```python
import torch

def _softmax(x, axis=-1):
    return torch.softmax(x, dim=axis)
def _gelu(x):
    return torch.nn.functional.gelu(x, approximate="tanh")
def _silu(x):
    return torch.nn.functional.silu(x)
def _sigmoid(x):
    return torch.sigmoid(x)
def _layernorm(x, axis=-1, eps=1e-5):
    m = x.mean(dim=axis, keepdim=True)
    v = x.var(dim=axis, keepdim=True, unbiased=False)
    return (x - m) / torch.sqrt(v + eps)
def _scatter_add(tgt, idx, src, axis=0):
    return tgt.clone().index_add_(axis, idx, src)
def _segment_sum(src, seg, n):
    out = torch.zeros((n,) + src.shape[1:], dtype=src.dtype)
    return out.index_add_(0, seg, src)
def _pad(x, pw):
    flat = tuple(v for pair in reversed(pw) for v in pair)
    return torch.nn.functional.pad(x, flat)

kernel_name = 'gated_mix__linear_attn_block__ssm_conv_h3__prompt'

def setup_inputs():

    _w = (lambda a: (lambda t: t.to(torch.bfloat16) if t.is_floating_point() else t)(torch.as_tensor(a)))
    def _A_setup():
        B, S, D = 1, 2048, 1024
        return {
            "x": _w((lambda *s: torch.randn(*s, dtype=torch.bfloat16) * 0.05)(B, S, D)),
            "wqkv": _w((lambda *s: torch.randn(*s, dtype=torch.bfloat16) * 1.6)(D, 3 * D)),
            "wo": _w((lambda *s: torch.randn(*s, dtype=torch.bfloat16) * 0.05)(D, D)),
        }
    _A_in = _A_setup()

    def _B_setup():
        B, S, D = 1, 2048, 1024
        ks = 4
        return {
            "q": _w((lambda *s: torch.randn(*s, dtype=torch.bfloat16) * 0.05)(B, S, D)),
            "k": _w((lambda *s: torch.randn(*s, dtype=torch.bfloat16) * 0.8)(B, S, D)),
            "v": _w((lambda *s: torch.randn(*s, dtype=torch.bfloat16) * 0.4)(B, S, D)),
            "shift_k": _w((lambda *s: torch.randn(*s, dtype=torch.bfloat16) * 0.8)(D, ks) * 0.5),
            "ssm_k": _w((lambda *s: torch.randn(*s, dtype=torch.bfloat16) * 1.6)(D, S) * (1.0 / S ** 0.5)),
            "ssm_D": _w((lambda *s: torch.randn(*s, dtype=torch.bfloat16) * 0.4)(D)),
        }
    _B_in = _B_setup()

    return {
        "A_x": _A_in["x"],
        "A_wqkv": _A_in["wqkv"],
        "A_wo": _A_in["wo"],
        "B_q": _B_in["q"],
        "B_k": _B_in["k"],
        "B_v": _B_in["v"],
        "B_shift_k": _B_in["shift_k"],
        "B_ssm_k": _B_in["ssm_k"],
        "B_ssm_D": _B_in["ssm_D"],
        "gate_w": _w((lambda *s: torch.randn(*s, dtype=torch.bfloat16) * 0.05)(1024) * 16.0),
    }

def reference(A_x, A_wqkv, A_wo, B_q, B_k, B_v, B_shift_k, B_ssm_k, B_ssm_D, gate_w):
    def _A_ref(x, wqkv, wo):
        B, S, D = x.shape
        H = 32; Dh = D // H
        qkv = (lambda x, *d: x.permute(*d))((x @ wqkv).reshape(B, S, 3, H, Dh), 2, 0, 3, 1, 4)
        q, k, v = qkv[0], qkv[1], qkv[2]
        phi = lambda t: torch.where(t > 0, t + 1, torch.exp(t)) + 1e-6
        pq, pk = phi(q), phi(k)
        kv = torch.einsum("bhsd,bhse->bhde", pk, v)
        z = torch.einsum("bhsd->bhd", pk)
        num = torch.einsum("bhqd,bhde->bhqe", pq, kv)
        den = torch.einsum("bhqd,bhd->bhq", pq, z)[..., None] + 1e-6
        o = num / den
        return (lambda x, *d: x.permute(*d))(o, 0, 2, 1, 3).reshape(B, S, D) @ wo

    def _B_ref(q, k, v, shift_k, ssm_k, ssm_D):
        B, S, D = q.shape
        ks = shift_k.shape[-1]
        k_pad = _pad(k, ((0, 0), (ks - 1, 0), (0, 0)))
        k_shift = torch.zeros_like(k)
        for t in range(ks):
            k_shift = k_shift + k_pad[:, t:t + S, :] * shift_k[:, ks - 1 - t][None, None, :]
        kv = k_shift * v
        L = 2 * S
        kv_pad = _pad(kv, ((0, 0), (0, S), (0, 0)))
        kf_pad = _pad(ssm_k, ((0, 0), (0, S)))
        kv_f = (lambda x, axes=(-2,-1): torch.fft.rfft2(x.float(), dim=axes))(kv_pad[:, None, :, :], axes=(1, 2))
        kf_f = (lambda x, axes=(-2,-1): torch.fft.rfft2(x.float(), dim=axes))(kf_pad[:, None, :], axes=(1, 2))
        kf_f = (lambda x, *d: x.permute(*d))(kf_f, 1, 2, 0)
        y_f = kv_f * kf_f[None, :, :, :]
        y = (lambda x, s, axes=(-2,-1): torch.fft.irfft2(x, s=s, dim=axes).to(torch.bfloat16))(y_f, (1, L), axes=(1, 2))[:, 0, :S, :]
        y = y + kv * ssm_D[None, None, :]
        return q * y

    x = A_x
    g = _sigmoid((x * gate_w).sum(-1, keepdims=True))
    a = _A_ref(x, A_wqkv, A_wo)
    b = _B_ref(x, B_k, B_v, B_shift_k, B_ssm_k, B_ssm_D)
    return g * a + (1 - g) * b
```

```python
class Asm:
    def __init__(self):
        self.lines = []
    def __call__(self, s=""):
        for ln in s.split("\n"):
            self.lines.append(ln)
    def label(self, name):
        self.lines.append(name + ":")
    def text(self):
        return "\n".join(self.lines) + "\n"

def kernel_begin(a, name):
    a(f".globl {name}")
    a(".p2align 8")
    a(f".type {name},@function")
    a(f"{name}:")

def kernel_desc(a, name, vgpr=256, sgpr=102, accum=None, wg_y=False):
    if accum is None:
        accum = min(256, (vgpr + 3) // 4 * 4)
    a(".p2align 6")
    a(f".amdhsa_kernel {name}")
    a(f"  .amdhsa_next_free_vgpr {vgpr}")
    a(f"  .amdhsa_next_free_sgpr {sgpr}")
    a(f"  .amdhsa_accum_offset {accum}")
    a("  .amdhsa_group_segment_fixed_size 0")
    a("  .amdhsa_kernarg_size 104")
    a("  .amdhsa_user_sgpr_count 2")
    a("  .amdhsa_user_sgpr_kernarg_segment_ptr 1")
    a("  .amdhsa_system_sgpr_workgroup_id_x 1")
    if wg_y:
        a("  .amdhsa_system_sgpr_workgroup_id_y 1")
    a("  .amdhsa_float_denorm_mode_32 3")
    a("  .amdhsa_float_denorm_mode_16_64 3")
    a(".end_amdhsa_kernel")

KA = dict(x=0, wqkv=8, wo=16, bq=24, bk=32, bv=40, shift=48, ssmk=56, ssmD=64, gw=72, out=80, dbg=88, ws=96)
NB = dict(x=2048*1024*2, wqkv=1024*3072*2, wo=1024*1024*2, bq=2048*1024*2, bk=2048*1024*2, bv=2048*1024*2,
          shift=1024*4*2, ssmk=1024*2048*2, ssmD=2048, gw=2048, out=2048*1024*2, dbg=256, ws=268435456)

def load_ptr(a, sreg, name):
    a(f"s_load_dwordx2 s[{sreg}:{sreg+1}], s[0:1], {KA[name]}")

def make_srd(a, d, base, nbytes, off=0):
    if off:
        a(f"s_add_u32 s{d}, s{base}, {off}")
        a(f"s_addc_u32 s{d+1}, s{base+1}, 0")
    else:
        a(f"s_mov_b32 s{d}, s{base}")
        a(f"s_mov_b32 s{d+1}, s{base+1}")
    a(f"s_mov_b32 s{d+2}, {nbytes}")
    a(f"s_mov_b32 s{d+3}, 0x00020000")
```

```python
import sys
from asmlib import *

WS_QKV = 0
WS_KV  = 16 << 20
WS_Z   = WS_KV + (1 << 20)
WS_O   = 20 << 20
WS_U   = 24 << 20
WS_G   = 28 << 20
WS_Y   = 32 << 20

def rnd_bf16(a, v, tmp=None):
    a(f"v_cvt_pk_bf16_f32 v{v}, v{v}, v{v}")
    a(f"v_lshlrev_b32 v{v}, 16, v{v}")

def phi(a, v, t0, t1):
    a(f"v_add_f32 v{t0}, 1.0, v{v}")
    a(f"v_mul_f32 v{t1}, 0x3fb8aa3b, v{v}")
    a(f"v_exp_f32 v{t1}, v{t1}")
    a(f"v_cmp_lt_f32 vcc, 0, v{v}")
    a("s_nop 1")
    a(f"v_cndmask_b32 v{v}, v{t1}, v{t0}, vcc")
    rnd_bf16(a, v)
    a(f"v_add_f32 v{v}, 0x358637bd, v{v}")
    rnd_bf16(a, v)

def gemm_naive(a, name, nwg, ncb, a_name, a_off, w_name, w_stride, epilogue):
    kernel_begin(a, name)
    a(f"s_cmp_ge_u32 s2, {nwg}")
    a(f"s_cbranch_scc1 {name}_done")
    load_ptr(a, 4, a_name); load_ptr(a, 6, w_name); load_ptr(a, 8, "ws"); load_ptr(a, 10, "x")
    load_ptr(a, 44, "out"); load_ptr(a, 46, "ssmD")
    magic = (2**32 + ncb - 1) // ncb
    a(f"s_mov_b32 s3, {magic}")
    a("s_mul_hi_u32 s12, s2, s3")
    a(f"s_mul_i32 s13, s12, {ncb}")
    a("s_sub_u32 s13, s2, s13")
    a("s_waitcnt lgkmcnt(0)")
    if a_off:
        a(f"s_add_u32 s4, s4, {a_off}"); a("s_addc_u32 s5, s5, 0")
    a("s_lshl_b32 s14, s12, 11")
    a("s_add_u32 s4, s4, s14"); a("s_addc_u32 s5, s5, 0")
    make_srd(a, 32, 6, NB[w_name])
    a("s_lshl_b32 s14, s13, 10")
    a("v_lshlrev_b32 v1, 2, v0")
    a("v_add_u32 v1, s14, v1")
    a("v_mov_b32 v2, v1")
    a("v_mov_b32 v4, 0"); a("v_mov_b32 v5, 0")
    a("s_mov_b32 s15, 0")
    a.label(f"{name}_loop")
    a("s_load_dwordx16 s[16:31], s[4:5], 0")
    for i in range(32):
        a(f"buffer_load_dword v{10+i}, v2, s[32:35], 0 offen")
        a(f"v_add_u32 v2, {w_stride}, v2")
    a("s_waitcnt vmcnt(0) lgkmcnt(0)")
    for i in range(32):
        if i % 2 == 0:
            a(f"s_lshl_b32 s40, s{16+i//2}, 16")
        else:
            a(f"s_and_b32 s40, s{16+i//2}, 0xffff0000")
        a(f"v_lshlrev_b32 v6, 16, v{10+i}")
        a(f"v_and_b32 v7, 0xffff0000, v{10+i}")
        a("v_fmac_f32 v4, s40, v6")
        a("v_fmac_f32 v5, s40, v7")
    a("s_add_u32 s4, s4, 64"); a("s_addc_u32 s5, s5, 0")
    a("s_add_u32 s15, s15, 1")
    a("s_cmp_lt_u32 s15, 32")
    a(f"s_cbranch_scc1 {name}_loop")
    epilogue(a, name)
    a.label(f"{name}_done")
    a("s_endpgm")

def ep_qkv(a, name):
    rnd_bf16(a, 4); rnd_bf16(a, 5)
    a("s_cmp_ge_u32 s13, 4")
    a(f"s_cbranch_scc1 {name}_nophi")
    phi(a, 4, 6, 7); phi(a, 5, 6, 7)
    a.label(f"{name}_nophi")
    a("v_lshrrev_b32 v4, 16, v4")
    a("v_and_b32 v5, 0xffff0000, v5")
    a("v_or_b32 v4, v4, v5")
    make_srd(a, 36, 8, 2048*3072*2, WS_QKV)
    a("s_mul_i32 s14, s12, 6144")
    a("v_add_u32 v1, s14, v1")
    a("buffer_store_dword v4, v1, s[36:39], 0 offen")
    a("s_waitcnt vmcnt(0)")

def ep_final(a, name):
    rnd_bf16(a, 4); rnd_bf16(a, 5)
    a("s_lshl_b32 s14, s12, 11")
    a("v_add_u32 v2, s14, v1")
    make_srd(a, 36, 10, NB["x"])
    a("buffer_load_dword v10, v2, s[36:39], 0 offen")
    make_srd(a, 48, 8, 2048*1024*2, WS_Y)
    a("buffer_load_dword v11, v2, s[48:51], 0 offen")
    make_srd(a, 52, 8, 2048*1024*2, WS_U)
    a("buffer_load_dword v12, v2, s[52:55], 0 offen")
    make_srd(a, 56, 46, NB["ssmD"])
    a("buffer_load_dword v13, v1, s[56:59], 0 offen")
    make_srd(a, 60, 8, 2048*4, WS_G)
    a("s_lshl_b32 s14, s12, 2")
    a("v_mov_b32 v3, s14")
    a("buffer_load_dword v14, v3, s[60:63], 0 offen")
    a("s_waitcnt vmcnt(0)")
    a("v_sub_f32 v15, 1.0, v14"); rnd_bf16(a, 15)
    for half, acc in ((0, 4), (1, 5)):
        for src, dst in ((10, 20), (11, 21), (12, 22), (13, 23)):
            if half == 0: a(f"v_lshlrev_b32 v{dst}, 16, v{src}")
            else: a(f"v_and_b32 v{dst}, 0xffff0000, v{src}")
        a("v_mul_f32 v22, v22, v23"); rnd_bf16(a, 22)
        a("v_add_f32 v21, v21, v22"); rnd_bf16(a, 21)
        a("v_mul_f32 v20, v20, v21"); rnd_bf16(a, 20)
        a("v_mul_f32 v20, v15, v20"); rnd_bf16(a, 20)
        a(f"v_mul_f32 v{acc}, v14, v{acc}"); rnd_bf16(a, acc)
        a(f"v_add_f32 v{acc}, v{acc}, v20")
    a("v_cvt_pk_bf16_f32 v4, v4, v5")
    make_srd(a, 36, 44, NB["out"])
    a("buffer_store_dword v4, v2, s[36:39], 0 offen")
    a("s_waitcnt vmcnt(0)")

def k_kv(a):
    name = "kv_kernel"
    kernel_begin(a, name)
    a("s_cmp_ge_u32 s2, 128"); a(f"s_cbranch_scc1 {name}_done")
    load_ptr(a, 8, "ws")
    a("s_lshr_b32 s12, s2, 2")
    a("s_and_b32 s13, s2, 3")
    a("v_lshrrev_b32 v1, 5, v0")
    a("s_lshl_b32 s14, s13, 3")
    a("v_add_u32 v1, s14, v1")
    a("v_and_b32 v2, 31, v0")
    a("s_lshl_b32 s14, s12, 5")
    a("v_add_u32 v3, s14, v1"); a("v_add_u32 v3, 1024, v3"); a("v_lshlrev_b32 v3, 1, v3")
    a("v_add_u32 v4, s14, v2"); a("v_add_u32 v4, 2048, v4"); a("v_lshlrev_b32 v4, 1, v4")
    a("s_waitcnt lgkmcnt(0)")
    make_srd(a, 32, 8, 2048*3072*2, WS_QKV)
    a("v_mov_b32 v5, 0"); a("v_mov_b32 v6, 0")
    a("s_mov_b32 s15, 0")
    a.label(f"{name}_loop")
    for i in range(16):
        a(f"buffer_load_ushort v{10+i}, v3, s[32:35], 0 offen")
        a(f"buffer_load_ushort v{30+i}, v4, s[32:35], 0 offen")
        a("v_add_u32 v3, 6144, v3"); a("v_add_u32 v4, 6144, v4")
    a("s_waitcnt vmcnt(0)")
    for i in range(16):
        a(f"v_lshlrev_b32 v{10+i}, 16, v{10+i}")
        a(f"v_lshlrev_b32 v{30+i}, 16, v{30+i}")
        a(f"v_fmac_f32 v5, v{10+i}, v{30+i}")
        a(f"v_add_f32 v6, v6, v{10+i}")
    a("s_add_u32 s15, s15, 1"); a("s_cmp_lt_u32 s15, 128"); a(f"s_cbranch_scc1 {name}_loop")
    rnd_bf16(a, 5); rnd_bf16(a, 6)
    make_srd(a, 36, 8, 32*32*32*4, WS_KV)
    make_srd(a, 40, 8, 32*32*4, WS_Z)
    a("s_lshl_b32 s14, s12, 5")
    a("v_add_u32 v7, s14, v1")
    a("v_lshlrev_b32 v8, 5, v7"); a("v_add_u32 v8, v8, v2"); a("v_lshlrev_b32 v8, 2, v8")
    a("buffer_store_dword v5, v8, s[36:39], 0 offen")
    a("v_lshlrev_b32 v7, 2, v7")
    a("buffer_store_dword v6, v7, s[40:43], 0 offen")
    a("s_waitcnt vmcnt(0)")
    a.label(f"{name}_done"); a("s_endpgm")

def k_o(a):
    name = "o_kernel"
    kernel_begin(a, name)
    a("s_cmp_ge_u32 s2, 8192"); a(f"s_cbranch_scc1 {name}_done")
    load_ptr(a, 8, "ws")
    a("s_lshr_b32 s12, s2, 2")
    a("s_and_b32 s13, s2, 3")
    a("s_lshl_b32 s14, s13, 8")
    a("v_add_u32 v1, s14, v0")
    a("v_lshrrev_b32 v2, 5, v1")
    a("v_and_b32 v3, 31, v1")
    a("s_waitcnt lgkmcnt(0)")
    make_srd(a, 32, 8, 2048*3072*2, WS_QKV)
    make_srd(a, 36, 8, 32*32*32*4, WS_KV)
    make_srd(a, 40, 8, 32*32*4, WS_Z)
    make_srd(a, 44, 8, 2048*1024*2, WS_O)
    a("s_mul_i32 s14, s12, 6144")
    a("v_lshlrev_b32 v4, 6, v2"); a("v_add_u32 v4, s14, v4")
    a("v_lshlrev_b32 v5, 12, v2"); a("v_lshlrev_b32 v6, 2, v3"); a("v_add_u32 v5, v5, v6")
    a("v_lshlrev_b32 v6, 7, v2")
    for d in range(32):
        a(f"buffer_load_ushort v{10+d}, v4, s[32:35], 0 offen offset:{2*d}")
        a(f"buffer_load_dword v{50+d}, v5, s[36:39], 0 offen offset:{128*d}")
        a(f"buffer_load_dword v{90+d}, v6, s[40:43], 0 offen offset:{4*d}")
    a("s_waitcnt vmcnt(0)")
    a("v_mov_b32 v7, 0"); a("v_mov_b32 v8, 0")
    for d in range(32):
        a(f"v_lshlrev_b32 v{10+d}, 16, v{10+d}")
        a(f"v_fmac_f32 v7, v{10+d}, v{50+d}")
        a(f"v_fmac_f32 v8, v{10+d}, v{90+d}")
    rnd_bf16(a, 7); rnd_bf16(a, 8)
    a("v_add_f32 v8, 0x358637bd, v8"); rnd_bf16(a, 8)
    a("v_rcp_f32 v8, v8"); a("s_nop 0")
    a("v_mul_f32 v7, v7, v8")
    a("v_cvt_pk_bf16_f32 v7, v7, v7")
    a("s_lshl_b32 s14, s12, 11")
    a("v_lshlrev_b32 v9, 1, v1"); a("v_add_u32 v9, s14, v9")
    a("buffer_store_short v7, v9, s[44:47], 0 offen")
    a("s_waitcnt vmcnt(0)")
    a.label(f"{name}_done"); a("s_endpgm")

def k_u(a):
    name = "u_kernel"
    kernel_begin(a, name)
    a("s_cmp_ge_u32 s2, 8192"); a(f"s_cbranch_scc1 {name}_done")
    load_ptr(a, 4, "bk"); load_ptr(a, 6, "bv"); load_ptr(a, 8, "ws"); load_ptr(a, 10, "shift")
    a("s_lshr_b32 s12, s2, 2"); a("s_and_b32 s13, s2, 3")
    a("s_lshl_b32 s14, s13, 8"); a("v_add_u32 v1, s14, v0")
    a("s_waitcnt lgkmcnt(0)")
    make_srd(a, 32, 4, NB["bk"]); make_srd(a, 36, 6, NB["bv"]); make_srd(a, 40, 10, NB["shift"])
    make_srd(a, 44, 8, 2048*1024*2, WS_U)
    a("s_lshl_b32 s14, s12, 11")
    a("v_lshlrev_b32 v2, 1, v1"); a("v_add_u32 v2, s14, v2")
    a("v_mov_b32 v3, v2")
    for j in range(4):
        a(f"buffer_load_ushort v{10+j}, v3, s[32:35], 0 offen")
        a("v_subrev_u32 v3, 2048, v3")
    a("buffer_load_ushort v14, v2, s[36:39], 0 offen")
    a("v_lshlrev_b32 v4, 3, v1")
    a("buffer_load_dwordx2 v[16:17], v4, s[40:43], 0 offen")
    a("s_waitcnt vmcnt(0)")
    a("v_lshlrev_b32 v20, 16, v16"); a("v_and_b32 v21, 0xffff0000, v16")
    a("v_lshlrev_b32 v22, 16, v17"); a("v_and_b32 v23, 0xffff0000, v17")
    a("v_mov_b32 v5, 0")
    for j in (3, 2, 1, 0):
        a(f"v_lshlrev_b32 v{10+j}, 16, v{10+j}")
        a(f"v_mul_f32 v6, v{10+j}, v{20+j}"); rnd_bf16(a, 6)
        a("v_add_f32 v5, v5, v6"); rnd_bf16(a, 5)
    a("v_lshlrev_b32 v14, 16, v14")
    a("v_mul_f32 v5, v5, v14")
    a("v_cvt_pk_bf16_f32 v5, v5, v5")
    a("buffer_store_short v5, v2, s[44:47], 0 offen")
    a("s_waitcnt vmcnt(0)")
    a.label(f"{name}_done"); a("s_endpgm")

def k_g(a):
    name = "g_kernel"
    kernel_begin(a, name)
    a("s_cmp_ge_u32 s2, 8"); a(f"s_cbranch_scc1 {name}_done")
    load_ptr(a, 4, "x"); load_ptr(a, 6, "gw"); load_ptr(a, 8, "ws")
    a("s_lshl_b32 s14, s2, 8"); a("v_add_u32 v1, s14, v0")
    a("s_waitcnt lgkmcnt(0)")
    make_srd(a, 32, 4, NB["x"]); make_srd(a, 36, 6, NB["gw"]); make_srd(a, 44, 8, 2048*4, WS_G)
    a("v_lshlrev_b32 v2, 11, v1"); a("v_mov_b32 v3, 0"); a("v_mov_b32 v5, 0")
    a("s_mov_b32 s15, 0")
    a.label(f"{name}_loop")
    for i in range(8):
        a(f"buffer_load_dword v{10+i}, v2, s[32:35], 0 offen offset:{4*i}")
        a(f"buffer_load_dword v{20+i}, v3, s[36:39], 0 offen offset:{4*i}")
    a("s_waitcnt vmcnt(0)")
    for i in range(8):
        a(f"v_lshlrev_b32 v6, 16, v{10+i}"); a(f"v_lshlrev_b32 v7, 16, v{20+i}")
        a("v_mul_f32 v6, v6, v7"); rnd_bf16(a, 6); a("v_add_f32 v5, v5, v6")
        a(f"v_and_b32 v6, 0xffff0000, v{10+i}"); a(f"v_and_b32 v7, 0xffff0000, v{20+i}")
        a("v_mul_f32 v6, v6, v7"); rnd_bf16(a, 6); a("v_add_f32 v5, v5, v6")
    a("v_add_u32 v2, 32, v2"); a("v_add_u32 v3, 32, v3")
    a("s_add_u32 s15, s15, 1"); a("s_cmp_lt_u32 s15, 64"); a(f"s_cbranch_scc1 {name}_loop")
    rnd_bf16(a, 5)
    a("v_mul_f32 v5, 0xbfb8aa3b, v5"); a("v_exp_f32 v5, v5"); a("s_nop 0")
    a("v_add_f32 v5, 1.0, v5"); a("v_rcp_f32 v5, v5"); a("s_nop 0")
    rnd_bf16(a, 5)
    a("v_lshlrev_b32 v1, 2, v1")
    a("buffer_store_dword v5, v1, s[44:47], 0 offen")
    a("s_waitcnt vmcnt(0)")
    a.label(f"{name}_done"); a("s_endpgm")

def k_conv(a):
    name = "conv_kernel"
    kernel_begin(a, name)
    a("s_cmp_ge_u32 s2, 8192"); a(f"s_cbranch_scc1 {name}_done")
    load_ptr(a, 4, "ssmk"); load_ptr(a, 8, "ws")
    a("s_lshr_b32 s12, s2, 2"); a("s_and_b32 s13, s2, 3")
    a("s_lshl_b32 s14, s13, 8"); a("v_add_u32 v1, s14, v0")
    a("s_waitcnt lgkmcnt(0)")
    make_srd(a, 32, 4, NB["ssmk"]); make_srd(a, 36, 8, 2048*1024*2, WS_U); make_srd(a, 44, 8, 2048*1024*2, WS_Y)
    a("s_lshl_b32 s14, s12, 11")
    a("v_lshlrev_b32 v2, 1, v1"); a("v_add_u32 v2, s14, v2")
    a("v_mov_b32 v9, v2")
    a("v_lshlrev_b32 v3, 12, v1")
    a("v_mov_b32 v5, 0")
    a("s_mov_b32 s15, 0")
    a.label(f"{name}_loop")
    for i in range(4):
        a(f"buffer_load_dword v{10+i}, v3, s[32:35], 0 offen offset:{4*i}")
    for i in range(8):
        a(f"buffer_load_ushort v{20+i}, v2, s[36:39], 0 offen")
        a("v_subrev_u32 v2, 2048, v2")
    a("s_waitcnt vmcnt(0)")
    for i in range(8):
        if i % 2 == 0: a(f"v_lshlrev_b32 v6, 16, v{10+i//2}")
        else: a(f"v_and_b32 v6, 0xffff0000, v{10+i//2}")
        a(f"v_lshlrev_b32 v7, 16, v{20+i}")
        a("v_fmac_f32 v5, v6, v7")
    a("v_add_u32 v3, 16, v3")
    a("s_add_u32 s15, s15, 8"); a("s_cmp_le_u32 s15, s12"); a(f"s_cbranch_scc1 {name}_loop")
    a("v_cvt_pk_bf16_f32 v5, v5, v5")
    a("buffer_store_short v5, v9, s[44:47], 0 offen")
    a("s_waitcnt vmcnt(0)")
    a.label(f"{name}_done"); a("s_endpgm")

def k_empty(a, name):
    kernel_begin(a, name); a("s_endpgm")

def gen(n_empty=0):
    a = Asm()
    L = [("qkv_kernel", 12288), ("kv_kernel", 128), ("o_kernel", 8192), ("u_kernel", 8192), ("g_kernel", 8),
         ("conv_kernel", 8192), ("final_kernel", 4096)]
    for k, g in L:
        a(f"; @launch kernel={k} grid=({g},1,1) block=(256,1,1) lds=0")
    for i in range(n_empty):
        a(f"; @launch kernel=empty_kernel grid=(256,1,1) block=(256,1,1) lds=0")
    a('.amdgcn_target "amdgcn-amd-amdhsa--gfx950"')
    a(".text")
    gemm_naive(a, "qkv_kernel", 12288, 6, "x", 0, "wqkv", 6144, ep_qkv)
    k_kv(a); k_o(a); k_u(a); k_g(a); k_conv(a)
    gemm_naive(a, "final_kernel", 4096, 2, "ws", WS_O, "wo", 2048, ep_final)
    if n_empty: k_empty(a, "empty_kernel")
    a('.section .rodata,"a"')
    for k, g in L:
        kernel_desc(a, k, vgpr=128)
    if n_empty: kernel_desc(a, "empty_kernel", vgpr=32)
    return a.text()

if __name__ == "__main__":
    n = int(sys.argv[1]) if len(sys.argv) > 1 else 0
    open(sys.argv[2] if len(sys.argv) > 2 else "naive.s", "w").write(gen(n))
```

```python
import gen_naive as g, struct, sys
def f2u(x): return struct.unpack("<I", struct.pack("<f", x))[0]
for name, delta in (("a", 0.004), ("b", 0.007), ("c", 0.012), ("d", 0.018), ("e", 0.03), ("f", 0.06)):
    t = g.gen(0)
    key = "v_cvt_pk_bf16_f32 v4, v4, v5\ns_mov_b32 s36, s44"
    assert key in t
    rep = ("v_mov_b32 v30, 0\nv_mov_b32 v31, 0x%08x\nv_cmp_eq_u32 vcc, 0, v2\ns_nop 1\nv_cndmask_b32 v30, v30, v31, vcc\nv_add_f32 v4, v4, v30\n" % f2u(delta)) + key
    t = t.replace(key, rep)
    open(f"v_probe_{name}.s", "w").write(t)
```

```python
import gen_naive as g
from asmlib import *
def probe(a):
    name = "probe_kernel"
    kernel_begin(a, name)
    a("s_cmp_ge_u32 s2, 256"); a(f"s_cbranch_scc1 {name}_done")
    a("s_memtime s[24:25]")
    srcs = [("x", 16), ("bq", 16), ("bk", 16), ("bv", 16), ("ssmk", 16), ("wqkv", 24), ("wo", 8)]
    for i, (n, kb) in enumerate(srcs): load_ptr(a, 4 + 2*i, n)
    load_ptr(a, 20, "dbg")
    a("v_and_b32 v1, 63, v0"); a("v_lshrrev_b32 v2, 6, v0"); a("s_nop 0"); a("v_readfirstlane_b32 s22, v2")
    a("v_lshlrev_b32 v5, 4, v1"); a("s_lshl_b32 s23, s22, 10")
    a("s_waitcnt lgkmcnt(0)")
    cnt = 0
    for i, (n, kb) in enumerate(srcs):
        make_srd(a, 32, 4 + 2*i, NB[n])
        a(f"s_mul_i32 s40, s2, {kb*1024}"); a("s_add_u32 s40, s40, s23")
        for j in range(kb // 4):
            a(f"s_add_u32 m0, s23, {(cnt % 32) * 4096}")
            a(f"s_add_u32 s42, s40, {j*4096}")
            a("buffer_load_dwordx4 v5, s[32:35], s42 offen lds")
            cnt += 1
    a("s_waitcnt vmcnt(0)"); a("s_barrier")
    a("s_memtime s[28:29]"); a("s_waitcnt lgkmcnt(0)")
    a("s_sub_u32 s28, s28, s24")
    make_srd(a, 44, 20, 256)
    a("s_lshr_b32 s14, s2, 4"); a("s_and_b32 s15, s2, 15"); a("s_cmp_lg_u32 s15, 0"); a(f"s_cbranch_scc1 {name}_done")
    a("s_lshl_b32 s14, s14, 2"); a("v_mov_b32 v23, s14"); a("v_mov_b32 v20, s28")
    a("buffer_store_dword v20, v23, s[44:47], 0 offen")
    a("s_waitcnt vmcnt(0)")
    a.label(f"{name}_done"); a("s_endpgm")
t = g.gen(0)
a = Asm(); probe(a)
d = Asm(); kernel_desc(d, "probe_kernel", vgpr=64)
t = t.replace("; @launch kernel=qkv_kernel", "; @launch kernel=probe_kernel grid=(256,1,1) block=(256,1,1) lds=131072\n; @launch kernel=qkv_kernel", 1)
t = t.replace(".text\n", ".text\n" + a.text(), 1)
t = t + d.text()
open("v_probe2.s", "w").write(t)
open("v_probe2.s", "w").write(t)
```

```python
import gen_naive as g
from asmlib import *
def probe(a):
    name = "probe_kernel"
    kernel_begin(a, name)
    a("s_cmp_ge_u32 s2, 256"); a(f"s_cbranch_scc1 {name}_done")
    a("s_memtime s[24:25]")
    srcs = [("x", 16), ("bq", 16), ("bk", 16), ("bv", 16), ("ssmk", 16), ("wqkv", 24), ("wo", 8)]
    for i, (n, kb) in enumerate(srcs): load_ptr(a, 4 + 2*i, n)
    load_ptr(a, 20, "ws")
    a("v_and_b32 v1, 63, v0"); a("v_lshrrev_b32 v2, 6, v0"); a("s_nop 0"); a("v_readfirstlane_b32 s22, v2")
    a("v_lshlrev_b32 v5, 4, v1"); a("s_lshl_b32 s23, s22, 10")
    a("s_waitcnt lgkmcnt(0)")
    cnt = 0
    for i, (n, kb) in enumerate(srcs):
        make_srd(a, 32, 4 + 2*i, NB[n])
        a(f"s_mul_i32 s40, s2, {kb*1024}"); a("s_add_u32 s40, s40, s23")
        for j in range(kb // 4):
            a(f"s_add_u32 m0, s23, {(cnt % 32) * 4096}")
            a(f"s_add_u32 s42, s40, {j*4096}")
            a("buffer_load_dwordx4 v5, s[32:35], s42 offen lds")
            cnt += 1
    a("s_waitcnt vmcnt(0)"); a("s_barrier")
    a("s_memtime s[28:29]"); a("s_waitcnt lgkmcnt(0)")
    a("s_sub_u32 s28, s28, s24")
    make_srd(a, 44, 20, 256, 48 << 20)
    a("s_lshr_b32 s14, s2, 4"); a("s_and_b32 s15, s2, 15"); a("s_cmp_lg_u32 s15, 0"); a(f"s_cbranch_scc1 {name}_done")
    a("s_lshl_b32 s14, s14, 2"); a("v_mov_b32 v23, s14"); a("v_mov_b32 v20, s28")
    a("buffer_store_dword v20, v23, s[44:47], 0 offen")
    a("s_waitcnt vmcnt(0)")
    a.label(f"{name}_done"); a("s_endpgm")
def copyk(a):
    name = "copy_kernel"
    kernel_begin(a, name)
    a("s_cmp_ge_u32 s2, 1"); a(f"s_cbranch_scc1 {name}_done")
    load_ptr(a, 4, "ws"); load_ptr(a, 6, "dbg")
    a("s_waitcnt lgkmcnt(0)")
    make_srd(a, 32, 4, 64, 48 << 20); make_srd(a, 36, 6, 64)
    a("v_lshlrev_b32 v1, 2, v0")
    a("buffer_load_dword v2, v1, s[32:35], 0 offen"); a("s_waitcnt vmcnt(0)")
    a("buffer_store_dword v2, v1, s[36:39], 0 offen"); a("s_waitcnt vmcnt(0)")
    a.label(f"{name}_done"); a("s_endpgm")
t = g.gen(0)
a = Asm(); probe(a); copyk(a)
d = Asm(); kernel_desc(d, "probe_kernel", vgpr=64); kernel_desc(d, "copy_kernel", vgpr=32)
t = t.replace("lds=0\n.amdgcn_target", "lds=0\n; @launch kernel=copy_kernel grid=(1,1,1) block=(64,1,1) lds=0\n.amdgcn_target")
t = t.replace("; @launch kernel=qkv_kernel", "; @launch kernel=probe_kernel grid=(256,1,1) block=(256,1,1) lds=131072\n; @launch kernel=qkv_kernel", 1)
t = t.replace(".text\n", ".text\n" + a.text(), 1)
t = t + d.text()
open("v_probe2.s", "w").write(t)
open("v_probe2.s", "w").write(t)
```

```python
import sys
from asmlib import *

WS_PQ  = 0
WS_UT  = 4 << 20
WS_KVP = 8 << 20
WS_ZP  = 10 << 20
WS_G   = 11 << 20
WS_O   = 12 << 20
WS_YT  = 16 << 20
WS_USED = 20 << 20

LOG2E = 0x3fb8aa3b
EPS   = 0x358637bd

def vr(a, n=1):
    return f"v{a}" if n == 1 else f"v[{a}:{a+n-1}]"
def sr(a, n=1):
    return f"s{a}" if n == 1 else f"s[{a}:{a+n-1}]"

WS_STAMP = 24 << 20
def stamp(a, opt, i):
    if opt.get("stamps"):
        a(f"s_memtime s[{80+2*i}:{81+2*i}]")
        if i == 0: a("s_memrealtime s[94:95]")
def stamp_dump(a, opt, n, wave_sgpr, srd_base_sgpr=16, nwaves=8):
    if not opt.get("stamps"): return
    a("s_waitcnt lgkmcnt(0)")
    a(f"s_add_u32 s76, s{srd_base_sgpr}, {WS_STAMP}"); a(f"s_addc_u32 s77, s{srd_base_sgpr+1}, 0")
    a("s_mov_b32 s78, 0x1000000"); a("s_mov_b32 s79, 0x00020000")
    a(f"s_mul_i32 s75, s2, {nwaves}"); a(f"s_add_u32 s75, s75, s{wave_sgpr}"); a("s_lshl_b32 s75, s75, 6")
    a("v_mov_b32 v1, s75")
    for i in range(n):
        if i == 0:
            a("v_mov_b32 v2, s80")
        else:
            a(f"s_sub_u32 s74, s{80+2*i}, s80"); a("v_mov_b32 v2, s74")
        a(f"buffer_store_dword v2, v1, s[76:79], 0 offen offset:{4*i}")
    a("s_memrealtime s[80:81]"); a("s_waitcnt lgkmcnt(0)"); a("v_mov_b32 v2, s80")
    a(f"buffer_store_dword v2, v1, s[76:79], 0 offen offset:60")
    a("v_mov_b32 v2, s94")
    a(f"buffer_store_dword v2, v1, s[76:79], 0 offen offset:56")

def phi_pair(a, t, tmp):
    a(f"v_pk_mul_f32 {vr(tmp,2)}, {vr(t,2)}, s[56:57]")
    a(f"v_exp_f32_e64 v{tmp}, v{tmp} clamp")
    a(f"v_exp_f32_e64 v{tmp+1}, v{tmp+1} clamp")
    a(f"v_max_f32 v{t}, 0, v{t}")
    a(f"v_max_f32 v{t+1}, 0, v{t+1}")
    a(f"v_pk_add_f32 {vr(t,2)}, {vr(t,2)}, {vr(tmp,2)}")
    a(f"v_pk_add_f32 {vr(t,2)}, {vr(t,2)}, s[58:59]")

K1_NS = 4
K1_STAGE = 40960

def k1(a, opt):
    name = "k1_kernel"
    kernel_begin(a, name)
    a("s_cmp_ge_u32 s2, 256")
    a(f"s_cbranch_scc1 {name}_done")
    stamp(a, opt, 0)
    a("s_load_dwordx4 s[4:7], s[0:1], 0")
    a("s_load_dwordx2 s[16:17], s[0:1], 96")
    a("v_lshrrev_b32 v1, 6, v0")
    a("v_and_b32 v0, 63, v0")
    a("v_readfirstlane_b32 s50, v1")
    a("s_and_b32 s51, s2, 7")
    a("s_lshr_b32 s52, s2, 3")
    a("s_lshl_b32 s53, s51, 3"); a("s_and_b32 s53, s53, 8"); a("s_and_b32 s54, s52, 7"); a("s_or_b32 s48, s53, s54")
    a("s_lshl_b32 s53, s51, 1"); a("s_and_b32 s53, s53, 12"); a("s_lshr_b32 s54, s52, 3"); a("s_or_b32 s49, s53, s54")
    a("s_cmp_ge_u32 s50, 4")
    a(f"s_cbranch_scc1 {name}_loader")

    def acc(ai, c, u): return 64 + ((c * 2 + u) * 4 + ai) * 4
    def xf(buf, ai): return 160 + buf * 40 + ai * 4
    def wf(buf, c, u): return 160 + buf * 40 + 16 + (c * 2 + u) * 4
    XA = 8
    WA = 12
    if not opt.get("noprio"): a("s_setprio 2")
    a("s_and_b32 s53, s50, 1")
    a("s_lshr_b32 s54, s50, 1")
    a("v_and_b32 v2, 15, v0")
    a("v_lshrrev_b32 v3, 4, v0")
    a("v_lshrrev_b32 v4, 1, v2"); a("v_xor_b32 v4, v4, v3")
    a("s_lshl_b32 s55, s53, 13")
    a("v_lshlrev_b32 v5, 7, v2"); a("v_add_u32 v5, s55, v5")
    a(f"v_lshl_add_u32 v{XA}, v4, 4, v5")
    a("v_xor_b32 v6, 4, v4"); a(f"v_lshl_add_u32 v{XA+1}, v6, 4, v5")
    for kk in range(2): a(f"v_add_u32 v{XA+2+kk}, {2*K1_STAGE}, v{XA+kk}")
    a("v_bfe_u32 v6, v0, 2, 2")
    a("v_lshl_add_u32 v7, v3, 3, v6"); a("v_lshlrev_b32 v7, 7, v7")
    a("v_and_b32 v18, 3, v0"); a("v_lshl_add_u32 v7, v18, 3, v7")
    a("v_add_u32 v7, 16384, v7")
    a("v_bfe_u32 v18, v0, 3, 1"); a("v_bfe_u32 v19, v0, 4, 1"); a("v_lshl_or_b32 v18, v19, 1, v18")
    a("s_lshl_b32 s55, s54, 1")
    a("v_xor_b32 v18, s55, v18")
    a(f"v_lshl_add_u32 v{WA}, v18, 5, v7")
    a("v_xor_b32 v18, 1, v18"); a(f"v_lshl_add_u32 v{WA+1}, v18, 5, v7")
    for u in range(2): a(f"v_add_u32 v{WA+2+u}, {2*K1_STAGE}, v{WA+u}")
    for r in range(64, 160): a(f"v_mov_b32 v{r}, 0")
    a(f"s_mov_b32 s56, {LOG2E:#x}"); a(f"s_mov_b32 s57, {LOG2E:#x}")
    a(f"s_mov_b32 s58, {EPS:#x}"); a(f"s_mov_b32 s59, {EPS:#x}")
    a("s_waitcnt lgkmcnt(0)")
    make_srd(a, 36, 16, WS_USED)

    def reads(slot, kk, buf):
        hi = 2 if slot >= 2 else 0
        so = (slot & 1) * K1_STAGE
        X = [f"ds_read_b128 {vr(xf(buf,ai),4)}, v{XA+hi+kk} offset:{so + ai*2048}" for ai in range(4)]
        W = {}
        for c in range(3):
            for u in range(2):
                W[c, u] = [f"ds_read_b64_tr_b16 {vr(wf(buf,c,u)+2*sec,2)}, v{WA+hi+u} offset:{so + c*8192 + kk*4096 + sec*512}" for sec in range(2)]
        return [X[0]] + W[0, 0] + [X[1], X[2], X[3]] + W[0, 1] + W[1, 0] + W[1, 1] + W[2, 0] + W[2, 1]
    def mfmas(buf):
        L = []
        for c in range(3):
            for u in range(2):
                for ai in range(4):
                    d = vr(acc(ai, c, u), 4)
                    if c == 0: L.append(f"v_mfma_f32_16x16x32_bf16 {d}, {vr(wf(buf,c,u),4)}, {vr(xf(buf,ai),4)}, {d}")
                    else:      L.append(f"v_mfma_f32_16x16x32_bf16 {d}, {vr(xf(buf,ai),4)}, {vr(wf(buf,c,u),4)}, {d}")
        return L
    def step(buf, nxt, barrier=False):
        M = mfmas(buf)
        if opt.get("nomfma"): M = ["s_nop 0"]*24
        if opt.get("noreads"): nxt = []
        q = list(nxt)
        first = 4 if barrier else 0
        for i in range(24):
            a(M[i])
            if barrier and i == first - 1: a("s_barrier")
            if i >= first - (1 if barrier else 0) and q: a(q.pop(0))
        for s_ in q: a(s_)

    stamp(a, opt, 1)
    a("s_barrier")
    stamp(a, opt, 2)
    for s in reads(0, 0, 0): a(s)
    a("s_mov_b32 s60, 0")
    a.label(f"{name}_cloop")
    for slot in range(4):
        for kk in range(2):
            buf = kk
            a("s_waitcnt lgkmcnt(0)")
            if kk == 0:
                step(buf, reads(slot, 1, 1))
            else:
                if slot == 3:
                    a("s_cmp_eq_u32 s60, 3")
                    a(f"s_cbranch_scc1 {name}_clast")
                step(buf, reads((slot + 1) & 3, 0, 0), barrier=True)
    a("s_add_u32 s60, s60, 1")
    a(f"s_branch {name}_cloop")
    a.label(f"{name}_clast")
    step(1, [])

    stamp(a, opt, 3)
    TMP = 20
    QF = 24
    a("s_lshl_b32 s55, s48, 7"); a("s_lshl_b32 s61, s53, 6"); a("s_add_u32 s55, s55, s61")
    a("v_add_u32 v5, s55, v2"); a("v_lshlrev_b32 v5, 11, v5")
    a("s_lshl_b32 s55, s49, 7"); a("s_lshl_b32 s61, s54, 6"); a("s_add_u32 s55, s55, s61")
    a("v_and_b32 v6, 1, v3"); a("v_lshlrev_b32 v6, 5, v6"); a("v_lshrrev_b32 v7, 1, v3"); a("v_lshl_add_u32 v6, v7, 4, v6")
    a("v_add3_u32 v5, v5, v6, s55")
    for ai in range(4): a(f"s_mov_b32 s{61+ai}, {WS_PQ + 16*ai*2048}")
    for ai in range(4):
        for u in range(2):
            t = acc(ai, 0, u); o = QF + ai*4 + u*2
            a(f"v_cvt_pk_bf16_f32 v{o}, v{t}, v{t+1}")
            a(f"v_cvt_pk_bf16_f32 v{o+1}, v{t+2}, v{t+3}")
    a("s_nop 1")
    for ai in range(4):
        o = QF + ai*4
        a(f"v_permlane16_swap_b32 v{o}, v{o+2}")
        a(f"v_permlane16_swap_b32 v{o+1}, v{o+3}")
    for ai in range(4):
        a(f"buffer_store_dwordx4 {vr(QF+ai*4,4)}, v5, s[36:39], s{61+ai} offen")
    KF = 160; VF = 176
    def kf(u, ks): return KF + (u*2 + ks)*4
    def vf(u, ks): return VF + (u*2 + ks)*4
    for u in range(2):
        for ai in range(4):
            t = acc(ai, 1, u); o = kf(u, ai >> 1) + (ai & 1)*2
            phi_pair(a, t, TMP); phi_pair(a, t + 2, TMP + 2)
            a(f"v_cvt_pk_bf16_f32 v{o}, v{t}, v{t+1}")
            a(f"v_cvt_pk_bf16_f32 v{o+1}, v{t+2}, v{t+3}")
    for u in range(2):
        for ai in range(4):
            t = acc(ai, 2, u); o = vf(u, ai >> 1) + (ai & 1)*2
            a(f"v_cvt_pk_bf16_f32 v{o}, v{t}, v{t+1}")
            a(f"v_cvt_pk_bf16_f32 v{o+1}, v{t+2}, v{t+3}")
    ONES = 192
    for r in range(4): a(f"v_mov_b32 v{ONES+r}, 0x3f803f80")
    KVA = 64; ZA = 80
    a("s_nop 1")
    for ks in range(2):
        for ud in range(2):
            for ue in range(2):
                d = vr(KVA + (ud*2+ue)*4, 4)
                a(f"v_mfma_f32_16x16x32_bf16 {d}, {vr(kf(ud,ks),4)}, {vr(vf(ue,ks),4)}, {'0' if ks == 0 else d}")
            d = vr(ZA + ud*4, 4)
            a(f"v_mfma_f32_16x16x32_bf16 {d}, {vr(kf(ud,ks),4)}, {vr(ONES,4)}, {'0' if ks == 0 else d}")
    stamp(a, opt, 4)
    a("s_lshl_b32 s55, s54, 13")
    a("v_lshlrev_b32 v6, 4, v0"); a("v_add_u32 v6, s55, v6")
    a("s_nop 7")
    a("s_cmp_eq_u32 s53, 0")
    a(f"s_cbranch_scc1 {name}_cred0")
    for q in range(6):
        a(f"ds_write_b128 v6, {vr(KVA+4*q,4)} offset:{q*1024}")
    a("s_waitcnt lgkmcnt(0)")
    a("s_barrier")
    a(f"s_branch {name}_cend")
    a.label(f"{name}_cred0")
    a("s_barrier")
    R = 24
    for q in range(6):
        a(f"ds_read_b128 {vr(R+4*q,4)}, v6 offset:{q*1024}")
    a("s_lshl_b32 s55, s49, 1"); a("s_add_u32 s55, s55, s54"); a("s_lshl_b32 s55, s55, 4"); a("s_add_u32 s55, s55, s48")
    a("s_lshl_b32 s61, s55, 12"); a(f"s_add_u32 s61, s61, {WS_KVP}")
    a("s_lshl_b32 s62, s55, 7"); a(f"s_add_u32 s62, s62, {WS_ZP}")
    a("v_lshlrev_b32 v6, 4, v0")
    a("v_lshlrev_b32 v7, 4, v3")
    a("s_waitcnt lgkmcnt(0)")
    for r in range(24):
        a(f"v_add_f32 v{KVA+r}, v{KVA+r}, v{R+r}")
    for q in range(4):
        a(f"buffer_store_dwordx4 {vr(KVA+4*q,4)}, v6, s[36:39], s61 offen offset:{q*1024}")
    a("v_cmp_eq_u32 vcc, 0, v2")
    a("s_and_saveexec_b64 s[64:65], vcc")
    for ud in range(2):
        a(f"buffer_store_dwordx4 {vr(ZA+4*ud,4)}, v7, s[36:39], s62 offen offset:{ud*64}")
    a("s_mov_b64 exec, s[64:65]")
    a.label(f"{name}_cend")
    stamp(a, opt, 5)
    a("s_waitcnt vmcnt(0)")
    stamp(a, opt, 6)
    stamp_dump(a, opt, 7, 50)
    a("s_waitcnt vmcnt(0)")
    a("s_endpgm")

    a.label(f"{name}_loader")
    a("s_sub_u32 s53, s50, 4")
    VA = 8
    VW = 12
    a("v_lshrrev_b32 v2, 3, v0")
    a("v_and_b32 v3, 7, v0")
    a("v_lshrrev_b32 v4, 4, v0")
    a("s_lshl_b32 s55, s48, 7"); a("s_lshl_b32 s61, s53, 5"); a("s_add_u32 s55, s55, s61")
    a("v_add_u32 v5, s55, v2"); a("v_lshlrev_b32 v5, 11, v5")
    a("v_xor_b32 v6, v4, v3"); a(f"v_lshl_add_u32 v{VA}, v6, 4, v5")
    a("v_xor_b32 v6, 4, v6"); a(f"v_lshl_add_u32 v{VA+1}, v6, 4, v5"); a(f"v_add_u32 v{VA+1}, 16384, v{VA+1}")
    for i in range(2, 4): a(f"v_add_u32 v{VA+i}, 32768, v{VA+(i&1)}")
    a("v_and_b32 v6, 1, v4"); a("v_lshlrev_b32 v6, 1, v6"); a("v_xor_b32 v6, v6, v3")
    a("v_mul_u32_u24 v5, 6144, v2")
    a(f"s_mul_i32 s55, s53, {2*8*6144}"); a("s_lshl_b32 s61, s49, 7"); a("s_add_u32 s55, s55, s61")
    a("v_add_u32 v5, s55, v5")
    a(f"v_lshl_add_u32 v{VW}, v6, 4, v5")
    a("v_xor_b32 v6, 4, v6"); a(f"v_lshl_add_u32 v{VW+1}, v6, 4, v5"); a(f"v_add_u32 v{VW+1}, {8*6144}, v{VW+1}")
    WL = [(seg, r2) for seg in range(3) for r2 in range(2)]
    for i, (seg, r2) in enumerate(WL):
        if i >= 2: a(f"v_add_u32 v{VW+i}, {seg*2048}, v{VW + r2}")
    a("s_lshl_b32 s64, s53, 12")
    a("s_lshl_b32 s65, s53, 11"); a("s_add_u32 s65, s65, 16384")
    a("s_mov_b32 s66, 0"); a("s_mov_b32 s67, 0"); a("s_mov_b32 s68, 0")
    a("s_waitcnt lgkmcnt(0)")
    make_srd(a, 20, 4, NB["x"]); make_srd(a, 24, 6, NB["wqkv"])
    def issue(inloop=False):
        if inloop and opt.get("nodma"): return
        a("s_add_u32 s69, s64, s68")
        a("s_add_u32 s55, s65, s68")
        for i in range(4):
            a(f"s_add_u32 m0, s69, {i*1024}"); a("s_nop 0")
            a(f"buffer_load_dwordx4 v{VA+i}, s[20:23], s66 offen lds")
        for i, (seg, r2) in enumerate(WL):
            a(f"s_add_u32 m0, s55, {seg*8192 + r2*1024}"); a("s_nop 0")
            a(f"buffer_load_dwordx4 v{VW+i}, s[24:27], s67 offen lds")
        a("s_add_u32 s66, s66, 128"); a(f"s_add_u32 s67, s67, {64*6144}")
        a(f"s_add_u32 s68, s68, {K1_STAGE}"); a(f"s_cmp_eq_u32 s68, {4*K1_STAGE}"); a("s_cselect_b32 s68, 0, s68")
    stamp(a, opt, 1)
    issue(); issue()
    a("s_load_dwordx4 s[8:11], s[0:1], 32")
    a("s_load_dwordx2 s[12:13], s[0:1], 48")
    a("s_load_dwordx2 s[14:15], s[0:1], 72")
    a("s_waitcnt vmcnt(10)"); a("s_barrier")
    stamp(a, opt, 2)
    issue(); issue()
    a("s_waitcnt lgkmcnt(0)")
    make_srd(a, 28, 8, NB["bk"]); make_srd(a, 32, 10, NB["bv"])
    make_srd(a, 36, 16, WS_USED); make_srd(a, 40, 12, NB["shift"]); make_srd(a, 44, 14, NB["gw"])
    a("s_mov_b32 s60, 1")
    a.label(f"{name}_lloop")
    a("s_waitcnt vmcnt(20)")
    a("s_barrier")
    issue(True)
    a("s_add_u32 s60, s60, 1"); a("s_cmp_lt_u32 s60, 13"); a(f"s_cbranch_scc1 {name}_lloop")
    stamp(a, opt, 3)
    if not opt.get("nopre"):
        pl = Asm(); prepass_loads(pl)
        cut = [i for i, ln in enumerate(pl.lines) if ln.startswith("buffer_load")][10] + 1
        partA, partB = pl.lines[:cut], pl.lines[cut:]
        parts = prepass_parts(opt)
        a("s_waitcnt vmcnt(20)"); a("s_barrier")
        for ln in partA: a(ln)
        a("s_waitcnt vmcnt(21)"); a("s_barrier")
        for ln in partB: a(ln)
        a("s_waitcnt vmcnt(23)"); a("s_barrier")
        a("s_waitcnt vmcnt(8)")
    else:
        parts = [""]
        a("s_waitcnt vmcnt(20)"); a("s_barrier")
        a("s_waitcnt vmcnt(10)"); a("s_barrier")
        a("s_waitcnt vmcnt(0)"); a("s_barrier")
    stamp(a, opt, 4)
    a(parts[0])
    stamp(a, opt, 5)
    a("s_waitcnt vmcnt(0)")
    stamp(a, opt, 6)
    stamp_dump(a, opt, 7, 50)
    a("s_waitcnt vmcnt(0)")
    a.label(f"{name}_done")
    a("s_endpgm")

def prepass_loads(a):
    n = 0
    a("s_and_b32 s70, s2, 15"); a("s_lshr_b32 s71, s2, 4")
    a("v_lshrrev_b32 v20, 3, v0"); a("v_and_b32 v21, 7, v0")
    a("s_lshl_b32 s72, s70, 7"); a("s_lshl_b32 s73, s53, 5"); a("s_add_u32 s72, s72, s73")
    a("v_lshl_add_u32 v22, v20, 2, s72")
    a("s_lshl_b32 s73, s71, 6"); a("v_lshl_add_u32 v23, v21, 3, s73")
    a("v_lshlrev_b32 v24, 11, v22"); a("v_lshl_add_u32 v24, v23, 1, v24")
    a("v_subrev_u32 v25, 6144, v24")
    for r in range(7):
        if r: a("v_add_u32 v25, 2048, v25")
        a(f"buffer_load_dwordx4 {vr(32+4*r,4)}, v25, s[28:31], 0 offen"); n += 1
    a("v_add_u32 v26, 4096, v24")
    for r in range(4):
        a(f"buffer_load_dwordx4 {vr(60+4*r,4)}, v{24 if r < 2 else 26}, s[32:35], 0 offen offset:{2048*(r & 1)}"); n += 1
    a("v_lshlrev_b32 v27, 3, v23")
    for q in range(4):
        a(f"buffer_load_dwordx4 {vr(76+4*q,4)}, v27, s[40:43], 0 offen offset:{16*q}"); n += 1
    a("s_lshl_b32 s73, s2, 3"); a("s_lshl_b32 s74, s53, 1"); a("s_add_u32 s73, s73, s74")
    a("v_lshrrev_b32 v28, 5, v0"); a("v_add_u32 v28, s73, v28")
    a("v_and_b32 v29, 31, v0"); a("v_lshlrev_b32 v29, 4, v29")
    a("v_lshl_add_u32 v30, v28, 11, v29")
    for i in range(4):
        a(f"buffer_load_dwordx4 {vr(92+4*i,4)}, v30, s[20:23], 0 offen offset:{512*i}"); n += 1
    for i in range(4):
        a(f"buffer_load_dwordx4 {vr(108+4*i,4)}, v29, s[44:47], 0 offen offset:{512*i}"); n += 1
    a("v_lshlrev_b32 v31, 12, v23"); a("v_lshl_add_u32 v31, v22, 1, v31")
    a(f"s_mov_b32 s72, {WS_UT}")
    a("s_mov_b32 s74, 0x05040100"); a("s_mov_b32 s75, 0x07060302")
    return n

def prepass_parts(opt):
    a = Asm()
    P = 128; KS = 140; VU = 148
    for c in range(8):
        cp, h = c >> 1, c & 1
        sel = "s75" if h else "s74"
        pb = P + 6*(c & 1)
        kb = KS + 4*(c & 1)
        for t in range(6):
            a(f"v_perm_b32 v{pb+t}, v{32+4*t+cp}, v{32+4*(t+1)+cp}, {sel}")
        for r in range(4):
            a(f"v_dot2_f32_bf16 v{kb+r}, v{pb+r+2}, v{76+2*c}, 0")
        for r in range(4):
            a(f"v_dot2_f32_bf16 v{kb+r}, v{pb+r}, v{76+2*c+1}, v{kb+r}")
        for r in range(4):
            if h: a(f"v_and_b32 v{VU+r}, 0xffff0000, v{60+4*r+cp}")
            else: a(f"v_lshlrev_b32 v{VU+r}, 16, v{60+4*r+cp}")
        for r in range(4):
            a(f"v_mul_f32 v{kb+r}, v{kb+r}, v{VU+r}")
        o = 152 + 2*(c & 3)
        a(f"v_cvt_pk_bf16_f32 v{o}, v{kb}, v{kb+1}")
        a(f"v_cvt_pk_bf16_f32 v{o+1}, v{kb+2}, v{kb+3}")
        a(f"s_add_u32 s73, s72, {c*4096}")
        a(f"buffer_store_dwordx2 {vr(o,2)}, v31, s[36:39], s73 offen")
    a("s_waitcnt vmcnt(8)")
    a("v_mov_b32 v128, 0")
    for i in range(16):
        a(f"v_dot2_f32_bf16 v128, v{92+i}, v{108+i}, v128")
    a("s_nop 3")
    for ctl in ("quad_perm:[1,0,3,2]", "quad_perm:[2,3,0,1]", "row_half_mirror", "row_mirror"):
        a(f"v_add_f32_dpp v128, v128, v128 {ctl} row_mask:0xf bank_mask:0xf")
        a("s_nop 1")
    a("v_mov_b32 v129, v128")
    a("s_nop 1")
    a("v_permlane16_swap_b32 v128, v129")
    a("s_nop 1")
    a("v_add_f32 v128, v128, v129")
    a("v_mul_f32 v128, 0xbfb8aa3b, v128")
    a("v_exp_f32 v128, v128")
    a("s_nop 0")
    a("v_add_f32 v128, 1.0, v128")
    a("v_rcp_f32 v128, v128")
    a("v_lshlrev_b32 v28, 2, v28")
    a("v_and_b32 v29, 31, v0")
    a("v_cmp_eq_u32 vcc, 0, v29")
    a("s_and_saveexec_b64 s[62:63], vcc")
    a(f"s_mov_b32 s73, {WS_G}")
    a("buffer_store_dword v128, v28, s[36:39], s73 offen")
    a("s_mov_b64 exec, s[62:63]")
    return [a.text().rstrip("\n"), "", ""]

K2_TS = 4160
K2_F  = 4 * K2_TS
K2_WB = 4 * K2_TS + 4608
K2_OS = 4 * K2_WB
K2_LDS = K2_OS + 4 * 6144

def k2(a, opt):
    name = "k2_kernel"
    kernel_begin(a, name)
    a("s_cmp_ge_u32 s2, 256")
    a(f"s_cbranch_scc1 {name}_done")
    stamp(a, opt, 0)
    a("s_load_dwordx4 s[4:7], s[0:1], 56")
    a("s_load_dwordx2 s[16:17], s[0:1], 96")
    a("v_lshrrev_b32 v1, 6, v0")
    a("v_and_b32 v0, 63, v0")
    a("v_readfirstlane_b32 s50, v1")
    a("s_and_b32 s51, s2, 7")
    a("s_lshr_b32 s52, s2, 3")
    a("s_cmp_ge_u32 s50, 4")
    a(f"s_cbranch_scc1 {name}_rd")

    a("s_lshl_b32 s53, s51, 7"); a("s_lshl_b32 s54, s52, 2"); a("s_add_u32 s53, s53, s54"); a("s_add_u32 s53, s53, s50")
    a(f"s_mul_i32 s54, s50, {K2_WB}")
    a("s_lshl_b32 s55, s53, 12")
    a("v_lshlrev_b32 v1, 2, v0")
    a("v_lshlrev_b32 v2, 4, v0")
    a("v_subrev_u32 v3, 4, v1")
    a("v_add_u32 v4, 252, v1")
    a("s_waitcnt lgkmcnt(0)")
    a("s_add_u32 s20, s4, s55"); a("s_addc_u32 s21, s5, 0"); a("s_mov_b32 s22, 4096"); a("s_mov_b32 s23, 0x00020000")
    make_srd(a, 36, 16, WS_USED)
    E = 32; E1 = 48
    a(f"s_add_u32 s56, s55, {WS_UT}")
    for i in range(4):
        a(f"s_add_u32 m0, s54, {K2_F + 480 + i*1024}")
        a(f"s_add_u32 s57, s56, {i*1024}")
        a("buffer_load_dwordx4 v2, s[36:39], s57 offen lds")
    for j in range(16):
        a(f"buffer_load_dword v{E+j}, v1, s[20:23], 0 offen offset:{256*j}")
        if j == 0: a(f"buffer_load_dword v{E1}, v3, s[20:23], 0 offen")
        else:      a(f"buffer_load_dword v{E1+j}, v4, s[20:23], 0 offen offset:{256*(j-1)}")
    a("s_lshl_b32 s57, s53, 1"); a("s_and_b32 s57, s57, 0xfffffffc")
    a("s_add_u32 s6, s6, s57"); a("s_addc_u32 s7, s7, 0")
    a("s_load_dword s58, s[6:7], 0")
    a("v_mov_b32 v8, 0"); a("v_mov_b32 v9, 0"); a("v_mov_b32 v10, 0"); a("v_mov_b32 v11, 0")
    a(f"s_add_u32 s57, s54, {K2_F}")
    a("v_min_u32 v5, 29, v0"); a("v_lshl_add_u32 v5, v5, 4, s57")
    a("ds_write_b128 v5, v[8:11]")
    a("v_lshrrev_b32 v5, 3, v0"); a("v_and_b32 v5, 3, v5"); a(f"v_mul_u32_u24 v5, {K2_TS}, v5")
    a("v_and_b32 v6, 7, v0"); a("v_lshl_add_u32 v5, v6, 2, v5")
    a(f"s_add_u32 s57, s54, {8 + 4*1023}"); a("v_add_u32 v5, s57, v5")
    a("ds_write_b32 v5, v8")
    TW = 12
    for rho in range(4):
        a(f"s_add_u32 s57, s54, {rho*K2_TS + 256 + (4 if rho >= 2 else 0)}")
        a(f"v_sub_u32 v{TW+rho}, s57, v1")
    a("v_and_b32 v5, 3, v0"); a(f"v_mul_u32_u24 v5, {K2_TS}, v5")
    a("v_bfe_u32 v6, v0, 2, 2"); a("v_lshlrev_b32 v6, 3, v6"); a("v_sub_u32 v5, v5, v6")
    a("v_lshrrev_b32 v7, 4, v0"); a("v_lshl_add_u32 v5, v7, 4, v5")
    a(f"s_add_u32 s57, s54, {8 + 24 + 448}"); a("v_add_u32 v16, s57, v5")
    a("v_and_b32 v5, 15, v0"); a("v_lshlrev_b32 v5, 5, v5"); a("v_lshl_add_u32 v5, v7, 4, v5")
    a(f"s_add_u32 s57, s54, {K2_F + 448}"); a("v_add_u32 v17, s57, v5")
    stamp(a, opt, 1)
    a("s_mov_b32 s59, 0xffff")
    a("s_waitcnt vmcnt(0)")
    a("s_barrier")
    stamp(a, opt, 2)
    S = 64; M = 80
    for j in range(16):
        a(f"v_alignbit_b32 v{S+j}, v{E+j}, v{E+j}, 16")
        a(f"v_bfi_b32 v{M+j}, s59, v{E+j}, v{E1+j}")
    for j in range(0, 16, 2):
        for rho in range(4):
            src = S if rho & 1 else M
            a(f"ds_write2st64_b32 v{TW+rho}, v{src+j}, v{src+j+1} offset0:{15-j} offset1:{14-j}")
    FR = 96; ACC = 32
    def tf(b, k1): return FR + b*64 + k1*4
    def ff(b, n1): return FR + b*64 + 32 + n1*4
    def rd(b):
        L = []
        for i in range(8):
            L.append(f"ds_read_b64 {vr(tf(b,i),2)}, v16 offset:{512*(7-i)}")
            L.append(f"ds_read_b64 {vr(tf(b,i)+2,2)}, v16 offset:{512*(7-i)+8}")
            L.append(f"ds_read_b128 {vr(ff(b,i),4)}, v17 offset:{512*i}")
        return L
    def mm(b, first):
        L = []
        seen = set()
        for k1 in range(8):
            for n1 in range(8 - k1):
                t = k1 + n1
                d = vr(ACC + 4*t, 4)
                c = "0" if (first and t not in seen) else d
                seen.add(t)
                L.append(f"v_mfma_f32_16x16x32_bf16 {d}, {vr(tf(b,k1),4)}, {vr(ff(b,n1),4)}, {c}")
        return L
    a("s_waitcnt lgkmcnt(0)")
    stamp(a, opt, 3)
    for s_ in rd(0): a(s_)
    a("v_subrev_u32 v16, 64, v16"); a("v_subrev_u32 v17, 64, v17")
    def resid(b, first, last):
        Ms = mm(b, first)
        R = [] if last else rd(b ^ 1)
        a("s_waitcnt lgkmcnt(0)")
        for i, m_ in enumerate(Ms):
            a(m_)
            if R: a(R.pop(0))
        if not last:
            a("v_subrev_u32 v16, 64, v16"); a("v_subrev_u32 v17, 64, v17")
    resid(0, True, False)
    resid(1, False, False)
    a("s_mov_b32 s60, 0")
    a.label(f"{name}_cl")
    resid(0, False, False)
    resid(1, False, False)
    a("s_add_u32 s60, s60, 1"); a("s_cmp_lt_u32 s60, 2"); a(f"s_cbranch_scc1 {name}_cl")
    resid(0, False, False)
    resid(1, False, True)
    stamp(a, opt, 4)
    a("v_and_b32 v5, 15, v0"); a("v_lshlrev_b32 v5, 5, v5"); a("v_lshl_add_u32 v5, v7, 3, v5")
    a(f"s_add_u32 s57, s54, {K2_F + 480}"); a("v_add_u32 v6, s57, v5")
    for t in range(8):
        a(f"ds_read_b64 {vr(FR+2*t,2)}, v6 offset:{512*t}")
    a("s_lshl_b32 s57, s58, 16"); a("s_and_b32 s58, s58, 0xffff0000")
    a("s_and_b32 s61, s53, 1"); a("s_cmp_eq_u32 s61, 0"); a("s_cselect_b32 s58, s57, s58")
    a(f"s_add_u32 s56, s55, {WS_YT}")
    a("s_waitcnt lgkmcnt(0)")
    for t in range(8):
        u0 = FR + 2*t; y = ACC + 4*t; tmp = FR + 16 + 4*(t & 1)
        a(f"v_lshlrev_b32 v{tmp}, 16, v{u0}"); a(f"v_and_b32 v{tmp+1}, 0xffff0000, v{u0}")
        a(f"v_lshlrev_b32 v{tmp+2}, 16, v{u0+1}"); a(f"v_and_b32 v{tmp+3}, 0xffff0000, v{u0+1}")
        for r in range(4): a(f"v_fmac_f32 v{y+r}, s58, v{tmp+r}")
        a(f"v_cvt_pk_bf16_f32 v{y}, v{y}, v{y+1}"); a(f"v_cvt_pk_bf16_f32 v{y+1}, v{y+2}, v{y+3}")
        a(f"buffer_store_dwordx2 {vr(y,2)}, v5, s[36:39], s56 offen offset:{512*t}")
    stamp(a, opt, 5)
    a("s_waitcnt vmcnt(0)")
    stamp(a, opt, 6)
    stamp_dump(a, opt, 7, 50)
    a("s_waitcnt vmcnt(0)")
    a("s_endpgm")

    a.label(f"{name}_rd")
    a("s_sub_u32 s53, s50, 4")
    a("s_lshl_b32 s54, s51, 2"); a("s_and_b32 s55, s52, 3"); a("s_add_u32 s54, s54, s55")
    a("s_lshr_b32 s55, s52, 2")
    a("v_and_b32 v2, 15, v0"); a("v_lshrrev_b32 v3, 4, v0")
    a("v_lshlrev_b32 v4, 4, v0")
    a("v_lshlrev_b32 v5, 4, v3")
    a("s_lshl_b32 s56, s54, 4"); a("s_lshl_b32 s57, s53, 2"); a("s_add_u32 s56, s56, s57")
    a("s_lshl_b32 s57, s56, 12"); a(f"s_add_u32 s57, s57, {WS_KVP}")
    a("s_lshl_b32 s58, s56, 7"); a(f"s_add_u32 s58, s58, {WS_ZP}")
    a("s_lshl_b32 s59, s55, 8"); a("s_lshl_b32 s60, s53, 6"); a("s_add_u32 s59, s59, s60")
    a("v_add_u32 v6, s59, v2"); a("v_lshlrev_b32 v6, 11, v6")
    a("s_lshl_b32 s60, s54, 6"); a("v_lshl_add_u32 v7, v3, 3, s60"); a("v_add_u32 v7, v6, v7")
    a("s_waitcnt lgkmcnt(0)")
    make_srd(a, 36, 16, WS_USED)
    PR = 32
    for p in range(4):
        for q in range(4):
            a(f"buffer_load_dwordx4 {vr(PR+24*p+4*q,4)}, v4, s[36:39], s57 offen offset:{q*1024}")
        for ud in range(2):
            a(f"buffer_load_dwordx4 {vr(PR+24*p+16+4*ud,4)}, v5, s[36:39], s58 offen offset:{ud*64}")
        a("s_add_u32 s57, s57, 4096"); a("s_add_u32 s58, s58, 128")
    QR = 128
    for ai in range(4):
        a(f"s_mov_b32 s60, {WS_PQ + 16*ai*2048}")
        a(f"buffer_load_dwordx2 {vr(QR+4*ai,2)}, v7, s[36:39], s60 offen")
        a(f"buffer_load_dwordx2 {vr(QR+4*ai+2,2)}, v7, s[36:39], s60 offen offset:32")
    a(f"s_mov_b32 s56, {LOG2E:#x}"); a(f"s_mov_b32 s57, {LOG2E:#x}")
    a(f"s_mov_b32 s58, {EPS:#x}"); a(f"s_mov_b32 s59, {EPS:#x}")
    stamp(a, opt, 1)
    a("s_waitcnt vmcnt(8)")
    for r in range(24):
        a(f"v_add_f32 v{PR+r}, v{PR+r}, v{PR+24+r}"); a(f"v_add_f32 v{PR+48+r}, v{PR+48+r}, v{PR+72+r}")
    for r in range(24):
        a(f"v_add_f32 v{PR+r}, v{PR+r}, v{PR+48+r}")
    a(f"s_mul_i32 s60, s53, 6144"); a(f"s_add_u32 s60, s60, {K2_OS}"); a("v_add_u32 v8, s60, v4")
    for q in range(6):
        a(f"ds_write_b128 v8, {vr(PR+4*q,4)} offset:{q*1024}")
    a("s_waitcnt lgkmcnt(0)")
    a("s_barrier")
    stamp(a, opt, 2)
    a(f"v_add_u32 v8, {K2_OS}, v4")
    for p in range(4):
        for q in range(6):
            a(f"ds_read_b128 {vr(PR+24*p+4*q,4)}, v8 offset:{p*6144+q*1024}")
    BF = 144
    a("s_waitcnt vmcnt(0)")
    T = 160
    for ai in range(4):
        for dw in range(4):
            a(f"v_lshlrev_b32 v{T}, 16, v{QR+4*ai+dw}"); a(f"v_and_b32 v{T+1}, 0xffff0000, v{QR+4*ai+dw}")
            phi_pair(a, T, T + 2)
            a(f"v_cvt_pk_bf16_f32 v{BF+4*ai+dw}, v{T}, v{T+1}")
    a("s_waitcnt lgkmcnt(0)")
    for r in range(24):
        a(f"v_add_f32 v{PR+r}, v{PR+r}, v{PR+24+r}"); a(f"v_add_f32 v{PR+48+r}, v{PR+48+r}, v{PR+72+r}")
    for r in range(24):
        a(f"v_add_f32 v{PR+r}, v{PR+r}, v{PR+48+r}")
    KA = 164; ZF = 172
    for ue in range(2):
        for ud in range(2):
            t = PR + (ud*2+ue)*4
            a(f"v_cvt_pk_bf16_f32 v{KA+4*ue+2*ud}, v{t}, v{t+1}"); a(f"v_cvt_pk_bf16_f32 v{KA+4*ue+2*ud+1}, v{t+2}, v{t+3}")
    for ud in range(2):
        t = PR + 16 + 4*ud
        a(f"v_cvt_pk_bf16_f32 v{ZF+2*ud}, v{t}, v{t+1}"); a(f"v_cvt_pk_bf16_f32 v{ZF+2*ud+1}, v{t+2}, v{t+3}")
    a("s_nop 1")
    O = 64
    for ai in range(4):
        for ue in range(2):
            a(f"v_mfma_f32_16x16x32_bf16 {vr(O+(ai*3+ue)*4,4)}, {vr(KA+4*ue,4)}, {vr(BF+4*ai,4)}, 0")
        a(f"v_mfma_f32_16x16x32_bf16 {vr(O+(ai*3+2)*4,4)}, {vr(ZF,4)}, {vr(BF+4*ai,4)}, 0")
    stamp(a, opt, 3)
    a("v_and_b32 v8, 1, v3"); a("v_lshlrev_b32 v8, 5, v8"); a("v_lshrrev_b32 v9, 1, v3"); a("v_lshl_add_u32 v8, v9, 4, v8")
    a("s_lshl_b32 s60, s54, 6"); a("v_add3_u32 v8, v6, v8, s60")
    a("s_nop 7")
    OP = 128
    for ai in range(4):
        dn = O + (ai*3+2)*4
        a(f"v_add_f32 v{dn}, s58, v{dn}")
        a(f"v_rcp_f32 v{dn}, v{dn}")
        a("s_nop 0")
        for ue in range(2):
            t = O + (ai*3+ue)*4
            for r in range(4): a(f"v_mul_f32 v{t+r}, v{t+r}, v{dn}")
            a(f"v_cvt_pk_bf16_f32 v{OP+4*ai+2*ue}, v{t}, v{t+1}"); a(f"v_cvt_pk_bf16_f32 v{OP+4*ai+2*ue+1}, v{t+2}, v{t+3}")
    a("s_nop 1")
    for ai in range(4):
        o = OP + 4*ai
        a(f"v_permlane16_swap_b32 v{o}, v{o+2}"); a(f"v_permlane16_swap_b32 v{o+1}, v{o+3}")
    for ai in range(4):
        a(f"s_mov_b32 s60, {WS_O + 16*ai*2048}")
        a(f"buffer_store_dwordx4 {vr(OP+4*ai,4)}, v8, s[36:39], s60 offen")
    stamp(a, opt, 4); stamp(a, opt, 5)
    a("s_waitcnt vmcnt(0)")
    stamp(a, opt, 6)
    stamp_dump(a, opt, 7, 50)
    a("s_waitcnt vmcnt(0)")
    a.label(f"{name}_done")
    a("s_endpgm")

K3_NS = 6
K3_STAGE = 24576
K3_Y = K3_NS * K3_STAGE

def k3(a, opt):
    name = "k3_kernel"
    NS = K3_NS
    kernel_begin(a, name)
    a("s_cmp_ge_u32 s2, 256")
    a(f"s_cbranch_scc1 {name}_done")
    stamp(a, opt, 0)
    a("s_load_dwordx2 s[6:7], s[0:1], 16")
    a("s_load_dwordx2 s[16:17], s[0:1], 96")
    a("v_lshrrev_b32 v1, 6, v0")
    a("v_and_b32 v0, 63, v0")
    a("v_readfirstlane_b32 s50, v1")
    a("s_and_b32 s51, s2, 7"); a("s_lshr_b32 s52, s2, 3")
    a("s_and_b32 s53, s51, 3"); a("s_lshl_b32 s53, s53, 2"); a("s_and_b32 s54, s52, 3"); a("s_or_b32 s48, s53, s54")
    a("s_lshr_b32 s53, s51, 2"); a("s_lshl_b32 s53, s53, 3"); a("s_lshr_b32 s54, s52, 2"); a("s_or_b32 s49, s53, s54")
    a("s_cmp_ge_u32 s50, 4")
    a(f"s_cbranch_scc1 {name}_loader")

    def acc(ai, u): return 64 + (u*4 + ai)*4
    def xf(buf, ai): return 96 + buf*24 + ai*4
    def wf(buf, u): return 96 + buf*24 + 16 + u*4
    XA = 8; WA = 12
    a("s_load_dwordx2 s[4:5], s[0:1], 0")
    a("s_load_dwordx2 s[8:9], s[0:1], 80")
    a("s_lshr_b32 s53, s50, 1")
    a("s_and_b32 s54, s50, 1")
    a("v_and_b32 v2, 15, v0"); a("v_lshrrev_b32 v3, 4, v0")
    a("v_lshrrev_b32 v4, 1, v2"); a("v_xor_b32 v4, v4, v3")
    a("s_lshl_b32 s55, s53, 13")
    a("v_lshlrev_b32 v5, 7, v2"); a("v_add_u32 v5, s55, v5")
    a(f"v_lshl_add_u32 v{XA}, v4, 4, v5")
    a("v_xor_b32 v6, 4, v4"); a(f"v_lshl_add_u32 v{XA+1}, v6, 4, v5")
    for kk in range(2): a(f"v_add_u32 v{XA+2+kk}, {3*K3_STAGE}, v{XA+kk}")
    a("v_bfe_u32 v6, v0, 2, 2")
    a("v_lshl_add_u32 v7, v3, 3, v6"); a("v_lshlrev_b32 v7, 7, v7")
    a("v_and_b32 v18, 3, v0"); a("v_lshl_add_u32 v7, v18, 3, v7")
    a("v_add_u32 v7, 16384, v7")
    a("v_bfe_u32 v18, v0, 3, 1"); a("v_bfe_u32 v19, v0, 4, 1"); a("v_lshl_or_b32 v18, v19, 1, v18")
    a("s_lshl_b32 s55, s54, 1")
    a("v_xor_b32 v18, s55, v18")
    a(f"v_lshl_add_u32 v{WA}, v18, 5, v7")
    a("v_xor_b32 v18, 1, v18"); a(f"v_lshl_add_u32 v{WA+1}, v18, 5, v7")
    for u in range(2): a(f"v_add_u32 v{WA+2+u}, {3*K3_STAGE}, v{WA+u}")
    for r in range(64, 96): a(f"v_mov_b32 v{r}, 0")
    a("s_waitcnt lgkmcnt(0)")
    make_srd(a, 20, 4, NB["x"]); make_srd(a, 24, 8, NB["out"]); make_srd(a, 36, 16, WS_USED)
    a("s_lshl_b32 s55, s48, 7"); a("s_lshl_b32 s61, s53, 6"); a("s_add_u32 s55, s55, s61")
    a("v_add_u32 v20, s55, v2")
    a("v_lshlrev_b32 v21, 11, v20")
    a("s_lshl_b32 s55, s49, 7"); a("s_lshl_b32 s61, s54, 6"); a("s_add_u32 s55, s55, s61")
    a("v_lshl_add_u32 v22, v3, 3, s55"); a("v_add_u32 v22, v21, v22")
    XR = 24
    GR = 40
    for ai in range(4):
        a(f"s_mov_b32 s61, {16*ai*2048}")
        for u in range(2):
            a(f"buffer_load_dwordx2 {vr(XR+(ai*2+u)*2,2)}, v22, s[20:23], s61 offen offset:{32*u}")
    a("v_lshlrev_b32 v23, 2, v20"); a(f"s_mov_b32 s61, {WS_G}")
    for ai in range(4):
        a(f"buffer_load_dword v{GR+ai}, v23, s[36:39], s61 offen offset:{64*ai}")

    def reads(st, kk, buf):
        slot = st % NS
        hi = 2 if slot >= 3 else 0
        so = (slot % 3) * K3_STAGE
        X = [f"ds_read_b128 {vr(xf(buf,ai),4)}, v{XA+hi+kk} offset:{so + ai*2048}" for ai in range(4)]
        W = [[f"ds_read_b64_tr_b16 {vr(wf(buf,u)+2*sec,2)}, v{WA+hi+u} offset:{so + kk*4096 + sec*512}" for sec in range(2)] for u in range(2)]
        return W[0] + [X[0], X[1]] + W[1] + [X[2], X[3]]
    def mfmas(buf):
        return [f"v_mfma_f32_16x16x32_bf16 {vr(acc(ai,u),4)}, {vr(wf(buf,u),4)}, {vr(xf(buf,ai),4)}, {vr(acc(ai,u),4)}"
                for u in range(2) for ai in range(4)]
    def step(buf, nxt, barrier=False):
        M = mfmas(buf); q = list(nxt)
        if barrier:
            a(M[0]); a(M[1]); a("s_barrier")
            for i in range(2, 8):
                a(M[i])
                for _ in range(2):
                    if q: a(q.pop(0))
        else:
            for i in range(8):
                a(M[i])
                for _ in range(2):
                    if q: a(q.pop(0))
        for s_ in q: a(s_)
    stamp(a, opt, 1)
    a("s_barrier")
    stamp(a, opt, 2)
    for s_ in reads(0, 0, 0): a(s_)
    for st in range(16):
        a("s_waitcnt lgkmcnt(0)")
        step(0, reads(st, 1, 1))
        a("s_waitcnt lgkmcnt(0)")
        if st < 15: step(1, reads(st + 1, 0, 0), barrier=True)
        else:
            step(1, [])
    stamp(a, opt, 3)
    a("s_barrier")
    a("v_bfe_u32 v6, v0, 2, 2"); a("v_lshl_add_u32 v6, v3, 2, v6")
    a("s_lshl_b32 s55, s54, 5"); a("v_add_u32 v6, s55, v6"); a("v_lshlrev_b32 v6, 8, v6")
    a("v_and_b32 v7, 3, v0"); a("v_lshl_add_u32 v6, v7, 3, v6")
    a("s_lshl_b32 s55, s53, 7"); a(f"s_add_u32 s55, s55, {K3_Y}"); a("v_add_u32 v6, s55, v6")
    YR = 96
    for ai in range(4):
        for u in range(2):
            a(f"ds_read_b64_tr_b16 {vr(YR+(ai*2+u)*2,2)}, v6 offset:{u*16*256 + ai*32}")
    a("s_lshl_b32 s55, s49, 7"); a("s_lshl_b32 s61, s54, 6"); a("s_add_u32 s55, s55, s61")
    a("v_and_b32 v8, 1, v3"); a("v_lshlrev_b32 v8, 5, v8"); a("v_lshrrev_b32 v9, 1, v3"); a("v_lshl_add_u32 v8, v9, 4, v8")
    a("v_add3_u32 v8, v21, v8, s55")
    a("s_waitcnt vmcnt(0) lgkmcnt(0)")
    OP = 112; T = 128
    for ai in range(4):
        g_ = GR + ai
        a(f"v_sub_f32 v{T+8}, 1.0, v{g_}")
        for u in range(2):
            t = acc(ai, u); xr = XR + (ai*2+u)*2; yr = YR + (ai*2+u)*2
            for dw in range(2):
                a(f"v_lshlrev_b32 v{T}, 16, v{xr+dw}"); a(f"v_and_b32 v{T+1}, 0xffff0000, v{xr+dw}")
                a(f"v_lshlrev_b32 v{T+2}, 16, v{yr+dw}"); a(f"v_and_b32 v{T+3}, 0xffff0000, v{yr+dw}")
                a(f"v_mul_f32 v{T}, v{T}, v{T+2}"); a(f"v_mul_f32 v{T+1}, v{T+1}, v{T+3}")
                a(f"v_mul_f32 v{T}, v{T}, v{T+8}"); a(f"v_mul_f32 v{T+1}, v{T+1}, v{T+8}")
                a(f"v_fmac_f32 v{T}, v{g_}, v{t+2*dw}"); a(f"v_fmac_f32 v{T+1}, v{g_}, v{t+2*dw+1}")
                a(f"v_cvt_pk_bf16_f32 v{OP+4*ai+2*u+dw}, v{T}, v{T+1}")
    a("s_nop 1")
    for ai in range(4):
        o = OP + 4*ai
        a(f"v_permlane16_swap_b32 v{o}, v{o+2}"); a(f"v_permlane16_swap_b32 v{o+1}, v{o+3}")
    for ai in range(4):
        a(f"s_mov_b32 s61, {16*ai*2048}")
        a(f"buffer_store_dwordx4 {vr(OP+4*ai,4)}, v8, s[24:27], s61 offen")
    stamp(a, opt, 4); stamp(a, opt, 5)
    a("s_waitcnt vmcnt(0)")
    stamp(a, opt, 6)
    stamp_dump(a, opt, 7, 50)
    a("s_waitcnt vmcnt(0)")
    a("s_endpgm")

    a.label(f"{name}_loader")
    a("s_sub_u32 s53, s50, 4")
    VA = 8; VW = 12
    a("v_lshrrev_b32 v2, 3, v0"); a("v_and_b32 v3, 7, v0"); a("v_lshrrev_b32 v4, 4, v0")
    a("s_lshl_b32 s55, s48, 7"); a("s_lshl_b32 s61, s53, 5"); a("s_add_u32 s55, s55, s61")
    a("v_add_u32 v5, s55, v2"); a("v_lshlrev_b32 v5, 11, v5")
    a("v_xor_b32 v6, v4, v3"); a(f"v_lshl_add_u32 v{VA}, v6, 4, v5")
    a("v_xor_b32 v6, 4, v6"); a(f"v_lshl_add_u32 v{VA+1}, v6, 4, v5"); a(f"v_add_u32 v{VA+1}, 16384, v{VA+1}")
    for i in range(2, 4): a(f"v_add_u32 v{VA+i}, 32768, v{VA+(i&1)}")
    a("v_and_b32 v6, 1, v4"); a("v_lshlrev_b32 v6, 1, v6"); a("v_xor_b32 v6, v6, v3")
    a("v_lshlrev_b32 v5, 11, v2")
    a(f"s_lshl_b32 s55, s53, 15"); a("s_lshl_b32 s61, s49, 7"); a("s_add_u32 s55, s55, s61")
    a("v_add_u32 v5, s55, v5")
    a(f"v_lshl_add_u32 v{VW}, v6, 4, v5")
    a("v_xor_b32 v6, 4, v6"); a(f"v_lshl_add_u32 v{VW+1}, v6, 4, v5"); a(f"v_add_u32 v{VW+1}, 16384, v{VW+1}")
    a("v_lshrrev_b32 v6, 4, v0"); a("s_lshl_b32 s55, s49, 6"); a("s_lshl_b32 s61, s53, 4"); a("s_add_u32 s55, s55, s61")
    a("v_add_u32 v6, s55, v6"); a("v_lshlrev_b32 v6, 12, v6")
    a("v_and_b32 v7, 15, v0"); a("v_lshl_add_u32 v6, v7, 4, v6"); a("s_lshl_b32 s55, s48, 8"); a("v_add_u32 v14, s55, v6")
    a("s_lshl_b32 s64, s53, 12")
    a("s_lshl_b32 s65, s53, 11"); a("s_add_u32 s65, s65, 16384")
    a(f"s_mov_b32 s66, {WS_O}"); a("s_mov_b32 s67, 0"); a("s_mov_b32 s68, 0")
    a("s_waitcnt lgkmcnt(0)")
    make_srd(a, 36, 16, WS_USED); make_srd(a, 24, 6, NB["wo"])
    def issue():
        a("s_add_u32 s69, s64, s68"); a("s_add_u32 s55, s65, s68")
        for i in range(4):
            a(f"s_add_u32 m0, s69, {i*1024}"); a("s_nop 0")
            a(f"buffer_load_dwordx4 v{VA+i}, s[36:39], s66 offen lds")
        for i in range(2):
            a(f"s_add_u32 m0, s55, {i*1024}"); a("s_nop 0")
            a(f"buffer_load_dwordx4 v{VW+i}, s[24:27], s67 offen lds")
        a("s_add_u32 s66, s66, 128"); a(f"s_add_u32 s67, s67, {64*2048}")
        a(f"s_add_u32 s68, s68, {K3_STAGE}"); a(f"s_cmp_eq_u32 s68, {NS*K3_STAGE}"); a("s_cselect_b32 s68, 0, s68")
    stamp(a, opt, 1)
    issue(); issue()
    a("s_waitcnt vmcnt(6)"); a("s_barrier")
    stamp(a, opt, 2)
    for _ in range(2, NS): issue()
    nloop = 16 - NS
    a("s_mov_b32 s60, 1")
    a.label(f"{name}_lloop")
    a(f"s_waitcnt vmcnt({6*(NS-2)})"); a("s_barrier")
    issue()
    a("s_add_u32 s60, s60, 1"); a(f"s_cmp_lt_u32 s60, {nloop+1}"); a(f"s_cbranch_scc1 {name}_lloop")
    stamp(a, opt, 3)
    a(f"s_lshl_b32 s55, s53, 12"); a(f"s_add_u32 s55, s55, {K3_Y}")
    for i in range(4):
        a(f"s_add_u32 m0, s55, {i*1024}"); a(f"s_mov_b32 s61, {WS_YT + i*4*4096}")
        a("buffer_load_dwordx4 v14, s[36:39], s61 offen lds")
    for i in range(nloop + 1, 16):
        a(f"s_waitcnt vmcnt({6*(15-i) + 4})"); a("s_barrier")
    a("s_waitcnt vmcnt(0)"); a("s_barrier")
    stamp(a, opt, 4); stamp(a, opt, 5); stamp(a, opt, 6)
    stamp_dump(a, opt, 7, 50)
    a("s_waitcnt vmcnt(0)")
    a.label(f"{name}_done")
    a("s_endpgm")

def build(kernels, opt=None):
    opt = opt or {}
    a = Asm()
    spec = {"k1": ("k1_kernel", 256, 512, 163840), "k2": ("k2_kernel", 256, 512, K2_LDS), "k3": ("k3_kernel", 256, 512, 163840)}
    for k in kernels:
        n, g, b, l = spec[k]
        a(f"; @launch kernel={n} grid=({g},1,1) block=({b},1,1) lds={l}")
    a('.amdgcn_target "amdgcn-amd-amdhsa--gfx950"')
    a(".text")
    for k in dict.fromkeys(kernels):
        globals()[k](a, opt)
    a('.section .rodata,"a"')
    for k in dict.fromkeys(kernels):
        kernel_desc(a, spec[k][0], vgpr=256, sgpr=96)
    return a.text()

if __name__ == "__main__":
    opt = {}
    for o in sys.argv[3:]:
        k, _, v = o.partition("=")
        opt[k] = int(v) if v else 1
    open(sys.argv[1], "w").write(build(sys.argv[2].split(","), opt))
```

```python
import sys
from asmlib import *

WS_PQ  = 0
WS_UT  = 4 << 20
WS_KVP = 8 << 20
WS_ZP  = 10 << 20
WS_G   = 11 << 20
WS_O   = 12 << 20
WS_YT  = 16 << 20
WS_USED = 20 << 20

LOG2E = 0x3fb8aa3b
EPS   = 0x358637bd

def vr(a, n=1):
    return f"v{a}" if n == 1 else f"v[{a}:{a+n-1}]"
def sr(a, n=1):
    return f"s{a}" if n == 1 else f"s[{a}:{a+n-1}]"

WS_STAMP = 24 << 20
def stamp(a, opt, i):
    if opt.get("stamps"):
        a(f"s_memtime s[{80+2*i}:{81+2*i}]")
        if i == 0: a("s_memrealtime s[94:95]")
def stamp_dump(a, opt, n, wave_sgpr, srd_base_sgpr=16, nwaves=8, region=0):
    if not opt.get("stamps"): return
    a("s_waitcnt lgkmcnt(0)")
    a(f"s_add_u32 s76, s{srd_base_sgpr}, {WS_STAMP + (region << 20)}"); a(f"s_addc_u32 s77, s{srd_base_sgpr+1}, 0")
    a("s_mov_b32 s78, 0x1000000"); a("s_mov_b32 s79, 0x00020000")
    a(f"s_mul_i32 s75, s2, {nwaves}"); a(f"s_add_u32 s75, s75, s{wave_sgpr}"); a("s_lshl_b32 s75, s75, 6")
    a("v_mov_b32 v1, s75")
    for i in range(n):
        if i == 0:
            a("v_mov_b32 v2, s80")
        else:
            a(f"s_sub_u32 s74, s{80+2*i}, s80"); a("v_mov_b32 v2, s74")
        a(f"buffer_store_dword v2, v1, s[76:79], 0 offen offset:{4*i}")
    a("s_memrealtime s[80:81]"); a("s_waitcnt lgkmcnt(0)"); a("v_mov_b32 v2, s80")
    a(f"buffer_store_dword v2, v1, s[76:79], 0 offen offset:60")
    a("v_mov_b32 v2, s94")
    a(f"buffer_store_dword v2, v1, s[76:79], 0 offen offset:56")

def phi_pair(a, t, tmp):
    a(f"v_pk_mul_f32 {vr(tmp,2)}, {vr(t,2)}, s[56:57]")
    a(f"v_exp_f32_e64 v{tmp}, v{tmp} clamp")
    a(f"v_exp_f32_e64 v{tmp+1}, v{tmp+1} clamp")
    a(f"v_max_f32 v{t}, 0, v{t}")
    a(f"v_max_f32 v{t+1}, 0, v{t+1}")
    a(f"v_pk_add_f32 {vr(t,2)}, {vr(t,2)}, {vr(tmp,2)}")
    a(f"v_pk_add_f32 {vr(t,2)}, {vr(t,2)}, s[58:59]")

K1_NS = 4
K1_STAGE = 40960

def k1(a, opt):
    name = "k1_kernel"
    kernel_begin(a, name)
    a("s_cmp_ge_u32 s2, 256")
    a(f"s_cbranch_scc1 {name}_done")
    stamp(a, opt, 0)
    a("s_load_dwordx4 s[4:7], s[0:1], 0")
    a("s_load_dwordx2 s[16:17], s[0:1], 96")
    a("v_lshrrev_b32 v1, 6, v0")
    a("v_and_b32 v0, 63, v0")
    a("v_readfirstlane_b32 s50, v1")
    a("s_and_b32 s51, s2, 7")
    a("s_lshr_b32 s52, s2, 3")
    a("s_lshl_b32 s53, s51, 3"); a("s_and_b32 s53, s53, 8"); a("s_and_b32 s54, s52, 7"); a("s_or_b32 s48, s53, s54")
    a("s_lshl_b32 s53, s51, 1"); a("s_and_b32 s53, s53, 12"); a("s_lshr_b32 s54, s52, 3"); a("s_or_b32 s49, s53, s54")
    a("s_cmp_ge_u32 s50, 4")
    a(f"s_cbranch_scc1 {name}_loader")

    def acc(ai, c, u): return 64 + ((c * 2 + u) * 4 + ai) * 4
    def xf(buf, ai): return 160 + buf * 40 + ai * 4
    def wf(buf, c, u): return 160 + buf * 40 + 16 + (c * 2 + u) * 4
    XA = 8
    WA = 12
    if not opt.get("noprio"): a("s_setprio 2")
    a("s_and_b32 s53, s50, 1")
    a("s_lshr_b32 s54, s50, 1")
    a("v_and_b32 v2, 15, v0")
    a("v_lshrrev_b32 v3, 4, v0")
    a("v_lshrrev_b32 v4, 1, v2"); a("v_xor_b32 v4, v4, v3")
    a("s_lshl_b32 s55, s53, 13")
    a("v_lshlrev_b32 v5, 7, v2"); a("v_add_u32 v5, s55, v5")
    a(f"v_lshl_add_u32 v{XA}, v4, 4, v5")
    a("v_xor_b32 v6, 4, v4"); a(f"v_lshl_add_u32 v{XA+1}, v6, 4, v5")
    for kk in range(2): a(f"v_add_u32 v{XA+2+kk}, {2*K1_STAGE}, v{XA+kk}")
    a("v_bfe_u32 v6, v0, 2, 2")
    a("v_lshl_add_u32 v7, v3, 3, v6"); a("v_lshlrev_b32 v7, 7, v7")
    a("v_and_b32 v18, 3, v0"); a("v_lshl_add_u32 v7, v18, 3, v7")
    a("v_add_u32 v7, 16384, v7")
    a("v_bfe_u32 v18, v0, 3, 1"); a("v_bfe_u32 v19, v0, 4, 1"); a("v_lshl_or_b32 v18, v19, 1, v18")
    a("s_lshl_b32 s55, s54, 1")
    a("v_xor_b32 v18, s55, v18")
    a(f"v_lshl_add_u32 v{WA}, v18, 5, v7")
    a("v_xor_b32 v18, 1, v18"); a(f"v_lshl_add_u32 v{WA+1}, v18, 5, v7")
    for u in range(2): a(f"v_add_u32 v{WA+2+u}, {2*K1_STAGE}, v{WA+u}")
    for r in range(64, 160): a(f"v_mov_b32 v{r}, 0")
    a(f"s_mov_b32 s56, {LOG2E:#x}"); a(f"s_mov_b32 s57, {LOG2E:#x}")
    a(f"s_mov_b32 s58, {EPS:#x}"); a(f"s_mov_b32 s59, {EPS:#x}")
    a("s_waitcnt lgkmcnt(0)")
    make_srd(a, 36, 16, WS_USED)

    def reads(slot, kk, buf):
        hi = 2 if slot >= 2 else 0
        so = (slot & 1) * K1_STAGE
        X = [f"ds_read_b128 {vr(xf(buf,ai),4)}, v{XA+hi+kk} offset:{so + ai*2048}" for ai in range(4)]
        W = {}
        for c in range(3):
            for u in range(2):
                W[c, u] = [f"ds_read_b64_tr_b16 {vr(wf(buf,c,u)+2*sec,2)}, v{WA+hi+u} offset:{so + c*8192 + kk*4096 + sec*512}" for sec in range(2)]
        return [X[0]] + W[0, 0] + [X[1], X[2], X[3]] + W[0, 1] + W[1, 0] + W[1, 1] + W[2, 0] + W[2, 1]
    def mfmas(buf):
        L = []
        for c in range(3):
            for u in range(2):
                for ai in range(4):
                    d = vr(acc(ai, c, u), 4)
                    if c == 0: L.append(f"v_mfma_f32_16x16x32_bf16 {d}, {vr(wf(buf,c,u),4)}, {vr(xf(buf,ai),4)}, {d}")
                    else:      L.append(f"v_mfma_f32_16x16x32_bf16 {d}, {vr(xf(buf,ai),4)}, {vr(wf(buf,c,u),4)}, {d}")
        return L
    def step(buf, nxt, barrier=False):
        M = mfmas(buf)
        if opt.get("nomfma"): M = ["s_nop 0"]*24
        if opt.get("noreads"): nxt = []
        q = list(nxt)
        first = 4 if barrier else 0
        for i in range(24):
            a(M[i])
            if barrier and i == first - 1: a("s_barrier")
            if i >= first - (1 if barrier else 0) and q: a(q.pop(0))
        for s_ in q: a(s_)

    stamp(a, opt, 1)
    a("s_barrier")
    stamp(a, opt, 2)
    for s in reads(0, 0, 0): a(s)
    a("s_mov_b32 s60, 0")
    a.label(f"{name}_cloop")
    for slot in range(4):
        for kk in range(2):
            buf = kk
            a("s_waitcnt lgkmcnt(0)")
            if kk == 0:
                step(buf, reads(slot, 1, 1))
            else:
                if slot == 3:
                    a("s_cmp_eq_u32 s60, 3")
                    a(f"s_cbranch_scc1 {name}_clast")
                step(buf, reads((slot + 1) & 3, 0, 0), barrier=True)
    a("s_add_u32 s60, s60, 1")
    a(f"s_branch {name}_cloop")
    a.label(f"{name}_clast")
    step(1, [])

    stamp(a, opt, 3)
    TMP = 20
    QF = 24
    a("s_lshl_b32 s55, s48, 7"); a("s_lshl_b32 s61, s53, 6"); a("s_add_u32 s55, s55, s61")
    a("v_add_u32 v5, s55, v2"); a("v_lshlrev_b32 v5, 11, v5")
    a("s_lshl_b32 s55, s49, 7"); a("s_lshl_b32 s61, s54, 6"); a("s_add_u32 s55, s55, s61")
    a("v_and_b32 v6, 1, v3"); a("v_lshlrev_b32 v6, 5, v6"); a("v_lshrrev_b32 v7, 1, v3"); a("v_lshl_add_u32 v6, v7, 4, v6")
    a("v_add3_u32 v5, v5, v6, s55")
    for ai in range(4): a(f"s_mov_b32 s{61+ai}, {WS_PQ + 16*ai*2048}")
    for ai in range(4):
        for u in range(2):
            t = acc(ai, 0, u); o = QF + ai*4 + u*2
            a(f"v_cvt_pk_bf16_f32 v{o}, v{t}, v{t+1}")
            a(f"v_cvt_pk_bf16_f32 v{o+1}, v{t+2}, v{t+3}")
    a("s_nop 1")
    for ai in range(4):
        o = QF + ai*4
        a(f"v_permlane16_swap_b32 v{o}, v{o+2}")
        a(f"v_permlane16_swap_b32 v{o+1}, v{o+3}")
    for ai in range(4):
        a(f"buffer_store_dwordx4 {vr(QF+ai*4,4)}, v5, s[36:39], s{61+ai} offen")
    KF = 160; VF = 176
    def kf(u, ks): return KF + (u*2 + ks)*4
    def vf(u, ks): return VF + (u*2 + ks)*4
    for u in range(2):
        for ai in range(4):
            t = acc(ai, 1, u); o = kf(u, ai >> 1) + (ai & 1)*2
            phi_pair(a, t, TMP); phi_pair(a, t + 2, TMP + 2)
            a(f"v_cvt_pk_bf16_f32 v{o}, v{t}, v{t+1}")
            a(f"v_cvt_pk_bf16_f32 v{o+1}, v{t+2}, v{t+3}")
    for u in range(2):
        for ai in range(4):
            t = acc(ai, 2, u); o = vf(u, ai >> 1) + (ai & 1)*2
            a(f"v_cvt_pk_bf16_f32 v{o}, v{t}, v{t+1}")
            a(f"v_cvt_pk_bf16_f32 v{o+1}, v{t+2}, v{t+3}")
    ONES = 192
    for r in range(4): a(f"v_mov_b32 v{ONES+r}, 0x3f803f80")
    KVA = 64; ZA = 80
    a("s_nop 1")
    for ks in range(2):
        for ud in range(2):
            for ue in range(2):
                d = vr(KVA + (ud*2+ue)*4, 4)
                a(f"v_mfma_f32_16x16x32_bf16 {d}, {vr(kf(ud,ks),4)}, {vr(vf(ue,ks),4)}, {'0' if ks == 0 else d}")
            d = vr(ZA + ud*4, 4)
            a(f"v_mfma_f32_16x16x32_bf16 {d}, {vr(kf(ud,ks),4)}, {vr(ONES,4)}, {'0' if ks == 0 else d}")
    stamp(a, opt, 4)
    a("s_lshl_b32 s55, s54, 13")
    a("v_lshlrev_b32 v6, 4, v0"); a("v_add_u32 v6, s55, v6")
    a("s_nop 7")
    a("s_cmp_eq_u32 s53, 0")
    a(f"s_cbranch_scc1 {name}_cred0")
    for q in range(6):
        a(f"ds_write_b128 v6, {vr(KVA+4*q,4)} offset:{q*1024}")
    a("s_waitcnt lgkmcnt(0)")
    a("s_barrier")
    a(f"s_branch {name}_cend")
    a.label(f"{name}_cred0")
    a("s_barrier")
    R = 24
    for q in range(6):
        a(f"ds_read_b128 {vr(R+4*q,4)}, v6 offset:{q*1024}")
    a("s_lshl_b32 s55, s49, 1"); a("s_add_u32 s55, s55, s54"); a("s_lshl_b32 s55, s55, 4"); a("s_add_u32 s55, s55, s48")
    a("s_lshl_b32 s61, s55, 12"); a(f"s_add_u32 s61, s61, {WS_KVP}")
    a("s_lshl_b32 s62, s55, 7"); a(f"s_add_u32 s62, s62, {WS_ZP}")
    a("v_lshlrev_b32 v6, 4, v0")
    a("v_lshlrev_b32 v7, 4, v3")
    a("s_waitcnt lgkmcnt(0)")
    for r in range(24):
        a(f"v_add_f32 v{KVA+r}, v{KVA+r}, v{R+r}")
    for q in range(4):
        a(f"buffer_store_dwordx4 {vr(KVA+4*q,4)}, v6, s[36:39], s61 offen offset:{q*1024}")
    a("v_cmp_eq_u32 vcc, 0, v2")
    a("s_and_saveexec_b64 s[64:65], vcc")
    for ud in range(2):
        a(f"buffer_store_dwordx4 {vr(ZA+4*ud,4)}, v7, s[36:39], s62 offen offset:{ud*64}")
    a("s_mov_b64 exec, s[64:65]")
    a.label(f"{name}_cend")
    stamp(a, opt, 5)
    a("s_waitcnt vmcnt(0)")
    stamp(a, opt, 6)
    stamp_dump(a, opt, 7, 50)
    a("s_waitcnt vmcnt(0)")
    a("s_endpgm")

    a.label(f"{name}_loader")
    a("s_sub_u32 s53, s50, 4")
    VA = 8
    VW = 12
    a("v_lshrrev_b32 v2, 3, v0")
    a("v_and_b32 v3, 7, v0")
    a("v_lshrrev_b32 v4, 4, v0")
    a("s_lshl_b32 s55, s48, 7"); a("s_lshl_b32 s61, s53, 5"); a("s_add_u32 s55, s55, s61")
    a("v_add_u32 v5, s55, v2"); a("v_lshlrev_b32 v5, 11, v5")
    a("v_xor_b32 v6, v4, v3"); a(f"v_lshl_add_u32 v{VA}, v6, 4, v5")
    a("v_xor_b32 v6, 4, v6"); a(f"v_lshl_add_u32 v{VA+1}, v6, 4, v5"); a(f"v_add_u32 v{VA+1}, 16384, v{VA+1}")
    for i in range(2, 4): a(f"v_add_u32 v{VA+i}, 32768, v{VA+(i&1)}")
    a("v_and_b32 v6, 1, v4"); a("v_lshlrev_b32 v6, 1, v6"); a("v_xor_b32 v6, v6, v3")
    a("v_mul_u32_u24 v5, 6144, v2")
    a(f"s_mul_i32 s55, s53, {2*8*6144}"); a("s_lshl_b32 s61, s49, 7"); a("s_add_u32 s55, s55, s61")
    a("v_add_u32 v5, s55, v5")
    a(f"v_lshl_add_u32 v{VW}, v6, 4, v5")
    a("v_xor_b32 v6, 4, v6"); a(f"v_lshl_add_u32 v{VW+1}, v6, 4, v5"); a(f"v_add_u32 v{VW+1}, {8*6144}, v{VW+1}")
    WL = [(seg, r2) for seg in range(3) for r2 in range(2)]
    for i, (seg, r2) in enumerate(WL):
        if i >= 2: a(f"v_add_u32 v{VW+i}, {seg*2048}, v{VW + r2}")
    a("s_lshl_b32 s64, s53, 12")
    a("s_lshl_b32 s65, s53, 11"); a("s_add_u32 s65, s65, 16384")
    a("s_mov_b32 s66, 0"); a("s_mov_b32 s67, 0"); a("s_mov_b32 s68, 0")
    a("s_waitcnt lgkmcnt(0)")
    make_srd(a, 20, 4, NB["x"]); make_srd(a, 24, 6, NB["wqkv"])
    def issue(inloop=False):
        if inloop and opt.get("nodma"): return
        a("s_add_u32 s69, s64, s68")
        a("s_add_u32 s55, s65, s68")
        for i in range(4):
            a(f"s_add_u32 m0, s69, {i*1024}"); a("s_nop 0")
            a(f"buffer_load_dwordx4 v{VA+i}, s[20:23], s66 offen lds")
        for i, (seg, r2) in enumerate(WL):
            a(f"s_add_u32 m0, s55, {seg*8192 + r2*1024}"); a("s_nop 0")
            a(f"buffer_load_dwordx4 v{VW+i}, s[24:27], s67 offen lds")
        a("s_add_u32 s66, s66, 128"); a(f"s_add_u32 s67, s67, {64*6144}")
        a(f"s_add_u32 s68, s68, {K1_STAGE}"); a(f"s_cmp_eq_u32 s68, {4*K1_STAGE}"); a("s_cselect_b32 s68, 0, s68")
    stamp(a, opt, 1)
    issue(); issue()
    a("s_load_dwordx4 s[8:11], s[0:1], 32")
    a("s_load_dwordx2 s[12:13], s[0:1], 48")
    a("s_load_dwordx2 s[14:15], s[0:1], 72")
    a("s_waitcnt vmcnt(10)"); a("s_barrier")
    stamp(a, opt, 2)
    issue(); issue()
    a("s_waitcnt lgkmcnt(0)")
    make_srd(a, 28, 8, NB["bk"]); make_srd(a, 32, 10, NB["bv"])
    make_srd(a, 36, 16, WS_USED); make_srd(a, 40, 12, NB["shift"]); make_srd(a, 44, 14, NB["gw"])
    a("s_mov_b32 s60, 1")
    a.label(f"{name}_lloop")
    a("s_waitcnt vmcnt(20)")
    a("s_barrier")
    issue(True)
    a("s_add_u32 s60, s60, 1"); a("s_cmp_lt_u32 s60, 13"); a(f"s_cbranch_scc1 {name}_lloop")
    stamp(a, opt, 3)
    if not opt.get("nopre"):
        pl = Asm(); prepass_loads(pl)
        cut = [i for i, ln in enumerate(pl.lines) if ln.startswith("buffer_load")][10] + 1
        partA, partB = pl.lines[:cut], pl.lines[cut:]
        parts = prepass_parts(opt)
        a("s_waitcnt vmcnt(20)"); a("s_barrier")
        for ln in partA: a(ln)
        a("s_waitcnt vmcnt(21)"); a("s_barrier")
        for ln in partB: a(ln)
        a("s_waitcnt vmcnt(23)"); a("s_barrier")
        a("s_waitcnt vmcnt(8)")
    else:
        parts = [""]
        a("s_waitcnt vmcnt(20)"); a("s_barrier")
        a("s_waitcnt vmcnt(10)"); a("s_barrier")
        a("s_waitcnt vmcnt(0)"); a("s_barrier")
    stamp(a, opt, 4)
    a(parts[0])
    stamp(a, opt, 5)
    a("s_waitcnt vmcnt(0)")
    stamp(a, opt, 6)
    stamp_dump(a, opt, 7, 50)
    a("s_waitcnt vmcnt(0)")
    a.label(f"{name}_done")
    a("s_endpgm")

def prepass_loads(a):
    n = 0
    a("s_and_b32 s70, s2, 15"); a("s_lshr_b32 s71, s2, 4")
    a("v_lshrrev_b32 v20, 3, v0"); a("v_and_b32 v21, 7, v0")
    a("s_lshl_b32 s72, s70, 7"); a("s_lshl_b32 s73, s53, 5"); a("s_add_u32 s72, s72, s73")
    a("v_lshl_add_u32 v22, v20, 2, s72")
    a("s_lshl_b32 s73, s71, 6"); a("v_lshl_add_u32 v23, v21, 3, s73")
    a("v_lshlrev_b32 v24, 11, v22"); a("v_lshl_add_u32 v24, v23, 1, v24")
    a("v_subrev_u32 v25, 6144, v24")
    for r in range(7):
        if r: a("v_add_u32 v25, 2048, v25")
        a(f"buffer_load_dwordx4 {vr(32+4*r,4)}, v25, s[28:31], 0 offen"); n += 1
    a("v_add_u32 v26, 4096, v24")
    for r in range(4):
        a(f"buffer_load_dwordx4 {vr(60+4*r,4)}, v{24 if r < 2 else 26}, s[32:35], 0 offen offset:{2048*(r & 1)}"); n += 1
    a("v_lshlrev_b32 v27, 3, v23")
    for q in range(4):
        a(f"buffer_load_dwordx4 {vr(76+4*q,4)}, v27, s[40:43], 0 offen offset:{16*q}"); n += 1
    a("s_lshl_b32 s73, s2, 3"); a("s_lshl_b32 s74, s53, 1"); a("s_add_u32 s73, s73, s74")
    a("v_lshrrev_b32 v28, 5, v0"); a("v_add_u32 v28, s73, v28")
    a("v_and_b32 v29, 31, v0"); a("v_lshlrev_b32 v29, 4, v29")
    a("v_lshl_add_u32 v30, v28, 11, v29")
    for i in range(4):
        a(f"buffer_load_dwordx4 {vr(92+4*i,4)}, v30, s[20:23], 0 offen offset:{512*i}"); n += 1
    for i in range(4):
        a(f"buffer_load_dwordx4 {vr(108+4*i,4)}, v29, s[44:47], 0 offen offset:{512*i}"); n += 1
    a("v_lshlrev_b32 v31, 12, v23"); a("v_lshl_add_u32 v31, v22, 1, v31")
    a(f"s_mov_b32 s72, {WS_UT}")
    a("s_mov_b32 s74, 0x05040100"); a("s_mov_b32 s75, 0x07060302")
    return n

def prepass_parts(opt):
    a = Asm()
    P = 128; KS = 140; VU = 148
    for c in range(8):
        cp, h = c >> 1, c & 1
        sel = "s75" if h else "s74"
        pb = P + 6*(c & 1)
        kb = KS + 4*(c & 1)
        for t in range(6):
            a(f"v_perm_b32 v{pb+t}, v{32+4*t+cp}, v{32+4*(t+1)+cp}, {sel}")
        for r in range(4):
            a(f"v_dot2_f32_bf16 v{kb+r}, v{pb+r+2}, v{76+2*c}, 0")
        for r in range(4):
            a(f"v_dot2_f32_bf16 v{kb+r}, v{pb+r}, v{76+2*c+1}, v{kb+r}")
        for r in range(4):
            if h: a(f"v_and_b32 v{VU+r}, 0xffff0000, v{60+4*r+cp}")
            else: a(f"v_lshlrev_b32 v{VU+r}, 16, v{60+4*r+cp}")
        for r in range(4):
            a(f"v_mul_f32 v{kb+r}, v{kb+r}, v{VU+r}")
        o = 152 + 2*(c & 3)
        a(f"v_cvt_pk_bf16_f32 v{o}, v{kb}, v{kb+1}")
        a(f"v_cvt_pk_bf16_f32 v{o+1}, v{kb+2}, v{kb+3}")
        a(f"s_add_u32 s73, s72, {c*4096}")
        a(f"buffer_store_dwordx2 {vr(o,2)}, v31, s[36:39], s73 offen")
    a("s_waitcnt vmcnt(8)")
    a("v_mov_b32 v128, 0")
    for i in range(16):
        a(f"v_dot2_f32_bf16 v128, v{92+i}, v{108+i}, v128")
    a("s_nop 3")
    for ctl in ("quad_perm:[1,0,3,2]", "quad_perm:[2,3,0,1]", "row_half_mirror", "row_mirror"):
        a(f"v_add_f32_dpp v128, v128, v128 {ctl} row_mask:0xf bank_mask:0xf")
        a("s_nop 1")
    a("v_mov_b32 v129, v128")
    a("s_nop 1")
    a("v_permlane16_swap_b32 v128, v129")
    a("s_nop 1")
    a("v_add_f32 v128, v128, v129")
    a("v_mul_f32 v128, 0xbfb8aa3b, v128")
    a("v_exp_f32 v128, v128")
    a("s_nop 0")
    a("v_add_f32 v128, 1.0, v128")
    a("v_rcp_f32 v128, v128")
    a("v_lshlrev_b32 v28, 2, v28")
    a("v_and_b32 v29, 31, v0")
    a("v_cmp_eq_u32 vcc, 0, v29")
    a("s_and_saveexec_b64 s[62:63], vcc")
    a(f"s_mov_b32 s73, {WS_G}")
    a("buffer_store_dword v128, v28, s[36:39], s73 offen")
    a("s_mov_b64 exec, s[62:63]")
    return [a.text().rstrip("\n"), "", ""]

K2_TS = 4160
K2_F  = 4 * K2_TS
K2_WB = 4 * K2_TS + 4608
K2_OS = 4 * K2_WB
K2_LDS = K2_OS + 4 * 6144

def k2(a, opt):
    name = "k2_kernel"
    kernel_begin(a, name)
    a("s_cmp_ge_u32 s2, 256")
    a(f"s_cbranch_scc1 {name}_done")
    stamp(a, opt, 0)
    a("s_load_dwordx4 s[4:7], s[0:1], 56")
    a("s_load_dwordx2 s[16:17], s[0:1], 96")
    a("v_lshrrev_b32 v1, 6, v0")
    a("v_and_b32 v0, 63, v0")
    a("v_readfirstlane_b32 s50, v1")
    a("s_and_b32 s51, s2, 7")
    a("s_lshr_b32 s52, s2, 3")
    a("s_cmp_ge_u32 s50, 4")
    a(f"s_cbranch_scc1 {name}_rd")

    a("s_lshl_b32 s53, s51, 7"); a("s_lshl_b32 s54, s52, 2"); a("s_add_u32 s53, s53, s54"); a("s_add_u32 s53, s53, s50")
    a(f"s_mul_i32 s54, s50, {K2_WB}")
    a("s_lshl_b32 s55, s53, 12")
    a("v_lshlrev_b32 v1, 2, v0")
    a("v_lshlrev_b32 v2, 4, v0")
    a("v_subrev_u32 v3, 4, v1")
    a("v_add_u32 v4, 252, v1")
    a("s_waitcnt lgkmcnt(0)")
    a("s_add_u32 s20, s4, s55"); a("s_addc_u32 s21, s5, 0"); a("s_mov_b32 s22, 4096"); a("s_mov_b32 s23, 0x00020000")
    make_srd(a, 36, 16, WS_USED)
    E = 32; E1 = 48
    a(f"s_add_u32 s56, s55, {WS_UT}")
    for i in range(4):
        a(f"s_add_u32 m0, s54, {K2_F + 480 + i*1024}")
        a(f"s_add_u32 s57, s56, {i*1024}")
        a("buffer_load_dwordx4 v2, s[36:39], s57 offen lds")
    for j in range(16):
        a(f"buffer_load_dword v{E+j}, v1, s[20:23], 0 offen offset:{256*j}")
        if j == 0: a(f"buffer_load_dword v{E1}, v3, s[20:23], 0 offen")
        else:      a(f"buffer_load_dword v{E1+j}, v4, s[20:23], 0 offen offset:{256*(j-1)}")
    a("s_lshl_b32 s57, s53, 1"); a("s_and_b32 s57, s57, 0xfffffffc")
    a("s_add_u32 s6, s6, s57"); a("s_addc_u32 s7, s7, 0")
    a("s_load_dword s58, s[6:7], 0")
    a("v_mov_b32 v8, 0"); a("v_mov_b32 v9, 0"); a("v_mov_b32 v10, 0"); a("v_mov_b32 v11, 0")
    a(f"s_add_u32 s57, s54, {K2_F}")
    a("v_min_u32 v5, 29, v0"); a("v_lshl_add_u32 v5, v5, 4, s57")
    a("ds_write_b128 v5, v[8:11]")
    a("v_lshrrev_b32 v5, 3, v0"); a("v_and_b32 v5, 3, v5"); a(f"v_mul_u32_u24 v5, {K2_TS}, v5")
    a("v_and_b32 v6, 7, v0"); a("v_lshl_add_u32 v5, v6, 2, v5")
    a(f"s_add_u32 s57, s54, {8 + 4*1023}"); a("v_add_u32 v5, s57, v5")
    a("ds_write_b32 v5, v8")
    TW = 12
    for rho in range(4):
        a(f"s_add_u32 s57, s54, {rho*K2_TS + 256 + (4 if rho >= 2 else 0)}")
        a(f"v_sub_u32 v{TW+rho}, s57, v1")
    a("v_and_b32 v5, 3, v0"); a(f"v_mul_u32_u24 v5, {K2_TS}, v5")
    a("v_bfe_u32 v6, v0, 2, 2"); a("v_lshlrev_b32 v6, 3, v6"); a("v_sub_u32 v5, v5, v6")
    a("v_lshrrev_b32 v7, 4, v0"); a("v_lshl_add_u32 v5, v7, 4, v5")
    a(f"s_add_u32 s57, s54, {8 + 24 + 448}"); a("v_add_u32 v16, s57, v5")
    a("v_and_b32 v5, 15, v0"); a("v_lshlrev_b32 v5, 5, v5"); a("v_lshl_add_u32 v5, v7, 4, v5")
    a(f"s_add_u32 s57, s54, {K2_F + 448}"); a("v_add_u32 v17, s57, v5")
    stamp(a, opt, 1)
    a("s_mov_b32 s59, 0xffff")
    a("s_waitcnt vmcnt(0)")
    a("s_barrier")
    stamp(a, opt, 2)
    S = 64; M = 80
    for j in range(16):
        a(f"v_alignbit_b32 v{S+j}, v{E+j}, v{E+j}, 16")
        a(f"v_bfi_b32 v{M+j}, s59, v{E+j}, v{E1+j}")
    for j in range(0, 16, 2):
        for rho in range(4):
            src = S if rho & 1 else M
            a(f"ds_write2st64_b32 v{TW+rho}, v{src+j}, v{src+j+1} offset0:{15-j} offset1:{14-j}")
    FR = 96; ACC = 32
    def tf(b, k1): return FR + b*64 + k1*4
    def ff(b, n1): return FR + b*64 + 32 + n1*4
    def rd(b):
        L = []
        for i in range(8):
            L.append(f"ds_read_b64 {vr(tf(b,i),2)}, v16 offset:{512*(7-i)}")
            L.append(f"ds_read_b64 {vr(tf(b,i)+2,2)}, v16 offset:{512*(7-i)+8}")
            L.append(f"ds_read_b128 {vr(ff(b,i),4)}, v17 offset:{512*i}")
        return L
    def mm(b, first):
        L = []
        seen = set()
        for k1 in range(8):
            for n1 in range(8 - k1):
                t = k1 + n1
                d = vr(ACC + 4*t, 4)
                c = "0" if (first and t not in seen) else d
                seen.add(t)
                L.append(f"v_mfma_f32_16x16x32_bf16 {d}, {vr(tf(b,k1),4)}, {vr(ff(b,n1),4)}, {c}")
        return L
    a("s_waitcnt lgkmcnt(0)")
    stamp(a, opt, 3)
    for s_ in rd(0): a(s_)
    a("v_subrev_u32 v16, 64, v16"); a("v_subrev_u32 v17, 64, v17")
    def resid(b, first, last):
        Ms = mm(b, first)
        R = [] if last else rd(b ^ 1)
        a("s_waitcnt lgkmcnt(0)")
        for i, m_ in enumerate(Ms):
            a(m_)
            if R: a(R.pop(0))
        if not last:
            a("v_subrev_u32 v16, 64, v16"); a("v_subrev_u32 v17, 64, v17")
    resid(0, True, False)
    resid(1, False, False)
    a("s_mov_b32 s60, 0")
    a.label(f"{name}_cl")
    resid(0, False, False)
    resid(1, False, False)
    a("s_add_u32 s60, s60, 1"); a("s_cmp_lt_u32 s60, 2"); a(f"s_cbranch_scc1 {name}_cl")
    resid(0, False, False)
    resid(1, False, True)
    stamp(a, opt, 4)
    a("v_and_b32 v5, 15, v0"); a("v_lshlrev_b32 v5, 5, v5"); a("v_lshl_add_u32 v5, v7, 3, v5")
    a(f"s_add_u32 s57, s54, {K2_F + 480}"); a("v_add_u32 v6, s57, v5")
    for t in range(8):
        a(f"ds_read_b64 {vr(FR+2*t,2)}, v6 offset:{512*t}")
    a("s_lshl_b32 s57, s58, 16"); a("s_and_b32 s58, s58, 0xffff0000")
    a("s_and_b32 s61, s53, 1"); a("s_cmp_eq_u32 s61, 0"); a("s_cselect_b32 s58, s57, s58")
    a(f"s_add_u32 s56, s55, {WS_YT}")
    a("s_waitcnt lgkmcnt(0)")
    for t in range(8):
        u0 = FR + 2*t; y = ACC + 4*t; tmp = FR + 16 + 4*(t & 1)
        a(f"v_lshlrev_b32 v{tmp}, 16, v{u0}"); a(f"v_and_b32 v{tmp+1}, 0xffff0000, v{u0}")
        a(f"v_lshlrev_b32 v{tmp+2}, 16, v{u0+1}"); a(f"v_and_b32 v{tmp+3}, 0xffff0000, v{u0+1}")
        for r in range(4): a(f"v_fmac_f32 v{y+r}, s58, v{tmp+r}")
        a(f"v_cvt_pk_bf16_f32 v{y}, v{y}, v{y+1}"); a(f"v_cvt_pk_bf16_f32 v{y+1}, v{y+2}, v{y+3}")
        a(f"buffer_store_dwordx2 {vr(y,2)}, v5, s[36:39], s56 offen offset:{512*t}")
    stamp(a, opt, 5)
    a("s_waitcnt vmcnt(0)")
    stamp(a, opt, 6)
    stamp_dump(a, opt, 7, 50, region=1)
    a("s_waitcnt vmcnt(0)")
    a("s_endpgm")

    a.label(f"{name}_rd")
    a("s_sub_u32 s53, s50, 4")
    a("s_lshl_b32 s54, s51, 2"); a("s_and_b32 s55, s52, 3"); a("s_add_u32 s54, s54, s55")
    a("s_lshr_b32 s55, s52, 2")
    a("v_and_b32 v2, 15, v0"); a("v_lshrrev_b32 v3, 4, v0")
    a("v_lshlrev_b32 v4, 4, v0")
    a("v_lshlrev_b32 v5, 4, v3")
    a("s_lshl_b32 s56, s54, 4"); a("s_lshl_b32 s57, s53, 2"); a("s_add_u32 s56, s56, s57")
    a("s_lshl_b32 s57, s56, 12"); a(f"s_add_u32 s57, s57, {WS_KVP}")
    a("s_lshl_b32 s58, s56, 7"); a(f"s_add_u32 s58, s58, {WS_ZP}")
    a("s_lshl_b32 s59, s55, 8"); a("s_lshl_b32 s60, s53, 6"); a("s_add_u32 s59, s59, s60")
    a("v_add_u32 v6, s59, v2"); a("v_lshlrev_b32 v6, 11, v6")
    a("s_lshl_b32 s60, s54, 6"); a("v_lshl_add_u32 v7, v3, 3, s60"); a("v_add_u32 v7, v6, v7")
    a("s_waitcnt lgkmcnt(0)")
    make_srd(a, 36, 16, WS_USED)
    PR = 32
    for p in range(4):
        for q in range(4):
            a(f"buffer_load_dwordx4 {vr(PR+24*p+4*q,4)}, v4, s[36:39], s57 offen offset:{q*1024}")
        for ud in range(2):
            a(f"buffer_load_dwordx4 {vr(PR+24*p+16+4*ud,4)}, v5, s[36:39], s58 offen offset:{ud*64}")
        a("s_add_u32 s57, s57, 4096"); a("s_add_u32 s58, s58, 128")
    QR = 128
    for ai in range(4):
        a(f"s_mov_b32 s60, {WS_PQ + 16*ai*2048}")
        a(f"buffer_load_dwordx2 {vr(QR+4*ai,2)}, v7, s[36:39], s60 offen")
        a(f"buffer_load_dwordx2 {vr(QR+4*ai+2,2)}, v7, s[36:39], s60 offen offset:32")
    a(f"s_mov_b32 s56, {LOG2E:#x}"); a(f"s_mov_b32 s57, {LOG2E:#x}")
    a(f"s_mov_b32 s58, {EPS:#x}"); a(f"s_mov_b32 s59, {EPS:#x}")
    stamp(a, opt, 1)
    a("s_waitcnt vmcnt(8)")
    for r in range(24):
        a(f"v_add_f32 v{PR+r}, v{PR+r}, v{PR+24+r}"); a(f"v_add_f32 v{PR+48+r}, v{PR+48+r}, v{PR+72+r}")
    for r in range(24):
        a(f"v_add_f32 v{PR+r}, v{PR+r}, v{PR+48+r}")
    a(f"s_mul_i32 s60, s53, 6144"); a(f"s_add_u32 s60, s60, {K2_OS}"); a("v_add_u32 v8, s60, v4")
    for q in range(6):
        a(f"ds_write_b128 v8, {vr(PR+4*q,4)} offset:{q*1024}")
    a("s_waitcnt lgkmcnt(0)")
    a("s_barrier")
    stamp(a, opt, 2)
    a(f"v_add_u32 v8, {K2_OS}, v4")
    for p in range(4):
        for q in range(6):
            a(f"ds_read_b128 {vr(PR+24*p+4*q,4)}, v8 offset:{p*6144+q*1024}")
    BF = 144
    a("s_waitcnt vmcnt(0)")
    T = 160
    for ai in range(4):
        for dw in range(4):
            a(f"v_lshlrev_b32 v{T}, 16, v{QR+4*ai+dw}"); a(f"v_and_b32 v{T+1}, 0xffff0000, v{QR+4*ai+dw}")
            phi_pair(a, T, T + 2)
            a(f"v_cvt_pk_bf16_f32 v{BF+4*ai+dw}, v{T}, v{T+1}")
    a("s_waitcnt lgkmcnt(0)")
    for r in range(24):
        a(f"v_add_f32 v{PR+r}, v{PR+r}, v{PR+24+r}"); a(f"v_add_f32 v{PR+48+r}, v{PR+48+r}, v{PR+72+r}")
    for r in range(24):
        a(f"v_add_f32 v{PR+r}, v{PR+r}, v{PR+48+r}")
    KA = 164; ZF = 172
    for ue in range(2):
        for ud in range(2):
            t = PR + (ud*2+ue)*4
            a(f"v_cvt_pk_bf16_f32 v{KA+4*ue+2*ud}, v{t}, v{t+1}"); a(f"v_cvt_pk_bf16_f32 v{KA+4*ue+2*ud+1}, v{t+2}, v{t+3}")
    for ud in range(2):
        t = PR + 16 + 4*ud
        a(f"v_cvt_pk_bf16_f32 v{ZF+2*ud}, v{t}, v{t+1}"); a(f"v_cvt_pk_bf16_f32 v{ZF+2*ud+1}, v{t+2}, v{t+3}")
    a("s_nop 1")
    O = 64
    for ai in range(4):
        for ue in range(2):
            a(f"v_mfma_f32_16x16x32_bf16 {vr(O+(ai*3+ue)*4,4)}, {vr(KA+4*ue,4)}, {vr(BF+4*ai,4)}, 0")
        a(f"v_mfma_f32_16x16x32_bf16 {vr(O+(ai*3+2)*4,4)}, {vr(ZF,4)}, {vr(BF+4*ai,4)}, 0")
    stamp(a, opt, 3)
    a("v_and_b32 v8, 1, v3"); a("v_lshlrev_b32 v8, 5, v8"); a("v_lshrrev_b32 v9, 1, v3"); a("v_lshl_add_u32 v8, v9, 4, v8")
    a("s_lshl_b32 s60, s54, 6"); a("v_add3_u32 v8, v6, v8, s60")
    a("s_nop 7")
    OP = 128
    for ai in range(4):
        dn = O + (ai*3+2)*4
        a(f"v_add_f32 v{dn}, s58, v{dn}")
        a(f"v_rcp_f32 v{dn}, v{dn}")
        a("s_nop 0")
        for ue in range(2):
            t = O + (ai*3+ue)*4
            for r in range(4): a(f"v_mul_f32 v{t+r}, v{t+r}, v{dn}")
            a(f"v_cvt_pk_bf16_f32 v{OP+4*ai+2*ue}, v{t}, v{t+1}"); a(f"v_cvt_pk_bf16_f32 v{OP+4*ai+2*ue+1}, v{t+2}, v{t+3}")
    a("s_nop 1")
    for ai in range(4):
        o = OP + 4*ai
        a(f"v_permlane16_swap_b32 v{o}, v{o+2}"); a(f"v_permlane16_swap_b32 v{o+1}, v{o+3}")
    for ai in range(4):
        a(f"s_mov_b32 s60, {WS_O + 16*ai*2048}")
        a(f"buffer_store_dwordx4 {vr(OP+4*ai,4)}, v8, s[36:39], s60 offen")
    stamp(a, opt, 4); stamp(a, opt, 5)
    a("s_waitcnt vmcnt(0)")
    stamp(a, opt, 6)
    stamp_dump(a, opt, 7, 50, region=1)
    a("s_waitcnt vmcnt(0)")
    a.label(f"{name}_done")
    a("s_endpgm")

K3_NS = 6
K3_STAGE = 24576
K3_Y = K3_NS * K3_STAGE

def k3(a, opt):
    name = "k3_kernel"
    NS = K3_NS
    kernel_begin(a, name)
    a("s_cmp_ge_u32 s2, 256")
    a(f"s_cbranch_scc1 {name}_done")
    stamp(a, opt, 0)
    a("s_load_dwordx2 s[6:7], s[0:1], 16")
    a("s_load_dwordx2 s[16:17], s[0:1], 96")
    a("v_lshrrev_b32 v1, 6, v0")
    a("v_and_b32 v0, 63, v0")
    a("v_readfirstlane_b32 s50, v1")
    a("s_and_b32 s51, s2, 7"); a("s_lshr_b32 s52, s2, 3")
    a("s_and_b32 s53, s51, 3"); a("s_lshl_b32 s53, s53, 2"); a("s_and_b32 s54, s52, 3"); a("s_or_b32 s48, s53, s54")
    a("s_lshr_b32 s53, s51, 2"); a("s_lshl_b32 s53, s53, 3"); a("s_lshr_b32 s54, s52, 2"); a("s_or_b32 s49, s53, s54")
    a("s_cmp_ge_u32 s50, 4")
    a(f"s_cbranch_scc1 {name}_loader")

    def acc(ai, u): return 64 + (u*4 + ai)*4
    def xf(buf, ai): return 96 + buf*24 + ai*4
    def wf(buf, u): return 96 + buf*24 + 16 + u*4
    XA = 8; WA = 12
    a("s_load_dwordx2 s[4:5], s[0:1], 0")
    a("s_load_dwordx2 s[8:9], s[0:1], 80")
    a("s_lshr_b32 s53, s50, 1")
    a("s_and_b32 s54, s50, 1")
    a("v_and_b32 v2, 15, v0"); a("v_lshrrev_b32 v3, 4, v0")
    a("v_lshrrev_b32 v4, 1, v2"); a("v_xor_b32 v4, v4, v3")
    a("s_lshl_b32 s55, s53, 13")
    a("v_lshlrev_b32 v5, 7, v2"); a("v_add_u32 v5, s55, v5")
    a(f"v_lshl_add_u32 v{XA}, v4, 4, v5")
    a("v_xor_b32 v6, 4, v4"); a(f"v_lshl_add_u32 v{XA+1}, v6, 4, v5")
    for kk in range(2): a(f"v_add_u32 v{XA+2+kk}, {3*K3_STAGE}, v{XA+kk}")
    a("v_bfe_u32 v6, v0, 2, 2")
    a("v_lshl_add_u32 v7, v3, 3, v6"); a("v_lshlrev_b32 v7, 7, v7")
    a("v_and_b32 v18, 3, v0"); a("v_lshl_add_u32 v7, v18, 3, v7")
    a("v_add_u32 v7, 16384, v7")
    a("v_bfe_u32 v18, v0, 3, 1"); a("v_bfe_u32 v19, v0, 4, 1"); a("v_lshl_or_b32 v18, v19, 1, v18")
    a("s_lshl_b32 s55, s54, 1")
    a("v_xor_b32 v18, s55, v18")
    a(f"v_lshl_add_u32 v{WA}, v18, 5, v7")
    a("v_xor_b32 v18, 1, v18"); a(f"v_lshl_add_u32 v{WA+1}, v18, 5, v7")
    for u in range(2): a(f"v_add_u32 v{WA+2+u}, {3*K3_STAGE}, v{WA+u}")
    for r in range(64, 96): a(f"v_mov_b32 v{r}, 0")
    a("s_waitcnt lgkmcnt(0)")
    make_srd(a, 20, 4, NB["x"]); make_srd(a, 24, 8, NB["out"]); make_srd(a, 36, 16, WS_USED)
    a("s_lshl_b32 s55, s48, 7"); a("s_lshl_b32 s61, s53, 6"); a("s_add_u32 s55, s55, s61")
    a("v_add_u32 v20, s55, v2")
    a("v_lshlrev_b32 v21, 11, v20")
    a("s_lshl_b32 s55, s49, 7"); a("s_lshl_b32 s61, s54, 6"); a("s_add_u32 s55, s55, s61")
    a("v_lshl_add_u32 v22, v3, 3, s55"); a("v_add_u32 v22, v21, v22")
    XR = 24
    GR = 40
    for ai in range(4):
        a(f"s_mov_b32 s61, {16*ai*2048}")
        for u in range(2):
            a(f"buffer_load_dwordx2 {vr(XR+(ai*2+u)*2,2)}, v22, s[20:23], s61 offen offset:{32*u}")
    a("v_lshlrev_b32 v23, 2, v20"); a(f"s_mov_b32 s61, {WS_G}")
    for ai in range(4):
        a(f"buffer_load_dword v{GR+ai}, v23, s[36:39], s61 offen offset:{64*ai}")

    def reads(st, kk, buf):
        slot = st % NS
        hi = 2 if slot >= 3 else 0
        so = (slot % 3) * K3_STAGE
        X = [f"ds_read_b128 {vr(xf(buf,ai),4)}, v{XA+hi+kk} offset:{so + ai*2048}" for ai in range(4)]
        W = [[f"ds_read_b64_tr_b16 {vr(wf(buf,u)+2*sec,2)}, v{WA+hi+u} offset:{so + kk*4096 + sec*512}" for sec in range(2)] for u in range(2)]
        return W[0] + [X[0], X[1]] + W[1] + [X[2], X[3]]
    def mfmas(buf):
        return [f"v_mfma_f32_16x16x32_bf16 {vr(acc(ai,u),4)}, {vr(wf(buf,u),4)}, {vr(xf(buf,ai),4)}, {vr(acc(ai,u),4)}"
                for u in range(2) for ai in range(4)]
    def step(buf, nxt, barrier=False):
        M = mfmas(buf); q = list(nxt)
        if barrier:
            a(M[0]); a(M[1]); a("s_barrier")
            for i in range(2, 8):
                a(M[i])
                for _ in range(2):
                    if q: a(q.pop(0))
        else:
            for i in range(8):
                a(M[i])
                for _ in range(2):
                    if q: a(q.pop(0))
        for s_ in q: a(s_)
    stamp(a, opt, 1)
    a("s_barrier")
    stamp(a, opt, 2)
    for s_ in reads(0, 0, 0): a(s_)
    for st in range(16):
        a("s_waitcnt lgkmcnt(0)")
        step(0, reads(st, 1, 1))
        a("s_waitcnt lgkmcnt(0)")
        if st < 15: step(1, reads(st + 1, 0, 0), barrier=True)
        else:
            step(1, [])
    stamp(a, opt, 3)
    a("s_barrier")
    a("v_bfe_u32 v6, v0, 2, 2"); a("v_lshl_add_u32 v6, v3, 2, v6")
    a("s_lshl_b32 s55, s54, 5"); a("v_add_u32 v6, s55, v6"); a("v_lshlrev_b32 v6, 8, v6")
    a("v_and_b32 v7, 3, v0"); a("v_lshl_add_u32 v6, v7, 3, v6")
    a("s_lshl_b32 s55, s53, 7"); a(f"s_add_u32 s55, s55, {K3_Y}"); a("v_add_u32 v6, s55, v6")
    YR = 96
    for ai in range(4):
        for u in range(2):
            a(f"ds_read_b64_tr_b16 {vr(YR+(ai*2+u)*2,2)}, v6 offset:{u*16*256 + ai*32}")
    a("s_lshl_b32 s55, s49, 7"); a("s_lshl_b32 s61, s54, 6"); a("s_add_u32 s55, s55, s61")
    a("v_and_b32 v8, 1, v3"); a("v_lshlrev_b32 v8, 5, v8"); a("v_lshrrev_b32 v9, 1, v3"); a("v_lshl_add_u32 v8, v9, 4, v8")
    a("v_add3_u32 v8, v21, v8, s55")
    a("s_waitcnt vmcnt(0) lgkmcnt(0)")
    OP = 112; T = 128
    for ai in range(4):
        g_ = GR + ai
        a(f"v_sub_f32 v{T+8}, 1.0, v{g_}")
        for u in range(2):
            t = acc(ai, u); xr = XR + (ai*2+u)*2; yr = YR + (ai*2+u)*2
            for dw in range(2):
                a(f"v_lshlrev_b32 v{T}, 16, v{xr+dw}"); a(f"v_and_b32 v{T+1}, 0xffff0000, v{xr+dw}")
                a(f"v_lshlrev_b32 v{T+2}, 16, v{yr+dw}"); a(f"v_and_b32 v{T+3}, 0xffff0000, v{yr+dw}")
                a(f"v_mul_f32 v{T}, v{T}, v{T+2}"); a(f"v_mul_f32 v{T+1}, v{T+1}, v{T+3}")
                a(f"v_mul_f32 v{T}, v{T}, v{T+8}"); a(f"v_mul_f32 v{T+1}, v{T+1}, v{T+8}")
                a(f"v_fmac_f32 v{T}, v{g_}, v{t+2*dw}"); a(f"v_fmac_f32 v{T+1}, v{g_}, v{t+2*dw+1}")
                a(f"v_cvt_pk_bf16_f32 v{OP+4*ai+2*u+dw}, v{T}, v{T+1}")
    a("s_nop 1")
    for ai in range(4):
        o = OP + 4*ai
        a(f"v_permlane16_swap_b32 v{o}, v{o+2}"); a(f"v_permlane16_swap_b32 v{o+1}, v{o+3}")
    for ai in range(4):
        a(f"s_mov_b32 s61, {16*ai*2048}")
        a(f"buffer_store_dwordx4 {vr(OP+4*ai,4)}, v8, s[24:27], s61 offen")
    stamp(a, opt, 4); stamp(a, opt, 5)
    a("s_waitcnt vmcnt(0)")
    stamp(a, opt, 6)
    stamp_dump(a, opt, 7, 50, region=2)
    a("s_waitcnt vmcnt(0)")
    a("s_endpgm")

    a.label(f"{name}_loader")
    a("s_sub_u32 s53, s50, 4")
    VA = 8; VW = 12
    a("v_lshrrev_b32 v2, 3, v0"); a("v_and_b32 v3, 7, v0"); a("v_lshrrev_b32 v4, 4, v0")
    a("s_lshl_b32 s55, s48, 7"); a("s_lshl_b32 s61, s53, 5"); a("s_add_u32 s55, s55, s61")
    a("v_add_u32 v5, s55, v2"); a("v_lshlrev_b32 v5, 11, v5")
    a("v_xor_b32 v6, v4, v3"); a(f"v_lshl_add_u32 v{VA}, v6, 4, v5")
    a("v_xor_b32 v6, 4, v6"); a(f"v_lshl_add_u32 v{VA+1}, v6, 4, v5"); a(f"v_add_u32 v{VA+1}, 16384, v{VA+1}")
    for i in range(2, 4): a(f"v_add_u32 v{VA+i}, 32768, v{VA+(i&1)}")
    a("v_and_b32 v6, 1, v4"); a("v_lshlrev_b32 v6, 1, v6"); a("v_xor_b32 v6, v6, v3")
    a("v_lshlrev_b32 v5, 11, v2")
    a(f"s_lshl_b32 s55, s53, 15"); a("s_lshl_b32 s61, s49, 7"); a("s_add_u32 s55, s55, s61")
    a("v_add_u32 v5, s55, v5")
    a(f"v_lshl_add_u32 v{VW}, v6, 4, v5")
    a("v_xor_b32 v6, 4, v6"); a(f"v_lshl_add_u32 v{VW+1}, v6, 4, v5"); a(f"v_add_u32 v{VW+1}, 16384, v{VW+1}")
    a("v_lshrrev_b32 v6, 4, v0"); a("s_lshl_b32 s55, s49, 6"); a("s_lshl_b32 s61, s53, 4"); a("s_add_u32 s55, s55, s61")
    a("v_add_u32 v6, s55, v6"); a("v_lshlrev_b32 v6, 12, v6")
    a("v_and_b32 v7, 15, v0"); a("v_lshl_add_u32 v6, v7, 4, v6"); a("s_lshl_b32 s55, s48, 8"); a("v_add_u32 v14, s55, v6")
    a("s_lshl_b32 s64, s53, 12")
    a("s_lshl_b32 s65, s53, 11"); a("s_add_u32 s65, s65, 16384")
    a(f"s_mov_b32 s66, {WS_O}"); a("s_mov_b32 s67, 0"); a("s_mov_b32 s68, 0")
    a("s_waitcnt lgkmcnt(0)")
    make_srd(a, 36, 16, WS_USED); make_srd(a, 24, 6, NB["wo"])
    def issue():
        a("s_add_u32 s69, s64, s68"); a("s_add_u32 s55, s65, s68")
        for i in range(4):
            a(f"s_add_u32 m0, s69, {i*1024}"); a("s_nop 0")
            a(f"buffer_load_dwordx4 v{VA+i}, s[36:39], s66 offen lds")
        for i in range(2):
            a(f"s_add_u32 m0, s55, {i*1024}"); a("s_nop 0")
            a(f"buffer_load_dwordx4 v{VW+i}, s[24:27], s67 offen lds")
        a("s_add_u32 s66, s66, 128"); a(f"s_add_u32 s67, s67, {64*2048}")
        a(f"s_add_u32 s68, s68, {K3_STAGE}"); a(f"s_cmp_eq_u32 s68, {NS*K3_STAGE}"); a("s_cselect_b32 s68, 0, s68")
    stamp(a, opt, 1)
    issue(); issue()
    a("s_waitcnt vmcnt(6)"); a("s_barrier")
    stamp(a, opt, 2)
    for _ in range(2, NS): issue()
    nloop = 16 - NS
    a("s_mov_b32 s60, 1")
    a.label(f"{name}_lloop")
    a(f"s_waitcnt vmcnt({6*(NS-2)})"); a("s_barrier")
    issue()
    a("s_add_u32 s60, s60, 1"); a(f"s_cmp_lt_u32 s60, {nloop+1}"); a(f"s_cbranch_scc1 {name}_lloop")
    stamp(a, opt, 3)
    a(f"s_lshl_b32 s55, s53, 12"); a(f"s_add_u32 s55, s55, {K3_Y}")
    for i in range(4):
        a(f"s_add_u32 m0, s55, {i*1024}"); a(f"s_mov_b32 s61, {WS_YT + i*4*4096}")
        a("buffer_load_dwordx4 v14, s[36:39], s61 offen lds")
    for i in range(nloop + 1, 16):
        a(f"s_waitcnt vmcnt({6*(15-i) + 4})"); a("s_barrier")
    a("s_waitcnt vmcnt(0)"); a("s_barrier")
    stamp(a, opt, 4); stamp(a, opt, 5); stamp(a, opt, 6)
    stamp_dump(a, opt, 7, 50, region=2)
    a("s_waitcnt vmcnt(0)")
    a.label(f"{name}_done")
    a("s_endpgm")

def kd(a, opt):
    name = "kd_kernel"
    kernel_begin(a, name)
    a("s_cmp_ge_u32 s2, 1"); a(f"s_cbranch_scc1 {name}_done")
    a("s_load_dwordx2 s[4:5], s[0:1], 96"); a("s_load_dwordx2 s[6:7], s[0:1], 88")
    a("s_waitcnt lgkmcnt(0)")
    make_srd(a, 20, 4, 4 << 20, WS_STAMP); make_srd(a, 24, 6, 256)
    a("v_mul_u32_u24 v1, 52, v0"); a("v_lshrrev_b32 v1, 8, v1")
    a("v_mul_u32_u24 v2, 5, v1"); a("v_sub_u32 v2, v0, v2")
    a("v_lshlrev_b32 v3, 20, v1")
    a("v_mov_b32 v4, 56")
    a("v_cmp_eq_u32 vcc, 1, v2"); a("s_nop 1"); a("v_cndmask_b32 v4, v4, 60, vcc" if False else "v_cndmask_b32_e64 v4, v4, 60, vcc")
    a(f"v_mov_b32 v5, {255*8*64 + 56}"); a("v_cmp_eq_u32 vcc, 2, v2"); a("s_nop 1"); a("v_cndmask_b32 v4, v4, v5, vcc")
    a(f"v_mov_b32 v5, {255*8*64 + 60}"); a("v_cmp_eq_u32 vcc, 3, v2"); a("s_nop 1"); a("v_cndmask_b32 v4, v4, v5, vcc")
    a("v_mov_b32 v5, 24"); a("v_cmp_eq_u32 vcc, 4, v2"); a("s_nop 1"); a("v_cndmask_b32 v4, v4, v5, vcc")
    a("v_add_u32 v3, v3, v4")
    a("buffer_load_dword v6, v3, s[20:23], 0 offen")
    a("v_lshlrev_b32 v7, 2, v0")
    a("s_waitcnt vmcnt(0)")
    a("buffer_store_dword v6, v7, s[24:27], 0 offen")
    a("s_waitcnt vmcnt(0)")
    a.label(f"{name}_done")
    a("s_endpgm")

def ke(a, opt):
    kernel_begin(a, "ke_kernel")
    a("s_endpgm")

def kp(a, opt):
    name = "kp_kernel"
    kernel_begin(a, name)
    a("s_cmp_ge_u32 s2, 256"); a(f"s_cbranch_scc1 {name}_done")
    srcs = [("x", 16), ("bk", 16), ("bv", 16), ("ssmk", 16), ("wqkv", 24), ("wo", 8)]
    if opt.get("kp_xw"): srcs = [("x", 16), ("wqkv", 24)]
    for i, (n, kb) in enumerate(srcs): load_ptr(a, 4 + 2*i, n)
    a("v_and_b32 v1, 63, v0"); a("v_lshrrev_b32 v2, 6, v0"); a("s_nop 0"); a("v_readfirstlane_b32 s22, v2")
    a("v_lshlrev_b32 v5, 4, v1"); a("s_lshl_b32 s23, s22, 10")
    a("s_waitcnt lgkmcnt(0)")
    cnt = 0
    for i, (n, kb) in enumerate(srcs):
        make_srd(a, 32, 4 + 2*i, NB[n])
        a(f"s_mul_i32 s40, s2, {kb*1024}"); a("s_add_u32 s40, s40, s23")
        for j in range(kb // 4):
            a(f"s_add_u32 m0, s23, {(cnt % 24) * 4096}")
            a(f"s_add_u32 s42, s40, {j*4096}")
            a("buffer_load_dwordx4 v5, s[32:35], s42 offen lds")
            cnt += 1
    a("s_waitcnt vmcnt(0)")
    a.label(f"{name}_done"); a("s_endpgm")

def build(kernels, opt=None):
    opt = opt or {}
    a = Asm()
    spec = {"k1": ("k1_kernel", 256, 512, 163840), "k2": ("k2_kernel", 256, 512, K2_LDS), "k3": ("k3_kernel", 256, 512, 163840), "kd": ("kd_kernel", 1, 64, 0), "ke": ("ke_kernel", 256, 256, 0), "kp": ("kp_kernel", 256, 256, 98304)}
    for k in kernels:
        n, g, b, l = spec[k]
        a(f"; @launch kernel={n} grid=({g},1,1) block=({b},1,1) lds={l}")
    a('.amdgcn_target "amdgcn-amd-amdhsa--gfx950"')
    a(".text")
    for k in dict.fromkeys(kernels):
        globals()[k](a, opt)
    a('.section .rodata,"a"')
    for k in dict.fromkeys(kernels):
        kernel_desc(a, spec[k][0], vgpr=256, sgpr=96)
    return a.text()

if __name__ == "__main__":
    opt = {}
    for o in sys.argv[3:]:
        k, _, v = o.partition("=")
        opt[k] = int(v) if v else 1
    open(sys.argv[1], "w").write(build(sys.argv[2].split(","), opt))
```

```python
import sys
from asmlib import *

WS_PQ  = 0
WS_UT  = 4 << 20
WS_KVP = 8 << 20
WS_ZP  = 10 << 20
WS_G   = 11 << 20
WS_O   = 12 << 20
WS_YT  = 16 << 20
WS_USED = 20 << 20

LOG2E = 0x3fb8aa3b
EPS   = 0x358637bd

def vr(a, n=1):
    return f"v{a}" if n == 1 else f"v[{a}:{a+n-1}]"
def sr(a, n=1):
    return f"s{a}" if n == 1 else f"s[{a}:{a+n-1}]"

WS_STAMP = 24 << 20
def stamp(a, opt, i):
    if opt.get("stamps"):
        a(f"s_memtime s[{80+2*i}:{81+2*i}]")
        if i == 0: a("s_memrealtime s[94:95]")
def stamp_dump(a, opt, n, wave_sgpr, srd_base_sgpr=16, nwaves=8, region=0):
    if not opt.get("stamps"): return
    a("s_waitcnt lgkmcnt(0)")
    a(f"s_add_u32 s76, s{srd_base_sgpr}, {WS_STAMP + (region << 20)}"); a(f"s_addc_u32 s77, s{srd_base_sgpr+1}, 0")
    a("s_mov_b32 s78, 0x1000000"); a("s_mov_b32 s79, 0x00020000")
    a(f"s_mul_i32 s75, s2, {nwaves}"); a(f"s_add_u32 s75, s75, s{wave_sgpr}"); a("s_lshl_b32 s75, s75, 6")
    a("v_mov_b32 v1, s75")
    for i in range(n):
        if i == 0:
            a("v_mov_b32 v2, s80")
        else:
            a(f"s_sub_u32 s74, s{80+2*i}, s80"); a("v_mov_b32 v2, s74")
        a(f"buffer_store_dword v2, v1, s[76:79], 0 offen offset:{4*i}")
    a("s_memrealtime s[80:81]"); a("s_waitcnt lgkmcnt(0)"); a("v_mov_b32 v2, s80")
    a(f"buffer_store_dword v2, v1, s[76:79], 0 offen offset:60")
    a("v_mov_b32 v2, s94")
    a(f"buffer_store_dword v2, v1, s[76:79], 0 offen offset:56")

def phi_pair(a, t, tmp):
    a(f"v_pk_mul_f32 {vr(tmp,2)}, {vr(t,2)}, s[56:57]")
    a(f"v_exp_f32_e64 v{tmp}, v{tmp} clamp")
    a(f"v_exp_f32_e64 v{tmp+1}, v{tmp+1} clamp")
    a(f"v_max_f32 v{t}, 0, v{t}")
    a(f"v_max_f32 v{t+1}, 0, v{t+1}")
    a(f"v_pk_add_f32 {vr(t,2)}, {vr(t,2)}, {vr(tmp,2)}")
    a(f"v_pk_add_f32 {vr(t,2)}, {vr(t,2)}, s[58:59]")

K1_NS = 4
K1_STAGE = 40960

def k1(a, opt):
    name = "k1_kernel"
    kernel_begin(a, name)
    a("s_cmp_ge_u32 s2, 256")
    a(f"s_cbranch_scc1 {name}_done")
    stamp(a, opt, 0)
    a("s_load_dwordx4 s[4:7], s[0:1], 0")
    a("s_load_dwordx2 s[16:17], s[0:1], 96")
    a("v_lshrrev_b32 v1, 6, v0")
    a("v_and_b32 v0, 63, v0")
    a("v_readfirstlane_b32 s50, v1")
    a("s_and_b32 s51, s2, 7")
    a("s_lshr_b32 s52, s2, 3")
    a("s_lshl_b32 s53, s51, 3"); a("s_and_b32 s53, s53, 8"); a("s_and_b32 s54, s52, 7"); a("s_or_b32 s48, s53, s54")
    a("s_lshl_b32 s53, s51, 1"); a("s_and_b32 s53, s53, 12"); a("s_lshr_b32 s54, s52, 3"); a("s_or_b32 s49, s53, s54")
    a("s_cmp_ge_u32 s50, 4")
    a(f"s_cbranch_scc1 {name}_loader")

    def acc(ai, c, u): return 64 + ((c * 2 + u) * 4 + ai) * 4
    def xf(buf, ai): return 160 + buf * 40 + ai * 4
    def wf(buf, c, u): return 160 + buf * 40 + 16 + (c * 2 + u) * 4
    XA = 8
    WA = 12
    if not opt.get("noprio"): a("s_setprio 2")
    a("s_and_b32 s53, s50, 1")
    a("s_lshr_b32 s54, s50, 1")
    a("v_and_b32 v2, 15, v0")
    a("v_lshrrev_b32 v3, 4, v0")
    a("v_lshrrev_b32 v4, 1, v2"); a("v_xor_b32 v4, v4, v3")
    a("s_lshl_b32 s55, s53, 13")
    a("v_lshlrev_b32 v5, 7, v2"); a("v_add_u32 v5, s55, v5")
    a(f"v_lshl_add_u32 v{XA}, v4, 4, v5")
    a("v_xor_b32 v6, 4, v4"); a(f"v_lshl_add_u32 v{XA+1}, v6, 4, v5")
    for kk in range(2): a(f"v_add_u32 v{XA+2+kk}, {2*K1_STAGE}, v{XA+kk}")
    a("v_bfe_u32 v6, v0, 2, 2")
    a("v_lshl_add_u32 v7, v3, 3, v6"); a("v_lshlrev_b32 v7, 7, v7")
    a("v_and_b32 v18, 3, v0"); a("v_lshl_add_u32 v7, v18, 3, v7")
    a("v_add_u32 v7, 16384, v7")
    a("v_bfe_u32 v18, v0, 3, 1"); a("v_bfe_u32 v19, v0, 4, 1"); a("v_lshl_or_b32 v18, v19, 1, v18")
    a("s_lshl_b32 s55, s54, 1")
    a("v_xor_b32 v18, s55, v18")
    a(f"v_lshl_add_u32 v{WA}, v18, 5, v7")
    a("v_xor_b32 v18, 1, v18"); a(f"v_lshl_add_u32 v{WA+1}, v18, 5, v7")
    for u in range(2): a(f"v_add_u32 v{WA+2+u}, {2*K1_STAGE}, v{WA+u}")
    for r in range(64, 160): a(f"v_mov_b32 v{r}, 0")
    a(f"s_mov_b32 s56, {LOG2E:#x}"); a(f"s_mov_b32 s57, {LOG2E:#x}")
    a(f"s_mov_b32 s58, {EPS:#x}"); a(f"s_mov_b32 s59, {EPS:#x}")
    a("s_waitcnt lgkmcnt(0)")
    make_srd(a, 36, 16, WS_USED)

    def reads(slot, kk, buf):
        hi = 2 if slot >= 2 else 0
        so = (slot & 1) * K1_STAGE
        X = [f"ds_read_b128 {vr(xf(buf,ai),4)}, v{XA+hi+kk} offset:{so + ai*2048}" for ai in range(4)]
        W = {}
        for c in range(3):
            for u in range(2):
                W[c, u] = [f"ds_read_b64_tr_b16 {vr(wf(buf,c,u)+2*sec,2)}, v{WA+hi+u} offset:{so + c*8192 + kk*4096 + sec*512}" for sec in range(2)]
        return [X[0]] + W[0, 0] + [X[1], X[2], X[3]] + W[0, 1] + W[1, 0] + W[1, 1] + W[2, 0] + W[2, 1]
    def mfmas(buf):
        L = []
        for c in range(3):
            for u in range(2):
                for ai in range(4):
                    d = vr(acc(ai, c, u), 4)
                    if c == 0: L.append(f"v_mfma_f32_16x16x32_bf16 {d}, {vr(wf(buf,c,u),4)}, {vr(xf(buf,ai),4)}, {d}")
                    else:      L.append(f"v_mfma_f32_16x16x32_bf16 {d}, {vr(xf(buf,ai),4)}, {vr(wf(buf,c,u),4)}, {d}")
        return L
    def step(buf, nxt, barrier=False):
        M = mfmas(buf)
        if opt.get("nomfma"): M = ["s_nop 0"]*24
        if opt.get("noreads"): nxt = []
        q = list(nxt)
        first = 4 if barrier else 0
        for i in range(24):
            a(M[i])
            if barrier and i == first - 1: a("s_barrier")
            if i >= first - (1 if barrier else 0) and q: a(q.pop(0))
        for s_ in q: a(s_)

    stamp(a, opt, 1)
    a("s_barrier")
    stamp(a, opt, 2)
    for s in reads(0, 0, 0): a(s)
    a("s_mov_b32 s60, 0")
    a.label(f"{name}_cloop")
    for slot in range(4):
        for kk in range(2):
            buf = kk
            a("s_waitcnt lgkmcnt(0)")
            if kk == 0:
                step(buf, reads(slot, 1, 1))
            else:
                if slot == 3:
                    a("s_cmp_eq_u32 s60, 3")
                    a(f"s_cbranch_scc1 {name}_clast")
                step(buf, reads((slot + 1) & 3, 0, 0), barrier=True)
    a("s_add_u32 s60, s60, 1")
    a(f"s_branch {name}_cloop")
    a.label(f"{name}_clast")
    step(1, [])

    stamp(a, opt, 3)
    TMP = 20
    QF = 24
    a("s_lshl_b32 s55, s48, 7"); a("s_lshl_b32 s61, s53, 6"); a("s_add_u32 s55, s55, s61")
    a("v_add_u32 v5, s55, v2"); a("v_lshlrev_b32 v5, 11, v5")
    a("s_lshl_b32 s55, s49, 7"); a("s_lshl_b32 s61, s54, 6"); a("s_add_u32 s55, s55, s61")
    a("v_and_b32 v6, 1, v3"); a("v_lshlrev_b32 v6, 5, v6"); a("v_lshrrev_b32 v7, 1, v3"); a("v_lshl_add_u32 v6, v7, 4, v6")
    a("v_add3_u32 v5, v5, v6, s55")
    for ai in range(4): a(f"s_mov_b32 s{61+ai}, {WS_PQ + 16*ai*2048}")
    for ai in range(4):
        for u in range(2):
            t = acc(ai, 0, u); o = QF + ai*4 + u*2
            a(f"v_cvt_pk_bf16_f32 v{o}, v{t}, v{t+1}")
            a(f"v_cvt_pk_bf16_f32 v{o+1}, v{t+2}, v{t+3}")
    a("s_nop 1")
    for ai in range(4):
        o = QF + ai*4
        a(f"v_permlane16_swap_b32 v{o}, v{o+2}")
        a(f"v_permlane16_swap_b32 v{o+1}, v{o+3}")
    for ai in range(4):
        a(f"buffer_store_dwordx4 {vr(QF+ai*4,4)}, v5, s[36:39], s{61+ai} offen")
    KF = 160; VF = 176
    def kf(u, ks): return KF + (u*2 + ks)*4
    def vf(u, ks): return VF + (u*2 + ks)*4
    for u in range(2):
        for ai in range(4):
            t = acc(ai, 1, u); o = kf(u, ai >> 1) + (ai & 1)*2
            phi_pair(a, t, TMP); phi_pair(a, t + 2, TMP + 2)
            a(f"v_cvt_pk_bf16_f32 v{o}, v{t}, v{t+1}")
            a(f"v_cvt_pk_bf16_f32 v{o+1}, v{t+2}, v{t+3}")
    for u in range(2):
        for ai in range(4):
            t = acc(ai, 2, u); o = vf(u, ai >> 1) + (ai & 1)*2
            a(f"v_cvt_pk_bf16_f32 v{o}, v{t}, v{t+1}")
            a(f"v_cvt_pk_bf16_f32 v{o+1}, v{t+2}, v{t+3}")
    ONES = 192
    for r in range(4): a(f"v_mov_b32 v{ONES+r}, 0x3f803f80")
    KVA = 64; ZA = 80
    a("s_nop 1")
    for ks in range(2):
        for ud in range(2):
            for ue in range(2):
                d = vr(KVA + (ud*2+ue)*4, 4)
                a(f"v_mfma_f32_16x16x32_bf16 {d}, {vr(kf(ud,ks),4)}, {vr(vf(ue,ks),4)}, {'0' if ks == 0 else d}")
            d = vr(ZA + ud*4, 4)
            a(f"v_mfma_f32_16x16x32_bf16 {d}, {vr(kf(ud,ks),4)}, {vr(ONES,4)}, {'0' if ks == 0 else d}")
    stamp(a, opt, 4)
    a("s_lshl_b32 s55, s54, 13")
    a("v_lshlrev_b32 v6, 4, v0"); a("v_add_u32 v6, s55, v6")
    a("s_nop 7")
    a("s_cmp_eq_u32 s53, 0")
    a(f"s_cbranch_scc1 {name}_cred0")
    for q in range(6):
        a(f"ds_write_b128 v6, {vr(KVA+4*q,4)} offset:{q*1024}")
    a("s_waitcnt lgkmcnt(0)")
    a("s_barrier")
    a(f"s_branch {name}_cend")
    a.label(f"{name}_cred0")
    a("s_barrier")
    R = 24
    for q in range(6):
        a(f"ds_read_b128 {vr(R+4*q,4)}, v6 offset:{q*1024}")
    a("s_lshl_b32 s55, s49, 1"); a("s_add_u32 s55, s55, s54"); a("s_lshl_b32 s55, s55, 4"); a("s_add_u32 s55, s55, s48")
    a("s_lshl_b32 s61, s55, 12"); a(f"s_add_u32 s61, s61, {WS_KVP}")
    a("s_lshl_b32 s62, s55, 7"); a(f"s_add_u32 s62, s62, {WS_ZP}")
    a("v_lshlrev_b32 v6, 4, v0")
    a("v_lshlrev_b32 v7, 4, v3")
    a("s_waitcnt lgkmcnt(0)")
    for r in range(24):
        a(f"v_add_f32 v{KVA+r}, v{KVA+r}, v{R+r}")
    for q in range(4):
        a(f"buffer_store_dwordx4 {vr(KVA+4*q,4)}, v6, s[36:39], s61 offen offset:{q*1024}")
    a("v_cmp_eq_u32 vcc, 0, v2")
    a("s_and_saveexec_b64 s[64:65], vcc")
    for ud in range(2):
        a(f"buffer_store_dwordx4 {vr(ZA+4*ud,4)}, v7, s[36:39], s62 offen offset:{ud*64}")
    a("s_mov_b64 exec, s[64:65]")
    a.label(f"{name}_cend")
    stamp(a, opt, 5)
    a("s_waitcnt vmcnt(0)")
    stamp(a, opt, 6)
    stamp_dump(a, opt, 7, 50)
    a("s_waitcnt vmcnt(0)")
    a("s_endpgm")

    a.label(f"{name}_loader")
    a("s_sub_u32 s53, s50, 4")
    VA = 8
    VW = 12
    a("v_lshrrev_b32 v2, 3, v0")
    a("v_and_b32 v3, 7, v0")
    a("v_lshrrev_b32 v4, 4, v0")
    a("s_lshl_b32 s55, s48, 7"); a("s_lshl_b32 s61, s53, 5"); a("s_add_u32 s55, s55, s61")
    a("v_add_u32 v5, s55, v2"); a("v_lshlrev_b32 v5, 11, v5")
    a("v_xor_b32 v6, v4, v3"); a(f"v_lshl_add_u32 v{VA}, v6, 4, v5")
    a("v_xor_b32 v6, 4, v6"); a(f"v_lshl_add_u32 v{VA+1}, v6, 4, v5"); a(f"v_add_u32 v{VA+1}, 16384, v{VA+1}")
    for i in range(2, 4): a(f"v_add_u32 v{VA+i}, 32768, v{VA+(i&1)}")
    a("v_and_b32 v6, 1, v4"); a("v_lshlrev_b32 v6, 1, v6"); a("v_xor_b32 v6, v6, v3")
    a("v_mul_u32_u24 v5, 6144, v2")
    a(f"s_mul_i32 s55, s53, {2*8*6144}"); a("s_lshl_b32 s61, s49, 7"); a("s_add_u32 s55, s55, s61")
    a("v_add_u32 v5, s55, v5")
    a(f"v_lshl_add_u32 v{VW}, v6, 4, v5")
    a("v_xor_b32 v6, 4, v6"); a(f"v_lshl_add_u32 v{VW+1}, v6, 4, v5"); a(f"v_add_u32 v{VW+1}, {8*6144}, v{VW+1}")
    WL = [(seg, r2) for seg in range(3) for r2 in range(2)]
    for i, (seg, r2) in enumerate(WL):
        if i >= 2: a(f"v_add_u32 v{VW+i}, {seg*2048}, v{VW + r2}")
    a("s_lshl_b32 s64, s53, 12")
    a("s_lshl_b32 s65, s53, 11"); a("s_add_u32 s65, s65, 16384")
    rot = opt.get("rot1", 4)
    if rot == 0: a("s_mov_b32 s46, 0")
    elif rot == 2: a("s_add_u32 s46, s54, s52"); a("s_and_b32 s46, s46, 1"); a("s_lshl_b32 s46, s46, 3")
    elif rot == 4: a("s_lshr_b32 s46, s52, 3"); a("s_add_u32 s46, s46, s52"); a("s_and_b32 s46, s46, 3"); a("s_lshl_b32 s46, s46, 2")
    elif rot == 8: a("s_lshr_b32 s46, s52, 3"); a("s_lshl_b32 s46, s46, 1"); a("s_add_u32 s46, s46, s52"); a("s_and_b32 s46, s46, 7"); a("s_lshl_b32 s46, s46, 1")
    a("s_lshl_b32 s66, s46, 7"); a(f"s_mul_i32 s67, s46, {64*6144}"); a("s_mov_b32 s68, 0")
    a("s_waitcnt lgkmcnt(0)")
    make_srd(a, 20, 4, NB["x"]); make_srd(a, 24, 6, NB["wqkv"])
    def issue(inloop=False):
        if inloop and opt.get("nodma"): return
        a("s_add_u32 s69, s64, s68")
        a("s_add_u32 s55, s65, s68")
        for i in range(4):
            a(f"s_add_u32 m0, s69, {i*1024}"); a("s_nop 0")
            a(f"buffer_load_dwordx4 v{VA+i}, s[20:23], s66 offen lds")
        for i, (seg, r2) in enumerate(WL):
            a(f"s_add_u32 m0, s55, {seg*8192 + r2*1024}"); a("s_nop 0")
            a(f"buffer_load_dwordx4 v{VW+i}, s[24:27], s67 offen lds")
        a("s_add_u32 s66, s66, 128"); a(f"s_add_u32 s67, s67, {64*6144}")
        a("s_cmp_eq_u32 s66, 2048"); a("s_cselect_b32 s66, 0, s66"); a("s_cselect_b32 s67, 0, s67")
        a(f"s_add_u32 s68, s68, {K1_STAGE}"); a(f"s_cmp_eq_u32 s68, {4*K1_STAGE}"); a("s_cselect_b32 s68, 0, s68")
    stamp(a, opt, 1)
    issue(); issue()
    a("s_load_dwordx4 s[8:11], s[0:1], 32")
    a("s_load_dwordx2 s[12:13], s[0:1], 48")
    a("s_load_dwordx2 s[14:15], s[0:1], 72")
    a("s_waitcnt vmcnt(10)"); a("s_barrier")
    stamp(a, opt, 2)
    issue(); issue()
    a("s_waitcnt lgkmcnt(0)")
    make_srd(a, 28, 8, NB["bk"]); make_srd(a, 32, 10, NB["bv"])
    make_srd(a, 36, 16, WS_USED); make_srd(a, 40, 12, NB["shift"]); make_srd(a, 44, 14, NB["gw"])
    a("s_mov_b32 s60, 1")
    a.label(f"{name}_lloop")
    a("s_waitcnt vmcnt(20)")
    a("s_barrier")
    issue(True)
    a("s_add_u32 s60, s60, 1"); a("s_cmp_lt_u32 s60, 13"); a(f"s_cbranch_scc1 {name}_lloop")
    stamp(a, opt, 3)
    if not opt.get("nopre"):
        pl = Asm(); prepass_loads(pl)
        cut = [i for i, ln in enumerate(pl.lines) if ln.startswith("buffer_load")][10] + 1
        partA, partB = pl.lines[:cut], pl.lines[cut:]
        parts = prepass_parts(opt)
        a("s_waitcnt vmcnt(20)"); a("s_barrier")
        for ln in partA: a(ln)
        a("s_waitcnt vmcnt(21)"); a("s_barrier")
        for ln in partB: a(ln)
        a("s_waitcnt vmcnt(23)"); a("s_barrier")
        a("s_waitcnt vmcnt(8)")
    else:
        parts = [""]
        a("s_waitcnt vmcnt(20)"); a("s_barrier")
        a("s_waitcnt vmcnt(10)"); a("s_barrier")
        a("s_waitcnt vmcnt(0)"); a("s_barrier")
    stamp(a, opt, 4)
    a(parts[0])
    stamp(a, opt, 5)
    a("s_waitcnt vmcnt(0)")
    stamp(a, opt, 6)
    stamp_dump(a, opt, 7, 50)
    a("s_waitcnt vmcnt(0)")
    a.label(f"{name}_done")
    a("s_endpgm")

def prepass_loads(a):
    n = 0
    a("s_and_b32 s70, s2, 15"); a("s_lshr_b32 s71, s2, 4")
    a("v_lshrrev_b32 v20, 3, v0"); a("v_and_b32 v21, 7, v0")
    a("s_lshl_b32 s72, s70, 7"); a("s_lshl_b32 s73, s53, 5"); a("s_add_u32 s72, s72, s73")
    a("v_lshl_add_u32 v22, v20, 2, s72")
    a("s_lshl_b32 s73, s71, 6"); a("v_lshl_add_u32 v23, v21, 3, s73")
    a("v_lshlrev_b32 v24, 11, v22"); a("v_lshl_add_u32 v24, v23, 1, v24")
    a("v_subrev_u32 v25, 6144, v24")
    for r in range(7):
        if r: a("v_add_u32 v25, 2048, v25")
        a(f"buffer_load_dwordx4 {vr(32+4*r,4)}, v25, s[28:31], 0 offen"); n += 1
    a("v_add_u32 v26, 4096, v24")
    for r in range(4):
        a(f"buffer_load_dwordx4 {vr(60+4*r,4)}, v{24 if r < 2 else 26}, s[32:35], 0 offen offset:{2048*(r & 1)}"); n += 1
    a("v_lshlrev_b32 v27, 3, v23")
    for q in range(4):
        a(f"buffer_load_dwordx4 {vr(76+4*q,4)}, v27, s[40:43], 0 offen offset:{16*q}"); n += 1
    a("s_lshl_b32 s73, s2, 3"); a("s_lshl_b32 s74, s53, 1"); a("s_add_u32 s73, s73, s74")
    a("v_lshrrev_b32 v28, 5, v0"); a("v_add_u32 v28, s73, v28")
    a("v_and_b32 v29, 31, v0"); a("v_lshlrev_b32 v29, 4, v29")
    a("v_lshl_add_u32 v30, v28, 11, v29")
    for i in range(4):
        a(f"buffer_load_dwordx4 {vr(92+4*i,4)}, v30, s[20:23], 0 offen offset:{512*i}"); n += 1
    for i in range(4):
        a(f"buffer_load_dwordx4 {vr(108+4*i,4)}, v29, s[44:47], 0 offen offset:{512*i}"); n += 1
    a("v_lshlrev_b32 v31, 12, v23"); a("v_lshl_add_u32 v31, v22, 1, v31")
    a(f"s_mov_b32 s72, {WS_UT}")
    a("s_mov_b32 s74, 0x05040100"); a("s_mov_b32 s75, 0x07060302")
    return n

def prepass_parts(opt):
    a = Asm()
    P = 128; KS = 140; VU = 148
    for c in range(8):
        cp, h = c >> 1, c & 1
        sel = "s75" if h else "s74"
        pb = P + 6*(c & 1)
        kb = KS + 4*(c & 1)
        for t in range(6):
            a(f"v_perm_b32 v{pb+t}, v{32+4*t+cp}, v{32+4*(t+1)+cp}, {sel}")
        for r in range(4):
            a(f"v_dot2_f32_bf16 v{kb+r}, v{pb+r+2}, v{76+2*c}, 0")
        for r in range(4):
            a(f"v_dot2_f32_bf16 v{kb+r}, v{pb+r}, v{76+2*c+1}, v{kb+r}")
        for r in range(4):
            if h: a(f"v_and_b32 v{VU+r}, 0xffff0000, v{60+4*r+cp}")
            else: a(f"v_lshlrev_b32 v{VU+r}, 16, v{60+4*r+cp}")
        for r in range(4):
            a(f"v_mul_f32 v{kb+r}, v{kb+r}, v{VU+r}")
        o = 152 + 2*(c & 3)
        a(f"v_cvt_pk_bf16_f32 v{o}, v{kb}, v{kb+1}")
        a(f"v_cvt_pk_bf16_f32 v{o+1}, v{kb+2}, v{kb+3}")
        a(f"s_add_u32 s73, s72, {c*4096}")
        a(f"buffer_store_dwordx2 {vr(o,2)}, v31, s[36:39], s73 offen")
    a("s_waitcnt vmcnt(8)")
    a("v_mov_b32 v128, 0")
    for i in range(16):
        a(f"v_dot2_f32_bf16 v128, v{92+i}, v{108+i}, v128")
    a("s_nop 3")
    for ctl in ("quad_perm:[1,0,3,2]", "quad_perm:[2,3,0,1]", "row_half_mirror", "row_mirror"):
        a(f"v_add_f32_dpp v128, v128, v128 {ctl} row_mask:0xf bank_mask:0xf")
        a("s_nop 1")
    a("v_mov_b32 v129, v128")
    a("s_nop 1")
    a("v_permlane16_swap_b32 v128, v129")
    a("s_nop 1")
    a("v_add_f32 v128, v128, v129")
    a("v_mul_f32 v128, 0xbfb8aa3b, v128")
    a("v_exp_f32 v128, v128")
    a("s_nop 0")
    a("v_add_f32 v128, 1.0, v128")
    a("v_rcp_f32 v128, v128")
    a("v_lshlrev_b32 v28, 2, v28")
    a("v_and_b32 v29, 31, v0")
    a("v_cmp_eq_u32 vcc, 0, v29")
    a("s_and_saveexec_b64 s[62:63], vcc")
    a(f"s_mov_b32 s73, {WS_G}")
    a("buffer_store_dword v128, v28, s[36:39], s73 offen")
    a("s_mov_b64 exec, s[62:63]")
    return [a.text().rstrip("\n"), "", ""]

K2_TS = 4160
K2_F  = 4 * K2_TS
K2_WB = 4 * K2_TS + 4608
K2_OS = 4 * K2_WB
K2_LDS = K2_OS + 4 * 6144

def k2(a, opt):
    name = "k2_kernel"
    kernel_begin(a, name)
    a("s_cmp_ge_u32 s2, 256")
    a(f"s_cbranch_scc1 {name}_done")
    stamp(a, opt, 0)
    a("s_load_dwordx4 s[4:7], s[0:1], 56")
    a("s_load_dwordx2 s[16:17], s[0:1], 96")
    a("v_lshrrev_b32 v1, 6, v0")
    a("v_and_b32 v0, 63, v0")
    a("v_readfirstlane_b32 s50, v1")
    a("s_and_b32 s51, s2, 7")
    a("s_lshr_b32 s52, s2, 3")
    a("s_cmp_ge_u32 s50, 4")
    a(f"s_cbranch_scc1 {name}_rd")

    a("s_lshl_b32 s53, s51, 7"); a("s_lshl_b32 s54, s52, 2"); a("s_add_u32 s53, s53, s54"); a("s_add_u32 s53, s53, s50")
    a(f"s_mul_i32 s54, s50, {K2_WB}")
    a("s_lshl_b32 s55, s53, 12")
    a("v_lshlrev_b32 v1, 2, v0")
    a("v_lshlrev_b32 v2, 4, v0")
    a("v_subrev_u32 v3, 4, v1")
    a("v_add_u32 v4, 252, v1")
    a("s_waitcnt lgkmcnt(0)")
    a("s_add_u32 s20, s4, s55"); a("s_addc_u32 s21, s5, 0"); a("s_mov_b32 s22, 4096"); a("s_mov_b32 s23, 0x00020000")
    make_srd(a, 36, 16, WS_USED)
    E = 32; E1 = 48
    a(f"s_add_u32 s56, s55, {WS_UT}")
    for i in range(4):
        a(f"s_add_u32 m0, s54, {K2_F + 480 + i*1024}")
        a(f"s_add_u32 s57, s56, {i*1024}")
        a("buffer_load_dwordx4 v2, s[36:39], s57 offen lds")
    for j in range(16):
        a(f"buffer_load_dword v{E+j}, v1, s[20:23], 0 offen offset:{256*j}")
        if j == 0: a(f"buffer_load_dword v{E1}, v3, s[20:23], 0 offen")
        else:      a(f"buffer_load_dword v{E1+j}, v4, s[20:23], 0 offen offset:{256*(j-1)}")
    a("s_lshl_b32 s57, s53, 1"); a("s_and_b32 s57, s57, 0xfffffffc")
    a("s_add_u32 s6, s6, s57"); a("s_addc_u32 s7, s7, 0")
    a("s_load_dword s58, s[6:7], 0")
    a("v_mov_b32 v8, 0"); a("v_mov_b32 v9, 0"); a("v_mov_b32 v10, 0"); a("v_mov_b32 v11, 0")
    a(f"s_add_u32 s57, s54, {K2_F}")
    a("v_min_u32 v5, 29, v0"); a("v_lshl_add_u32 v5, v5, 4, s57")
    a("ds_write_b128 v5, v[8:11]")
    a("v_lshrrev_b32 v5, 3, v0"); a("v_and_b32 v5, 3, v5"); a(f"v_mul_u32_u24 v5, {K2_TS}, v5")
    a("v_and_b32 v6, 7, v0"); a("v_lshl_add_u32 v5, v6, 2, v5")
    a(f"s_add_u32 s57, s54, {8 + 4*1023}"); a("v_add_u32 v5, s57, v5")
    a("ds_write_b32 v5, v8")
    TW = 12
    for rho in range(4):
        a(f"s_add_u32 s57, s54, {rho*K2_TS + 256 + (4 if rho >= 2 else 0)}")
        a(f"v_sub_u32 v{TW+rho}, s57, v1")
    a("v_and_b32 v5, 3, v0"); a(f"v_mul_u32_u24 v5, {K2_TS}, v5")
    a("v_bfe_u32 v6, v0, 2, 2"); a("v_lshlrev_b32 v6, 3, v6"); a("v_sub_u32 v5, v5, v6")
    a("v_lshrrev_b32 v7, 4, v0"); a("v_lshl_add_u32 v5, v7, 4, v5")
    a(f"s_add_u32 s57, s54, {8 + 24 + 448}"); a("v_add_u32 v16, s57, v5")
    a("v_and_b32 v5, 15, v0"); a("v_lshlrev_b32 v5, 5, v5"); a("v_lshl_add_u32 v5, v7, 4, v5")
    a(f"s_add_u32 s57, s54, {K2_F + 448}"); a("v_add_u32 v17, s57, v5")
    stamp(a, opt, 1)
    a("s_mov_b32 s59, 0xffff")
    a("s_waitcnt vmcnt(0)")
    a("s_barrier")
    stamp(a, opt, 2)
    S = 64; M = 80
    for j in range(16):
        a(f"v_alignbit_b32 v{S+j}, v{E+j}, v{E+j}, 16")
        a(f"v_bfi_b32 v{M+j}, s59, v{E+j}, v{E1+j}")
    for j in range(0, 16, 2):
        for rho in range(4):
            src = S if rho & 1 else M
            a(f"ds_write2st64_b32 v{TW+rho}, v{src+j}, v{src+j+1} offset0:{15-j} offset1:{14-j}")
    FR = 96; ACC = 32
    def tf(b, k1): return FR + b*64 + k1*4
    def ff(b, n1): return FR + b*64 + 32 + n1*4
    def rd(b):
        L = []
        for i in range(8):
            L.append(f"ds_read_b64 {vr(tf(b,i),2)}, v16 offset:{512*(7-i)}")
            L.append(f"ds_read_b64 {vr(tf(b,i)+2,2)}, v16 offset:{512*(7-i)+8}")
            L.append(f"ds_read_b128 {vr(ff(b,i),4)}, v17 offset:{512*i}")
        return L
    def mm(b, first):
        L = []
        seen = set()
        for k1 in range(8):
            for n1 in range(8 - k1):
                t = k1 + n1
                d = vr(ACC + 4*t, 4)
                c = "0" if (first and t not in seen) else d
                seen.add(t)
                L.append(f"v_mfma_f32_16x16x32_bf16 {d}, {vr(tf(b,k1),4)}, {vr(ff(b,n1),4)}, {c}")
        return L
    a("s_waitcnt lgkmcnt(0)")
    stamp(a, opt, 3)
    for s_ in rd(0): a(s_)
    a("v_subrev_u32 v16, 64, v16"); a("v_subrev_u32 v17, 64, v17")
    def resid(b, first, last):
        Ms = mm(b, first)
        R = [] if last else rd(b ^ 1)
        a("s_waitcnt lgkmcnt(0)")
        for i, m_ in enumerate(Ms):
            a(m_)
            if R: a(R.pop(0))
        if not last:
            a("v_subrev_u32 v16, 64, v16"); a("v_subrev_u32 v17, 64, v17")
    resid(0, True, False)
    resid(1, False, False)
    a("s_mov_b32 s60, 0")
    a.label(f"{name}_cl")
    resid(0, False, False)
    resid(1, False, False)
    a("s_add_u32 s60, s60, 1"); a("s_cmp_lt_u32 s60, 2"); a(f"s_cbranch_scc1 {name}_cl")
    resid(0, False, False)
    resid(1, False, True)
    stamp(a, opt, 4)
    a("v_and_b32 v5, 15, v0"); a("v_lshlrev_b32 v5, 5, v5"); a("v_lshl_add_u32 v5, v7, 3, v5")
    a(f"s_add_u32 s57, s54, {K2_F + 480}"); a("v_add_u32 v6, s57, v5")
    for t in range(8):
        a(f"ds_read_b64 {vr(FR+2*t,2)}, v6 offset:{512*t}")
    a("s_lshl_b32 s57, s58, 16"); a("s_and_b32 s58, s58, 0xffff0000")
    a("s_and_b32 s61, s53, 1"); a("s_cmp_eq_u32 s61, 0"); a("s_cselect_b32 s58, s57, s58")
    a(f"s_add_u32 s56, s55, {WS_YT}")
    a("s_waitcnt lgkmcnt(0)")
    for t in range(8):
        u0 = FR + 2*t; y = ACC + 4*t; tmp = FR + 16 + 4*(t & 1)
        a(f"v_lshlrev_b32 v{tmp}, 16, v{u0}"); a(f"v_and_b32 v{tmp+1}, 0xffff0000, v{u0}")
        a(f"v_lshlrev_b32 v{tmp+2}, 16, v{u0+1}"); a(f"v_and_b32 v{tmp+3}, 0xffff0000, v{u0+1}")
        for r in range(4): a(f"v_fmac_f32 v{y+r}, s58, v{tmp+r}")
        a(f"v_cvt_pk_bf16_f32 v{y}, v{y}, v{y+1}"); a(f"v_cvt_pk_bf16_f32 v{y+1}, v{y+2}, v{y+3}")
        a(f"buffer_store_dwordx2 {vr(y,2)}, v5, s[36:39], s56 offen offset:{512*t}")
    stamp(a, opt, 5)
    a("s_waitcnt vmcnt(0)")
    stamp(a, opt, 6)
    stamp_dump(a, opt, 7, 50, region=1)
    a("s_waitcnt vmcnt(0)")
    a("s_endpgm")

    a.label(f"{name}_rd")
    a("s_sub_u32 s53, s50, 4")
    a("s_lshl_b32 s54, s51, 2"); a("s_and_b32 s55, s52, 3"); a("s_add_u32 s54, s54, s55")
    a("s_lshr_b32 s55, s52, 2")
    a("v_and_b32 v2, 15, v0"); a("v_lshrrev_b32 v3, 4, v0")
    a("v_lshlrev_b32 v4, 4, v0")
    a("v_lshlrev_b32 v5, 4, v3")
    a("s_lshl_b32 s56, s54, 4"); a("s_lshl_b32 s57, s53, 2"); a("s_add_u32 s56, s56, s57")
    a("s_lshl_b32 s57, s56, 12"); a(f"s_add_u32 s57, s57, {WS_KVP}")
    a("s_lshl_b32 s58, s56, 7"); a(f"s_add_u32 s58, s58, {WS_ZP}")
    a("s_lshl_b32 s59, s55, 8"); a("s_lshl_b32 s60, s53, 6"); a("s_add_u32 s59, s59, s60")
    a("v_add_u32 v6, s59, v2"); a("v_lshlrev_b32 v6, 11, v6")
    a("s_lshl_b32 s60, s54, 6"); a("v_lshl_add_u32 v7, v3, 3, s60"); a("v_add_u32 v7, v6, v7")
    a("s_waitcnt lgkmcnt(0)")
    make_srd(a, 36, 16, WS_USED)
    PR = 32
    for p in range(4):
        for q in range(4):
            a(f"buffer_load_dwordx4 {vr(PR+24*p+4*q,4)}, v4, s[36:39], s57 offen offset:{q*1024}")
        for ud in range(2):
            a(f"buffer_load_dwordx4 {vr(PR+24*p+16+4*ud,4)}, v5, s[36:39], s58 offen offset:{ud*64}")
        a("s_add_u32 s57, s57, 4096"); a("s_add_u32 s58, s58, 128")
    QR = 128
    for ai in range(4):
        a(f"s_mov_b32 s60, {WS_PQ + 16*ai*2048}")
        a(f"buffer_load_dwordx2 {vr(QR+4*ai,2)}, v7, s[36:39], s60 offen")
        a(f"buffer_load_dwordx2 {vr(QR+4*ai+2,2)}, v7, s[36:39], s60 offen offset:32")
    a(f"s_mov_b32 s56, {LOG2E:#x}"); a(f"s_mov_b32 s57, {LOG2E:#x}")
    a(f"s_mov_b32 s58, {EPS:#x}"); a(f"s_mov_b32 s59, {EPS:#x}")
    stamp(a, opt, 1)
    a("s_waitcnt vmcnt(8)")
    for r in range(24):
        a(f"v_add_f32 v{PR+r}, v{PR+r}, v{PR+24+r}"); a(f"v_add_f32 v{PR+48+r}, v{PR+48+r}, v{PR+72+r}")
    for r in range(24):
        a(f"v_add_f32 v{PR+r}, v{PR+r}, v{PR+48+r}")
    a(f"s_mul_i32 s60, s53, 6144"); a(f"s_add_u32 s60, s60, {K2_OS}"); a("v_add_u32 v8, s60, v4")
    for q in range(6):
        a(f"ds_write_b128 v8, {vr(PR+4*q,4)} offset:{q*1024}")
    a("s_waitcnt lgkmcnt(0)")
    a("s_barrier")
    stamp(a, opt, 2)
    a(f"v_add_u32 v8, {K2_OS}, v4")
    for p in range(4):
        for q in range(6):
            a(f"ds_read_b128 {vr(PR+24*p+4*q,4)}, v8 offset:{p*6144+q*1024}")
    BF = 144
    a("s_waitcnt vmcnt(0)")
    T = 160
    for ai in range(4):
        for dw in range(4):
            a(f"v_lshlrev_b32 v{T}, 16, v{QR+4*ai+dw}"); a(f"v_and_b32 v{T+1}, 0xffff0000, v{QR+4*ai+dw}")
            phi_pair(a, T, T + 2)
            a(f"v_cvt_pk_bf16_f32 v{BF+4*ai+dw}, v{T}, v{T+1}")
    a("s_waitcnt lgkmcnt(0)")
    for r in range(24):
        a(f"v_add_f32 v{PR+r}, v{PR+r}, v{PR+24+r}"); a(f"v_add_f32 v{PR+48+r}, v{PR+48+r}, v{PR+72+r}")
    for r in range(24):
        a(f"v_add_f32 v{PR+r}, v{PR+r}, v{PR+48+r}")
    KA = 164; ZF = 172
    for ue in range(2):
        for ud in range(2):
            t = PR + (ud*2+ue)*4
            a(f"v_cvt_pk_bf16_f32 v{KA+4*ue+2*ud}, v{t}, v{t+1}"); a(f"v_cvt_pk_bf16_f32 v{KA+4*ue+2*ud+1}, v{t+2}, v{t+3}")
    for ud in range(2):
        t = PR + 16 + 4*ud
        a(f"v_cvt_pk_bf16_f32 v{ZF+2*ud}, v{t}, v{t+1}"); a(f"v_cvt_pk_bf16_f32 v{ZF+2*ud+1}, v{t+2}, v{t+3}")
    a("s_nop 1")
    O = 64
    for ai in range(4):
        for ue in range(2):
            a(f"v_mfma_f32_16x16x32_bf16 {vr(O+(ai*3+ue)*4,4)}, {vr(KA+4*ue,4)}, {vr(BF+4*ai,4)}, 0")
        a(f"v_mfma_f32_16x16x32_bf16 {vr(O+(ai*3+2)*4,4)}, {vr(ZF,4)}, {vr(BF+4*ai,4)}, 0")
    stamp(a, opt, 3)
    a("v_and_b32 v8, 1, v3"); a("v_lshlrev_b32 v8, 5, v8"); a("v_lshrrev_b32 v9, 1, v3"); a("v_lshl_add_u32 v8, v9, 4, v8")
    a("s_lshl_b32 s60, s54, 6"); a("v_add3_u32 v8, v6, v8, s60")
    a("s_nop 7")
    OP = 128
    for ai in range(4):
        dn = O + (ai*3+2)*4
        a(f"v_add_f32 v{dn}, s58, v{dn}")
        a(f"v_rcp_f32 v{dn}, v{dn}")
        a("s_nop 0")
        for ue in range(2):
            t = O + (ai*3+ue)*4
            for r in range(4): a(f"v_mul_f32 v{t+r}, v{t+r}, v{dn}")
            a(f"v_cvt_pk_bf16_f32 v{OP+4*ai+2*ue}, v{t}, v{t+1}"); a(f"v_cvt_pk_bf16_f32 v{OP+4*ai+2*ue+1}, v{t+2}, v{t+3}")
    a("s_nop 1")
    for ai in range(4):
        o = OP + 4*ai
        a(f"v_permlane16_swap_b32 v{o}, v{o+2}"); a(f"v_permlane16_swap_b32 v{o+1}, v{o+3}")
    for ai in range(4):
        a(f"s_mov_b32 s60, {WS_O + 16*ai*2048}")
        a(f"buffer_store_dwordx4 {vr(OP+4*ai,4)}, v8, s[36:39], s60 offen")
    stamp(a, opt, 4); stamp(a, opt, 5)
    a("s_waitcnt vmcnt(0)")
    stamp(a, opt, 6)
    stamp_dump(a, opt, 7, 50, region=1)
    a("s_waitcnt vmcnt(0)")
    a.label(f"{name}_done")
    a("s_endpgm")

K3_NS = 6
K3_STAGE = 24576
K3_Y = K3_NS * K3_STAGE

def k3(a, opt):
    name = "k3_kernel"
    NS = K3_NS
    kernel_begin(a, name)
    a("s_cmp_ge_u32 s2, 256")
    a(f"s_cbranch_scc1 {name}_done")
    stamp(a, opt, 0)
    a("s_load_dwordx2 s[6:7], s[0:1], 16")
    a("s_load_dwordx2 s[16:17], s[0:1], 96")
    a("v_lshrrev_b32 v1, 6, v0")
    a("v_and_b32 v0, 63, v0")
    a("v_readfirstlane_b32 s50, v1")
    a("s_and_b32 s51, s2, 7"); a("s_lshr_b32 s52, s2, 3")
    a("s_and_b32 s53, s51, 3"); a("s_lshl_b32 s53, s53, 2"); a("s_and_b32 s54, s52, 3"); a("s_or_b32 s48, s53, s54")
    a("s_lshr_b32 s53, s51, 2"); a("s_lshl_b32 s53, s53, 3"); a("s_lshr_b32 s54, s52, 2"); a("s_or_b32 s49, s53, s54")
    a("s_cmp_ge_u32 s50, 4")
    a(f"s_cbranch_scc1 {name}_loader")

    def acc(ai, u): return 64 + (u*4 + ai)*4
    def xf(buf, ai): return 96 + buf*24 + ai*4
    def wf(buf, u): return 96 + buf*24 + 16 + u*4
    XA = 8; WA = 12
    a("s_load_dwordx2 s[4:5], s[0:1], 0")
    a("s_load_dwordx2 s[8:9], s[0:1], 80")
    a("s_lshr_b32 s53, s50, 1")
    a("s_and_b32 s54, s50, 1")
    a("v_and_b32 v2, 15, v0"); a("v_lshrrev_b32 v3, 4, v0")
    a("v_lshrrev_b32 v4, 1, v2"); a("v_xor_b32 v4, v4, v3")
    a("s_lshl_b32 s55, s53, 13")
    a("v_lshlrev_b32 v5, 7, v2"); a("v_add_u32 v5, s55, v5")
    a(f"v_lshl_add_u32 v{XA}, v4, 4, v5")
    a("v_xor_b32 v6, 4, v4"); a(f"v_lshl_add_u32 v{XA+1}, v6, 4, v5")
    for kk in range(2): a(f"v_add_u32 v{XA+2+kk}, {3*K3_STAGE}, v{XA+kk}")
    a("v_bfe_u32 v6, v0, 2, 2")
    a("v_lshl_add_u32 v7, v3, 3, v6"); a("v_lshlrev_b32 v7, 7, v7")
    a("v_and_b32 v18, 3, v0"); a("v_lshl_add_u32 v7, v18, 3, v7")
    a("v_add_u32 v7, 16384, v7")
    a("v_bfe_u32 v18, v0, 3, 1"); a("v_bfe_u32 v19, v0, 4, 1"); a("v_lshl_or_b32 v18, v19, 1, v18")
    a("s_lshl_b32 s55, s54, 1")
    a("v_xor_b32 v18, s55, v18")
    a(f"v_lshl_add_u32 v{WA}, v18, 5, v7")
    a("v_xor_b32 v18, 1, v18"); a(f"v_lshl_add_u32 v{WA+1}, v18, 5, v7")
    for u in range(2): a(f"v_add_u32 v{WA+2+u}, {3*K3_STAGE}, v{WA+u}")
    for r in range(64, 96): a(f"v_mov_b32 v{r}, 0")
    a("s_waitcnt lgkmcnt(0)")
    make_srd(a, 20, 4, NB["x"]); make_srd(a, 24, 8, NB["out"]); make_srd(a, 36, 16, WS_USED)
    a("s_lshl_b32 s55, s48, 7"); a("s_lshl_b32 s61, s53, 6"); a("s_add_u32 s55, s55, s61")
    a("v_add_u32 v20, s55, v2")
    a("v_lshlrev_b32 v21, 11, v20")
    a("s_lshl_b32 s55, s49, 7"); a("s_lshl_b32 s61, s54, 6"); a("s_add_u32 s55, s55, s61")
    a("v_lshl_add_u32 v22, v3, 3, s55"); a("v_add_u32 v22, v21, v22")
    XR = 24
    GR = 40
    for ai in range(4):
        a(f"s_mov_b32 s61, {16*ai*2048}")
        for u in range(2):
            a(f"buffer_load_dwordx2 {vr(XR+(ai*2+u)*2,2)}, v22, s[20:23], s61 offen offset:{32*u}")
    a("v_lshlrev_b32 v23, 2, v20"); a(f"s_mov_b32 s61, {WS_G}")
    for ai in range(4):
        a(f"buffer_load_dword v{GR+ai}, v23, s[36:39], s61 offen offset:{64*ai}")

    def reads(st, kk, buf):
        slot = st % NS
        hi = 2 if slot >= 3 else 0
        so = (slot % 3) * K3_STAGE
        X = [f"ds_read_b128 {vr(xf(buf,ai),4)}, v{XA+hi+kk} offset:{so + ai*2048}" for ai in range(4)]
        W = [[f"ds_read_b64_tr_b16 {vr(wf(buf,u)+2*sec,2)}, v{WA+hi+u} offset:{so + kk*4096 + sec*512}" for sec in range(2)] for u in range(2)]
        return W[0] + [X[0], X[1]] + W[1] + [X[2], X[3]]
    def mfmas(buf):
        return [f"v_mfma_f32_16x16x32_bf16 {vr(acc(ai,u),4)}, {vr(wf(buf,u),4)}, {vr(xf(buf,ai),4)}, {vr(acc(ai,u),4)}"
                for u in range(2) for ai in range(4)]
    def step(buf, nxt, barrier=False):
        M = mfmas(buf); q = list(nxt)
        if barrier:
            a(M[0]); a(M[1]); a("s_barrier")
            for i in range(2, 8):
                a(M[i])
                for _ in range(2):
                    if q: a(q.pop(0))
        else:
            for i in range(8):
                a(M[i])
                for _ in range(2):
                    if q: a(q.pop(0))
        for s_ in q: a(s_)
    stamp(a, opt, 1)
    a("s_barrier")
    stamp(a, opt, 2)
    for s_ in reads(0, 0, 0): a(s_)
    for st in range(16):
        a("s_waitcnt lgkmcnt(0)")
        step(0, reads(st, 1, 1))
        a("s_waitcnt lgkmcnt(0)")
        if st < 15: step(1, reads(st + 1, 0, 0), barrier=True)
        else:
            step(1, [])
    stamp(a, opt, 3)
    a("s_barrier")
    a("v_bfe_u32 v6, v0, 2, 2"); a("v_lshl_add_u32 v6, v3, 2, v6")
    a("s_lshl_b32 s55, s54, 5"); a("v_add_u32 v6, s55, v6"); a("v_lshlrev_b32 v6, 8, v6")
    a("v_and_b32 v7, 3, v0"); a("v_lshl_add_u32 v6, v7, 3, v6")
    a("s_lshl_b32 s55, s53, 7"); a(f"s_add_u32 s55, s55, {K3_Y}"); a("v_add_u32 v6, s55, v6")
    YR = 96
    for ai in range(4):
        for u in range(2):
            a(f"ds_read_b64_tr_b16 {vr(YR+(ai*2+u)*2,2)}, v6 offset:{u*16*256 + ai*32}")
    a("s_lshl_b32 s55, s49, 7"); a("s_lshl_b32 s61, s54, 6"); a("s_add_u32 s55, s55, s61")
    a("v_and_b32 v8, 1, v3"); a("v_lshlrev_b32 v8, 5, v8"); a("v_lshrrev_b32 v9, 1, v3"); a("v_lshl_add_u32 v8, v9, 4, v8")
    a("v_add3_u32 v8, v21, v8, s55")
    a("s_waitcnt vmcnt(0) lgkmcnt(0)")
    OP = 112; T = 128
    for ai in range(4):
        g_ = GR + ai
        a(f"v_sub_f32 v{T+8}, 1.0, v{g_}")
        for u in range(2):
            t = acc(ai, u); xr = XR + (ai*2+u)*2; yr = YR + (ai*2+u)*2
            for dw in range(2):
                a(f"v_lshlrev_b32 v{T}, 16, v{xr+dw}"); a(f"v_and_b32 v{T+1}, 0xffff0000, v{xr+dw}")
                a(f"v_lshlrev_b32 v{T+2}, 16, v{yr+dw}"); a(f"v_and_b32 v{T+3}, 0xffff0000, v{yr+dw}")
                a(f"v_mul_f32 v{T}, v{T}, v{T+2}"); a(f"v_mul_f32 v{T+1}, v{T+1}, v{T+3}")
                a(f"v_mul_f32 v{T}, v{T}, v{T+8}"); a(f"v_mul_f32 v{T+1}, v{T+1}, v{T+8}")
                a(f"v_fmac_f32 v{T}, v{g_}, v{t+2*dw}"); a(f"v_fmac_f32 v{T+1}, v{g_}, v{t+2*dw+1}")
                a(f"v_cvt_pk_bf16_f32 v{OP+4*ai+2*u+dw}, v{T}, v{T+1}")
    a("s_nop 1")
    for ai in range(4):
        o = OP + 4*ai
        a(f"v_permlane16_swap_b32 v{o}, v{o+2}"); a(f"v_permlane16_swap_b32 v{o+1}, v{o+3}")
    for ai in range(4):
        a(f"s_mov_b32 s61, {16*ai*2048}")
        a(f"buffer_store_dwordx4 {vr(OP+4*ai,4)}, v8, s[24:27], s61 offen")
    stamp(a, opt, 4); stamp(a, opt, 5)
    a("s_waitcnt vmcnt(0)")
    stamp(a, opt, 6)
    stamp_dump(a, opt, 7, 50, region=2)
    a("s_waitcnt vmcnt(0)")
    a("s_endpgm")

    a.label(f"{name}_loader")
    a("s_sub_u32 s53, s50, 4")
    VA = 8; VW = 12
    a("v_lshrrev_b32 v2, 3, v0"); a("v_and_b32 v3, 7, v0"); a("v_lshrrev_b32 v4, 4, v0")
    a("s_lshl_b32 s55, s48, 7"); a("s_lshl_b32 s61, s53, 5"); a("s_add_u32 s55, s55, s61")
    a("v_add_u32 v5, s55, v2"); a("v_lshlrev_b32 v5, 11, v5")
    a("v_xor_b32 v6, v4, v3"); a(f"v_lshl_add_u32 v{VA}, v6, 4, v5")
    a("v_xor_b32 v6, 4, v6"); a(f"v_lshl_add_u32 v{VA+1}, v6, 4, v5"); a(f"v_add_u32 v{VA+1}, 16384, v{VA+1}")
    for i in range(2, 4): a(f"v_add_u32 v{VA+i}, 32768, v{VA+(i&1)}")
    a("v_and_b32 v6, 1, v4"); a("v_lshlrev_b32 v6, 1, v6"); a("v_xor_b32 v6, v6, v3")
    a("v_lshlrev_b32 v5, 11, v2")
    a(f"s_lshl_b32 s55, s53, 15"); a("s_lshl_b32 s61, s49, 7"); a("s_add_u32 s55, s55, s61")
    a("v_add_u32 v5, s55, v5")
    a(f"v_lshl_add_u32 v{VW}, v6, 4, v5")
    a("v_xor_b32 v6, 4, v6"); a(f"v_lshl_add_u32 v{VW+1}, v6, 4, v5"); a(f"v_add_u32 v{VW+1}, 16384, v{VW+1}")
    a("v_lshrrev_b32 v6, 4, v0"); a("s_lshl_b32 s55, s49, 6"); a("s_lshl_b32 s61, s53, 4"); a("s_add_u32 s55, s55, s61")
    a("v_add_u32 v6, s55, v6"); a("v_lshlrev_b32 v6, 12, v6")
    a("v_and_b32 v7, 15, v0"); a("v_lshl_add_u32 v6, v7, 4, v6"); a("s_lshl_b32 s55, s48, 8"); a("v_add_u32 v14, s55, v6")
    a("s_lshl_b32 s64, s53, 12")
    a("s_lshl_b32 s65, s53, 11"); a("s_add_u32 s65, s65, 16384")
    rot = opt.get("rot3", 4)
    if rot == 0: a("s_mov_b32 s46, 0")
    elif rot == 4: a("s_lshr_b32 s46, s52, 2"); a("s_add_u32 s46, s46, s52"); a("s_and_b32 s46, s46, 3"); a("s_lshl_b32 s46, s46, 2")
    elif rot == 8: a("s_lshr_b32 s46, s52, 2"); a("s_and_b32 s47, s52, 3"); a("s_lshl_b32 s47, s47, 1"); a("s_add_u32 s46, s46, s47"); a("s_and_b32 s46, s46, 7"); a("s_lshl_b32 s46, s46, 1")
    a("s_lshl_b32 s66, s46, 7"); a(f"s_add_u32 s66, s66, {WS_O}"); a(f"s_lshl_b32 s67, s46, 17"); a("s_mov_b32 s68, 0")
    a("s_waitcnt lgkmcnt(0)")
    make_srd(a, 36, 16, WS_USED); make_srd(a, 24, 6, NB["wo"])
    def issue():
        a("s_add_u32 s69, s64, s68"); a("s_add_u32 s55, s65, s68")
        for i in range(4):
            a(f"s_add_u32 m0, s69, {i*1024}"); a("s_nop 0")
            a(f"buffer_load_dwordx4 v{VA+i}, s[36:39], s66 offen lds")
        for i in range(2):
            a(f"s_add_u32 m0, s55, {i*1024}"); a("s_nop 0")
            a(f"buffer_load_dwordx4 v{VW+i}, s[24:27], s67 offen lds")
        a("s_add_u32 s66, s66, 128"); a(f"s_add_u32 s67, s67, {64*2048}")
        a(f"s_cmp_eq_u32 s66, {WS_O + 2048}"); a(f"s_cselect_b32 s66, {WS_O}, s66"); a("s_cselect_b32 s67, 0, s67")
        a(f"s_add_u32 s68, s68, {K3_STAGE}"); a(f"s_cmp_eq_u32 s68, {NS*K3_STAGE}"); a("s_cselect_b32 s68, 0, s68")
    stamp(a, opt, 1)
    issue(); issue()
    a("s_waitcnt vmcnt(6)"); a("s_barrier")
    stamp(a, opt, 2)
    for _ in range(2, NS): issue()
    nloop = 16 - NS
    a("s_mov_b32 s60, 1")
    a.label(f"{name}_lloop")
    a(f"s_waitcnt vmcnt({6*(NS-2)})"); a("s_barrier")
    issue()
    a("s_add_u32 s60, s60, 1"); a(f"s_cmp_lt_u32 s60, {nloop+1}"); a(f"s_cbranch_scc1 {name}_lloop")
    stamp(a, opt, 3)
    a(f"s_lshl_b32 s55, s53, 12"); a(f"s_add_u32 s55, s55, {K3_Y}")
    for i in range(4):
        a(f"s_add_u32 m0, s55, {i*1024}"); a(f"s_mov_b32 s61, {WS_YT + i*4*4096}")
        a("buffer_load_dwordx4 v14, s[36:39], s61 offen lds")
    for i in range(nloop + 1, 16):
        a(f"s_waitcnt vmcnt({6*(15-i) + 4})"); a("s_barrier")
    a("s_waitcnt vmcnt(0)"); a("s_barrier")
    stamp(a, opt, 4); stamp(a, opt, 5); stamp(a, opt, 6)
    stamp_dump(a, opt, 7, 50, region=2)
    a("s_waitcnt vmcnt(0)")
    a.label(f"{name}_done")
    a("s_endpgm")

def kd(a, opt):
    name = "kd_kernel"
    kernel_begin(a, name)
    a("s_cmp_ge_u32 s2, 1"); a(f"s_cbranch_scc1 {name}_done")
    a("s_load_dwordx2 s[4:5], s[0:1], 96"); a("s_load_dwordx2 s[6:7], s[0:1], 88")
    a("s_waitcnt lgkmcnt(0)")
    make_srd(a, 20, 4, 4 << 20, WS_STAMP); make_srd(a, 24, 6, 256)
    a("v_mul_u32_u24 v1, 52, v0"); a("v_lshrrev_b32 v1, 8, v1")
    a("v_mul_u32_u24 v2, 5, v1"); a("v_sub_u32 v2, v0, v2")
    a("v_lshlrev_b32 v3, 20, v1")
    a("v_mov_b32 v4, 56")
    a("v_cmp_eq_u32 vcc, 1, v2"); a("s_nop 1"); a("v_cndmask_b32 v4, v4, 60, vcc" if False else "v_cndmask_b32_e64 v4, v4, 60, vcc")
    a(f"v_mov_b32 v5, {255*8*64 + 56}"); a("v_cmp_eq_u32 vcc, 2, v2"); a("s_nop 1"); a("v_cndmask_b32 v4, v4, v5, vcc")
    a(f"v_mov_b32 v5, {255*8*64 + 60}"); a("v_cmp_eq_u32 vcc, 3, v2"); a("s_nop 1"); a("v_cndmask_b32 v4, v4, v5, vcc")
    a("v_mov_b32 v5, 24"); a("v_cmp_eq_u32 vcc, 4, v2"); a("s_nop 1"); a("v_cndmask_b32 v4, v4, v5, vcc")
    a("v_add_u32 v3, v3, v4")
    a("buffer_load_dword v6, v3, s[20:23], 0 offen")
    a("v_lshlrev_b32 v7, 2, v0")
    a("s_waitcnt vmcnt(0)")
    a("buffer_store_dword v6, v7, s[24:27], 0 offen")
    a("s_waitcnt vmcnt(0)")
    a.label(f"{name}_done")
    a("s_endpgm")

def ke(a, opt):
    kernel_begin(a, "ke_kernel")
    a("s_endpgm")

def kp(a, opt):
    name = "kp_kernel"
    kernel_begin(a, name)
    a("s_cmp_ge_u32 s2, 256"); a(f"s_cbranch_scc1 {name}_done")
    srcs = [("x", 16), ("bk", 16), ("bv", 16), ("ssmk", 16), ("wqkv", 24), ("wo", 8)]
    if opt.get("kp_xw"): srcs = [("x", 16), ("wqkv", 24)]
    for i, (n, kb) in enumerate(srcs): load_ptr(a, 4 + 2*i, n)
    a("v_and_b32 v1, 63, v0"); a("v_lshrrev_b32 v2, 6, v0"); a("s_nop 0"); a("v_readfirstlane_b32 s22, v2")
    a("v_lshlrev_b32 v5, 4, v1"); a("s_lshl_b32 s23, s22, 10")
    a("s_waitcnt lgkmcnt(0)")
    cnt = 0
    for i, (n, kb) in enumerate(srcs):
        make_srd(a, 32, 4 + 2*i, NB[n])
        a(f"s_mul_i32 s40, s2, {kb*1024}"); a("s_add_u32 s40, s40, s23")
        for j in range(kb // 4):
            a(f"s_add_u32 m0, s23, {(cnt % 24) * 4096}")
            a(f"s_add_u32 s42, s40, {j*4096}")
            a("buffer_load_dwordx4 v5, s[32:35], s42 offen lds")
            cnt += 1
    a("s_waitcnt vmcnt(0)")
    a.label(f"{name}_done"); a("s_endpgm")

def build(kernels, opt=None):
    opt = opt or {}
    a = Asm()
    spec = {"k1": ("k1_kernel", 256, 512, 163840), "k2": ("k2_kernel", 256, 512, K2_LDS), "k3": ("k3_kernel", 256, 512, 163840), "kd": ("kd_kernel", 1, 64, 0), "ke": ("ke_kernel", 256, 256, 0), "kp": ("kp_kernel", 256, 256, 98304)}
    for k in kernels:
        n, g, b, l = spec[k]
        a(f"; @launch kernel={n} grid=({g},1,1) block=({b},1,1) lds={l}")
    a('.amdgcn_target "amdgcn-amd-amdhsa--gfx950"')
    a(".text")
    for k in dict.fromkeys(kernels):
        globals()[k](a, opt)
    a('.section .rodata,"a"')
    for k in dict.fromkeys(kernels):
        kernel_desc(a, spec[k][0], vgpr=256, sgpr=96)
    return a.text()

if __name__ == "__main__":
    opt = {}
    for o in sys.argv[3:]:
        k, _, v = o.partition("=")
        opt[k] = int(v) if v else 1
    open(sys.argv[1], "w").write(build(sys.argv[2].split(","), opt))
```

```python
import sys
from asmlib import *

WS_UT  = 4 << 20
WS_KVP = 8 << 20
WS_ZP  = 10 << 20
WS_G   = 11 << 20
WS_FL  = (11 << 20) | 0x80000
FL_KV, FL_U, FL_O, FL_Y = WS_FL, WS_FL + 32768, WS_FL + 65536, WS_FL + 98304
WS_O   = 12 << 20
WS_YT  = 16 << 20
WS_USED = 20 << 20
WS_STAMP = 24 << 20
LOG2E = 0x3fb8aa3b
EPS   = 0x358637bd
SPIN_MAX = 1 << 17
NAME = "gated_mix__linear_attn_block__ssm_conv_h3__prompt_kernel"

ST1 = 40960
CTS = 4160
CF  = 4 * CTS
CWB = 4 * CTS + 4608
F_FL = 4 * CWB
ST3 = 24576
F_U = F_FL + 256
F_SCR = F_U + 2 * ST3
F_Y = ST3
F_E0 = CWB - 32
F_E1 = 2 * CWB - 32
E_XF = F_E0
E_RF = F_E0 + 16
E_KVC, E_KVR = F_E0 + 24, F_E0 + 28
E_ADC, E_UR, E_CRC, E_OC, E_OR = F_E1, F_E1 + 4, F_E1 + 8, F_E1 + 12, F_E1 + 16
W_YC, W_YR = F_FL, F_FL + 4

def vr(a, n=1): return f"v{a}" if n == 1 else f"v[{a}:{a+n-1}]"

def stamp(a, opt, i):
    if opt.get("stamps"):
        a(f"s_memtime s[{80+2*i}:{81+2*i}]")
        if i == 0: a("s_memrealtime s[98:99]")
def stamp_dump(a, opt, n):
    if not opt.get("stamps"): return
    a("s_waitcnt vmcnt(0) lgkmcnt(0)")
    a(f"s_add_u32 s76, s14, {WS_STAMP}"); a("s_addc_u32 s77, s15, 0"); a("s_mov_b32 s78, 0x1000000"); a("s_mov_b32 s79, 0x00020000")
    a("s_lshl_b32 s75, s2, 3"); a("s_add_u32 s75, s75, s50"); a("s_lshl_b32 s75, s75, 6"); a("v_mov_b32 v1, s75")
    for i in range(1, n):
        a(f"s_sub_u32 s74, s{80+2*i}, s80"); a("v_mov_b32 v2, s74")
        a(f"buffer_store_dword v2, v1, s[76:79], 0 offen offset:{4*i}")
    a("s_memrealtime s[80:81]"); a("s_waitcnt lgkmcnt(0)"); a("v_mov_b32 v2, s80")
    a("buffer_store_dword v2, v1, s[76:79], 0 offen offset:60")
    a("v_mov_b32 v2, s98"); a("buffer_store_dword v2, v1, s[76:79], 0 offen offset:56")

def phi_pair(a, t, tmp):
    a(f"v_pk_mul_f32 {vr(tmp,2)}, {vr(t,2)}, s[56:57]")
    a(f"v_exp_f32_e64 v{tmp}, v{tmp} clamp")
    a(f"v_exp_f32_e64 v{tmp+1}, v{tmp+1} clamp")
    a(f"v_max_f32 v{t}, 0, v{t}")
    a(f"v_max_f32 v{t+1}, 0, v{t+1}")
    a(f"v_pk_add_f32 {vr(t,2)}, {vr(t,2)}, {vr(tmp,2)}")
    a(f"v_pk_add_f32 {vr(t,2)}, {vr(t,2)}, s[58:59]")

_lab = [0]
def lab(p):
    _lab[0] += 1
    return f"L{p}{_lab[0]}"

def lds_spin(a, vaddr, off, vtmp, cond, val):
    assert off < 65536
    l0, l1 = lab("sp"), lab("sx")
    a("s_mov_b32 s61, 0")
    a.label(l0)
    a(f"ds_read_b32 v{vtmp}, v{vaddr} offset:{off}"); a("s_waitcnt lgkmcnt(0)")
    a(f"v_readfirstlane_b32 s60, v{vtmp}"); a("s_add_u32 s61, s61, 1"); a(f"s_cmp_{cond}_u32 s60, {val}"); a(f"s_cbranch_scc1 {l1}")
    a(f"s_cmp_lt_u32 s61, {SPIN_MAX*8}"); a(f"s_cbranch_scc1 {l0}")
    a.label(l1)

def lds_count_last(a, vaddr, off, vone, vtmp, last, action):
    l = lab("cl")
    a("s_mov_b64 exec, 1")
    a(f"ds_add_rtn_u32 v{vtmp}, v{vaddr}, v{vone} offset:{off}"); a("s_waitcnt lgkmcnt(0)")
    a(f"v_readfirstlane_b32 s60, v{vtmp}"); a(f"s_cmp_eq_u32 s60, {last}"); a(f"s_cbranch_scc0 {l}")
    action()
    a.label(l)
    a("s_mov_b64 exec, -1")

def poll16(a, vaddr, vtmp, extra=None):
    l0, l1 = lab("pl"), lab("px")
    a("s_mov_b32 s61, 0")
    a.label(l0)
    a(f"buffer_load_dword v{vtmp}, v{vaddr}, s[36:39], 0 offen sc1")
    if extra: a(f"ds_read_b32 v{vtmp+1}, v{extra[0]} offset:{extra[1]}")
    a("s_waitcnt vmcnt(0) lgkmcnt(0)")
    a(f"v_cmp_ne_u32 vcc, 1, v{vtmp}")
    if extra: a(f"v_readfirstlane_b32 s62, v{vtmp+1}")
    a("s_add_u32 s61, s61, 1"); a("s_nop 2")
    a("s_cmp_eq_u64 vcc, 0")
    if extra:
        a("s_cselect_b32 s60, 1, 0"); a(f"s_cmp_ge_u32 s62, {extra[2]}"); a("s_cselect_b32 s62, 1, 0"); a("s_and_b32 s60, s60, s62")
    a(f"s_cbranch_scc1 {l1}")
    a(f"s_cmp_lt_u32 s61, {SPIN_MAX}"); a(f"s_cbranch_scc1 {l0}")
    a.label(l1)

def poll_zeroed(a, vtmp):
    l0, l1 = lab("zl"), lab("zx")
    a("s_mov_b32 s61, 0"); a(f"v_mov_b32 v{vtmp+1}, 0")
    a.label(l0)
    a(f"buffer_load_dword v{vtmp}, v{vtmp+1}, s[40:43], 0 offen sc1"); a("s_waitcnt vmcnt(0)")
    a(f"v_readfirstlane_b32 s60, v{vtmp}"); a("s_add_u32 s61, s61, 1"); a("s_cmp_ge_u32 s60, 256"); a(f"s_cbranch_scc1 {l1}")
    a(f"s_cmp_lt_u32 s61, {SPIN_MAX}"); a(f"s_cbranch_scc1 {l0}")
    a.label(l1)

def kernel(a, opt):
    name = NAME
    kernel_begin(a, name)
    a("s_cmp_ge_u32 s2, 256")
    a("s_cbranch_scc1 Ldone")
    stamp(a, opt, 0)
    if opt.get("pad0"):
        a("s_memtime s[20:21]"); a("s_waitcnt lgkmcnt(0)"); a(f"s_add_u32 s22, s20, {opt['pad0']}")
        a.label("Lpad0"); a("s_memtime s[20:21]"); a("s_waitcnt lgkmcnt(0)"); a("s_cmp_lt_u32 s20, s22"); a("s_cbranch_scc1 Lpad0")
    a("s_load_dwordx4 s[4:7], s[0:1], 0")
    a("s_load_dwordx4 s[12:15], s[0:1], 88")
    a("v_lshrrev_b32 v1, 6, v0")
    a("v_and_b32 v0, 63, v0")
    a("v_readfirstlane_b32 s50, v1")
    a("s_and_b32 s51, s2, 7")
    a("s_lshr_b32 s52, s2, 3")
    a("s_lshl_b32 s53, s51, 3"); a("s_and_b32 s53, s53, 8"); a("s_and_b32 s54, s52, 7"); a("s_or_b32 s48, s53, s54")
    a("s_lshl_b32 s53, s51, 1"); a("s_and_b32 s53, s53, 12"); a("s_lshr_b32 s54, s52, 3"); a("s_or_b32 s49, s53, s54")
    if opt.get("jx"): a(f"s_xor_b32 s49, s49, {opt['jx']}")
    if opt.get("jperm", 1):
        a("s_lshr_b32 s53, s49, 2"); a("s_add_u32 s53, s53, 1"); a("s_and_b32 s53, s53, 2"); a("s_mul_i32 s53, s53, 6"); a("s_xor_b32 s49, s49, s53")
    a("s_and_b32 s53, s51, 3"); a("s_lshl_b32 s53, s53, 2"); a("s_and_b32 s54, s52, 3"); a("s_or_b32 s96, s53, s54")
    a("s_lshr_b32 s53, s51, 2"); a("s_lshl_b32 s53, s53, 3"); a("s_lshr_b32 s54, s52, 2"); a("s_or_b32 s97, s53, s54")
    a("s_cmp_ge_u32 s50, 4")
    a("s_cbranch_scc1 Laux")
    c_waves(a, opt)
    a.label("Laux")
    a_waves(a, opt)
    a.label("Ldone")
    a("s_endpgm")

def c_waves(a, opt):
    def acc(ai, c, u): return 64 + ((c * 2 + u) * 4 + ai) * 4
    def xf(buf, ai): return 160 + buf * 40 + ai * 4
    def wf(buf, c, u): return 160 + buf * 40 + 16 + (c * 2 + u) * 4
    XA = 8; WA = 12
    a("s_load_dwordx4 s[8:11], s[0:1], 56") if False else None
    a("s_setprio 2")
    a("s_and_b32 s53, s50, 1")
    a("s_lshr_b32 s54, s50, 1")
    a("v_and_b32 v2, 15, v0")
    a("v_lshrrev_b32 v3, 4, v0")
    a("v_lshrrev_b32 v4, 1, v2"); a("v_xor_b32 v4, v4, v3")
    a("s_lshl_b32 s55, s53, 13")
    a("v_lshlrev_b32 v5, 7, v2"); a("v_add_u32 v5, s55, v5")
    a(f"v_lshl_add_u32 v{XA}, v4, 4, v5")
    a("v_xor_b32 v6, 4, v4"); a(f"v_lshl_add_u32 v{XA+1}, v6, 4, v5")
    for kk in range(2): a(f"v_add_u32 v{XA+2+kk}, {2*ST1}, v{XA+kk}")
    a("v_bfe_u32 v6, v0, 2, 2")
    a("v_lshl_add_u32 v7, v3, 3, v6"); a("v_lshlrev_b32 v7, 7, v7")
    a("v_and_b32 v18, 3, v0"); a("v_lshl_add_u32 v7, v18, 3, v7")
    a("v_add_u32 v7, 16384, v7")
    a("v_bfe_u32 v18, v0, 3, 1"); a("v_bfe_u32 v19, v0, 4, 1"); a("v_lshl_or_b32 v18, v19, 1, v18")
    a("s_lshl_b32 s55, s54, 1")
    a("v_xor_b32 v18, s55, v18")
    a(f"v_lshl_add_u32 v{WA}, v18, 5, v7")
    a("v_xor_b32 v18, 1, v18"); a(f"v_lshl_add_u32 v{WA+1}, v18, 5, v7")
    for u in range(2): a(f"v_add_u32 v{WA+2+u}, {2*ST1}, v{WA+u}")
    for r in range(64, 160): a(f"v_mov_b32 v{r}, 0")
    a(f"s_mov_b32 s56, {LOG2E:#x}"); a(f"s_mov_b32 s57, {LOG2E:#x}")
    a(f"s_mov_b32 s58, {EPS:#x}"); a(f"s_mov_b32 s59, {EPS:#x}")
    a("s_waitcnt lgkmcnt(0)")
    make_srd(a, 36, 14, WS_USED); make_srd(a, 40, 12, 256)
    a("s_load_dwordx4 s[8:11], s[0:1], 64") ;
    a("s_load_dwordx2 s[16:17], s[0:1], 80")
    a("s_cmp_eq_u32 s50, 0"); a("s_cbranch_scc0 Lnz")
    a("s_lshl_b32 s55, s49, 4"); a("s_add_u32 s55, s55, s48"); a("s_lshl_b32 s55, s55, 7"); a(f"s_add_u32 s55, s55, {FL_KV}"); a("v_writelane_b32 v18, s55, 0")
    a("s_lshl_b32 s55, s2, 7"); a(f"s_add_u32 s55, s55, {FL_U}"); a("v_writelane_b32 v18, s55, 1")
    a("s_lshl_b32 s55, s48, 4"); a("s_add_u32 s55, s55, s49"); a("s_lshl_b32 s55, s55, 7"); a(f"s_add_u32 s55, s55, {FL_O}"); a("v_writelane_b32 v18, s55, 2")
    a("s_lshl_b32 s55, s51, 5"); a("s_add_u32 s55, s55, s52"); a("s_lshl_b32 s55, s55, 7"); a(f"s_add_u32 s55, s55, {FL_Y}"); a("v_writelane_b32 v18, s55, 3")
    a("v_mov_b32 v19, 0"); a("v_mov_b32 v20, 1")
    a("s_mov_b64 exec, 15")
    a("buffer_store_dword v19, v18, s[36:39], 0 offen sc1")
    if opt.get("atom_early"):
        a("s_waitcnt vmcnt(0)")
        a("s_mov_b64 exec, 1")
        a("buffer_atomic_add v20, v19, s[40:43], 0 offen sc1")
    a("s_mov_b64 exec, -1")
    a.label("Lnz")

    def reads(slot, kk, buf):
        hi = 2 if slot >= 2 else 0
        so = (slot & 1) * ST1
        X = [f"ds_read_b128 {vr(xf(buf,ai),4)}, v{XA+hi+kk} offset:{so + ai*2048}" for ai in range(4)]
        W = {}
        for c in range(3):
            for u in range(2):
                W[c, u] = [f"ds_read_b64_tr_b16 {vr(wf(buf,c,u)+2*sec,2)}, v{WA+hi+u} offset:{so + c*8192 + kk*4096 + sec*512}" for sec in range(2)]
        return [X[0]] + W[0, 0] + [X[1], X[2], X[3]] + W[0, 1] + W[1, 0] + W[1, 1] + W[2, 0] + W[2, 1]
    def mfmas(buf):
        L = []
        for c in range(3):
            for u in range(2):
                for ai in range(4):
                    d = vr(acc(ai, c, u), 4)
                    if c == 0: L.append(f"v_mfma_f32_16x16x32_bf16 {d}, {vr(wf(buf,c,u),4)}, {vr(xf(buf,ai),4)}, {d}")
                    else:      L.append(f"v_mfma_f32_16x16x32_bf16 {d}, {vr(xf(buf,ai),4)}, {vr(wf(buf,c,u),4)}, {d}")
        return L
    def step(buf, nxt, barrier=False):
        M = mfmas(buf); q = list(nxt)
        first = 4 if barrier else 0
        for i in range(24):
            a(M[i])
            if barrier and i == first - 1: a("s_barrier")
            if i >= first - (1 if barrier else 0) and q: a(q.pop(0))
        for s_ in q: a(s_)
    a("s_barrier")
    cst = opt.get("cst")
    def st_(i, j=None):
        k = j if cst else i
        if k is not None: stamp(a, opt, k)
    st_(1)
    for s in reads(0, 0, 0): a(s)
    a("s_mov_b32 s60, 0")
    a.label("Lcloop")
    for slot in range(4):
        for kk in range(2):
            a("s_waitcnt lgkmcnt(0)")
            if kk == 0:
                if slot == 0 and not opt.get("atom_early") and not opt.get("atom_none"):
                    a("s_cmp_eq_u32 s60, 2"); a("s_cselect_b32 s61, s50, 1"); a("s_cmp_eq_u32 s61, 0"); a("s_cbranch_scc0 Lnat")
                    a("s_waitcnt vmcnt(0)"); a("s_mov_b64 exec, 1")
                    a("buffer_atomic_add v20, v19, s[40:43], 0 offen sc1")
                    a("s_mov_b64 exec, -1"); a("s_nop 4")
                    a.label("Lnat")
                step(0, reads(slot, 1, 1))
            else:
                if slot == 3:
                    a("s_cmp_eq_u32 s60, 3"); a("s_cbranch_scc1 Lclast")
                step(1, reads((slot + 1) & 3, 0, 0), barrier=True)
    a("s_add_u32 s60, s60, 1")
    a("s_branch Lcloop")
    a.label("Lclast")
    step(1, [])
    st_(2, 1)

    TMP = 20
    KF = 160; VF = 176; ONES = 192; QF = 200
    def kf(u, ks): return KF + (u*2 + ks)*4
    def vf(u, ks): return VF + (u*2 + ks)*4
    a("s_nop 7")
    for u in range(2):
        for ai in range(4):
            t = acc(ai, 1, u); o = kf(u, ai >> 1) + (ai & 1)*2
            phi_pair(a, t, TMP); phi_pair(a, t + 2, TMP + 2)
            a(f"v_cvt_pk_bf16_f32 v{o}, v{t}, v{t+1}"); a(f"v_cvt_pk_bf16_f32 v{o+1}, v{t+2}, v{t+3}")
    for u in range(2):
        for ai in range(4):
            t = acc(ai, 2, u); o = vf(u, ai >> 1) + (ai & 1)*2
            a(f"v_cvt_pk_bf16_f32 v{o}, v{t}, v{t+1}"); a(f"v_cvt_pk_bf16_f32 v{o+1}, v{t+2}, v{t+3}")
    for r in range(4): a(f"v_mov_b32 v{ONES+r}, 0x3f803f80")
    KVA = 96; ZA = 112
    a("s_nop 1")
    for ks in range(2):
        for ud in range(2):
            for ue in range(2):
                d = vr(KVA + (ud*2+ue)*4, 4)
                a(f"v_mfma_f32_16x16x32_bf16 {d}, {vr(kf(ud,ks),4)}, {vr(vf(ue,ks),4)}, {'0' if ks == 0 else d}")
            d = vr(ZA + ud*4, 4)
            a(f"v_mfma_f32_16x16x32_bf16 {d}, {vr(kf(ud,ks),4)}, {vr(ONES,4)}, {'0' if ks == 0 else d}")
    st_(None, 2)
    a(f"s_mul_i32 s55, s54, 6144"); a(f"s_add_u32 s55, s55, {F_SCR}")
    a("v_lshlrev_b32 v6, 4, v0"); a("v_add_u32 v6, s55, v6")
    a("v_mov_b32 v30, 0"); a("v_mov_b32 v31, 1")
    a("s_lshl_b32 s55, s54, 2"); a("v_mov_b32 v29, s55")
    def q_frags():
        for ai in range(4):
            for u in range(2):
                t = acc(ai, 0, u); o = QF + ai*4 + u*2
                phi_pair(a, t, TMP); phi_pair(a, t + 2, TMP + 2)
                a(f"v_cvt_pk_bf16_f32 v{o}, v{t}, v{t+1}"); a(f"v_cvt_pk_bf16_f32 v{o+1}, v{t+2}, v{t+3}")
    a("s_cmp_eq_u32 s53, 0"); a("s_cbranch_scc1 Lred0")
    a("s_nop 7")
    for q in range(6):
        a(f"ds_write_b128 v6, {vr(KVA+4*q,4)} offset:{q*1024}")
    a("s_waitcnt lgkmcnt(0)")
    a(f"ds_write_b32 v29, v31 offset:{E_RF}")
    q_frags()
    a("s_branch Lred1")
    a.label("Lred0")
    a("s_lshl_b32 s55, s49, 1"); a("s_add_u32 s55, s55, s54"); a("s_lshl_b32 s55, s55, 4"); a("s_add_u32 s55, s55, s48")
    a("s_lshl_b32 s63, s55, 11"); a(f"s_add_u32 s63, s63, {WS_KVP}")
    a("s_lshl_b32 s62, s55, 7"); a(f"s_add_u32 s62, s62, {WS_ZP}")
    a("v_lshlrev_b32 v7, 4, v3")
    lds_spin(a, 29, E_RF, 28, "eq", 1)
    R = 32
    for q in range(6):
        a(f"ds_read_b128 {vr(R+4*q,4)}, v6 offset:{q*1024}")
    a("v_lshlrev_b32 v6, 4, v0")
    a("s_waitcnt lgkmcnt(0)")
    for r in range(24):
        a(f"v_add_f32 v{KVA+r}, v{KVA+r}, v{R+r}")
    for t in range(4):
        for p in range(2):
            a(f"v_cvt_pk_bf16_f32 v{R+2*t+p}, v{KVA+4*t+2*p}, v{KVA+4*t+2*p+1}")
    for q in range(2):
        a(f"buffer_store_dwordx4 {vr(R+4*q,4)}, v6, s[36:39], s63 offen offset:{q*1024} sc1")
    a("v_cmp_eq_u32 vcc, 0, v2")
    a("s_and_saveexec_b64 s[64:65], vcc")
    for ud in range(2):
        a(f"buffer_store_dwordx4 {vr(ZA+4*ud,4)}, v7, s[36:39], s62 offen offset:{ud*64} sc1")
    a("s_mov_b64 exec, s[64:65]")
    st_(None, 3)
    q_frags()
    a("s_lshl_b32 s55, s49, 4"); a("s_add_u32 s55, s55, s48"); a("s_lshl_b32 s55, s55, 7"); a(f"s_add_u32 s55, s55, {FL_KV}"); a("v_mov_b32 v28, s55")
    a("s_waitcnt vmcnt(0)")
    lds_count_last(a, 30, E_KVC, 31, 29, 1, lambda: a("buffer_store_dword v31, v28, s[36:39], 0 offen sc1"))
    st_(None, 4)
    a.label("Lred1")
    a("s_lshl_b32 s55, s48, 7"); a("s_lshl_b32 s61, s53, 6"); a("s_add_u32 s55, s55, s61")
    a("v_add_u32 v5, s55, v2"); a("v_lshlrev_b32 v5, 11, v5")
    a("s_lshl_b32 s55, s49, 7"); a("s_lshl_b32 s61, s54, 6"); a("s_add_u32 s55, s55, s61")
    a("v_and_b32 v6, 1, v3"); a("v_lshlrev_b32 v6, 5, v6"); a("v_lshrrev_b32 v7, 1, v3"); a("v_lshl_add_u32 v6, v7, 4, v6")
    a("v_add3_u32 v5, v5, v6, s55")
    a(f"s_mul_i32 s55, s50, 4608"); a(f"s_add_u32 s55, s55, {F_SCR}"); a("s_xor_b32 s61, s50, 1"); a("s_mul_i32 s61, s61, 4608"); a(f"s_add_u32 s61, s61, {F_SCR}")
    a("v_lshlrev_b32 v6, 4, v0"); a("v_add_u32 v8, s55, v6"); a("v_add_u32 v9, s61, v6")
    a("v_and_b32 v7, 7, v0"); a("v_lshlrev_b32 v7, 4, v7"); a("s_add_u32 s55, s55, 4096"); a("v_add_u32 v10, s55, v7")
    a("v_lshlrev_b32 v7, 4, v3"); a("v_add_u32 v11, s55, v7"); a("s_add_u32 s61, s61, 4096"); a("v_add_u32 v12, s61, v7")
    a("s_lshl_b32 s55, s50, 2"); a("v_mov_b32 v13, s55"); a("s_xor_b32 s55, s55, 4"); a("v_mov_b32 v14, s55")
    a("s_lshl_b32 s55, s49, 1"); a("s_add_u32 s55, s55, s54"); a("s_lshl_b32 s55, s55, 4"); a("s_lshl_b32 s61, s53, 3"); a("s_add_u32 s55, s55, s61")
    a("s_lshl_b32 s68, s55, 11"); a(f"s_add_u32 s68, s68, {WS_KVP}")
    a("s_lshl_b32 s69, s55, 7"); a(f"s_add_u32 s69, s69, {WS_ZP}")
    a("s_lshl_b32 s53, s51, 7"); a("s_lshl_b32 s54, s52, 2"); a("s_add_u32 s53, s53, s54"); a("s_add_u32 s53, s53, s50")
    a(f"s_mul_i32 s54, s50, {CWB}")
    a("v_and_b32 v6, 3, v0"); a(f"v_mul_u32_u24 v6, {CTS}, v6")
    a("v_bfe_u32 v7, v0, 2, 2"); a("v_lshlrev_b32 v7, 3, v7"); a("v_sub_u32 v6, v6, v7")
    a("v_lshl_add_u32 v6, v3, 4, v6")
    a(f"s_add_u32 s55, s54, {8 + 24 + 448}"); a("v_add_u32 v16, s55, v6")
    a("v_lshlrev_b32 v6, 5, v2"); a("v_lshl_add_u32 v6, v3, 4, v6")
    a(f"s_add_u32 s55, s54, {CF + 448}"); a("v_add_u32 v17, s55, v6")
    a("s_lshl_b32 s55, s53, 1"); a("s_and_b32 s55, s55, 0xfffffffc")
    a("s_add_u32 s8, s8, s55"); a("s_addc_u32 s9, s9, 0")
    a("s_load_dword s70, s[8:9], 0")
    make_srd(a, 24, 4, NB["x"]); make_srd(a, 28, 16, NB["out"])
    GXA = 224; GWA = 228; XR = 232; GR = 32
    a("s_lshr_b32 s66, s50, 1"); a("s_and_b32 s67, s50, 1")
    a("s_lshl_b32 s55, s96, 7"); a("s_lshl_b32 s61, s66, 6"); a("s_add_u32 s55, s55, s61")
    a("v_add_u32 v20, s55, v2"); a("v_lshlrev_b32 v21, 11, v20")
    a("s_lshl_b32 s55, s97, 7"); a("s_lshl_b32 s61, s67, 6"); a("s_add_u32 s64, s55, s61")
    a("v_lshl_add_u32 v22, v3, 3, s64"); a("v_add_u32 v22, v21, v22"); a("v_lshlrev_b32 v23, 2, v20")
    a("v_lshrrev_b32 v24, 1, v2"); a("v_xor_b32 v24, v24, v3")
    a("s_lshl_b32 s55, s66, 13")
    a("v_lshlrev_b32 v25, 7, v2"); a("v_add_u32 v25, s55, v25")
    a(f"v_lshl_add_u32 v{GXA+2}, v24, 4, v25")
    a("v_xor_b32 v26, 4, v24"); a(f"v_lshl_add_u32 v{GXA+3}, v26, 4, v25")
    for kk in range(2): a(f"v_add_u32 v{GXA+kk}, {F_U}, v{GXA+2+kk}")
    a("v_bfe_u32 v26, v0, 2, 2")
    a("v_lshl_add_u32 v27, v3, 3, v26"); a("v_lshlrev_b32 v27, 7, v27")
    a("v_and_b32 v28, 3, v0"); a("v_lshl_add_u32 v27, v28, 3, v27"); a("v_add_u32 v27, 16384, v27")
    a("v_bfe_u32 v28, v0, 3, 1"); a("v_bfe_u32 v29, v0, 4, 1"); a("v_lshl_or_b32 v28, v29, 1, v28")
    a("s_lshl_b32 s55, s67, 1"); a("v_xor_b32 v28, s55, v28")
    a(f"v_lshl_add_u32 v{GWA+2}, v28, 5, v27")
    a("v_xor_b32 v28, 1, v28"); a(f"v_lshl_add_u32 v{GWA+3}, v28, 5, v27")
    for u in range(2): a(f"v_add_u32 v{GWA+u}, {F_U}, v{GWA+2+u}")
    a("v_mov_b32 v7, v3")
    st_(None, 5)
    a("s_cmp_eq_u32 s50, 1"); a("s_cbranch_scc0 Lkvw")
    poll_zeroed(a, 28)
    a("s_lshl_b32 s55, s49, 11"); a(f"s_add_u32 s55, s55, {FL_KV}")
    a("v_lshl_add_u32 v27, v2, 7, s55")
    poll16(a, 27, 28, extra=(30, E_KVC, 2))
    a(f"ds_write_b32 v30, v31 offset:{E_KVR}")
    a("s_branch Lkvg")
    a.label("Lkvw")
    lds_spin(a, 30, E_KVR, 28, "eq", 1)
    a.label("Lkvg")
    st_(3, 6)
    PK = 128; PR = 64; ZR = 120
    a("v_lshlrev_b32 v6, 4, v0")
    a(f"buffer_load_dwordx4 {vr(ZR,4)}, v6, s[36:39], s69 offen sc1")
    for p in range(8):
        for q in range(2):
            a(f"buffer_load_dwordx4 {vr(PK+8*p+4*q,4)}, v6, s[36:39], s68 offen offset:{q*1024} sc1")
        a("s_add_u32 s68, s68, 2048")
    a("s_mov_b32 s60, 0x00003f80"); a("s_mov_b32 s61, 0x3f800000")
    a("s_waitcnt vmcnt(16)")
    for r in range(4): a(f"v_add_f32_dpp v{ZR+r}, v{ZR+r}, v{ZR+r} row_ror:8 row_mask:0xf bank_mask:0xf")
    for r in range(4): a(f"v_mov_b32 v{ZR+4+r}, v{ZR+r}")
    a("s_nop 1")
    for r in range(4): a(f"v_permlane16_swap_b32 v{ZR+r}, v{ZR+4+r}")
    a("s_nop 1")
    for r in range(4): a(f"v_add_f32 v{ZR+r}, v{ZR+r}, v{ZR+4+r}")
    for r in range(4): a(f"v_mov_b32 v{ZR+4+r}, v{ZR+r}")
    a("s_nop 1")
    for r in range(4): a(f"v_permlane32_swap_b32 v{ZR+r}, v{ZR+4+r}")
    a("s_nop 1")
    for r in range(4): a(f"v_add_f32 v{ZR+r}, v{ZR+r}, v{ZR+4+r}")
    a(f"ds_write_b128 v10, {vr(ZR,4)}")
    for p in range(8):
        a(f"s_waitcnt vmcnt({14-2*p})")
        for d_ in range(8):
            o_ = PR + 4*(d_ >> 1) + 2*(d_ & 1)
            for h_ in range(2):
                c_ = "0" if p == 0 else f"v{o_+h_}"
                a(f"v_dot2_f32_bf16 v{o_+h_}, v{PK+8*p+d_}, s{60+h_}, {c_}")
    a("s_nop 2")
    for q in range(4):
        a(f"ds_write_b128 v8, {vr(PR+4*q,4)} offset:{q*1024}")
    a("s_waitcnt lgkmcnt(0)")
    a(f"ds_write_b32 v13, v31 offset:{E_XF}")
    lds_spin(a, 14, E_XF, 28, "eq", 1)
    SB = 80
    for q in range(4):
        a(f"ds_read_b128 {vr(SB+4*q,4)}, v9 offset:{q*1024}")
    for ud in range(2):
        a(f"ds_read_b128 {vr(96+4*ud,4)}, v11 offset:{ud*64}"); a(f"ds_read_b128 {vr(104+4*ud,4)}, v12 offset:{ud*64}")
    a("s_waitcnt lgkmcnt(0)")
    for r in range(16): a(f"v_add_f32 v{PR+r}, v{PR+r}, v{SB+r}")
    for r in range(8): a(f"v_add_f32 v{96+r}, v{96+r}, v{104+r}")
    KA = 112; ZF = 120
    for ue in range(2):
        for ud in range(2):
            t = PR + (ud*2+ue)*4
            a(f"v_cvt_pk_bf16_f32 v{KA+4*ue+2*ud}, v{t}, v{t+1}"); a(f"v_cvt_pk_bf16_f32 v{KA+4*ue+2*ud+1}, v{t+2}, v{t+3}")
    for ud in range(2):
        t = 96 + 4*ud
        a(f"v_cvt_pk_bf16_f32 v{ZF+2*ud}, v{t}, v{t+1}"); a(f"v_cvt_pk_bf16_f32 v{ZF+2*ud+1}, v{t+2}, v{t+3}")
    a("s_nop 1")
    O = 128
    for ai in range(4):
        for ue in range(2):
            a(f"v_mfma_f32_16x16x32_bf16 {vr(O+(ai*3+ue)*4,4)}, {vr(KA+4*ue,4)}, {vr(QF+4*ai,4)}, 0")
        a(f"v_mfma_f32_16x16x32_bf16 {vr(O+(ai*3+2)*4,4)}, {vr(ZF,4)}, {vr(QF+4*ai,4)}, 0")
    a("s_nop 7")
    OP = 64
    for ai in range(4):
        dn = O + (ai*3+2)*4
        a(f"v_add_f32 v{dn}, s58, v{dn}")
        a(f"v_rcp_f32 v{dn}, v{dn}")
        a("s_nop 0")
        for ue in range(2):
            t = O + (ai*3+ue)*4
            for r in range(4): a(f"v_mul_f32 v{t+r}, v{t+r}, v{dn}")
            a(f"v_cvt_pk_bf16_f32 v{OP+4*ai+2*ue}, v{t}, v{t+1}"); a(f"v_cvt_pk_bf16_f32 v{OP+4*ai+2*ue+1}, v{t+2}, v{t+3}")
        o = OP + 4*ai
        a("s_nop 1")
        a(f"v_permlane16_swap_b32 v{o}, v{o+2}"); a(f"v_permlane16_swap_b32 v{o+1}, v{o+3}")
        a(f"s_mov_b32 s60, {WS_O + 16*ai*2048}")
        a(f"buffer_store_dwordx4 {vr(o,4)}, v5, s[36:39], s60 offen sc1")
    st_(4, 7)
    a("s_lshl_b32 s55, s53, 12")
    a("s_mov_b32 s58, s70")
    def publish_o():
        a("s_lshl_b32 s57, s48, 4"); a("s_add_u32 s57, s57, s49"); a("s_lshl_b32 s57, s57, 7"); a(f"s_add_u32 s57, s57, {FL_O}"); a("v_mov_b32 v28, s57")
        lds_spin(a, 30, E_ADC, 29, "ge", 4)
        a("s_waitcnt vmcnt(0)")
        lds_count_last(a, 30, E_OC, 31, 29, 3, lambda: a("buffer_store_dword v31, v28, s[36:39], 0 offen sc1"))
        a("s_nop 4")
    a("s_mov_b32 s71, 0")
    a(f"ds_read_b32 v29, v30 offset:{E_CRC}"); a("s_waitcnt lgkmcnt(0)")
    a("v_readfirstlane_b32 s60, v29"); a("s_cmp_ge_u32 s60, 4"); a("s_cbranch_scc1 Lconv")
    publish_o()
    a("s_mov_b32 s71, 1")
    lds_spin(a, 30, E_CRC, 29, "ge", 4)
    a.label("Lconv")
    st_(5)
    FR = 96; ACC = 32
    def tf(b, k1): return FR + b*64 + k1*4
    def ff(b, n1): return FR + b*64 + 32 + n1*4
    def rd(b):
        L = []
        for i in range(8):
            L.append(f"ds_read_b64 {vr(tf(b,i),2)}, v16 offset:{512*(7-i)}")
            L.append(f"ds_read_b64 {vr(tf(b,i)+2,2)}, v16 offset:{512*(7-i)+8}")
            L.append(f"ds_read_b128 {vr(ff(b,i),4)}, v17 offset:{512*i}")
        return L
    def mm(b, first):
        L = []; seen = set()
        for k1 in range(8):
            for n1 in range(8 - k1):
                t = k1 + n1
                d = vr(ACC + 4*t, 4)
                c = "0" if (first and t not in seen) else d
                seen.add(t)
                L.append(f"v_mfma_f32_16x16x32_bf16 {d}, {vr(tf(b,k1),4)}, {vr(ff(b,n1),4)}, {c}")
        return L
    for s_ in rd(0): a(s_)
    a("v_subrev_u32 v16, 64, v16"); a("v_subrev_u32 v17, 64, v17")
    def resid(b, first, last):
        Ms = mm(b, first)
        R_ = [] if last else rd(b ^ 1)
        a("s_waitcnt lgkmcnt(0)")
        for m_ in Ms:
            a(m_)
            if R_: a(R_.pop(0))
        if not last:
            a("v_subrev_u32 v16, 64, v16"); a("v_subrev_u32 v17, 64, v17")
    resid(0, True, False); resid(1, False, False)
    a("s_cmp_eq_u32 s71, 0"); a("s_cbranch_scc0 Lpubd")
    publish_o()
    a.label("Lpubd")
    a("s_mov_b32 s60, 0")
    a.label("Lcl")
    resid(0, False, False); resid(1, False, False)
    a("s_add_u32 s60, s60, 1"); a("s_cmp_lt_u32 s60, 2"); a("s_cbranch_scc1 Lcl")
    resid(0, False, False); resid(1, False, True)
    a("v_lshlrev_b32 v5, 5, v2"); a("v_lshl_add_u32 v5, v7, 3, v5")
    a(f"s_add_u32 s57, s54, {CF + 480}"); a("v_add_u32 v6, s57, v5")
    for t in range(8):
        a(f"ds_read_b64 {vr(FR+2*t,2)}, v6 offset:{512*t}")
    a("s_lshl_b32 s57, s58, 16"); a("s_and_b32 s58, s58, 0xffff0000")
    a("s_and_b32 s61, s53, 1"); a("s_cmp_eq_u32 s61, 0"); a("s_cselect_b32 s58, s57, s58")
    a(f"s_add_u32 s56, s55, {WS_YT}")
    a("s_waitcnt lgkmcnt(0)")
    for t in range(8):
        u0 = FR + 2*t; y = ACC + 4*t; tmp = FR + 16 + 4*(t & 1)
        a(f"v_lshlrev_b32 v{tmp}, 16, v{u0}"); a(f"v_and_b32 v{tmp+1}, 0xffff0000, v{u0}")
        a(f"v_lshlrev_b32 v{tmp+2}, 16, v{u0+1}"); a(f"v_and_b32 v{tmp+3}, 0xffff0000, v{u0+1}")
        for r in range(4): a(f"v_fmac_f32 v{y+r}, s58, v{tmp+r}")
        a(f"v_cvt_pk_bf16_f32 v{y}, v{y}, v{y+1}"); a(f"v_cvt_pk_bf16_f32 v{y+1}, v{y+2}, v{y+3}")
        a(f"buffer_store_dwordx2 {vr(y,2)}, v5, s[36:39], s56 offen offset:{512*t} sc1")

    NS = 6
    def gacc(ai, u): return 64 + (u*4 + ai)*4
    def gxf(buf, kk, ai): return 96 + buf*48 + (kk*4 + ai)*4
    def gwf(buf, kk, u): return 96 + buf*48 + 32 + (kk*2 + u)*4
    def greads(st, buf):
        slot = st % NS
        hi = 0 if slot < 3 else 2
        so = (slot % 3) * ST3
        L = []
        for kk in range(2):
            X = [f"ds_read_b128 {vr(gxf(buf,kk,ai),4)}, v{GXA+hi+kk} offset:{so + ai*2048}" for ai in range(4)]
            W = [[f"ds_read_b64_tr_b16 {vr(gwf(buf,kk,u)+2*sec,2)}, v{GWA+hi+u} offset:{so + kk*4096 + sec*512}" for sec in range(2)] for u in range(2)]
            L += W[0] + [X[0], X[1]] + W[1] + [X[2], X[3]]
        return L
    def gmfmas(buf):
        return [f"v_mfma_f32_16x16x32_bf16 {vr(gacc(ai,u),4)}, {vr(gwf(buf,kk,u),4)}, {vr(gxf(buf,kk,ai),4)}, {vr(gacc(ai,u),4)}"
                for kk in range(2) for u in range(2) for ai in range(4)]
    XG = 192
    xg = []
    for ai in range(4):
        for u in range(2):
            xr = XR + (ai*2+u)*2; o = XG + (ai*2+u)*4
            xg += [f"v_lshlrev_b32 v{o}, 16, v{xr}", f"v_and_b32 v{o+1}, 0xffff0000, v{xr}",
                   f"v_lshlrev_b32 v{o+2}, 16, v{xr+1}", f"v_and_b32 v{o+3}, 0xffff0000, v{xr+1}"]
    for ai in range(4):
        a(f"s_mov_b32 s61, {16*ai*2048}")
        for u in range(2):
            a(f"buffer_load_dwordx2 {vr(XR+(ai*2+u)*2,2)}, v22, s[24:27], s61 offen offset:{32*u}")
    for r in range(64, 96): a(f"v_mov_b32 v{r}, 0")
    a(f"v_mov_b32 v30, {F_FL}")
    a("s_barrier")
    st_(6)
    for s_ in greads(0, 0): a(s_)
    for st in range(16):
        buf = st & 1
        Ms = gmfmas(buf)
        q = greads(st + 1, buf ^ 1) if st < 15 else []
        extra = []
        if 5 <= st < 15:
            n = -(-len(xg) // 10)
            extra = xg[(st-5)*n:(st-4)*n]
        a("s_waitcnt lgkmcnt(0)")
        if st == 4:
            a("s_waitcnt vmcnt(0)")
            a("s_lshr_b32 s65, s53, 2"); a("s_lshl_b32 s65, s65, 7"); a(f"s_add_u32 s65, s65, {FL_Y}"); a("v_mov_b32 v28, s65")
            lds_count_last(a, 30, 0, 31, 29, 3, lambda: a("buffer_store_dword v31, v28, s[36:39], 0 offen sc1"))
            a("s_nop 4")
        if st == 11:
            a(f"s_mov_b32 s61, {WS_G}")
            for ai in range(4):
                a(f"buffer_load_dword v{GR+4*ai}, v23, s[36:39], s61 offen offset:{64*ai} sc1")
        if st == 8:
            a("s_lshl_b32 s61, s97, 11"); a(f"s_add_u32 s61, s61, {FL_Y}")
            a("v_lshl_add_u32 v28, v2, 7, s61")
            a("s_cmp_eq_u32 s50, 0"); a("s_cbranch_scc0 Lyp0")
            a("buffer_load_dword v29, v28, s[36:39], 0 offen sc1")
            a.label("Lyp0")
        if st == 10:
            a("s_cmp_eq_u32 s50, 0"); a("s_cbranch_scc0 Lypd")
            a("s_mov_b32 s65, 0")
            a.label("Lyp")
            a("s_waitcnt vmcnt(0)")
            a("v_cmp_ne_u32 vcc, 1, v29"); a("s_add_u32 s65, s65, 1")
            a("s_nop 3"); a("s_cmp_eq_u64 vcc, 0"); a("s_cbranch_scc1 Lypo")
            a("buffer_load_dword v29, v28, s[36:39], 0 offen sc1")
            a(f"s_cmp_lt_u32 s65, {SPIN_MAX}"); a("s_cbranch_scc1 Lyp")
            a.label("Lypo")
            a("ds_write_b32 v30, v31 offset:4")
            a.label("Lypd")
        for i in range(16):
            a(Ms[i])
            if i == 1 and st < 15: a("s_barrier")
            if i >= 1:
                for _ in range(2):
                    if q: a(q.pop(0))
            if i >= 9:
                for _ in range(3):
                    if extra: a(extra.pop(0))
        for s_ in q + extra: a(s_)
    a("v_bfe_u32 v6, v0, 2, 2"); a("v_lshl_add_u32 v6, v7, 2, v6")
    a("s_lshl_b32 s57, s67, 5"); a("v_add_u32 v6, s57, v6"); a("v_lshlrev_b32 v6, 8, v6")
    a("v_and_b32 v5, 3, v0"); a("v_lshl_add_u32 v6, v5, 3, v6")
    a("s_lshl_b32 s57, s66, 7"); a(f"s_add_u32 s57, s57, {F_Y}"); a("v_add_u32 v6, s57, v6")
    YR = 96
    for ai in range(4):
        for u in range(2):
            a(f"ds_read_b64_tr_b16 {vr(YR+(ai*2+u)*2,2)}, v6 offset:{u*16*256 + ai*32}")
    a("v_and_b32 v8, 1, v7"); a("v_lshlrev_b32 v8, 5, v8"); a("v_lshrrev_b32 v9, 1, v7"); a("v_lshl_add_u32 v8, v9, 4, v8")
    a("v_add3_u32 v8, v21, v8, s64")
    a("s_waitcnt lgkmcnt(0)")
    OP = 112; T = 128
    a("s_waitcnt vmcnt(0)")
    for ai in range(4): a(f"v_sub_f32 v{GR+4*ai+2}, 1.0, v{GR+4*ai}")
    for ai in range(4):
        g_ = GR + 4*ai
        for u in range(2):
            t = gacc(ai, u); yr = YR + (ai*2+u)*2; xo = XG + (ai*2+u)*4; T_ = T + 4*(u & 1)
            a(f"v_lshlrev_b32 v{T_}, 16, v{yr}"); a(f"v_and_b32 v{T_+1}, 0xffff0000, v{yr}")
            a(f"v_lshlrev_b32 v{T_+2}, 16, v{yr+1}"); a(f"v_and_b32 v{T_+3}, 0xffff0000, v{yr+1}")
            for h_ in range(2):
                a(f"v_pk_mul_f32 {vr(T_+2*h_,2)}, {vr(T_+2*h_,2)}, {vr(xo+2*h_,2)}")
                a(f"v_pk_mul_f32 {vr(T_+2*h_,2)}, {vr(T_+2*h_,2)}, {vr(g_+2,2)} op_sel_hi:[1,0]")
                a(f"v_pk_fma_f32 {vr(T_+2*h_,2)}, {vr(t+2*h_,2)}, {vr(g_,2)}, {vr(T_+2*h_,2)} op_sel_hi:[1,0,1]")
                a(f"v_cvt_pk_bf16_f32 v{OP+4*ai+2*u+h_}, v{T_+2*h_}, v{T_+2*h_+1}")
        o = OP + 4*ai
        a("s_nop 1")
        a(f"v_permlane16_swap_b32 v{o}, v{o+2}"); a(f"v_permlane16_swap_b32 v{o+1}, v{o+3}")
        a(f"s_mov_b32 s61, {16*ai*2048}")
        a(f"buffer_store_dwordx4 {vr(o,4)}, v8, s[28:31], s61 offen")
    a("s_waitcnt vmcnt(0)")
    st_(7)
    stamp_dump(a, opt, 8)
    a("s_waitcnt vmcnt(0)")
    a("s_endpgm")

def a_waves(a, opt):
    a("s_sub_u32 s53, s50, 4")
    VA = 8; VW = 12
    a("v_lshrrev_b32 v2, 3, v0"); a("v_and_b32 v3, 7, v0"); a("v_lshrrev_b32 v4, 4, v0")
    a("s_lshl_b32 s55, s48, 7"); a("s_lshl_b32 s61, s53, 5"); a("s_add_u32 s55, s55, s61")
    a("v_add_u32 v5, s55, v2"); a("v_lshlrev_b32 v5, 11, v5")
    a("v_xor_b32 v6, v4, v3"); a(f"v_lshl_add_u32 v{VA}, v6, 4, v5")
    a("v_xor_b32 v6, 4, v6"); a(f"v_lshl_add_u32 v{VA+1}, v6, 4, v5"); a(f"v_add_u32 v{VA+1}, 16384, v{VA+1}")
    for i in range(2, 4): a(f"v_add_u32 v{VA+i}, 32768, v{VA+(i&1)}")
    a("v_and_b32 v6, 1, v4"); a("v_lshlrev_b32 v6, 1, v6"); a("v_xor_b32 v6, v6, v3")
    a("v_mul_u32_u24 v5, 6144, v2")
    a(f"s_mul_i32 s55, s53, {2*8*6144}"); a("s_lshl_b32 s61, s49, 7"); a("s_add_u32 s55, s55, s61")
    a("v_add_u32 v5, s55, v5")
    a(f"v_lshl_add_u32 v{VW}, v6, 4, v5")
    a("v_xor_b32 v6, 4, v6"); a(f"v_lshl_add_u32 v{VW+1}, v6, 4, v5"); a(f"v_add_u32 v{VW+1}, {8*6144}, v{VW+1}")
    WL = [(seg, r2) for seg in range(3) for r2 in range(2)]
    for i, (seg, r2) in enumerate(WL):
        if i >= 2: a(f"v_add_u32 v{VW+i}, {seg*2048}, v{VW + r2}")
    a("s_lshl_b32 s64, s53, 12")
    a("s_lshl_b32 s65, s53, 11"); a("s_add_u32 s65, s65, 16384")
    a("s_lshr_b32 s46, s52, 3"); a("s_add_u32 s46, s46, s52"); a("s_and_b32 s46, s46, 3"); a("s_lshl_b32 s46, s46, 2")
    a("s_lshl_b32 s66, s46, 7"); a(f"s_mul_i32 s67, s46, {64*6144}"); a("s_mov_b32 s68, 0")
    a("s_waitcnt lgkmcnt(0)")
    make_srd(a, 20, 4, NB["x"]); make_srd(a, 24, 6, NB["wqkv"])
    def prep():
        a("s_add_u32 s69, s64, s68"); a("s_add_u32 s55, s65, s68"); a("s_mov_b32 m0, s69")
    def issue(prepared=False):
        if not prepared: prep(); a("s_nop 0")
        fill = [f"s_add_u32 s68, s68, {ST1}", f"s_cmp_eq_u32 s68, {4*ST1}\ns_cselect_b32 s68, 0, s68", "s_nop 0"]
        for i in range(4):
            if i:
                a(f"s_add_u32 m0, s69, {i*1024}"); a(fill.pop(0))
            a(f"buffer_load_dwordx4 v{VA+i}, s[20:23], s66 offen lds")
        fill = ["s_add_u32 s66, s66, 128", "s_cmp_eq_u32 s66, 2048\ns_cselect_b32 s66, 0, s66"]
        for i, (seg, r2) in enumerate(WL):
            a(f"s_add_u32 m0, s55, {seg*8192 + r2*1024}"); a(fill.pop(0) if fill else "s_nop 0")
            a(f"buffer_load_dwordx4 v{VW+i}, s[24:27], s67 offen lds")
        a(f"s_add_u32 s67, s67, {64*6144}"); a(f"s_cmp_eq_u32 s67, {16*64*6144}"); a("s_cselect_b32 s67, 0, s67")
    issue(); issue()
    a("s_load_dwordx4 s[8:11], s[0:1], 32")
    a("s_load_dwordx4 s[4:7], s[0:1], 48")
    a("s_load_dwordx2 s[16:17], s[0:1], 72")
    a("s_load_dwordx2 s[18:19], s[0:1], 16")
    ramp = (1, 1, 1, 1, 2)
    issued = 2
    for i, n in enumerate(ramp):
        prep()
        a(f"s_waitcnt vmcnt({10*(issued - i - 1)})"); a("s_barrier")
        if i == 0: stamp(a, opt, 1)
        for k_ in range(n):
            issue(prepared=(k_ == 0)); issued += 1
        if i == 0:
            a("s_waitcnt lgkmcnt(0)")
            make_srd(a, 28, 8, NB["bk"]); make_srd(a, 32, 10, NB["bv"])
            make_srd(a, 36, 14, WS_USED); make_srd(a, 40, 4, NB["shift"]); make_srd(a, 44, 16, NB["gw"])
    i0 = len(ramp)
    a(f"s_mov_b32 s60, {i0}")
    a.label("Llloop")
    prep()
    a("s_add_u32 s60, s60, 1")
    a("s_waitcnt vmcnt(20)"); a("s_barrier")
    issue(prepared=True)
    a("s_cmp_lt_u32 s60, 13"); a("s_cbranch_scc1 Llloop")
    pl = Asm()
    pl("s_and_b32 s70, s2, 15"); pl("s_lshr_b32 s71, s2, 4")
    pl("v_lshrrev_b32 v20, 3, v0"); pl("v_and_b32 v21, 7, v0")
    pl("s_lshl_b32 s72, s70, 7"); pl("s_lshl_b32 s73, s53, 5"); pl("s_add_u32 s72, s72, s73")
    pl("v_lshl_add_u32 v22, v20, 2, s72")
    pl("s_lshl_b32 s73, s71, 6"); pl("v_lshl_add_u32 v23, v21, 3, s73")
    pl("v_lshlrev_b32 v24, 11, v22"); pl("v_lshl_add_u32 v24, v23, 1, v24")
    pl("v_subrev_u32 v25, 6144, v24")
    for r in range(7):
        if r: pl("v_add_u32 v25, 2048, v25")
        pl(f"buffer_load_dwordx4 {vr(32+4*r,4)}, v25, s[28:31], 0 offen nt")
    pl("v_add_u32 v26, 4096, v24")
    for r in range(4):
        pl(f"buffer_load_dwordx4 {vr(60+4*r,4)}, v{24 if r < 2 else 26}, s[32:35], 0 offen offset:{2048*(r & 1)} nt")
    partA = pl.lines; pl = Asm()
    pl("v_lshlrev_b32 v27, 3, v23")
    for q in range(4):
        pl(f"buffer_load_dwordx4 {vr(76+4*q,4)}, v27, s[40:43], 0 offen offset:{16*q}")
    pl("s_lshl_b32 s73, s48, 7"); pl("s_lshl_b32 s74, s49, 3"); pl("s_add_u32 s73, s73, s74"); pl("s_lshl_b32 s74, s53, 1"); pl("s_add_u32 s73, s73, s74")
    pl("v_lshrrev_b32 v28, 5, v0"); pl("v_add_u32 v28, s73, v28")
    pl("v_and_b32 v29, 31, v0"); pl("v_lshlrev_b32 v29, 4, v29")
    pl("v_lshl_add_u32 v30, v28, 11, v29")
    for i in range(4):
        pl(f"buffer_load_dwordx4 {vr(92+4*i,4)}, v30, s[20:23], 0 offen offset:{512*i}")
    for i in range(4):
        pl(f"buffer_load_dwordx4 {vr(108+4*i,4)}, v29, s[44:47], 0 offen offset:{512*i}")
    pl("v_lshlrev_b32 v31, 12, v23"); pl("v_lshl_add_u32 v31, v22, 1, v31")
    pl(f"s_mov_b32 s72, {WS_UT}")
    pl("s_mov_b32 s74, 0x05040100"); pl("s_mov_b32 s75, 0x07060302")
    partB = pl.lines
    a("v_mov_b32 v160, 0"); a("v_mov_b32 v161, 0"); a("v_mov_b32 v162, 0"); a("v_mov_b32 v163, 0")
    a("v_and_b32 v164, 1, v0"); a("v_lshlrev_b32 v164, 4, v164")
    a("s_waitcnt vmcnt(20)"); a("s_barrier")
    a(f"ds_write_b128 v164, v[160:163] offset:{F_E0}")
    for ln in partA: a(ln)
    a("s_waitcnt vmcnt(21)"); a("s_barrier")
    a(f"ds_write_b128 v164, v[160:163] offset:{F_E1}")
    for ln in partB: a(ln)
    a("s_lshl_b32 s54, s51, 7"); a("s_lshl_b32 s55, s52, 2"); a("s_add_u32 s54, s54, s55"); a("s_add_u32 s54, s54, s53")
    a("s_lshl_b32 s55, s54, 12")
    a("s_add_u32 s60, s6, s55"); a("s_addc_u32 s61, s7, 0")
    a("v_lshlrev_b32 v1, 2, v0"); a("v_subrev_u32 v3, 4, v1"); a("v_add_u32 v4, 252, v1")
    a("s_waitcnt vmcnt(23) lgkmcnt(0)"); a("s_barrier")
    a("v_and_b32 v165, 7, v0"); a("v_lshlrev_b32 v165, 4, v165"); a(f"v_add_u32 v165, {F_FL}, v165")
    a("ds_write_b128 v165, v[160:163]")
    a("s_mov_b32 s24, s60"); a("s_mov_b32 s25, s61"); a("s_mov_b32 s26, 4096"); a("s_mov_b32 s27, 0x00020000")
    E = 176; E1 = 192
    for j in range(16):
        a(f"buffer_load_dword v{E+j}, v1, s[24:27], 0 offen offset:{256*j} nt")
        if j == 0: a(f"buffer_load_dword v{E1}, v3, s[24:27], 0 offen")
        else:      a(f"buffer_load_dword v{E1+j}, v4, s[24:27], 0 offen offset:{256*(j-1)}")
    a("s_waitcnt vmcnt(40)")
    stamp(a, opt, 2)
    P = 128; KS = 140; VU = 148
    for c in range(8):
        cp, h = c >> 1, c & 1
        sel = "s75" if h else "s74"
        pb = P + 6*(c & 1); kb = KS + 4*(c & 1)
        for t in range(6): a(f"v_perm_b32 v{pb+t}, v{32+4*t+cp}, v{32+4*(t+1)+cp}, {sel}")
        for r in range(4): a(f"v_dot2_f32_bf16 v{kb+r}, v{pb+r+2}, v{76+2*c}, 0")
        for r in range(4): a(f"v_dot2_f32_bf16 v{kb+r}, v{pb+r}, v{76+2*c+1}, v{kb+r}")
        for r in range(4):
            if h: a(f"v_and_b32 v{VU+r}, 0xffff0000, v{60+4*r+cp}")
            else: a(f"v_lshlrev_b32 v{VU+r}, 16, v{60+4*r+cp}")
        for r in range(4): a(f"v_mul_f32 v{kb+r}, v{kb+r}, v{VU+r}")
        o = 152 + 2*(c & 3)
        a(f"v_cvt_pk_bf16_f32 v{o}, v{kb}, v{kb+1}"); a(f"v_cvt_pk_bf16_f32 v{o+1}, v{kb+2}, v{kb+3}")
        a(f"s_add_u32 s73, s72, {c*4096}")
        a(f"buffer_store_dwordx2 {vr(o,2)}, v31, s[36:39], s73 offen sc1")
    a("s_waitcnt vmcnt(40)")
    a("v_mov_b32 v128, 0")
    for i in range(16): a(f"v_dot2_f32_bf16 v128, v{92+i}, v{108+i}, v128")
    a("s_nop 3")
    for ctl in ("quad_perm:[1,0,3,2]", "quad_perm:[2,3,0,1]", "row_half_mirror", "row_mirror"):
        a(f"v_add_f32_dpp v128, v128, v128 {ctl} row_mask:0xf bank_mask:0xf"); a("s_nop 1")
    a("v_mov_b32 v129, v128"); a("s_nop 1")
    a("v_permlane16_swap_b32 v128, v129"); a("s_nop 1")
    a("v_add_f32 v128, v128, v129")
    a("v_mul_f32 v128, 0xbfb8aa3b, v128"); a("v_exp_f32 v128, v128"); a("s_nop 0")
    a("v_add_f32 v128, 1.0, v128"); a("v_rcp_f32 v128, v128")
    a("v_lshlrev_b32 v28, 2, v28"); a("v_and_b32 v29, 31, v0"); a("v_cmp_eq_u32 vcc, 0, v29")
    a("s_and_saveexec_b64 s[62:63], vcc")
    a(f"s_mov_b32 s73, {WS_G}")
    a("buffer_store_dword v128, v28, s[36:39], s73 offen sc1")
    a("s_mov_b64 exec, s[62:63]")
    stamp(a, opt, 3)
    a("v_lshlrev_b32 v2, 4, v0")
    a(f"s_mul_i32 s56, s53, {CWB}")
    a("v_mov_b32 v12, 0"); a("v_mov_b32 v13, 0"); a("v_mov_b32 v14, 0"); a("v_mov_b32 v15, 0")
    a(f"s_add_u32 s57, s56, {CF}")
    a("v_min_u32 v5, 29, v0"); a("v_lshl_add_u32 v5, v5, 4, s57")
    a("ds_write_b128 v5, v[12:15]")
    a("v_lshrrev_b32 v5, 3, v0"); a("v_and_b32 v5, 3, v5"); a(f"v_mul_u32_u24 v5, {CTS}, v5")
    a("v_and_b32 v6, 7, v0"); a("v_lshl_add_u32 v5, v6, 2, v5")
    a(f"s_add_u32 s57, s56, {8 + 4*1023}"); a("v_add_u32 v5, s57, v5")
    a("ds_write_b32 v5, v12")
    TW = 16
    for rho in range(4):
        a(f"s_add_u32 s57, s56, {rho*CTS + 256 + (4 if rho >= 2 else 0)}")
        a(f"v_sub_u32 v{TW+rho}, s57, v1")
    a("s_mov_b32 s59, 0xffff")
    a("s_waitcnt vmcnt(9)")
    S = 64; M = 80
    for j in range(16):
        a(f"v_alignbit_b32 v{S+j}, v{E+j}, v{E+j}, 16")
        a(f"v_bfi_b32 v{M+j}, s59, v{E+j}, v{E1+j}")
    for j in range(0, 16, 2):
        for rho in range(4):
            src = S if rho & 1 else M
            a(f"ds_write2st64_b32 v{TW+rho}, v{src+j}, v{src+j+1} offset0:{15-j} offset1:{14-j}")
    make_srd(a, 40, 12, 256); make_srd(a, 24, 18, NB["wo"])
    a("v_mov_b32 v9, 0"); a("v_mov_b32 v11, 1")
    a("s_lshl_b32 s60, s2, 7"); a(f"s_add_u32 s60, s60, {FL_U}"); a("v_mov_b32 v10, s60")
    a("s_waitcnt vmcnt(0)")
    lds_count_last(a, 9, E_ADC, 11, 8, 3, lambda: a("buffer_store_dword v11, v10, s[36:39], 0 offen sc1"))
    stamp(a, opt, 4)
    GA = 20; GW = 24
    a("v_lshrrev_b32 v96, 3, v0"); a("v_and_b32 v97, 7, v0"); a("v_lshrrev_b32 v98, 4, v0")
    a("s_lshl_b32 s60, s96, 7"); a("s_lshl_b32 s61, s53, 5"); a("s_add_u32 s60, s60, s61")
    a("v_add_u32 v99, s60, v96"); a("v_lshlrev_b32 v99, 11, v99")
    a("v_xor_b32 v100, v98, v97"); a(f"v_lshl_add_u32 v{GA}, v100, 4, v99")
    a("v_xor_b32 v100, 4, v100"); a(f"v_lshl_add_u32 v{GA+1}, v100, 4, v99"); a(f"v_add_u32 v{GA+1}, 16384, v{GA+1}")
    for i in range(2, 4): a(f"v_add_u32 v{GA+i}, 32768, v{GA+(i&1)}")
    a("v_and_b32 v100, 1, v98"); a("v_lshlrev_b32 v100, 1, v100"); a("v_xor_b32 v100, v100, v97")
    a("v_lshlrev_b32 v99, 11, v96")
    a("s_lshl_b32 s60, s53, 15"); a("s_lshl_b32 s61, s97, 7"); a("s_add_u32 s60, s60, s61")
    a("v_add_u32 v99, s60, v99")
    a(f"v_lshl_add_u32 v{GW}, v100, 4, v99")
    a("v_xor_b32 v100, 4, v100"); a(f"v_lshl_add_u32 v{GW+1}, v100, 4, v99"); a(f"v_add_u32 v{GW+1}, 16384, v{GW+1}")
    a("v_lshrrev_b32 v99, 4, v0"); a("s_lshl_b32 s60, s97, 6"); a("s_lshl_b32 s61, s53, 4"); a("s_add_u32 s60, s60, s61")
    a("v_add_u32 v99, s60, v99"); a("v_lshlrev_b32 v99, 12, v99")
    a("v_and_b32 v100, 15, v0"); a("v_lshl_add_u32 v99, v100, 4, v99"); a("s_lshl_b32 s60, s96, 8"); a("v_add_u32 v26, s60, v99")
    a("s_lshl_b32 s64, s53, 12"); a("s_lshl_b32 s65, s53, 11"); a("s_add_u32 s65, s65, 16384")
    rot3 = opt.get("rot3", 0)
    if rot3 == 0: a("s_mov_b32 s46, 0")
    elif rot3 == 2: a("s_lshr_b32 s46, s52, 2"); a("s_add_u32 s46, s46, s52"); a("s_and_b32 s46, s46, 1"); a("s_lshl_b32 s46, s46, 3")
    elif rot3 == 4: a("s_lshr_b32 s46, s52, 2"); a("s_add_u32 s46, s46, s52"); a("s_and_b32 s46, s46, 3"); a("s_lshl_b32 s46, s46, 2")
    a("s_cmp_eq_u32 s53, 0"); a("s_cbranch_scc1 Lupoll")
    a("s_lshl_b32 s60, s52, 5"); a("s_lshl_b32 s61, s53, 3"); a("s_add_u32 s60, s60, s61"); a("s_sub_u32 s60, s60, 8")
    a("v_lshrrev_b32 v96, 3, v0"); a("v_add_u32 v96, s60, v96"); a("v_lshlrev_b32 v96, 11, v96")
    a("v_and_b32 v97, 7, v0"); a("v_lshl_add_u32 v96, v97, 7, v96")
    a("s_lshr_b32 s60, s51, 2"); a("s_lshl_b32 s60, s60, 10")
    a("buffer_load_dword v98, v96, s[24:27], s60 offen")
    a("s_cmp_eq_u32 s53, 3"); a("s_cbranch_scc0 Lnpf")
    a("v_add_u32 v96, 16384, v96")
    a("buffer_load_dword v99, v96, s[24:27], s60 offen")
    a.label("Lnpf")
    lds_spin(a, 9, E_UR, 8, "eq", 1)
    a("s_branch Lugo")
    a.label("Lupoll")
    poll_zeroed(a, 100)
    a("s_lshl_b32 s60, s51, 1"); a("s_lshr_b32 s61, s52, 4"); a("s_add_u32 s60, s60, s61"); a("s_lshl_b32 s60, s60, 11"); a(f"s_add_u32 s60, s60, {FL_U}")
    a("v_and_b32 v102, 15, v0"); a("v_lshl_add_u32 v102, v102, 7, s60")
    poll16(a, 102, 100)
    a(f"ds_write_b32 v9, v11 offset:{E_UR}")
    a.label("Lugo")
    a(f"s_add_u32 s57, s55, {WS_UT}")
    for i in range(4):
        a(f"s_add_u32 m0, s56, {CF + 480 + i*1024}")
        a(f"s_add_u32 s60, s57, {i*1024}")
        a("buffer_load_dwordx4 v2, s[36:39], s60 offen sc1 lds")
    a("s_waitcnt vmcnt(0) lgkmcnt(0)")
    a("s_mov_b64 exec, 1")
    a(f"ds_add_u32 v9, v11 offset:{E_CRC}")
    a("s_mov_b64 exec, -1")
    stamp(a, opt, 5)
    def slot_base(st):
        sl = st % 6
        return (F_U + sl*ST3) if sl < 3 else (sl - 3)*ST3
    a("s_lshl_b32 s60, s96, 11"); a(f"s_add_u32 s60, s60, {FL_O}")
    a("v_and_b32 v102, 15, v0"); a("v_lshl_add_u32 v102, v102, 7, s60")
    a(f"v_mov_b32 v27, {F_FL}")
    a("s_mov_b32 s70, 0"); a("s_mov_b32 s71, 0"); a("s_mov_b32 s72, 0")
    def next_j(k):
        lloc, ljoin, lfol = lab("nl"), lab("nj"), lab("nf")
        a("s_cmp_eq_u32 s70, 1"); a(f"s_cbranch_scc1 {lloc}")
        a("s_cmp_eq_u32 s53, 0"); a(f"s_cbranch_scc0 {lfol}")
        l0, l1 = lab("np"), lab("nq")
        a("s_mov_b32 s61, 0")
        a("s_andn2_b32 s62, s72, s71"); a(f"s_cbranch_scc1 {l1}")
        a.label(l0)
        a("buffer_load_dword v100, v102, s[36:39], 0 offen sc1"); a("s_waitcnt vmcnt(0)")
        a("v_cmp_eq_u32 vcc, 1, v100"); a("s_add_u32 s61, s61, 1"); a("s_nop 3")
        a("s_and_b32 s72, vcc_lo, 0xffff"); a("s_andn2_b32 s62, s72, s71"); a(f"s_cbranch_scc1 {l1}")
        a(f"s_cmp_lt_u32 s61, {SPIN_MAX}"); a(f"s_cbranch_scc1 {l0}")
        a("s_andn2_b32 s62, 0xffff, s71"); a("s_mov_b32 s72, 0xffff")
        a.label(l1)
        a("s_ff1_i32_b32 s47, s62")
        a("s_cmp_eq_u32 s72, 0xffff"); a("s_cselect_b32 s70, 1, 0")
        a("s_lshl_b32 s62, s70, 8"); a("s_add_u32 s62, s62, s47"); a("s_add_u32 s62, s62, 1"); a("v_mov_b32 v100, s62")
        a(f"ds_write_b32 v27, v100 offset:{64 + 4*k}")
        a(f"s_branch {ljoin}")
        a.label(lfol)
        l2, l3 = lab("nr"), lab("ns")
        a("s_mov_b32 s61, 0")
        a.label(l2)
        a(f"ds_read_b32 v100, v27 offset:{64 + 4*k}"); a("s_waitcnt lgkmcnt(0)")
        a("v_readfirstlane_b32 s62, v100"); a("s_add_u32 s61, s61, 1"); a("s_cmp_lg_u32 s62, 0"); a(f"s_cbranch_scc1 {l3}")
        a(f"s_cmp_lt_u32 s61, {SPIN_MAX*8}"); a(f"s_cbranch_scc1 {l2}")
        a.label(l3)
        a("s_lshr_b32 s70, s62, 8"); a("s_and_b32 s47, s62, 0xff"); a("s_sub_u32 s47, s47, 1"); a("s_and_b32 s47, s47, 15")
        a(f"s_branch {ljoin}")
        a.label(lloc)
        a("s_andn2_b32 s62, 0xffff, s71"); a("s_ff1_i32_b32 s47, s62")
        a.label(ljoin)
        a("s_lshl_b32 s62, 1, s47"); a("s_or_b32 s71, s71, s62")
        a("s_lshl_b32 s66, s47, 7"); a(f"s_add_u32 s66, s66, {WS_O}"); a("s_lshl_b32 s67, s47, 17")
    def issue_stage(st, prepared):
        sb = slot_base(st)
        if not prepared:
            next_j(st); a(f"s_add_u32 m0, s64, {sb}"); a("s_nop 0")
        for i in range(4):
            if i: a(f"s_add_u32 m0, s64, {sb + i*1024}"); a("s_nop 0")
            a(f"buffer_load_dwordx4 v{GA+i}, s[36:39], s66 offen sc1 lds")
        for i in range(2):
            a(f"s_add_u32 m0, s65, {sb + i*1024}"); a("s_nop 0")
            a(f"buffer_load_dwordx4 v{GW+i}, s[24:27], s67 offen lds")
    Q = []
    for st in range(3):
        if st == 2: lds_spin(a, 9, E_OC, 8, "ge", 4)
        issue_stage(st, False); Q += [st]*6
        if st == 0: stamp(a, opt, 6)
    issued = 3
    for i in range(16):
        last = max(k for k, e in enumerate(Q) if e == i)
        if i == 15: last = len(Q) - 1
        n_after = len(Q) - 1 - last
        todo = []
        while issued + len(todo) <= min(15, i + 5) and len(todo) < opt.get("gburst", 2): todo.append(issued + len(todo))
        a(f"s_waitcnt vmcnt({n_after})")
        a("s_barrier")
        Q = Q[last + 1:]
        for k_, st in enumerate(todo):
            issue_stage(st, False); Q += [st]*6
        issued += len(todo)
        if i == 12:
            lds_spin(a, 27, 4, 8, "eq", 1)
            a(f"s_lshl_b32 s60, s53, 12"); a(f"s_add_u32 s60, s60, {F_Y}")
            for k_ in range(4):
                a(f"s_add_u32 m0, s60, {k_*1024}"); a(f"s_mov_b32 s61, {WS_YT + k_*4*4096}")
                a("buffer_load_dwordx4 v26, s[36:39], s61 offen sc1 lds")
            Q += ["y"]*4
    assert issued == 16
    if opt.get("gst"):
        a(f"s_add_u32 s76, s14, {WS_STAMP + (1 << 20)}"); a("s_addc_u32 s77, s15, 0"); a("s_mov_b32 s78, 0x1000000"); a("s_mov_b32 s79, 0x00020000")
        a("s_lshl_b32 s75, s2, 2"); a("s_add_u32 s75, s75, s53"); a("s_lshl_b32 s75, s75, 8")
        a("v_lshlrev_b32 v201, 2, v0"); a("buffer_store_dword v200, v201, s[76:79], s75 offen")
    stamp(a, opt, 7)
    stamp_dump(a, opt, 8)
    a("s_waitcnt vmcnt(0)")

def build(opt=None):
    opt = opt or {}
    _lab[0] = 0
    a = Asm()
    if opt.get("aslist"): a(f"; @launch kernel={NAME} grid=(256,1,1) block=(512,1,1) lds=163840")
    else: a("; @launch grid=(256,1,1) block=(512,1,1) lds=163840")
    a('.amdgcn_target "amdgcn-amd-amdhsa--gfx950"')
    a(".text")
    a.lines = [l for l in a.lines]
    kernel(a, opt)
    a('.section .rodata,"a"')
    kernel_desc(a, NAME, vgpr=256, sgpr=102)
    return a.text().replace("None\n", "")

if __name__ == "__main__":
    opt = {}
    for o in sys.argv[2:]:
        k, _, v = o.partition("=")
        opt[k] = int(v) if v else 1
    open(sys.argv[1], "w").write(build(opt))
```

```python
import sys
from asmlib import *

WS_UT  = 4 << 20
WS_KVP = 8 << 20
WS_ZP  = 10 << 20
WS_G   = 11 << 20
WS_FL  = (11 << 20) | 0x80000
FL_KV, FL_U, FL_O, FL_Y = WS_FL, WS_FL + 32768, WS_FL + 65536, WS_FL + 98304
WS_O   = 12 << 20
WS_YT  = 16 << 20
WS_USED = 20 << 20
WS_STAMP = 24 << 20
LOG2E = 0x3fb8aa3b
EPS   = 0x358637bd
SPIN_MAX = 1 << 17
NAME = "gated_mix__linear_attn_block__ssm_conv_h3__prompt_kernel"

ST1 = 40960
CTS = 4160
CF  = 4 * CTS
CWB = 4 * CTS + 4608
F_FL = 4 * CWB
ST3 = 24576
F_U = F_FL + 256
F_SCR = F_U + 2 * ST3
F_Y = ST3
F_E0 = CWB - 32
F_E1 = 2 * CWB - 32
E_XF = F_E0
E_RF = F_E0 + 16
E_KVC, E_KVR = F_E0 + 24, F_E0 + 28
E_ADC, E_UR, E_CRC, E_OC, E_OR = F_E1, F_E1 + 4, F_E1 + 8, F_E1 + 12, F_E1 + 16
W_YC, W_YR = F_FL, F_FL + 4

def vr(a, n=1): return f"v{a}" if n == 1 else f"v[{a}:{a+n-1}]"

def stamp(a, opt, i):
    if opt.get("stamps"):
        a(f"s_memtime s[{80+2*i}:{81+2*i}]")
        if i == 0: a("s_memrealtime s[98:99]")
def stamp_dump(a, opt, n):
    if not opt.get("stamps"): return
    a("s_waitcnt vmcnt(0) lgkmcnt(0)")
    a(f"s_add_u32 s76, s14, {WS_STAMP}"); a("s_addc_u32 s77, s15, 0"); a("s_mov_b32 s78, 0x1000000"); a("s_mov_b32 s79, 0x00020000")
    a("s_lshl_b32 s75, s2, 3"); a("s_add_u32 s75, s75, s50"); a("s_lshl_b32 s75, s75, 6"); a("v_mov_b32 v1, s75")
    for i in range(1, n):
        a(f"s_sub_u32 s74, s{80+2*i}, s80"); a("v_mov_b32 v2, s74")
        a(f"buffer_store_dword v2, v1, s[76:79], 0 offen offset:{4*i}")
    a("s_memrealtime s[80:81]"); a("s_waitcnt lgkmcnt(0)"); a("v_mov_b32 v2, s80")
    a("buffer_store_dword v2, v1, s[76:79], 0 offen offset:60")
    a("v_mov_b32 v2, s98"); a("buffer_store_dword v2, v1, s[76:79], 0 offen offset:56")

def phi_pair(a, t, tmp):
    a(f"v_pk_mul_f32 {vr(tmp,2)}, {vr(t,2)}, s[56:57]")
    a(f"v_exp_f32_e64 v{tmp}, v{tmp} clamp")
    a(f"v_exp_f32_e64 v{tmp+1}, v{tmp+1} clamp")
    a(f"v_max_f32 v{t}, 0, v{t}")
    a(f"v_max_f32 v{t+1}, 0, v{t+1}")
    a(f"v_pk_add_f32 {vr(t,2)}, {vr(t,2)}, {vr(tmp,2)}")
    a(f"v_pk_add_f32 {vr(t,2)}, {vr(t,2)}, s[58:59]")

_lab = [0]
def lab(p):
    _lab[0] += 1
    return f"L{p}{_lab[0]}"

def lds_spin(a, vaddr, off, vtmp, cond, val):
    assert off < 65536
    l0, l1 = lab("sp"), lab("sx")
    a("s_mov_b32 s61, 0")
    a.label(l0)
    a(f"ds_read_b32 v{vtmp}, v{vaddr} offset:{off}"); a("s_waitcnt lgkmcnt(0)")
    a(f"v_readfirstlane_b32 s60, v{vtmp}"); a("s_add_u32 s61, s61, 1"); a(f"s_cmp_{cond}_u32 s60, {val}"); a(f"s_cbranch_scc1 {l1}")
    a(f"s_cmp_lt_u32 s61, {SPIN_MAX*8}"); a(f"s_cbranch_scc1 {l0}")
    a.label(l1)

def lds_count_last(a, vaddr, off, vone, vtmp, last, action):
    l = lab("cl")
    a("s_mov_b64 exec, 1")
    a(f"ds_add_rtn_u32 v{vtmp}, v{vaddr}, v{vone} offset:{off}"); a("s_waitcnt lgkmcnt(0)")
    a(f"v_readfirstlane_b32 s60, v{vtmp}"); a(f"s_cmp_eq_u32 s60, {last}"); a(f"s_cbranch_scc0 {l}")
    action()
    a.label(l)
    a("s_mov_b64 exec, -1")

def poll16(a, vaddr, vtmp, extra=None):
    l0, l1 = lab("pl"), lab("px")
    a("s_mov_b32 s61, 0")
    a.label(l0)
    a(f"buffer_load_dword v{vtmp}, v{vaddr}, s[36:39], 0 offen sc1")
    if extra: a(f"ds_read_b32 v{vtmp+1}, v{extra[0]} offset:{extra[1]}")
    a("s_waitcnt vmcnt(0) lgkmcnt(0)")
    a(f"v_cmp_ne_u32 vcc, 1, v{vtmp}")
    if extra: a(f"v_readfirstlane_b32 s62, v{vtmp+1}")
    a("s_add_u32 s61, s61, 1"); a("s_nop 2")
    a("s_cmp_eq_u64 vcc, 0")
    if extra:
        a("s_cselect_b32 s60, 1, 0"); a(f"s_cmp_ge_u32 s62, {extra[2]}"); a("s_cselect_b32 s62, 1, 0"); a("s_and_b32 s60, s60, s62")
    a(f"s_cbranch_scc1 {l1}")
    a(f"s_cmp_lt_u32 s61, {SPIN_MAX}"); a(f"s_cbranch_scc1 {l0}")
    a.label(l1)

def poll_zeroed(a, vtmp):
    l0, l1 = lab("zl"), lab("zx")
    a("s_mov_b32 s61, 0"); a(f"v_mov_b32 v{vtmp+1}, 0")
    a.label(l0)
    a(f"buffer_load_dword v{vtmp}, v{vtmp+1}, s[40:43], 0 offen sc1"); a("s_waitcnt vmcnt(0)")
    a(f"v_readfirstlane_b32 s60, v{vtmp}"); a("s_add_u32 s61, s61, 1"); a("s_cmp_ge_u32 s60, 256"); a(f"s_cbranch_scc1 {l1}")
    a(f"s_cmp_lt_u32 s61, {SPIN_MAX}"); a(f"s_cbranch_scc1 {l0}")
    a.label(l1)

def kernel(a, opt):
    name = NAME
    kernel_begin(a, name)
    a("s_cmp_ge_u32 s2, 256")
    a("s_cbranch_scc1 Ldone")
    stamp(a, opt, 0)
    a("s_load_dwordx4 s[4:7], s[0:1], 0")
    a("s_load_dwordx4 s[12:15], s[0:1], 88")
    a("v_lshrrev_b32 v1, 6, v0")
    a("v_and_b32 v0, 63, v0")
    a("v_readfirstlane_b32 s50, v1")
    a("s_and_b32 s51, s2, 7")
    a("s_lshr_b32 s52, s2, 3")
    a("s_lshl_b32 s53, s51, 3"); a("s_and_b32 s53, s53, 8"); a("s_and_b32 s54, s52, 7"); a("s_or_b32 s48, s53, s54")
    a("s_lshl_b32 s53, s51, 1"); a("s_and_b32 s53, s53, 12"); a("s_lshr_b32 s54, s52, 3"); a("s_or_b32 s49, s53, s54")
    if opt.get("jx"): a(f"s_xor_b32 s49, s49, {opt['jx']}")
    if opt.get("jperm", 1):
        a("s_lshr_b32 s53, s49, 2"); a("s_add_u32 s53, s53, 1"); a("s_and_b32 s53, s53, 2"); a("s_mul_i32 s53, s53, 6"); a("s_xor_b32 s49, s49, s53")
    a("s_and_b32 s53, s51, 3"); a("s_lshl_b32 s53, s53, 2"); a("s_and_b32 s54, s52, 3"); a("s_or_b32 s96, s53, s54")
    a("s_lshr_b32 s53, s51, 2"); a("s_lshl_b32 s53, s53, 3"); a("s_lshr_b32 s54, s52, 2"); a("s_or_b32 s97, s53, s54")
    a("s_cmp_ge_u32 s50, 4")
    a("s_cbranch_scc1 Laux")
    c_waves(a, opt)
    a.label("Laux")
    a_waves(a, opt)
    a.label("Ldone")
    a("s_endpgm")

def c_waves(a, opt):
    def acc(ai, c, u): return 64 + ((c * 2 + u) * 4 + ai) * 4
    def xf(buf, ai): return 160 + buf * 40 + ai * 4
    def wf(buf, c, u): return 160 + buf * 40 + 16 + (c * 2 + u) * 4
    XA = 8; WA = 12
    a("s_load_dwordx4 s[8:11], s[0:1], 56") if False else None
    a("s_setprio 2")
    a("s_and_b32 s53, s50, 1")
    a("s_lshr_b32 s54, s50, 1")
    a("v_and_b32 v2, 15, v0")
    a("v_lshrrev_b32 v3, 4, v0")
    a("v_lshrrev_b32 v4, 1, v2"); a("v_xor_b32 v4, v4, v3")
    a("s_lshl_b32 s55, s53, 13")
    a("v_lshlrev_b32 v5, 7, v2"); a("v_add_u32 v5, s55, v5")
    a(f"v_lshl_add_u32 v{XA}, v4, 4, v5")
    a("v_xor_b32 v6, 4, v4"); a(f"v_lshl_add_u32 v{XA+1}, v6, 4, v5")
    for kk in range(2): a(f"v_add_u32 v{XA+2+kk}, {2*ST1}, v{XA+kk}")
    a("v_bfe_u32 v6, v0, 2, 2")
    a("v_lshl_add_u32 v7, v3, 3, v6"); a("v_lshlrev_b32 v7, 7, v7")
    a("v_and_b32 v18, 3, v0"); a("v_lshl_add_u32 v7, v18, 3, v7")
    a("v_add_u32 v7, 16384, v7")
    a("v_bfe_u32 v18, v0, 3, 1"); a("v_bfe_u32 v19, v0, 4, 1"); a("v_lshl_or_b32 v18, v19, 1, v18")
    a("s_lshl_b32 s55, s54, 1")
    a("v_xor_b32 v18, s55, v18")
    a(f"v_lshl_add_u32 v{WA}, v18, 5, v7")
    a("v_xor_b32 v18, 1, v18"); a(f"v_lshl_add_u32 v{WA+1}, v18, 5, v7")
    for u in range(2): a(f"v_add_u32 v{WA+2+u}, {2*ST1}, v{WA+u}")
    for r in range(64, 160): a(f"v_mov_b32 v{r}, 0")
    a(f"s_mov_b32 s56, {LOG2E:#x}"); a(f"s_mov_b32 s57, {LOG2E:#x}")
    a(f"s_mov_b32 s58, {EPS:#x}"); a(f"s_mov_b32 s59, {EPS:#x}")
    a("s_waitcnt lgkmcnt(0)")
    make_srd(a, 36, 14, WS_USED); make_srd(a, 40, 12, 256)
    a("s_load_dwordx4 s[8:11], s[0:1], 64") ;
    a("s_load_dwordx2 s[16:17], s[0:1], 80")
    a("s_cmp_eq_u32 s50, 0"); a("s_cbranch_scc0 Lnz")
    a("s_lshl_b32 s55, s49, 4"); a("s_add_u32 s55, s55, s48"); a("s_lshl_b32 s55, s55, 7"); a(f"s_add_u32 s55, s55, {FL_KV}"); a("v_writelane_b32 v18, s55, 0")
    a("s_lshl_b32 s55, s2, 7"); a(f"s_add_u32 s55, s55, {FL_U}"); a("v_writelane_b32 v18, s55, 1")
    a("s_lshl_b32 s55, s48, 4"); a("s_add_u32 s55, s55, s49"); a("s_lshl_b32 s55, s55, 7"); a(f"s_add_u32 s55, s55, {FL_O}"); a("v_writelane_b32 v18, s55, 2")
    a("s_lshl_b32 s55, s51, 5"); a("s_add_u32 s55, s55, s52"); a("s_lshl_b32 s55, s55, 7"); a(f"s_add_u32 s55, s55, {FL_Y}"); a("v_writelane_b32 v18, s55, 3")
    a("v_mov_b32 v19, 0"); a("v_mov_b32 v20, 1")
    a("s_mov_b64 exec, 15")
    a("buffer_store_dword v19, v18, s[36:39], 0 offen sc1")
    if opt.get("atom_early"):
        a("s_waitcnt vmcnt(0)")
        a("s_mov_b64 exec, 1")
        a("buffer_atomic_add v20, v19, s[40:43], 0 offen sc1")
    a("s_mov_b64 exec, -1")
    a.label("Lnz")

    def reads(slot, kk, buf):
        hi = 2 if slot >= 2 else 0
        so = (slot & 1) * ST1
        X = [f"ds_read_b128 {vr(xf(buf,ai),4)}, v{XA+hi+kk} offset:{so + ai*2048}" for ai in range(4)]
        W = {}
        for c in range(3):
            for u in range(2):
                W[c, u] = [f"ds_read_b64_tr_b16 {vr(wf(buf,c,u)+2*sec,2)}, v{WA+hi+u} offset:{so + c*8192 + kk*4096 + sec*512}" for sec in range(2)]
        return [X[0]] + W[0, 0] + [X[1], X[2], X[3]] + W[0, 1] + W[1, 0] + W[1, 1] + W[2, 0] + W[2, 1]
    def mfmas(buf):
        L = []
        for c in range(3):
            for u in range(2):
                for ai in range(4):
                    d = vr(acc(ai, c, u), 4)
                    if c == 0: L.append(f"v_mfma_f32_16x16x32_bf16 {d}, {vr(wf(buf,c,u),4)}, {vr(xf(buf,ai),4)}, {d}")
                    else:      L.append(f"v_mfma_f32_16x16x32_bf16 {d}, {vr(xf(buf,ai),4)}, {vr(wf(buf,c,u),4)}, {d}")
        return L
    def step(buf, nxt, barrier=False):
        M = mfmas(buf); q = list(nxt)
        first = 4 if barrier else 0
        for i in range(24):
            a(M[i])
            if barrier and i == first - 1: a("s_barrier")
            if i >= first - (1 if barrier else 0) and q: a(q.pop(0))
        for s_ in q: a(s_)
    a("s_barrier")
    cst = opt.get("cst")
    def st_(i, j=None):
        k = j if cst else i
        if k is not None: stamp(a, opt, k)
    st_(1)
    for s in reads(0, 0, 0): a(s)
    a("s_mov_b32 s60, 0")
    a.label("Lcloop")
    for slot in range(4):
        for kk in range(2):
            a("s_waitcnt lgkmcnt(0)")
            if kk == 0:
                if slot == 0 and not opt.get("atom_early") and not opt.get("atom_none"):
                    a("s_cmp_eq_u32 s60, 2"); a("s_cselect_b32 s61, s50, 1"); a("s_cmp_eq_u32 s61, 0"); a("s_cbranch_scc0 Lnat")
                    a("s_waitcnt vmcnt(0)"); a("s_mov_b64 exec, 1")
                    a("buffer_atomic_add v20, v19, s[40:43], 0 offen sc1")
                    a("s_mov_b64 exec, -1"); a("s_nop 4")
                    a.label("Lnat")
                step(0, reads(slot, 1, 1))
            else:
                if slot == 3:
                    a("s_cmp_eq_u32 s60, 3"); a("s_cbranch_scc1 Lclast")
                step(1, reads((slot + 1) & 3, 0, 0), barrier=True)
    a("s_add_u32 s60, s60, 1")
    a("s_branch Lcloop")
    a.label("Lclast")
    step(1, [])
    st_(2, 1)

    TMP = 20
    KF = 160; VF = 176; ONES = 192; QF = 200
    def kf(u, ks): return KF + (u*2 + ks)*4
    def vf(u, ks): return VF + (u*2 + ks)*4
    a("s_nop 7")
    for u in range(2):
        for ai in range(4):
            t = acc(ai, 1, u); o = kf(u, ai >> 1) + (ai & 1)*2
            phi_pair(a, t, TMP); phi_pair(a, t + 2, TMP + 2)
            a(f"v_cvt_pk_bf16_f32 v{o}, v{t}, v{t+1}"); a(f"v_cvt_pk_bf16_f32 v{o+1}, v{t+2}, v{t+3}")
    for u in range(2):
        for ai in range(4):
            t = acc(ai, 2, u); o = vf(u, ai >> 1) + (ai & 1)*2
            a(f"v_cvt_pk_bf16_f32 v{o}, v{t}, v{t+1}"); a(f"v_cvt_pk_bf16_f32 v{o+1}, v{t+2}, v{t+3}")
    for r in range(4): a(f"v_mov_b32 v{ONES+r}, 0x3f803f80")
    KVA = 96; ZA = 112
    a("s_nop 1")
    for ks in range(2):
        for ud in range(2):
            for ue in range(2):
                d = vr(KVA + (ud*2+ue)*4, 4)
                a(f"v_mfma_f32_16x16x32_bf16 {d}, {vr(kf(ud,ks),4)}, {vr(vf(ue,ks),4)}, {'0' if ks == 0 else d}")
            d = vr(ZA + ud*4, 4)
            a(f"v_mfma_f32_16x16x32_bf16 {d}, {vr(kf(ud,ks),4)}, {vr(ONES,4)}, {'0' if ks == 0 else d}")
    st_(None, 2)
    a(f"s_mul_i32 s55, s54, 6144"); a(f"s_add_u32 s55, s55, {F_SCR}")
    a("v_lshlrev_b32 v6, 4, v0"); a("v_add_u32 v6, s55, v6")
    a("v_mov_b32 v30, 0"); a("v_mov_b32 v31, 1")
    a("s_lshl_b32 s55, s54, 2"); a("v_mov_b32 v29, s55")
    def q_frags():
        for ai in range(4):
            for u in range(2):
                t = acc(ai, 0, u); o = QF + ai*4 + u*2
                phi_pair(a, t, TMP); phi_pair(a, t + 2, TMP + 2)
                a(f"v_cvt_pk_bf16_f32 v{o}, v{t}, v{t+1}"); a(f"v_cvt_pk_bf16_f32 v{o+1}, v{t+2}, v{t+3}")
    a("s_cmp_eq_u32 s53, 0"); a("s_cbranch_scc1 Lred0")
    a("s_nop 7")
    for q in range(6):
        a(f"ds_write_b128 v6, {vr(KVA+4*q,4)} offset:{q*1024}")
    a("s_waitcnt lgkmcnt(0)")
    a(f"ds_write_b32 v29, v31 offset:{E_RF}")
    q_frags()
    a("s_branch Lred1")
    a.label("Lred0")
    a("s_lshl_b32 s55, s49, 1"); a("s_add_u32 s55, s55, s54"); a("s_lshl_b32 s55, s55, 4"); a("s_add_u32 s55, s55, s48")
    a("s_lshl_b32 s63, s55, 11"); a(f"s_add_u32 s63, s63, {WS_KVP}")
    a("s_lshl_b32 s62, s55, 7"); a(f"s_add_u32 s62, s62, {WS_ZP}")
    a("v_lshlrev_b32 v7, 4, v3")
    lds_spin(a, 29, E_RF, 28, "eq", 1)
    R = 32
    for q in range(6):
        a(f"ds_read_b128 {vr(R+4*q,4)}, v6 offset:{q*1024}")
    a("v_lshlrev_b32 v6, 4, v0")
    a("s_waitcnt lgkmcnt(0)")
    for r in range(24):
        a(f"v_add_f32 v{KVA+r}, v{KVA+r}, v{R+r}")
    for t in range(4):
        for p in range(2):
            a(f"v_cvt_pk_bf16_f32 v{R+2*t+p}, v{KVA+4*t+2*p}, v{KVA+4*t+2*p+1}")
    for q in range(2):
        a(f"buffer_store_dwordx4 {vr(R+4*q,4)}, v6, s[36:39], s63 offen offset:{q*1024} sc1")
    a("v_cmp_eq_u32 vcc, 0, v2")
    a("s_and_saveexec_b64 s[64:65], vcc")
    for ud in range(2):
        a(f"buffer_store_dwordx4 {vr(ZA+4*ud,4)}, v7, s[36:39], s62 offen offset:{ud*64} sc1")
    a("s_mov_b64 exec, s[64:65]")
    st_(None, 3)
    q_frags()
    a("s_lshl_b32 s55, s49, 4"); a("s_add_u32 s55, s55, s48"); a("s_lshl_b32 s55, s55, 7"); a(f"s_add_u32 s55, s55, {FL_KV}"); a("v_mov_b32 v28, s55")
    a("s_waitcnt vmcnt(0)")
    lds_count_last(a, 30, E_KVC, 31, 29, 1, lambda: a("buffer_store_dword v31, v28, s[36:39], 0 offen sc1"))
    st_(None, 4)
    a.label("Lred1")
    a("s_lshl_b32 s55, s48, 7"); a("s_lshl_b32 s61, s53, 6"); a("s_add_u32 s55, s55, s61")
    a("v_add_u32 v5, s55, v2"); a("v_lshlrev_b32 v5, 11, v5")
    a("s_lshl_b32 s55, s49, 7"); a("s_lshl_b32 s61, s54, 6"); a("s_add_u32 s55, s55, s61")
    a("v_and_b32 v6, 1, v3"); a("v_lshlrev_b32 v6, 5, v6"); a("v_lshrrev_b32 v7, 1, v3"); a("v_lshl_add_u32 v6, v7, 4, v6")
    a("v_add3_u32 v5, v5, v6, s55")
    a(f"s_mul_i32 s55, s50, 4608"); a(f"s_add_u32 s55, s55, {F_SCR}"); a("s_xor_b32 s61, s50, 1"); a("s_mul_i32 s61, s61, 4608"); a(f"s_add_u32 s61, s61, {F_SCR}")
    a("v_lshlrev_b32 v6, 4, v0"); a("v_add_u32 v8, s55, v6"); a("v_add_u32 v9, s61, v6")
    a("v_and_b32 v7, 7, v0"); a("v_lshlrev_b32 v7, 4, v7"); a("s_add_u32 s55, s55, 4096"); a("v_add_u32 v10, s55, v7")
    a("v_lshlrev_b32 v7, 4, v3"); a("v_add_u32 v11, s55, v7"); a("s_add_u32 s61, s61, 4096"); a("v_add_u32 v12, s61, v7")
    a("s_lshl_b32 s55, s50, 2"); a("v_mov_b32 v13, s55"); a("s_xor_b32 s55, s55, 4"); a("v_mov_b32 v14, s55")
    a("s_lshl_b32 s55, s49, 1"); a("s_add_u32 s55, s55, s54"); a("s_lshl_b32 s55, s55, 4"); a("s_lshl_b32 s61, s53, 3"); a("s_add_u32 s55, s55, s61")
    a("s_lshl_b32 s68, s55, 11"); a(f"s_add_u32 s68, s68, {WS_KVP}")
    a("s_lshl_b32 s69, s55, 7"); a(f"s_add_u32 s69, s69, {WS_ZP}")
    a("s_lshl_b32 s53, s51, 7"); a("s_lshl_b32 s54, s52, 2"); a("s_add_u32 s53, s53, s54"); a("s_add_u32 s53, s53, s50")
    a(f"s_mul_i32 s54, s50, {CWB}")
    a("v_and_b32 v6, 3, v0"); a(f"v_mul_u32_u24 v6, {CTS}, v6")
    a("v_bfe_u32 v7, v0, 2, 2"); a("v_lshlrev_b32 v7, 3, v7"); a("v_sub_u32 v6, v6, v7")
    a("v_lshl_add_u32 v6, v3, 4, v6")
    a(f"s_add_u32 s55, s54, {8 + 24 + 448}"); a("v_add_u32 v16, s55, v6")
    a("v_lshlrev_b32 v6, 5, v2"); a("v_lshl_add_u32 v6, v3, 4, v6")
    a(f"s_add_u32 s55, s54, {CF + 448}"); a("v_add_u32 v17, s55, v6")
    a("s_lshl_b32 s55, s53, 1"); a("s_and_b32 s55, s55, 0xfffffffc")
    a("s_add_u32 s8, s8, s55"); a("s_addc_u32 s9, s9, 0")
    a("s_load_dword s70, s[8:9], 0")
    make_srd(a, 24, 4, NB["x"]); make_srd(a, 28, 16, NB["out"])
    GXA = 224; GWA = 228; XR = 232; GR = 32
    a("s_lshr_b32 s66, s50, 1"); a("s_and_b32 s67, s50, 1")
    a("s_lshl_b32 s55, s96, 7"); a("s_lshl_b32 s61, s66, 6"); a("s_add_u32 s55, s55, s61")
    a("v_add_u32 v20, s55, v2"); a("v_lshlrev_b32 v21, 11, v20")
    a("s_lshl_b32 s55, s97, 7"); a("s_lshl_b32 s61, s67, 6"); a("s_add_u32 s64, s55, s61")
    a("v_lshl_add_u32 v22, v3, 3, s64"); a("v_add_u32 v22, v21, v22"); a("v_lshlrev_b32 v23, 2, v20")
    a("v_lshrrev_b32 v24, 1, v2"); a("v_xor_b32 v24, v24, v3")
    a("s_lshl_b32 s55, s66, 13")
    a("v_lshlrev_b32 v25, 7, v2"); a("v_add_u32 v25, s55, v25")
    a(f"v_lshl_add_u32 v{GXA+2}, v24, 4, v25")
    a("v_xor_b32 v26, 4, v24"); a(f"v_lshl_add_u32 v{GXA+3}, v26, 4, v25")
    for kk in range(2): a(f"v_add_u32 v{GXA+kk}, {F_U}, v{GXA+2+kk}")
    a("v_bfe_u32 v26, v0, 2, 2")
    a("v_lshl_add_u32 v27, v3, 3, v26"); a("v_lshlrev_b32 v27, 7, v27")
    a("v_and_b32 v28, 3, v0"); a("v_lshl_add_u32 v27, v28, 3, v27"); a("v_add_u32 v27, 16384, v27")
    a("v_bfe_u32 v28, v0, 3, 1"); a("v_bfe_u32 v29, v0, 4, 1"); a("v_lshl_or_b32 v28, v29, 1, v28")
    a("s_lshl_b32 s55, s67, 1"); a("v_xor_b32 v28, s55, v28")
    a(f"v_lshl_add_u32 v{GWA+2}, v28, 5, v27")
    a("v_xor_b32 v28, 1, v28"); a(f"v_lshl_add_u32 v{GWA+3}, v28, 5, v27")
    for u in range(2): a(f"v_add_u32 v{GWA+u}, {F_U}, v{GWA+2+u}")
    a("v_mov_b32 v7, v3")
    st_(None, 5)
    a("s_cmp_eq_u32 s50, 1"); a("s_cbranch_scc0 Lkvw")
    poll_zeroed(a, 28)
    a("s_lshl_b32 s55, s49, 11"); a(f"s_add_u32 s55, s55, {FL_KV}")
    a("v_lshl_add_u32 v27, v2, 7, s55")
    poll16(a, 27, 28, extra=(30, E_KVC, 2))
    a(f"ds_write_b32 v30, v31 offset:{E_KVR}")
    a("s_branch Lkvg")
    a.label("Lkvw")
    lds_spin(a, 30, E_KVR, 28, "eq", 1)
    a.label("Lkvg")
    st_(3, 6)
    PK = 128; PR = 64; ZR = 120
    a("v_lshlrev_b32 v6, 4, v0")
    a(f"buffer_load_dwordx4 {vr(ZR,4)}, v6, s[36:39], s69 offen sc1")
    for p in range(8):
        for q in range(2):
            a(f"buffer_load_dwordx4 {vr(PK+8*p+4*q,4)}, v6, s[36:39], s68 offen offset:{q*1024} sc1")
        a("s_add_u32 s68, s68, 2048")
    a("s_mov_b32 s60, 0x00003f80"); a("s_mov_b32 s61, 0x3f800000")
    a("s_waitcnt vmcnt(16)")
    for r in range(4): a(f"v_add_f32_dpp v{ZR+r}, v{ZR+r}, v{ZR+r} row_ror:8 row_mask:0xf bank_mask:0xf")
    for r in range(4): a(f"v_mov_b32 v{ZR+4+r}, v{ZR+r}")
    a("s_nop 1")
    for r in range(4): a(f"v_permlane16_swap_b32 v{ZR+r}, v{ZR+4+r}")
    a("s_nop 1")
    for r in range(4): a(f"v_add_f32 v{ZR+r}, v{ZR+r}, v{ZR+4+r}")
    for r in range(4): a(f"v_mov_b32 v{ZR+4+r}, v{ZR+r}")
    a("s_nop 1")
    for r in range(4): a(f"v_permlane32_swap_b32 v{ZR+r}, v{ZR+4+r}")
    a("s_nop 1")
    for r in range(4): a(f"v_add_f32 v{ZR+r}, v{ZR+r}, v{ZR+4+r}")
    a(f"ds_write_b128 v10, {vr(ZR,4)}")
    for p in range(8):
        a(f"s_waitcnt vmcnt({14-2*p})")
        for d_ in range(8):
            o_ = PR + 4*(d_ >> 1) + 2*(d_ & 1)
            for h_ in range(2):
                c_ = "0" if p == 0 else f"v{o_+h_}"
                a(f"v_dot2_f32_bf16 v{o_+h_}, v{PK+8*p+d_}, s{60+h_}, {c_}")
    a("s_nop 2")
    for q in range(4):
        a(f"ds_write_b128 v8, {vr(PR+4*q,4)} offset:{q*1024}")
    a("s_waitcnt lgkmcnt(0)")
    a(f"ds_write_b32 v13, v31 offset:{E_XF}")
    lds_spin(a, 14, E_XF, 28, "eq", 1)
    SB = 80
    for q in range(4):
        a(f"ds_read_b128 {vr(SB+4*q,4)}, v9 offset:{q*1024}")
    for ud in range(2):
        a(f"ds_read_b128 {vr(96+4*ud,4)}, v11 offset:{ud*64}"); a(f"ds_read_b128 {vr(104+4*ud,4)}, v12 offset:{ud*64}")
    a("s_waitcnt lgkmcnt(0)")
    for r in range(16): a(f"v_add_f32 v{PR+r}, v{PR+r}, v{SB+r}")
    for r in range(8): a(f"v_add_f32 v{96+r}, v{96+r}, v{104+r}")
    KA = 112; ZF = 120
    for ue in range(2):
        for ud in range(2):
            t = PR + (ud*2+ue)*4
            a(f"v_cvt_pk_bf16_f32 v{KA+4*ue+2*ud}, v{t}, v{t+1}"); a(f"v_cvt_pk_bf16_f32 v{KA+4*ue+2*ud+1}, v{t+2}, v{t+3}")
    for ud in range(2):
        t = 96 + 4*ud
        a(f"v_cvt_pk_bf16_f32 v{ZF+2*ud}, v{t}, v{t+1}"); a(f"v_cvt_pk_bf16_f32 v{ZF+2*ud+1}, v{t+2}, v{t+3}")
    a("s_nop 1")
    O = 128
    for ai in range(4):
        for ue in range(2):
            a(f"v_mfma_f32_16x16x32_bf16 {vr(O+(ai*3+ue)*4,4)}, {vr(KA+4*ue,4)}, {vr(QF+4*ai,4)}, 0")
        a(f"v_mfma_f32_16x16x32_bf16 {vr(O+(ai*3+2)*4,4)}, {vr(ZF,4)}, {vr(QF+4*ai,4)}, 0")
    a("s_nop 7")
    OP = 64
    for ai in range(4):
        dn = O + (ai*3+2)*4
        a(f"v_add_f32 v{dn}, s58, v{dn}")
        a(f"v_rcp_f32 v{dn}, v{dn}")
        a("s_nop 0")
        for ue in range(2):
            t = O + (ai*3+ue)*4
            for r in range(4): a(f"v_mul_f32 v{t+r}, v{t+r}, v{dn}")
            a(f"v_cvt_pk_bf16_f32 v{OP+4*ai+2*ue}, v{t}, v{t+1}"); a(f"v_cvt_pk_bf16_f32 v{OP+4*ai+2*ue+1}, v{t+2}, v{t+3}")
        o = OP + 4*ai
        a("s_nop 1")
        a(f"v_permlane16_swap_b32 v{o}, v{o+2}"); a(f"v_permlane16_swap_b32 v{o+1}, v{o+3}")
        a(f"s_mov_b32 s60, {WS_O + 16*ai*2048}")
        a(f"buffer_store_dwordx4 {vr(o,4)}, v5, s[36:39], s60 offen sc1")
    st_(4, 7)
    a("s_lshl_b32 s55, s53, 12")
    a("s_mov_b32 s58, s70")
    def publish_o():
        a("s_lshl_b32 s57, s48, 4"); a("s_add_u32 s57, s57, s49"); a("s_lshl_b32 s57, s57, 7"); a(f"s_add_u32 s57, s57, {FL_O}"); a("v_mov_b32 v28, s57")
        lds_spin(a, 30, E_ADC, 29, "ge", 4)
        a("s_waitcnt vmcnt(0)")
        lds_count_last(a, 30, E_OC, 31, 29, 3, lambda: a("buffer_store_dword v31, v28, s[36:39], 0 offen sc1"))
        a("s_nop 4")
    a("s_mov_b32 s71, 0")
    a(f"ds_read_b32 v29, v30 offset:{E_CRC}"); a("s_waitcnt lgkmcnt(0)")
    a("v_readfirstlane_b32 s60, v29"); a("s_cmp_ge_u32 s60, 4"); a("s_cbranch_scc1 Lconv")
    publish_o()
    a("s_mov_b32 s71, 1")
    lds_spin(a, 30, E_CRC, 29, "ge", 4)
    a.label("Lconv")
    st_(5)
    FR = 96; ACC = 32
    def tf(b, k1): return FR + b*64 + k1*4
    def ff(b, n1): return FR + b*64 + 32 + n1*4
    def rd(b):
        L = []
        for i in range(8):
            L.append(f"ds_read_b64 {vr(tf(b,i),2)}, v16 offset:{512*(7-i)}")
            L.append(f"ds_read_b64 {vr(tf(b,i)+2,2)}, v16 offset:{512*(7-i)+8}")
            L.append(f"ds_read_b128 {vr(ff(b,i),4)}, v17 offset:{512*i}")
        return L
    def mm(b, first):
        L = []; seen = set()
        for k1 in range(8):
            for n1 in range(8 - k1):
                t = k1 + n1
                d = vr(ACC + 4*t, 4)
                c = "0" if (first and t not in seen) else d
                seen.add(t)
                L.append(f"v_mfma_f32_16x16x32_bf16 {d}, {vr(tf(b,k1),4)}, {vr(ff(b,n1),4)}, {c}")
        return L
    for s_ in rd(0): a(s_)
    a("v_subrev_u32 v16, 64, v16"); a("v_subrev_u32 v17, 64, v17")
    def resid(b, first, last):
        Ms = mm(b, first)
        R_ = [] if last else rd(b ^ 1)
        a("s_waitcnt lgkmcnt(0)")
        for m_ in Ms:
            a(m_)
            if R_: a(R_.pop(0))
        if not last:
            a("v_subrev_u32 v16, 64, v16"); a("v_subrev_u32 v17, 64, v17")
    resid(0, True, False); resid(1, False, False)
    a("s_cmp_eq_u32 s71, 0"); a("s_cbranch_scc0 Lpubd")
    publish_o()
    a.label("Lpubd")
    a("s_mov_b32 s60, 0")
    a.label("Lcl")
    resid(0, False, False); resid(1, False, False)
    a("s_add_u32 s60, s60, 1"); a("s_cmp_lt_u32 s60, 2"); a("s_cbranch_scc1 Lcl")
    resid(0, False, False); resid(1, False, True)
    a("v_lshlrev_b32 v5, 5, v2"); a("v_lshl_add_u32 v5, v7, 3, v5")
    a(f"s_add_u32 s57, s54, {CF + 480}"); a("v_add_u32 v6, s57, v5")
    for t in range(8):
        a(f"ds_read_b64 {vr(FR+2*t,2)}, v6 offset:{512*t}")
    a("s_lshl_b32 s57, s58, 16"); a("s_and_b32 s58, s58, 0xffff0000")
    a("s_and_b32 s61, s53, 1"); a("s_cmp_eq_u32 s61, 0"); a("s_cselect_b32 s58, s57, s58")
    a(f"s_add_u32 s56, s55, {WS_YT}")
    a("s_waitcnt lgkmcnt(0)")
    for t in range(8):
        u0 = FR + 2*t; y = ACC + 4*t; tmp = FR + 16 + 4*(t & 1)
        a(f"v_lshlrev_b32 v{tmp}, 16, v{u0}"); a(f"v_and_b32 v{tmp+1}, 0xffff0000, v{u0}")
        a(f"v_lshlrev_b32 v{tmp+2}, 16, v{u0+1}"); a(f"v_and_b32 v{tmp+3}, 0xffff0000, v{u0+1}")
        for r in range(4): a(f"v_fmac_f32 v{y+r}, s58, v{tmp+r}")
        a(f"v_cvt_pk_bf16_f32 v{y}, v{y}, v{y+1}"); a(f"v_cvt_pk_bf16_f32 v{y+1}, v{y+2}, v{y+3}")
        a(f"buffer_store_dwordx2 {vr(y,2)}, v5, s[36:39], s56 offen offset:{512*t} sc1")

    NS = 6
    def gacc(ai, u): return 64 + (u*4 + ai)*4
    def gxf(buf, kk, ai): return 96 + buf*48 + (kk*4 + ai)*4
    def gwf(buf, kk, u): return 96 + buf*48 + 32 + (kk*2 + u)*4
    def greads(st, buf):
        slot = st % NS
        hi = 0 if slot < 3 else 2
        so = (slot % 3) * ST3
        L = []
        for kk in range(2):
            X = [f"ds_read_b128 {vr(gxf(buf,kk,ai),4)}, v{GXA+hi+kk} offset:{so + ai*2048}" for ai in range(4)]
            W = [[f"ds_read_b64_tr_b16 {vr(gwf(buf,kk,u)+2*sec,2)}, v{GWA+hi+u} offset:{so + kk*4096 + sec*512}" for sec in range(2)] for u in range(2)]
            L += W[0] + [X[0], X[1]] + W[1] + [X[2], X[3]]
        return L
    def gmfmas(buf):
        return [f"v_mfma_f32_16x16x32_bf16 {vr(gacc(ai,u),4)}, {vr(gwf(buf,kk,u),4)}, {vr(gxf(buf,kk,ai),4)}, {vr(gacc(ai,u),4)}"
                for kk in range(2) for u in range(2) for ai in range(4)]
    XG = 192
    xg = []
    for ai in range(4):
        for u in range(2):
            xr = XR + (ai*2+u)*2; o = XG + (ai*2+u)*4
            xg += [f"v_lshlrev_b32 v{o}, 16, v{xr}", f"v_and_b32 v{o+1}, 0xffff0000, v{xr}",
                   f"v_lshlrev_b32 v{o+2}, 16, v{xr+1}", f"v_and_b32 v{o+3}, 0xffff0000, v{xr+1}"]
    for ai in range(4):
        a(f"s_mov_b32 s61, {16*ai*2048}")
        for u in range(2):
            a(f"buffer_load_dwordx2 {vr(XR+(ai*2+u)*2,2)}, v22, s[24:27], s61 offen offset:{32*u}")
    for r in range(64, 96): a(f"v_mov_b32 v{r}, 0")
    a(f"v_mov_b32 v30, {F_FL}")
    a("s_barrier")
    st_(6)
    for s_ in greads(0, 0): a(s_)
    for st in range(16):
        buf = st & 1
        Ms = gmfmas(buf)
        q = greads(st + 1, buf ^ 1) if st < 15 else []
        extra = []
        if 5 <= st < 15:
            n = -(-len(xg) // 10)
            extra = xg[(st-5)*n:(st-4)*n]
        a("s_waitcnt lgkmcnt(0)")
        if st == 4:
            a("s_waitcnt vmcnt(0)")
            a("s_lshr_b32 s65, s53, 2"); a("s_lshl_b32 s65, s65, 7"); a(f"s_add_u32 s65, s65, {FL_Y}"); a("v_mov_b32 v28, s65")
            lds_count_last(a, 30, 0, 31, 29, 3, lambda: a("buffer_store_dword v31, v28, s[36:39], 0 offen sc1"))
            a("s_nop 4")
        if st == 11:
            a(f"s_mov_b32 s61, {WS_G}")
            for ai in range(4):
                a(f"buffer_load_dword v{GR+4*ai}, v23, s[36:39], s61 offen offset:{64*ai} sc1")
        if st == 8:
            a("s_lshl_b32 s61, s97, 11"); a(f"s_add_u32 s61, s61, {FL_Y}")
            a("v_lshl_add_u32 v28, v2, 7, s61")
            a("s_cmp_eq_u32 s50, 0"); a("s_cbranch_scc0 Lyp0")
            a("buffer_load_dword v29, v28, s[36:39], 0 offen sc1")
            a.label("Lyp0")
        if st == 10:
            a("s_cmp_eq_u32 s50, 0"); a("s_cbranch_scc0 Lypd")
            a("s_mov_b32 s65, 0")
            a.label("Lyp")
            a("s_waitcnt vmcnt(0)")
            a("v_cmp_ne_u32 vcc, 1, v29"); a("s_add_u32 s65, s65, 1")
            a("s_nop 3"); a("s_cmp_eq_u64 vcc, 0"); a("s_cbranch_scc1 Lypo")
            a("buffer_load_dword v29, v28, s[36:39], 0 offen sc1")
            a(f"s_cmp_lt_u32 s65, {SPIN_MAX}"); a("s_cbranch_scc1 Lyp")
            a.label("Lypo")
            a("ds_write_b32 v30, v31 offset:4")
            a.label("Lypd")
        for i in range(16):
            a(Ms[i])
            if i == 1 and st < 15: a("s_barrier")
            if i >= 1:
                for _ in range(2):
                    if q: a(q.pop(0))
            if i >= 9:
                for _ in range(3):
                    if extra: a(extra.pop(0))
        for s_ in q + extra: a(s_)
    a("v_bfe_u32 v6, v0, 2, 2"); a("v_lshl_add_u32 v6, v7, 2, v6")
    a("s_lshl_b32 s57, s67, 5"); a("v_add_u32 v6, s57, v6"); a("v_lshlrev_b32 v6, 8, v6")
    a("v_and_b32 v5, 3, v0"); a("v_lshl_add_u32 v6, v5, 3, v6")
    a("s_lshl_b32 s57, s66, 7"); a(f"s_add_u32 s57, s57, {F_Y}"); a("v_add_u32 v6, s57, v6")
    YR = 96
    for ai in range(4):
        for u in range(2):
            a(f"ds_read_b64_tr_b16 {vr(YR+(ai*2+u)*2,2)}, v6 offset:{u*16*256 + ai*32}")
    a("v_and_b32 v8, 1, v7"); a("v_lshlrev_b32 v8, 5, v8"); a("v_lshrrev_b32 v9, 1, v7"); a("v_lshl_add_u32 v8, v9, 4, v8")
    a("v_add3_u32 v8, v21, v8, s64")
    a("s_waitcnt lgkmcnt(0)")
    OP = 112; T = 128
    a("s_waitcnt vmcnt(0)")
    for ai in range(4): a(f"v_sub_f32 v{GR+4*ai+2}, 1.0, v{GR+4*ai}")
    for ai in range(4):
        g_ = GR + 4*ai
        for u in range(2):
            t = gacc(ai, u); yr = YR + (ai*2+u)*2; xo = XG + (ai*2+u)*4; T_ = T + 4*(u & 1)
            a(f"v_lshlrev_b32 v{T_}, 16, v{yr}"); a(f"v_and_b32 v{T_+1}, 0xffff0000, v{yr}")
            a(f"v_lshlrev_b32 v{T_+2}, 16, v{yr+1}"); a(f"v_and_b32 v{T_+3}, 0xffff0000, v{yr+1}")
            for h_ in range(2):
                a(f"v_pk_mul_f32 {vr(T_+2*h_,2)}, {vr(T_+2*h_,2)}, {vr(xo+2*h_,2)}")
                a(f"v_pk_mul_f32 {vr(T_+2*h_,2)}, {vr(T_+2*h_,2)}, {vr(g_+2,2)} op_sel_hi:[1,0]")
                a(f"v_pk_fma_f32 {vr(T_+2*h_,2)}, {vr(t+2*h_,2)}, {vr(g_,2)}, {vr(T_+2*h_,2)} op_sel_hi:[1,0,1]")
                a(f"v_cvt_pk_bf16_f32 v{OP+4*ai+2*u+h_}, v{T_+2*h_}, v{T_+2*h_+1}")
        o = OP + 4*ai
        a("s_nop 1")
        a(f"v_permlane16_swap_b32 v{o}, v{o+2}"); a(f"v_permlane16_swap_b32 v{o+1}, v{o+3}")
        a(f"s_mov_b32 s61, {16*ai*2048}")
        a(f"buffer_store_dwordx4 {vr(o,4)}, v8, s[28:31], s61 offen")
    a("s_waitcnt vmcnt(0)")
    st_(7)
    stamp_dump(a, opt, 8)
    a("s_waitcnt vmcnt(0)")
    a("s_endpgm")

def a_waves(a, opt):
    a("s_sub_u32 s53, s50, 4")
    VA = 8; VW = 12
    a("v_lshrrev_b32 v2, 3, v0"); a("v_and_b32 v3, 7, v0"); a("v_lshrrev_b32 v4, 4, v0")
    a("s_lshl_b32 s55, s48, 7"); a("s_lshl_b32 s61, s53, 5"); a("s_add_u32 s55, s55, s61")
    a("v_add_u32 v5, s55, v2"); a("v_lshlrev_b32 v5, 11, v5")
    a("v_xor_b32 v6, v4, v3"); a(f"v_lshl_add_u32 v{VA}, v6, 4, v5")
    a("v_xor_b32 v6, 4, v6"); a(f"v_lshl_add_u32 v{VA+1}, v6, 4, v5"); a(f"v_add_u32 v{VA+1}, 16384, v{VA+1}")
    for i in range(2, 4): a(f"v_add_u32 v{VA+i}, 32768, v{VA+(i&1)}")
    a("v_and_b32 v6, 1, v4"); a("v_lshlrev_b32 v6, 1, v6"); a("v_xor_b32 v6, v6, v3")
    a("v_mul_u32_u24 v5, 6144, v2")
    a(f"s_mul_i32 s55, s53, {2*8*6144}"); a("s_lshl_b32 s61, s49, 7"); a("s_add_u32 s55, s55, s61")
    a("v_add_u32 v5, s55, v5")
    a(f"v_lshl_add_u32 v{VW}, v6, 4, v5")
    a("v_xor_b32 v6, 4, v6"); a(f"v_lshl_add_u32 v{VW+1}, v6, 4, v5"); a(f"v_add_u32 v{VW+1}, {8*6144}, v{VW+1}")
    WL = [(seg, r2) for seg in range(3) for r2 in range(2)]
    for i, (seg, r2) in enumerate(WL):
        if i >= 2: a(f"v_add_u32 v{VW+i}, {seg*2048}, v{VW + r2}")
    a("s_lshl_b32 s64, s53, 12")
    a("s_lshl_b32 s65, s53, 11"); a("s_add_u32 s65, s65, 16384")
    a("s_lshr_b32 s46, s52, 3"); a("s_add_u32 s46, s46, s52"); a("s_and_b32 s46, s46, 3"); a("s_lshl_b32 s46, s46, 2")
    a("s_lshl_b32 s66, s46, 7"); a(f"s_mul_i32 s67, s46, {64*6144}"); a("s_mov_b32 s68, 0")
    a("s_waitcnt lgkmcnt(0)")
    make_srd(a, 20, 4, NB["x"]); make_srd(a, 24, 6, NB["wqkv"])
    def prep():
        a("s_add_u32 s69, s64, s68"); a("s_add_u32 s55, s65, s68"); a("s_mov_b32 m0, s69")
    def issue(prepared=False):
        if not prepared: prep(); a("s_nop 0")
        fill = [f"s_add_u32 s68, s68, {ST1}", f"s_cmp_eq_u32 s68, {4*ST1}\ns_cselect_b32 s68, 0, s68", "s_nop 0"]
        for i in range(4):
            if i:
                a(f"s_add_u32 m0, s69, {i*1024}"); a(fill.pop(0))
            a(f"buffer_load_dwordx4 v{VA+i}, s[20:23], s66 offen lds")
        fill = ["s_add_u32 s66, s66, 128", "s_cmp_eq_u32 s66, 2048\ns_cselect_b32 s66, 0, s66"]
        for i, (seg, r2) in enumerate(WL):
            a(f"s_add_u32 m0, s55, {seg*8192 + r2*1024}"); a(fill.pop(0) if fill else "s_nop 0")
            a(f"buffer_load_dwordx4 v{VW+i}, s[24:27], s67 offen lds")
        a(f"s_add_u32 s67, s67, {64*6144}"); a(f"s_cmp_eq_u32 s67, {16*64*6144}"); a("s_cselect_b32 s67, 0, s67")
    issue(); issue()
    a("s_load_dwordx4 s[8:11], s[0:1], 32")
    a("s_load_dwordx4 s[4:7], s[0:1], 48")
    a("s_load_dwordx2 s[16:17], s[0:1], 72")
    a("s_load_dwordx2 s[18:19], s[0:1], 16")
    ramp = (1, 1, 1, 1, 2)
    issued = 2
    for i, n in enumerate(ramp):
        prep()
        a(f"s_waitcnt vmcnt({10*(issued - i - 1)})"); a("s_barrier")
        if i == 0: stamp(a, opt, 1)
        for k_ in range(n):
            issue(prepared=(k_ == 0)); issued += 1
        if i == 0:
            a("s_waitcnt lgkmcnt(0)")
            make_srd(a, 28, 8, NB["bk"]); make_srd(a, 32, 10, NB["bv"])
            make_srd(a, 36, 14, WS_USED); make_srd(a, 40, 4, NB["shift"]); make_srd(a, 44, 16, NB["gw"])
    i0 = len(ramp)
    a(f"s_mov_b32 s60, {i0}")
    a.label("Llloop")
    prep()
    a("s_add_u32 s60, s60, 1")
    a("s_waitcnt vmcnt(20)"); a("s_barrier")
    issue(prepared=True)
    a("s_cmp_lt_u32 s60, 13"); a("s_cbranch_scc1 Llloop")
    pl = Asm()
    pl("s_and_b32 s70, s2, 15"); pl("s_lshr_b32 s71, s2, 4")
    pl("v_lshrrev_b32 v20, 3, v0"); pl("v_and_b32 v21, 7, v0")
    pl("s_lshl_b32 s72, s70, 7"); pl("s_lshl_b32 s73, s53, 5"); pl("s_add_u32 s72, s72, s73")
    pl("v_lshl_add_u32 v22, v20, 2, s72")
    pl("s_lshl_b32 s73, s71, 6"); pl("v_lshl_add_u32 v23, v21, 3, s73")
    pl("v_lshlrev_b32 v24, 11, v22"); pl("v_lshl_add_u32 v24, v23, 1, v24")
    pl("v_subrev_u32 v25, 6144, v24")
    for r in range(7):
        if r: pl("v_add_u32 v25, 2048, v25")
        pl(f"buffer_load_dwordx4 {vr(32+4*r,4)}, v25, s[28:31], 0 offen nt")
    pl("v_add_u32 v26, 4096, v24")
    for r in range(4):
        pl(f"buffer_load_dwordx4 {vr(60+4*r,4)}, v{24 if r < 2 else 26}, s[32:35], 0 offen offset:{2048*(r & 1)} nt")
    partA = pl.lines; pl = Asm()
    pl("v_lshlrev_b32 v27, 3, v23")
    for q in range(4):
        pl(f"buffer_load_dwordx4 {vr(76+4*q,4)}, v27, s[40:43], 0 offen offset:{16*q}")
    pl("s_lshl_b32 s73, s48, 7"); pl("s_lshl_b32 s74, s49, 3"); pl("s_add_u32 s73, s73, s74"); pl("s_lshl_b32 s74, s53, 1"); pl("s_add_u32 s73, s73, s74")
    pl("v_lshrrev_b32 v28, 5, v0"); pl("v_add_u32 v28, s73, v28")
    pl("v_and_b32 v29, 31, v0"); pl("v_lshlrev_b32 v29, 4, v29")
    pl("v_lshl_add_u32 v30, v28, 11, v29")
    for i in range(4):
        pl(f"buffer_load_dwordx4 {vr(92+4*i,4)}, v30, s[20:23], 0 offen offset:{512*i}")
    for i in range(4):
        pl(f"buffer_load_dwordx4 {vr(108+4*i,4)}, v29, s[44:47], 0 offen offset:{512*i}")
    pl("v_lshlrev_b32 v31, 12, v23"); pl("v_lshl_add_u32 v31, v22, 1, v31")
    pl(f"s_mov_b32 s72, {WS_UT}")
    pl("s_mov_b32 s74, 0x05040100"); pl("s_mov_b32 s75, 0x07060302")
    partB = pl.lines
    a("v_mov_b32 v160, 0"); a("v_mov_b32 v161, 0"); a("v_mov_b32 v162, 0"); a("v_mov_b32 v163, 0")
    a("v_and_b32 v164, 1, v0"); a("v_lshlrev_b32 v164, 4, v164")
    a("s_waitcnt vmcnt(20)"); a("s_barrier")
    a(f"ds_write_b128 v164, v[160:163] offset:{F_E0}")
    for ln in partA: a(ln)
    a("s_waitcnt vmcnt(21)"); a("s_barrier")
    a(f"ds_write_b128 v164, v[160:163] offset:{F_E1}")
    for ln in partB: a(ln)
    a("s_lshl_b32 s54, s51, 7"); a("s_lshl_b32 s55, s52, 2"); a("s_add_u32 s54, s54, s55"); a("s_add_u32 s54, s54, s53")
    a("s_lshl_b32 s55, s54, 12")
    a("s_add_u32 s60, s6, s55"); a("s_addc_u32 s61, s7, 0")
    a("v_lshlrev_b32 v1, 2, v0"); a("v_subrev_u32 v3, 4, v1"); a("v_add_u32 v4, 252, v1")
    a("s_waitcnt vmcnt(23) lgkmcnt(0)"); a("s_barrier")
    a("v_and_b32 v165, 7, v0"); a("v_lshlrev_b32 v165, 4, v165"); a(f"v_add_u32 v165, {F_FL}, v165")
    a("ds_write_b128 v165, v[160:163]")
    a("s_mov_b32 s24, s60"); a("s_mov_b32 s25, s61"); a("s_mov_b32 s26, 4096"); a("s_mov_b32 s27, 0x00020000")
    E = 176; E1 = 192
    for j in range(16):
        a(f"buffer_load_dword v{E+j}, v1, s[24:27], 0 offen offset:{256*j} nt")
        if j == 0: a(f"buffer_load_dword v{E1}, v3, s[24:27], 0 offen")
        else:      a(f"buffer_load_dword v{E1+j}, v4, s[24:27], 0 offen offset:{256*(j-1)}")
    a("s_waitcnt vmcnt(40)")
    stamp(a, opt, 2)
    P = 128; KS = 140; VU = 148
    for c in range(8):
        cp, h = c >> 1, c & 1
        sel = "s75" if h else "s74"
        pb = P + 6*(c & 1); kb = KS + 4*(c & 1)
        for t in range(6): a(f"v_perm_b32 v{pb+t}, v{32+4*t+cp}, v{32+4*(t+1)+cp}, {sel}")
        for r in range(4): a(f"v_dot2_f32_bf16 v{kb+r}, v{pb+r+2}, v{76+2*c}, 0")
        for r in range(4): a(f"v_dot2_f32_bf16 v{kb+r}, v{pb+r}, v{76+2*c+1}, v{kb+r}")
        for r in range(4):
            if h: a(f"v_and_b32 v{VU+r}, 0xffff0000, v{60+4*r+cp}")
            else: a(f"v_lshlrev_b32 v{VU+r}, 16, v{60+4*r+cp}")
        for r in range(4): a(f"v_mul_f32 v{kb+r}, v{kb+r}, v{VU+r}")
        o = 152 + 2*(c & 3)
        a(f"v_cvt_pk_bf16_f32 v{o}, v{kb}, v{kb+1}"); a(f"v_cvt_pk_bf16_f32 v{o+1}, v{kb+2}, v{kb+3}")
        a(f"s_add_u32 s73, s72, {c*4096}")
        a(f"buffer_store_dwordx2 {vr(o,2)}, v31, s[36:39], s73 offen sc1")
    a("s_waitcnt vmcnt(40)")
    a("v_mov_b32 v128, 0")
    for i in range(16): a(f"v_dot2_f32_bf16 v128, v{92+i}, v{108+i}, v128")
    a("s_nop 3")
    for ctl in ("quad_perm:[1,0,3,2]", "quad_perm:[2,3,0,1]", "row_half_mirror", "row_mirror"):
        a(f"v_add_f32_dpp v128, v128, v128 {ctl} row_mask:0xf bank_mask:0xf"); a("s_nop 1")
    a("v_mov_b32 v129, v128"); a("s_nop 1")
    a("v_permlane16_swap_b32 v128, v129"); a("s_nop 1")
    a("v_add_f32 v128, v128, v129")
    a("v_mul_f32 v128, 0xbfb8aa3b, v128"); a("v_exp_f32 v128, v128"); a("s_nop 0")
    a("v_add_f32 v128, 1.0, v128"); a("v_rcp_f32 v128, v128")
    a("v_lshlrev_b32 v28, 2, v28"); a("v_and_b32 v29, 31, v0"); a("v_cmp_eq_u32 vcc, 0, v29")
    a("s_and_saveexec_b64 s[62:63], vcc")
    a(f"s_mov_b32 s73, {WS_G}")
    a("buffer_store_dword v128, v28, s[36:39], s73 offen sc1")
    a("s_mov_b64 exec, s[62:63]")
    stamp(a, opt, 3)
    a("v_lshlrev_b32 v2, 4, v0")
    a(f"s_mul_i32 s56, s53, {CWB}")
    a("v_mov_b32 v12, 0"); a("v_mov_b32 v13, 0"); a("v_mov_b32 v14, 0"); a("v_mov_b32 v15, 0")
    a(f"s_add_u32 s57, s56, {CF}")
    a("v_min_u32 v5, 29, v0"); a("v_lshl_add_u32 v5, v5, 4, s57")
    a("ds_write_b128 v5, v[12:15]")
    a("v_lshrrev_b32 v5, 3, v0"); a("v_and_b32 v5, 3, v5"); a(f"v_mul_u32_u24 v5, {CTS}, v5")
    a("v_and_b32 v6, 7, v0"); a("v_lshl_add_u32 v5, v6, 2, v5")
    a(f"s_add_u32 s57, s56, {8 + 4*1023}"); a("v_add_u32 v5, s57, v5")
    a("ds_write_b32 v5, v12")
    TW = 16
    for rho in range(4):
        a(f"s_add_u32 s57, s56, {rho*CTS + 256 + (4 if rho >= 2 else 0)}")
        a(f"v_sub_u32 v{TW+rho}, s57, v1")
    a("s_mov_b32 s59, 0xffff")
    a("s_waitcnt vmcnt(9)")
    S = 64; M = 80
    for j in range(16):
        a(f"v_alignbit_b32 v{S+j}, v{E+j}, v{E+j}, 16")
        a(f"v_bfi_b32 v{M+j}, s59, v{E+j}, v{E1+j}")
    for j in range(0, 16, 2):
        for rho in range(4):
            src = S if rho & 1 else M
            a(f"ds_write2st64_b32 v{TW+rho}, v{src+j}, v{src+j+1} offset0:{15-j} offset1:{14-j}")
    make_srd(a, 40, 12, 256); make_srd(a, 24, 18, NB["wo"])
    a("v_mov_b32 v9, 0"); a("v_mov_b32 v11, 1")
    a("s_lshl_b32 s60, s2, 7"); a(f"s_add_u32 s60, s60, {FL_U}"); a("v_mov_b32 v10, s60")
    a("s_waitcnt vmcnt(0)")
    lds_count_last(a, 9, E_ADC, 11, 8, 3, lambda: a("buffer_store_dword v11, v10, s[36:39], 0 offen sc1"))
    stamp(a, opt, 4)
    GA = 20; GW = 24
    a("v_lshrrev_b32 v96, 3, v0"); a("v_and_b32 v97, 7, v0"); a("v_lshrrev_b32 v98, 4, v0")
    a("s_lshl_b32 s60, s96, 7"); a("s_lshl_b32 s61, s53, 5"); a("s_add_u32 s60, s60, s61")
    a("v_add_u32 v99, s60, v96"); a("v_lshlrev_b32 v99, 11, v99")
    a("v_xor_b32 v100, v98, v97"); a(f"v_lshl_add_u32 v{GA}, v100, 4, v99")
    a("v_xor_b32 v100, 4, v100"); a(f"v_lshl_add_u32 v{GA+1}, v100, 4, v99"); a(f"v_add_u32 v{GA+1}, 16384, v{GA+1}")
    for i in range(2, 4): a(f"v_add_u32 v{GA+i}, 32768, v{GA+(i&1)}")
    a("v_and_b32 v100, 1, v98"); a("v_lshlrev_b32 v100, 1, v100"); a("v_xor_b32 v100, v100, v97")
    a("v_lshlrev_b32 v99, 11, v96")
    a("s_lshl_b32 s60, s53, 15"); a("s_lshl_b32 s61, s97, 7"); a("s_add_u32 s60, s60, s61")
    a("v_add_u32 v99, s60, v99")
    a(f"v_lshl_add_u32 v{GW}, v100, 4, v99")
    a("v_xor_b32 v100, 4, v100"); a(f"v_lshl_add_u32 v{GW+1}, v100, 4, v99"); a(f"v_add_u32 v{GW+1}, 16384, v{GW+1}")
    a("v_lshrrev_b32 v99, 4, v0"); a("s_lshl_b32 s60, s97, 6"); a("s_lshl_b32 s61, s53, 4"); a("s_add_u32 s60, s60, s61")
    a("v_add_u32 v99, s60, v99"); a("v_lshlrev_b32 v99, 12, v99")
    a("v_and_b32 v100, 15, v0"); a("v_lshl_add_u32 v99, v100, 4, v99"); a("s_lshl_b32 s60, s96, 8"); a("v_add_u32 v26, s60, v99")
    a("s_lshl_b32 s64, s53, 12"); a("s_lshl_b32 s65, s53, 11"); a("s_add_u32 s65, s65, 16384")
    rot3 = opt.get("rot3", 0)
    if rot3 == 0: a("s_mov_b32 s46, 0")
    elif rot3 == 2: a("s_lshr_b32 s46, s52, 2"); a("s_add_u32 s46, s46, s52"); a("s_and_b32 s46, s46, 1"); a("s_lshl_b32 s46, s46, 3")
    elif rot3 == 4: a("s_lshr_b32 s46, s52, 2"); a("s_add_u32 s46, s46, s52"); a("s_and_b32 s46, s46, 3"); a("s_lshl_b32 s46, s46, 2")
    a("s_cmp_eq_u32 s53, 0"); a("s_cbranch_scc1 Lupoll")
    a("s_lshl_b32 s60, s52, 5"); a("s_lshl_b32 s61, s53, 3"); a("s_add_u32 s60, s60, s61"); a("s_sub_u32 s60, s60, 8")
    a("v_lshrrev_b32 v96, 3, v0"); a("v_add_u32 v96, s60, v96"); a("v_lshlrev_b32 v96, 11, v96")
    a("v_and_b32 v97, 7, v0"); a("v_lshl_add_u32 v96, v97, 7, v96")
    a("s_lshr_b32 s60, s51, 2"); a("s_lshl_b32 s60, s60, 10")
    a("buffer_load_dword v98, v96, s[24:27], s60 offen")
    a("s_cmp_eq_u32 s53, 3"); a("s_cbranch_scc0 Lnpf")
    a("v_add_u32 v96, 16384, v96")
    a("buffer_load_dword v99, v96, s[24:27], s60 offen")
    a.label("Lnpf")
    lds_spin(a, 9, E_UR, 8, "eq", 1)
    a("s_branch Lugo")
    a.label("Lupoll")
    poll_zeroed(a, 100)
    a("s_lshl_b32 s60, s51, 1"); a("s_lshr_b32 s61, s52, 4"); a("s_add_u32 s60, s60, s61"); a("s_lshl_b32 s60, s60, 11"); a(f"s_add_u32 s60, s60, {FL_U}")
    a("v_and_b32 v102, 15, v0"); a("v_lshl_add_u32 v102, v102, 7, s60")
    poll16(a, 102, 100)
    a(f"ds_write_b32 v9, v11 offset:{E_UR}")
    a.label("Lugo")
    a(f"s_add_u32 s57, s55, {WS_UT}")
    for i in range(4):
        a(f"s_add_u32 m0, s56, {CF + 480 + i*1024}")
        a(f"s_add_u32 s60, s57, {i*1024}")
        a("buffer_load_dwordx4 v2, s[36:39], s60 offen sc1 lds")
    a("s_waitcnt vmcnt(0) lgkmcnt(0)")
    a("s_mov_b64 exec, 1")
    a(f"ds_add_u32 v9, v11 offset:{E_CRC}")
    a("s_mov_b64 exec, -1")
    stamp(a, opt, 5)
    def slot_base(st):
        sl = st % 6
        return (F_U + sl*ST3) if sl < 3 else (sl - 3)*ST3
    a("s_lshl_b32 s60, s96, 11"); a(f"s_add_u32 s60, s60, {FL_O}")
    a("v_and_b32 v102, 15, v0"); a("v_lshl_add_u32 v102, v102, 7, s60")
    a(f"v_mov_b32 v27, {F_FL}")
    a("s_mov_b32 s70, 0"); a("s_mov_b32 s71, 0"); a("s_mov_b32 s72, 0")
    def next_j(k):
        lloc, ljoin, lfol = lab("nl"), lab("nj"), lab("nf")
        a("s_cmp_eq_u32 s70, 1"); a(f"s_cbranch_scc1 {lloc}")
        a("s_cmp_eq_u32 s53, 0"); a(f"s_cbranch_scc0 {lfol}")
        l0, l1 = lab("np"), lab("nq")
        a("s_mov_b32 s61, 0")
        a("s_andn2_b32 s62, s72, s71"); a(f"s_cbranch_scc1 {l1}")
        a.label(l0)
        a("buffer_load_dword v100, v102, s[36:39], 0 offen sc1"); a("s_waitcnt vmcnt(0)")
        a("v_cmp_eq_u32 vcc, 1, v100"); a("s_add_u32 s61, s61, 1"); a("s_nop 3")
        a("s_and_b32 s72, vcc_lo, 0xffff"); a("s_andn2_b32 s62, s72, s71"); a(f"s_cbranch_scc1 {l1}")
        a(f"s_cmp_lt_u32 s61, {SPIN_MAX}"); a(f"s_cbranch_scc1 {l0}")
        a("s_andn2_b32 s62, 0xffff, s71"); a("s_mov_b32 s72, 0xffff")
        a.label(l1)
        a("s_ff1_i32_b32 s47, s62")
        a("s_cmp_eq_u32 s72, 0xffff"); a("s_cselect_b32 s70, 1, 0")
        a("s_lshl_b32 s62, s70, 8"); a("s_add_u32 s62, s62, s47"); a("s_add_u32 s62, s62, 1"); a("v_mov_b32 v100, s62")
        a(f"ds_write_b32 v27, v100 offset:{64 + 4*k}")
        a(f"s_branch {ljoin}")
        a.label(lfol)
        l2, l3 = lab("nr"), lab("ns")
        a("s_mov_b32 s61, 0")
        a.label(l2)
        a(f"ds_read_b32 v100, v27 offset:{64 + 4*k}"); a("s_waitcnt lgkmcnt(0)")
        a("v_readfirstlane_b32 s62, v100"); a("s_add_u32 s61, s61, 1"); a("s_cmp_lg_u32 s62, 0"); a(f"s_cbranch_scc1 {l3}")
        a(f"s_cmp_lt_u32 s61, {SPIN_MAX*8}"); a(f"s_cbranch_scc1 {l2}")
        a.label(l3)
        a("s_lshr_b32 s70, s62, 8"); a("s_and_b32 s47, s62, 0xff"); a("s_sub_u32 s47, s47, 1"); a("s_and_b32 s47, s47, 15")
        a(f"s_branch {ljoin}")
        a.label(lloc)
        a("s_andn2_b32 s62, 0xffff, s71"); a("s_ff1_i32_b32 s47, s62")
        a.label(ljoin)
        a("s_lshl_b32 s62, 1, s47"); a("s_or_b32 s71, s71, s62")
        a("s_lshl_b32 s66, s47, 7"); a(f"s_add_u32 s66, s66, {WS_O}"); a("s_lshl_b32 s67, s47, 17")
    def issue_stage(st, prepared):
        sb = slot_base(st)
        if not prepared:
            next_j(st); a(f"s_add_u32 m0, s64, {sb}"); a("s_nop 0")
        for i in range(4):
            if i: a(f"s_add_u32 m0, s64, {sb + i*1024}"); a("s_nop 0")
            a(f"buffer_load_dwordx4 v{GA+i}, s[36:39], s66 offen sc1 lds")
        for i in range(2):
            a(f"s_add_u32 m0, s65, {sb + i*1024}"); a("s_nop 0")
            a(f"buffer_load_dwordx4 v{GW+i}, s[24:27], s67 offen lds")
    Q = []
    for st in range(3):
        if st == 2: lds_spin(a, 9, E_OC, 8, "ge", 4)
        issue_stage(st, False); Q += [st]*6
        if st == 0: stamp(a, opt, 6)
    issued = 3
    for i in range(16):
        last = max(k for k, e in enumerate(Q) if e == i)
        if i == 15: last = len(Q) - 1
        n_after = len(Q) - 1 - last
        todo = []
        while issued + len(todo) <= min(15, i + 5) and len(todo) < opt.get("gburst", 2): todo.append(issued + len(todo))
        a(f"s_waitcnt vmcnt({n_after})")
        a("s_barrier")
        Q = Q[last + 1:]
        for k_, st in enumerate(todo):
            issue_stage(st, False); Q += [st]*6
        issued += len(todo)
        if i == 12:
            lds_spin(a, 27, 4, 8, "eq", 1)
            a(f"s_lshl_b32 s60, s53, 12"); a(f"s_add_u32 s60, s60, {F_Y}")
            for k_ in range(4):
                a(f"s_add_u32 m0, s60, {k_*1024}"); a(f"s_mov_b32 s61, {WS_YT + k_*4*4096}")
                a("buffer_load_dwordx4 v26, s[36:39], s61 offen sc1 lds")
            Q += ["y"]*4
    assert issued == 16
    if opt.get("gst"):
        a(f"s_add_u32 s76, s14, {WS_STAMP + (1 << 20)}"); a("s_addc_u32 s77, s15, 0"); a("s_mov_b32 s78, 0x1000000"); a("s_mov_b32 s79, 0x00020000")
        a("s_lshl_b32 s75, s2, 2"); a("s_add_u32 s75, s75, s53"); a("s_lshl_b32 s75, s75, 8")
        a("v_lshlrev_b32 v201, 2, v0"); a("buffer_store_dword v200, v201, s[76:79], s75 offen")
    stamp(a, opt, 7)
    stamp_dump(a, opt, 8)
    a("s_waitcnt vmcnt(0)")

def build(opt=None):
    opt = opt or {}
    _lab[0] = 0
    a = Asm()
    a("; @launch grid=(256,1,1) block=(512,1,1) lds=163840")
    a('.amdgcn_target "amdgcn-amd-amdhsa--gfx950"')
    a(".text")
    a.lines = [l for l in a.lines]
    kernel(a, opt)
    a('.section .rodata,"a"')
    kernel_desc(a, NAME, vgpr=256, sgpr=102)
    return a.text().replace("None\n", "")

if __name__ == "__main__":
    opt = {}
    for o in sys.argv[2:]:
        k, _, v = o.partition("=")
        opt[k] = int(v) if v else 1
    open(sys.argv[1], "w").write(build(opt))
```

```python
import sys
from asmlib import *

WS_UT  = 4 << 20
WS_KVP = 8 << 20
WS_ZP  = 10 << 20
WS_G   = 11 << 20
WS_FL  = (11 << 20) | 0x80000
FL_KV, FL_U, FL_O, FL_Y = WS_FL, WS_FL + 32768, WS_FL + 65536, WS_FL + 98304
WS_O   = 12 << 20
WS_YT  = 16 << 20
WS_USED = 20 << 20
WS_STAMP = 24 << 20
LOG2E = 0x3fb8aa3b
EPS   = 0x358637bd
SPIN_MAX = 1 << 17
NAME = "gated_mix__linear_attn_block__ssm_conv_h3__prompt_kernel"

ST1 = 40960
CTS = 4160
CF  = 4 * CTS
CWB = 4 * CTS + 4608
F_FL = 4 * CWB
ST3 = 24576
F_U = F_FL + 256
F_SCR = F_U + 2 * ST3
F_Y = ST3
F_E0 = CWB - 32
F_E1 = 2 * CWB - 32
E_XF = F_E0
E_RF = F_E0 + 16
E_ADC, E_UR, E_CRC, E_OC, E_CD, E_KVC, E_KVR = (F_E1 + 4*k for k in range(7))
W_YC, W_YR = F_FL, F_FL + 4

def vr(a, n=1): return f"v{a}" if n == 1 else f"v[{a}:{a+n-1}]"

def stamp(a, opt, i):
    if opt.get("stamps"):
        a(f"s_memtime s[{80+2*i}:{81+2*i}]")
        if i == 0: a("s_memrealtime s[98:99]")
def stamp_dump(a, opt, n):
    if not opt.get("stamps"): return
    a("s_waitcnt vmcnt(0) lgkmcnt(0)")
    a(f"s_add_u32 s76, s14, {WS_STAMP}"); a("s_addc_u32 s77, s15, 0"); a("s_mov_b32 s78, 0x1000000"); a("s_mov_b32 s79, 0x00020000")
    a("s_lshl_b32 s75, s2, 3"); a("s_add_u32 s75, s75, s50"); a("s_lshl_b32 s75, s75, 6"); a("v_mov_b32 v1, s75")
    for i in range(1, n):
        a(f"s_sub_u32 s74, s{80+2*i}, s80"); a("v_mov_b32 v2, s74")
        a(f"buffer_store_dword v2, v1, s[76:79], 0 offen offset:{4*i}")
    a("s_memrealtime s[80:81]"); a("s_waitcnt lgkmcnt(0)"); a("v_mov_b32 v2, s80")
    a("buffer_store_dword v2, v1, s[76:79], 0 offen offset:60")
    a("v_mov_b32 v2, s98"); a("buffer_store_dword v2, v1, s[76:79], 0 offen offset:56")

def phi_pair(a, t, tmp):
    a(f"v_pk_mul_f32 {vr(tmp,2)}, {vr(t,2)}, s[56:57]")
    a(f"v_exp_f32_e64 v{tmp}, v{tmp} clamp")
    a(f"v_exp_f32_e64 v{tmp+1}, v{tmp+1} clamp")
    a(f"v_max_f32 v{t}, 0, v{t}")
    a(f"v_max_f32 v{t+1}, 0, v{t+1}")
    a(f"v_pk_add_f32 {vr(t,2)}, {vr(t,2)}, {vr(tmp,2)}")
    a(f"v_pk_add_f32 {vr(t,2)}, {vr(t,2)}, s[58:59]")

_lab = [0]
def lab(p):
    _lab[0] += 1
    return f"L{p}{_lab[0]}"

def lds_spin(a, vaddr, off, vtmp, cond, val):
    assert off < 65536
    l0, l1 = lab("sp"), lab("sx")
    a("s_mov_b32 s61, 0")
    a.label(l0)
    a(f"ds_read_b32 v{vtmp}, v{vaddr} offset:{off}"); a("s_waitcnt lgkmcnt(0)")
    a(f"v_readfirstlane_b32 s60, v{vtmp}"); a("s_add_u32 s61, s61, 1"); a(f"s_cmp_{cond}_u32 s60, {val}"); a(f"s_cbranch_scc1 {l1}")
    a(f"s_cmp_lt_u32 s61, {SPIN_MAX*8}"); a(f"s_cbranch_scc1 {l0}")
    a.label(l1)

def lds_count_last(a, vaddr, off, vone, vtmp, last, action):
    l = lab("cl")
    a("s_mov_b64 exec, 1")
    a(f"ds_add_rtn_u32 v{vtmp}, v{vaddr}, v{vone} offset:{off}"); a("s_waitcnt lgkmcnt(0)")
    a(f"v_readfirstlane_b32 s60, v{vtmp}"); a(f"s_cmp_eq_u32 s60, {last}"); a(f"s_cbranch_scc0 {l}")
    action()
    a.label(l)
    a("s_mov_b64 exec, -1")

def poll16(a, vaddr, vtmp, extra=None):
    l0, l1 = lab("pl"), lab("px")
    a("s_mov_b32 s61, 0")
    a.label(l0)
    a(f"buffer_load_dword v{vtmp}, v{vaddr}, s[36:39], 0 offen sc1")
    if extra: a(f"ds_read_b32 v{vtmp+1}, v{extra[0]} offset:{extra[1]}")
    a("s_waitcnt vmcnt(0) lgkmcnt(0)")
    a(f"v_cmp_ne_u32 vcc, 1, v{vtmp}")
    if extra: a(f"v_readfirstlane_b32 s62, v{vtmp+1}")
    a("s_add_u32 s61, s61, 1"); a("s_nop 2")
    a("s_cmp_eq_u64 vcc, 0")
    if extra:
        a("s_cselect_b32 s60, 1, 0"); a(f"s_cmp_ge_u32 s62, {extra[2]}"); a("s_cselect_b32 s62, 1, 0"); a("s_and_b32 s60, s60, s62")
    a(f"s_cbranch_scc1 {l1}")
    a(f"s_cmp_lt_u32 s61, {SPIN_MAX}"); a(f"s_cbranch_scc1 {l0}")
    a.label(l1)

def poll_zeroed(a, vtmp):
    l0, l1 = lab("zl"), lab("zx")
    a("s_mov_b32 s61, 0"); a(f"v_mov_b32 v{vtmp+1}, 0")
    a.label(l0)
    a(f"buffer_load_dword v{vtmp}, v{vtmp+1}, s[40:43], 0 offen sc1"); a("s_waitcnt vmcnt(0)")
    a(f"v_readfirstlane_b32 s60, v{vtmp}"); a("s_add_u32 s61, s61, 1"); a("s_cmp_ge_u32 s60, 256"); a(f"s_cbranch_scc1 {l1}")
    a(f"s_cmp_lt_u32 s61, {SPIN_MAX}"); a(f"s_cbranch_scc1 {l0}")
    a.label(l1)

def kernel(a, opt):
    name = NAME
    kernel_begin(a, name)
    a("s_cmp_ge_u32 s2, 256")
    a("s_cbranch_scc1 Ldone")
    stamp(a, opt, 0)
    if opt.get("pad0"):
        a("s_memtime s[20:21]"); a("s_waitcnt lgkmcnt(0)"); a(f"s_add_u32 s22, s20, {opt['pad0']}")
        a.label("Lpad0"); a("s_memtime s[20:21]"); a("s_waitcnt lgkmcnt(0)"); a("s_cmp_lt_u32 s20, s22"); a("s_cbranch_scc1 Lpad0")
    a("s_load_dwordx4 s[4:7], s[0:1], 0")
    a("s_load_dwordx4 s[12:15], s[0:1], 88")
    a("v_lshrrev_b32 v1, 6, v0")
    a("v_and_b32 v0, 63, v0")
    a("v_readfirstlane_b32 s50, v1")
    a("s_and_b32 s51, s2, 7")
    a("s_lshr_b32 s52, s2, 3")
    a("s_lshl_b32 s53, s51, 3"); a("s_and_b32 s53, s53, 8"); a("s_and_b32 s54, s52, 7"); a("s_or_b32 s48, s53, s54")
    a("s_lshl_b32 s53, s51, 1"); a("s_and_b32 s53, s53, 12"); a("s_lshr_b32 s54, s52, 3"); a("s_or_b32 s49, s53, s54")
    if opt.get("jx"): a(f"s_xor_b32 s49, s49, {opt['jx']}")
    if opt.get("jperm", 1):
        a("s_lshr_b32 s53, s49, 2"); a("s_add_u32 s53, s53, 1"); a("s_and_b32 s53, s53, 2"); a("s_mul_i32 s53, s53, 6"); a("s_xor_b32 s49, s49, s53")
    a("s_and_b32 s53, s51, 3"); a("s_lshl_b32 s53, s53, 2"); a("s_and_b32 s54, s52, 3"); a("s_or_b32 s96, s53, s54")
    a("s_lshr_b32 s53, s51, 2"); a("s_lshl_b32 s53, s53, 3"); a("s_lshr_b32 s54, s52, 2"); a("s_or_b32 s97, s53, s54")
    a("s_cmp_ge_u32 s50, 4")
    a("s_cbranch_scc1 Laux")
    c_waves(a, opt)
    a.label("Laux")
    a_waves(a, opt)
    a.label("Ldone")
    a("s_endpgm")

def c_waves(a, opt):
    def acc(ai, c, u): return 64 + ((c * 2 + u) * 4 + ai) * 4
    def xf(buf, ai): return 160 + buf * 40 + ai * 4
    def wf(buf, c, u): return 160 + buf * 40 + 16 + (c * 2 + u) * 4
    XA = 8; WA = 12
    a("s_load_dwordx4 s[8:11], s[0:1], 56") if False else None
    a("s_setprio 2")
    a("s_and_b32 s53, s50, 1")
    a("s_lshr_b32 s54, s50, 1")
    a("v_and_b32 v2, 15, v0")
    a("v_lshrrev_b32 v3, 4, v0")
    a("v_lshrrev_b32 v4, 1, v2"); a("v_xor_b32 v4, v4, v3")
    a("s_lshl_b32 s55, s53, 13")
    a("v_lshlrev_b32 v5, 7, v2"); a("v_add_u32 v5, s55, v5")
    a(f"v_lshl_add_u32 v{XA}, v4, 4, v5")
    a("v_xor_b32 v6, 4, v4"); a(f"v_lshl_add_u32 v{XA+1}, v6, 4, v5")
    for kk in range(2): a(f"v_add_u32 v{XA+2+kk}, {2*ST1}, v{XA+kk}")
    a("v_bfe_u32 v6, v0, 2, 2")
    a("v_lshl_add_u32 v7, v3, 3, v6"); a("v_lshlrev_b32 v7, 7, v7")
    a("v_and_b32 v18, 3, v0"); a("v_lshl_add_u32 v7, v18, 3, v7")
    a("v_add_u32 v7, 16384, v7")
    a("v_bfe_u32 v18, v0, 3, 1"); a("v_bfe_u32 v19, v0, 4, 1"); a("v_lshl_or_b32 v18, v19, 1, v18")
    a("s_lshl_b32 s55, s54, 1")
    a("v_xor_b32 v18, s55, v18")
    a(f"v_lshl_add_u32 v{WA}, v18, 5, v7")
    a("v_xor_b32 v18, 1, v18"); a(f"v_lshl_add_u32 v{WA+1}, v18, 5, v7")
    for u in range(2): a(f"v_add_u32 v{WA+2+u}, {2*ST1}, v{WA+u}")
    for r in range(64, 160): a(f"v_mov_b32 v{r}, 0")
    a(f"s_mov_b32 s56, {LOG2E:#x}"); a(f"s_mov_b32 s57, {LOG2E:#x}")
    a(f"s_mov_b32 s58, {EPS:#x}"); a(f"s_mov_b32 s59, {EPS:#x}")
    a("s_waitcnt lgkmcnt(0)")
    make_srd(a, 36, 14, WS_USED); make_srd(a, 40, 12, 256)
    a("s_load_dwordx4 s[8:11], s[0:1], 64") ;
    a("s_load_dwordx2 s[16:17], s[0:1], 80")
    a("s_cmp_eq_u32 s50, 0"); a("s_cbranch_scc0 Lnz")
    a("s_lshl_b32 s55, s49, 4"); a("s_add_u32 s55, s55, s48"); a("s_lshl_b32 s55, s55, 7"); a(f"s_add_u32 s55, s55, {FL_KV}"); a("v_writelane_b32 v18, s55, 0")
    a("s_lshl_b32 s55, s2, 7"); a(f"s_add_u32 s55, s55, {FL_U}"); a("v_writelane_b32 v18, s55, 1")
    a("s_lshl_b32 s55, s48, 4"); a("s_add_u32 s55, s55, s49"); a("s_lshl_b32 s55, s55, 7"); a(f"s_add_u32 s55, s55, {FL_O}"); a("v_writelane_b32 v18, s55, 2")
    a("s_lshl_b32 s55, s51, 5"); a("s_add_u32 s55, s55, s52"); a("s_lshl_b32 s55, s55, 7"); a(f"s_add_u32 s55, s55, {FL_Y}"); a("v_writelane_b32 v18, s55, 3")
    a("v_mov_b32 v19, 0"); a("v_mov_b32 v20, 1")
    a("s_mov_b64 exec, 15")
    a("buffer_store_dword v19, v18, s[36:39], 0 offen sc1")
    if opt.get("atom_early"):
        a("s_waitcnt vmcnt(0)")
        a("s_mov_b64 exec, 1")
        a("buffer_atomic_add v20, v19, s[40:43], 0 offen sc1")
    a("s_mov_b64 exec, -1")
    a.label("Lnz")

    def reads(slot, kk, buf):
        hi = 2 if slot >= 2 else 0
        so = (slot & 1) * ST1
        X = [f"ds_read_b128 {vr(xf(buf,ai),4)}, v{XA+hi+kk} offset:{so + ai*2048}" for ai in range(4)]
        W = {}
        for c in range(3):
            for u in range(2):
                W[c, u] = [f"ds_read_b64_tr_b16 {vr(wf(buf,c,u)+2*sec,2)}, v{WA+hi+u} offset:{so + c*8192 + kk*4096 + sec*512}" for sec in range(2)]
        return [X[0]] + W[0, 0] + [X[1], X[2], X[3]] + W[0, 1] + W[1, 0] + W[1, 1] + W[2, 0] + W[2, 1]
    def mfmas(buf):
        L = []
        for c in range(3):
            for u in range(2):
                for ai in range(4):
                    d = vr(acc(ai, c, u), 4)
                    if c == 0: L.append(f"v_mfma_f32_16x16x32_bf16 {d}, {vr(wf(buf,c,u),4)}, {vr(xf(buf,ai),4)}, {d}")
                    else:      L.append(f"v_mfma_f32_16x16x32_bf16 {d}, {vr(xf(buf,ai),4)}, {vr(wf(buf,c,u),4)}, {d}")
        return L
    def step(buf, nxt, barrier=False):
        M = mfmas(buf); q = list(nxt)
        first = 4 if barrier else 0
        for i in range(24):
            a(M[i])
            if barrier and i == first - 1: a("s_barrier")
            if i >= first - (1 if barrier else 0) and q: a(q.pop(0))
        for s_ in q: a(s_)
    a("s_barrier")
    cst = opt.get("cst")
    def st_(i, j=None):
        k = j if cst else i
        if k is not None: stamp(a, opt, k)
    st_(1)
    for s in reads(0, 0, 0): a(s)
    a("s_mov_b32 s60, 0")
    a.label("Lcloop")
    for slot in range(4):
        for kk in range(2):
            a("s_waitcnt lgkmcnt(0)")
            if kk == 0:
                if slot == 0 and not opt.get("atom_early") and not opt.get("atom_none"):
                    a("s_cmp_eq_u32 s60, 2"); a("s_cselect_b32 s61, s50, 1"); a("s_cmp_eq_u32 s61, 0"); a("s_cbranch_scc0 Lnat")
                    a("s_waitcnt vmcnt(0)"); a("s_mov_b64 exec, 1")
                    a("buffer_atomic_add v20, v19, s[40:43], 0 offen sc1")
                    a("s_mov_b64 exec, -1"); a("s_nop 4")
                    a.label("Lnat")
                step(0, reads(slot, 1, 1))
            else:
                if slot == 3:
                    a("s_cmp_eq_u32 s60, 3"); a("s_cbranch_scc1 Lclast")
                step(1, reads((slot + 1) & 3, 0, 0), barrier=True)
    a("s_add_u32 s60, s60, 1")
    a("s_branch Lcloop")
    a.label("Lclast")
    step(1, [])
    st_(2, 1)

    TMP = 20
    KF = 160; VF = 176; ONES = 192; QF = 200
    def kf(u, ks): return KF + (u*2 + ks)*4
    def vf(u, ks): return VF + (u*2 + ks)*4
    a("s_nop 7")
    for u in range(2):
        for ai in range(4):
            t = acc(ai, 1, u); o = kf(u, ai >> 1) + (ai & 1)*2
            phi_pair(a, t, TMP); phi_pair(a, t + 2, TMP + 2)
            a(f"v_cvt_pk_bf16_f32 v{o}, v{t}, v{t+1}"); a(f"v_cvt_pk_bf16_f32 v{o+1}, v{t+2}, v{t+3}")
    for u in range(2):
        for ai in range(4):
            t = acc(ai, 2, u); o = vf(u, ai >> 1) + (ai & 1)*2
            a(f"v_cvt_pk_bf16_f32 v{o}, v{t}, v{t+1}"); a(f"v_cvt_pk_bf16_f32 v{o+1}, v{t+2}, v{t+3}")
    for r in range(4): a(f"v_mov_b32 v{ONES+r}, 0x3f803f80")
    KVA = 96; ZA = 112
    a("s_nop 1")
    for ks in range(2):
        for ud in range(2):
            for ue in range(2):
                d = vr(KVA + (ud*2+ue)*4, 4)
                a(f"v_mfma_f32_16x16x32_bf16 {d}, {vr(kf(ud,ks),4)}, {vr(vf(ue,ks),4)}, {'0' if ks == 0 else d}")
            d = vr(ZA + ud*4, 4)
            a(f"v_mfma_f32_16x16x32_bf16 {d}, {vr(kf(ud,ks),4)}, {vr(ONES,4)}, {'0' if ks == 0 else d}")
    st_(None, 2)
    def q_frags():
        for ai in range(4):
            for u in range(2):
                t = acc(ai, 0, u); o = QF + ai*4 + u*2
                phi_pair(a, t, 24); phi_pair(a, t + 2, 26)
                a(f"v_cvt_pk_bf16_f32 v{o}, v{t}, v{t+1}"); a(f"v_cvt_pk_bf16_f32 v{o+1}, v{t+2}, v{t+3}")
    a("v_mov_b32 v30, 0"); a("v_mov_b32 v31, 1")
    a(f"s_mul_i32 s55, s50, 3072"); a(f"s_add_u32 s55, s55, {F_SCR}"); a("s_xor_b32 s61, s50, 1"); a("s_mul_i32 s61, s61, 3072"); a(f"s_add_u32 s61, s61, {F_SCR}")
    a("v_lshlrev_b32 v6, 4, v0"); a("v_add_u32 v8, s55, v6"); a("v_add_u32 v9, s61, v6")
    a("s_lshl_b32 s55, s50, 2"); a("v_mov_b32 v13, s55"); a("s_xor_b32 s55, s55, 4"); a("v_mov_b32 v14, s55")
    a("s_lshl_b32 s55, s49, 1"); a("s_add_u32 s55, s55, s54"); a("s_lshl_b32 s55, s55, 4"); a("s_add_u32 s55, s55, s48")
    a("s_lshl_b32 s63, s55, 11"); a("s_lshl_b32 s61, s53, 10"); a("s_add_u32 s63, s63, s61"); a(f"s_add_u32 s63, s63, {WS_KVP}")
    a("s_lshl_b32 s62, s55, 7"); a("s_lshl_b32 s61, s53, 6"); a("s_add_u32 s62, s62, s61"); a(f"s_add_u32 s62, s62, {WS_ZP}")
    a("v_lshlrev_b32 v7, 4, v3")
    R = 32
    def half(wm):
        give = [KVA + 4*(2*(wm ^ 1)), KVA + 4*(2*(wm ^ 1) + 1), ZA + 4*(wm ^ 1)]
        keep = [KVA + 4*(2*wm), KVA + 4*(2*wm + 1), ZA + 4*wm]
        for q in range(3): a(f"ds_write_b128 v8, {vr(give[q],4)} offset:{q*1024}")
        a("s_waitcnt lgkmcnt(0)")
        a(f"ds_write_b32 v13, v31 offset:{E_RF}")
        lds_spin(a, 14, E_RF, 28, "eq", 1)
        for q in range(3): a(f"ds_read_b128 {vr(R+4*q,4)}, v9 offset:{q*1024}")
        a("s_waitcnt lgkmcnt(0)")
        for q in range(3):
            for r in range(4): a(f"v_add_f32 v{keep[q]+r}, v{keep[q]+r}, v{R+4*q+r}")
        for q in range(2):
            for p in range(2): a(f"v_cvt_pk_bf16_f32 v{R+12+2*q+p}, v{keep[q]+2*p}, v{keep[q]+2*p+1}")
        a(f"buffer_store_dwordx4 {vr(R+12,4)}, v6, s[36:39], s63 offen sc1")
        a("v_cmp_eq_u32 vcc, 0, v2")
        a("s_and_saveexec_b64 s[64:65], vcc")
        a(f"buffer_store_dwordx4 {vr(keep[2],4)}, v7, s[36:39], s62 offen sc1")
        a("s_mov_b64 exec, s[64:65]")
    a("s_nop 3")
    a("s_cmp_eq_u32 s53, 0"); a("s_cbranch_scc1 Lred0")
    half(1)
    a("s_branch Lredj")
    a.label("Lred0")
    half(0)
    a.label("Lredj")
    st_(None, 3)
    a("s_lshl_b32 s55, s49, 4"); a("s_add_u32 s55, s55, s48"); a("s_lshl_b32 s55, s55, 7"); a(f"s_add_u32 s55, s55, {FL_KV}"); a("v_mov_b32 v28, s55")
    a("s_waitcnt vmcnt(0)")
    lds_count_last(a, 30, E_KVC, 31, 29, 3, lambda: a("buffer_store_dword v31, v28, s[36:39], 0 offen sc1"))
    st_(None, 4)
    a.label("Lred1")
    a("s_lshl_b32 s55, s48, 7"); a("s_lshl_b32 s61, s53, 6"); a("s_add_u32 s55, s55, s61")
    a("v_add_u32 v5, s55, v2"); a("v_lshlrev_b32 v5, 11, v5")
    a("s_lshl_b32 s55, s49, 7"); a("s_lshl_b32 s61, s54, 6"); a("s_add_u32 s55, s55, s61")
    a("v_and_b32 v6, 1, v3"); a("v_lshlrev_b32 v6, 5, v6"); a("v_lshrrev_b32 v7, 1, v3"); a("v_lshl_add_u32 v6, v7, 4, v6")
    a("v_add3_u32 v5, v5, v6, s55")
    a(f"s_mul_i32 s55, s50, 4608"); a(f"s_add_u32 s55, s55, {F_SCR}"); a("s_xor_b32 s61, s50, 1"); a("s_mul_i32 s61, s61, 4608"); a(f"s_add_u32 s61, s61, {F_SCR}")
    a("v_lshlrev_b32 v6, 4, v0"); a("v_add_u32 v8, s55, v6"); a("v_add_u32 v9, s61, v6")
    a("v_and_b32 v7, 7, v0"); a("v_lshlrev_b32 v7, 4, v7"); a("s_add_u32 s55, s55, 4096"); a("v_add_u32 v10, s55, v7")
    a("v_lshlrev_b32 v7, 4, v3"); a("v_add_u32 v11, s55, v7"); a("s_add_u32 s61, s61, 4096"); a("v_add_u32 v12, s61, v7")
    a("s_lshl_b32 s55, s50, 2"); a("v_mov_b32 v13, s55"); a("s_xor_b32 s55, s55, 4"); a("v_mov_b32 v14, s55")
    a("s_lshl_b32 s55, s49, 1"); a("s_add_u32 s55, s55, s54"); a("s_lshl_b32 s55, s55, 4"); a("s_lshl_b32 s61, s53, 3"); a("s_add_u32 s55, s55, s61")
    a("s_lshl_b32 s68, s55, 11"); a(f"s_add_u32 s68, s68, {WS_KVP}")
    a("s_lshl_b32 s69, s55, 7"); a(f"s_add_u32 s69, s69, {WS_ZP}")
    a("s_lshl_b32 s53, s51, 7"); a("s_lshl_b32 s54, s52, 2"); a("s_add_u32 s53, s53, s54"); a("s_add_u32 s53, s53, s50")
    a(f"s_mul_i32 s54, s50, {CWB}")
    a("v_and_b32 v6, 3, v0"); a(f"v_mul_u32_u24 v6, {CTS}, v6")
    a("v_bfe_u32 v7, v0, 2, 2"); a("v_lshlrev_b32 v7, 3, v7"); a("v_sub_u32 v6, v6, v7")
    a("v_lshl_add_u32 v6, v3, 4, v6")
    a(f"s_add_u32 s55, s54, {8 + 24 + 448}"); a("v_add_u32 v16, s55, v6")
    a("v_lshlrev_b32 v6, 5, v2"); a("v_lshl_add_u32 v6, v3, 4, v6")
    a(f"s_add_u32 s55, s54, {CF + 448}"); a("v_add_u32 v17, s55, v6")
    a("s_lshl_b32 s55, s53, 1"); a("s_and_b32 s55, s55, 0xfffffffc")
    a("s_add_u32 s8, s8, s55"); a("s_addc_u32 s9, s9, 0")
    a("s_load_dword s70, s[8:9], 0")
    make_srd(a, 24, 4, NB["x"]); make_srd(a, 28, 16, NB["out"])
    GXA = 224; GWA = 228; XR = 232; GR = 32
    a("s_lshr_b32 s66, s50, 1"); a("s_and_b32 s67, s50, 1")
    a("s_lshl_b32 s55, s96, 7"); a("s_lshl_b32 s61, s66, 6"); a("s_add_u32 s55, s55, s61")
    a("v_add_u32 v20, s55, v2"); a("v_lshlrev_b32 v21, 11, v20")
    a("s_lshl_b32 s55, s97, 7"); a("s_lshl_b32 s61, s67, 6"); a("s_add_u32 s64, s55, s61")
    a("v_lshl_add_u32 v22, v3, 3, s64"); a("v_add_u32 v22, v21, v22"); a("v_lshlrev_b32 v23, 2, v20")
    a("v_lshrrev_b32 v24, 1, v2"); a("v_xor_b32 v24, v24, v3")
    a("s_lshl_b32 s55, s66, 13")
    a("v_lshlrev_b32 v25, 7, v2"); a("v_add_u32 v25, s55, v25")
    a(f"v_lshl_add_u32 v{GXA+2}, v24, 4, v25")
    a("v_xor_b32 v26, 4, v24"); a(f"v_lshl_add_u32 v{GXA+3}, v26, 4, v25")
    for kk in range(2): a(f"v_add_u32 v{GXA+kk}, {F_U}, v{GXA+2+kk}")
    a("v_bfe_u32 v26, v0, 2, 2")
    a("v_lshl_add_u32 v27, v3, 3, v26"); a("v_lshlrev_b32 v27, 7, v27")
    a("v_and_b32 v28, 3, v0"); a("v_lshl_add_u32 v27, v28, 3, v27"); a("v_add_u32 v27, 16384, v27")
    a("v_bfe_u32 v28, v0, 3, 1"); a("v_bfe_u32 v29, v0, 4, 1"); a("v_lshl_or_b32 v28, v29, 1, v28")
    a("s_lshl_b32 s55, s67, 1"); a("v_xor_b32 v28, s55, v28")
    a(f"v_lshl_add_u32 v{GWA+2}, v28, 5, v27")
    a("v_xor_b32 v28, 1, v28"); a(f"v_lshl_add_u32 v{GWA+3}, v28, 5, v27")
    for u in range(2): a(f"v_add_u32 v{GWA+u}, {F_U}, v{GWA+2+u}")
    SEL = 240
    a("v_lshrrev_b32 v6, 2, v2"); a("v_cmp_eq_u32 vcc, v6, v3")
    a("v_and_b32 v6, 1, v2"); a("v_lshlrev_b32 v6, 4, v6"); a("v_mov_b32 v7, 0x3f80"); a("v_lshlrev_b32 v6, v6, v7")
    a("v_cndmask_b32 v6, 0, v6, vcc")
    a("v_bfe_u32 v7, v2, 1, 1"); a("v_cmp_eq_u32 vcc, 0, v7")
    for r in range(8): a(f"v_mov_b32 v{SEL+r}, 0")
    a(f"v_cndmask_b32 v{SEL}, 0, v6, vcc"); a(f"v_cndmask_b32 v{SEL+1}, v6, 0, vcc" if False else f"v_cndmask_b32_e64 v{SEL+1}, v6, 0, vcc")
    a(f"v_mov_b32 v{SEL+6}, v{SEL}"); a(f"v_mov_b32 v{SEL+7}, v{SEL+1}")
    a("v_mov_b32 v7, v3")
    q_frags()
    st_(None, 5)
    a("s_cmp_eq_u32 s50, 1"); a("s_cbranch_scc0 Lkvw")
    poll_zeroed(a, 28)
    a("s_lshl_b32 s55, s49, 11"); a(f"s_add_u32 s55, s55, {FL_KV}")
    a("v_lshl_add_u32 v27, v2, 7, s55")
    poll16(a, 27, 28, extra=(30, E_KVC, 4))
    a(f"ds_write_b32 v30, v31 offset:{E_KVR}")
    a("s_branch Lkvg")
    a.label("Lkvw")
    lds_spin(a, 30, E_KVR, 28, "eq", 1)
    a.label("Lkvg")
    st_(3, 6)
    PK = 128; PR = 64; ZR = 120
    a("v_lshlrev_b32 v6, 4, v0")
    a(f"buffer_load_dwordx4 {vr(ZR,4)}, v6, s[36:39], s69 offen sc1")
    for p in range(8):
        for q in range(2):
            a(f"buffer_load_dwordx4 {vr(PK+8*p+4*q,4)}, v6, s[36:39], s68 offen offset:{q*1024} sc1")
        a("s_add_u32 s68, s68, 2048")
    a("s_waitcnt vmcnt(16)")
    for r in range(4): a(f"v_add_f32_dpp v{ZR+r}, v{ZR+r}, v{ZR+r} row_ror:8 row_mask:0xf bank_mask:0xf")
    for r in range(4): a(f"v_mov_b32 v{ZR+4+r}, v{ZR+r}")
    a("s_nop 1")
    for r in range(4): a(f"v_permlane16_swap_b32 v{ZR+r}, v{ZR+4+r}")
    a("s_nop 1")
    for r in range(4): a(f"v_add_f32 v{ZR+r}, v{ZR+r}, v{ZR+4+r}")
    for r in range(4): a(f"v_mov_b32 v{ZR+4+r}, v{ZR+r}")
    a("s_nop 1")
    for r in range(4): a(f"v_permlane32_swap_b32 v{ZR+r}, v{ZR+4+r}")
    a("s_nop 1")
    for r in range(4): a(f"v_add_f32 v{ZR+r}, v{ZR+r}, v{ZR+4+r}")
    a(f"ds_write_b128 v10, {vr(ZR,4)}")
    for p in range(8):
        a(f"s_waitcnt vmcnt({14-2*p})")
        for q in range(2):
            for h_ in range(2):
                d = vr(PR + 4*(2*q + h_), 4)
                a(f"v_mfma_f32_16x16x32_bf16 {d}, {vr(SEL+4*h_,4)}, {vr(PK+8*p+4*q,4)}, {'0' if p == 0 else d}")
    a("s_nop 7")
    for q in range(4):
        a(f"ds_write_b128 v8, {vr(PR+4*q,4)} offset:{q*1024}")
    a("s_waitcnt lgkmcnt(0)")
    a(f"ds_write_b32 v13, v31 offset:{E_XF}")
    lds_spin(a, 14, E_XF, 28, "eq", 1)
    SB = 80
    for q in range(4):
        a(f"ds_read_b128 {vr(SB+4*q,4)}, v9 offset:{q*1024}")
    for ud in range(2):
        a(f"ds_read_b128 {vr(96+4*ud,4)}, v11 offset:{ud*64}"); a(f"ds_read_b128 {vr(104+4*ud,4)}, v12 offset:{ud*64}")
    a("s_waitcnt lgkmcnt(0)")
    for r in range(16): a(f"v_add_f32 v{PR+r}, v{PR+r}, v{SB+r}")
    for r in range(8): a(f"v_add_f32 v{96+r}, v{96+r}, v{104+r}")
    KA = 112; ZF = 120
    for ue in range(2):
        for ud in range(2):
            t = PR + (ud*2+ue)*4
            a(f"v_cvt_pk_bf16_f32 v{KA+4*ue+2*ud}, v{t}, v{t+1}"); a(f"v_cvt_pk_bf16_f32 v{KA+4*ue+2*ud+1}, v{t+2}, v{t+3}")
    for ud in range(2):
        t = 96 + 4*ud
        a(f"v_cvt_pk_bf16_f32 v{ZF+2*ud}, v{t}, v{t+1}"); a(f"v_cvt_pk_bf16_f32 v{ZF+2*ud+1}, v{t+2}, v{t+3}")
    a("s_nop 1")
    O = 128
    for ai in range(4):
        for ue in range(2):
            a(f"v_mfma_f32_16x16x32_bf16 {vr(O+(ai*3+ue)*4,4)}, {vr(KA+4*ue,4)}, {vr(QF+4*ai,4)}, 0")
        a(f"v_mfma_f32_16x16x32_bf16 {vr(O+(ai*3+2)*4,4)}, {vr(ZF,4)}, {vr(QF+4*ai,4)}, 0")
    a("s_nop 7")
    OP = 64
    for ai in range(4):
        dn = O + (ai*3+2)*4
        a(f"v_add_f32 v{dn}, s58, v{dn}")
        a(f"v_rcp_f32 v{dn}, v{dn}")
        a("s_nop 0")
        for ue in range(2):
            t = O + (ai*3+ue)*4
            for r in range(4): a(f"v_mul_f32 v{t+r}, v{t+r}, v{dn}")
            a(f"v_cvt_pk_bf16_f32 v{OP+4*ai+2*ue}, v{t}, v{t+1}"); a(f"v_cvt_pk_bf16_f32 v{OP+4*ai+2*ue+1}, v{t+2}, v{t+3}")
        o = OP + 4*ai
        a("s_nop 1")
        a(f"v_permlane16_swap_b32 v{o}, v{o+2}"); a(f"v_permlane16_swap_b32 v{o+1}, v{o+3}")
        a(f"s_mov_b32 s60, {WS_O + 16*ai*2048}")
        a(f"buffer_store_dwordx4 {vr(o,4)}, v5, s[36:39], s60 offen sc1")
    st_(4, 7)
    a("s_lshl_b32 s55, s53, 12")
    a("s_mov_b32 s58, s70")
    def publish_o():
        a("s_lshl_b32 s57, s48, 4"); a("s_add_u32 s57, s57, s49"); a("s_lshl_b32 s57, s57, 7"); a(f"s_add_u32 s57, s57, {FL_O}"); a("v_mov_b32 v28, s57")
        lds_spin(a, 30, E_ADC, 29, "ge", 4)
        a("s_waitcnt vmcnt(0)")
        lds_count_last(a, 30, E_OC, 31, 29, 3, lambda: a("buffer_store_dword v31, v28, s[36:39], 0 offen sc1"))
        a("s_nop 4")
    a("s_mov_b32 s71, 0")
    a(f"ds_read_b32 v29, v30 offset:{E_CRC}"); a("s_waitcnt lgkmcnt(0)")
    a("v_readfirstlane_b32 s60, v29"); a("s_cmp_ge_u32 s60, 4"); a("s_cbranch_scc1 Lconv")
    publish_o()
    a("s_mov_b32 s71, 1")
    lds_spin(a, 30, E_CRC, 29, "ge", 4)
    a.label("Lconv")
    st_(5)
    FR = 96; ACC = 32
    def tf(b, k1): return FR + b*64 + k1*4
    def ff(b, n1): return FR + b*64 + 32 + n1*4
    def rd(b):
        L = []
        for i in range(8):
            L.append(f"ds_read_b64 {vr(tf(b,i),2)}, v16 offset:{512*(7-i)}")
            L.append(f"ds_read_b64 {vr(tf(b,i)+2,2)}, v16 offset:{512*(7-i)+8}")
            L.append(f"ds_read_b128 {vr(ff(b,i),4)}, v17 offset:{512*i}")
        return L
    def mm(b, first):
        L = []; seen = set()
        for k1 in range(8):
            for n1 in range(8 - k1):
                t = k1 + n1
                d = vr(ACC + 4*t, 4)
                c = "0" if (first and t not in seen) else d
                seen.add(t)
                L.append(f"v_mfma_f32_16x16x32_bf16 {d}, {vr(tf(b,k1),4)}, {vr(ff(b,n1),4)}, {c}")
        return L
    for s_ in rd(0): a(s_)
    a("v_subrev_u32 v16, 64, v16"); a("v_subrev_u32 v17, 64, v17")
    def resid(b, first, last):
        Ms = mm(b, first)
        R_ = [] if last else rd(b ^ 1)
        a("s_waitcnt lgkmcnt(0)")
        for m_ in Ms:
            a(m_)
            if R_: a(R_.pop(0))
        if not last:
            a("v_subrev_u32 v16, 64, v16"); a("v_subrev_u32 v17, 64, v17")
    resid(0, True, False); resid(1, False, False)
    a("s_cmp_eq_u32 s71, 0"); a("s_cbranch_scc0 Lpubd")
    publish_o()
    a.label("Lpubd")
    for ai in range(4):
        a(f"s_mov_b32 s61, {16*ai*2048}")
        for u in range(2):
            a(f"buffer_load_dwordx2 {vr(XR+(ai*2+u)*2,2)}, v22, s[24:27], s61 offen offset:{32*u}")
    a("s_mov_b32 s60, 0")
    a.label("Lcl")
    resid(0, False, False); resid(1, False, False)
    a("s_add_u32 s60, s60, 1"); a("s_cmp_lt_u32 s60, 2"); a("s_cbranch_scc1 Lcl")
    resid(0, False, False); resid(1, False, True)
    a("v_lshlrev_b32 v5, 5, v2"); a("v_lshl_add_u32 v5, v7, 3, v5")
    a(f"s_add_u32 s57, s54, {CF + 480}"); a("v_add_u32 v6, s57, v5")
    for t in range(8):
        a(f"ds_read_b64 {vr(FR+2*t,2)}, v6 offset:{512*t}")
    a("s_lshl_b32 s57, s58, 16"); a("s_and_b32 s58, s58, 0xffff0000")
    a("s_and_b32 s61, s53, 1"); a("s_cmp_eq_u32 s61, 0"); a("s_cselect_b32 s58, s57, s58")
    a(f"s_add_u32 s56, s55, {WS_YT}")
    a("s_waitcnt lgkmcnt(0)")
    for t in range(8):
        u0 = FR + 2*t; y = ACC + 4*t; tmp = FR + 16 + 4*(t & 1)
        a(f"v_lshlrev_b32 v{tmp}, 16, v{u0}"); a(f"v_and_b32 v{tmp+1}, 0xffff0000, v{u0}")
        a(f"v_lshlrev_b32 v{tmp+2}, 16, v{u0+1}"); a(f"v_and_b32 v{tmp+3}, 0xffff0000, v{u0+1}")
        for r in range(4): a(f"v_fmac_f32 v{y+r}, s58, v{tmp+r}")
        a(f"v_cvt_pk_bf16_f32 v{y}, v{y}, v{y+1}"); a(f"v_cvt_pk_bf16_f32 v{y+1}, v{y+2}, v{y+3}")
        a(f"buffer_store_dwordx2 {vr(y,2)}, v5, s[36:39], s56 offen offset:{512*t} sc1")

    NS = 6
    def gacc(ai, u): return 64 + (u*4 + ai)*4
    def gxf(buf, kk, ai): return 96 + buf*48 + (kk*4 + ai)*4
    def gwf(buf, kk, u): return 96 + buf*48 + 32 + (kk*2 + u)*4
    def greads(st, buf):
        slot = st % NS
        hi = 0 if slot < 3 else 2
        so = (slot % 3) * ST3
        L = []
        for kk in range(2):
            X = [f"ds_read_b128 {vr(gxf(buf,kk,ai),4)}, v{GXA+hi+kk} offset:{so + ai*2048}" for ai in range(4)]
            W = [[f"ds_read_b64_tr_b16 {vr(gwf(buf,kk,u)+2*sec,2)}, v{GWA+hi+u} offset:{so + kk*4096 + sec*512}" for sec in range(2)] for u in range(2)]
            L += W[0] + [X[0], X[1]] + W[1] + [X[2], X[3]]
        return L
    def gmfmas(buf):
        return [f"v_mfma_f32_16x16x32_bf16 {vr(gacc(ai,u),4)}, {vr(gwf(buf,kk,u),4)}, {vr(gxf(buf,kk,ai),4)}, {vr(gacc(ai,u),4)}"
                for kk in range(2) for u in range(2) for ai in range(4)]
    XG = 192
    xg = []
    for ai in range(4):
        for u in range(2):
            xr = XR + (ai*2+u)*2; o = XG + (ai*2+u)*4
            xg += [f"v_lshlrev_b32 v{o}, 16, v{xr}", f"v_and_b32 v{o+1}, 0xffff0000, v{xr}",
                   f"v_lshlrev_b32 v{o+2}, 16, v{xr+1}", f"v_and_b32 v{o+3}, 0xffff0000, v{xr+1}"]
    for r in range(64, 96): a(f"v_mov_b32 v{r}, 0")
    a("s_mov_b64 exec, 1"); a(f"ds_add_u32 v30, v31 offset:{E_CD}"); a("s_mov_b64 exec, -1")
    a(f"v_mov_b32 v30, {F_FL}")
    a("s_barrier")
    st_(6)
    for s_ in greads(0, 0): a(s_)
    for st in range(16):
        buf = st & 1
        Ms = gmfmas(buf)
        q = greads(st + 1, buf ^ 1) if st < 15 else []
        if st == 15:
            q = [f"ds_read_b64_tr_b16 {vr(96+(ai*2+u)*2,2)}, v6 offset:{u*16*256 + ai*32}" for ai in range(4) for u in range(2)]
        extra = []
        if 5 <= st < 15:
            n = -(-len(xg) // 10)
            extra = xg[(st-5)*n:(st-4)*n]
        a("s_waitcnt lgkmcnt(0)")
        if st == 4:
            a("s_waitcnt vmcnt(0)")
            a("s_lshr_b32 s65, s53, 2"); a("s_lshl_b32 s65, s65, 7"); a(f"s_add_u32 s65, s65, {FL_Y}"); a("v_mov_b32 v28, s65")
            lds_count_last(a, 30, 0, 31, 29, 3, lambda: a("buffer_store_dword v31, v28, s[36:39], 0 offen sc1"))
            a("s_nop 4")
        if st == 13:
            a("v_bfe_u32 v6, v0, 2, 2"); a("v_lshl_add_u32 v6, v7, 2, v6")
            a("s_lshl_b32 s57, s67, 5"); a("v_add_u32 v6, s57, v6"); a("v_lshlrev_b32 v6, 8, v6")
            a("v_and_b32 v5, 3, v0"); a("v_lshl_add_u32 v6, v5, 3, v6")
            a("s_lshl_b32 s57, s66, 7"); a(f"s_add_u32 s57, s57, {F_Y}"); a("v_add_u32 v6, s57, v6")
            a("v_and_b32 v8, 1, v7"); a("v_lshlrev_b32 v8, 5, v8"); a("v_lshrrev_b32 v9, 1, v7"); a("v_lshl_add_u32 v8, v9, 4, v8")
            a("v_add3_u32 v8, v21, v8, s64")
        if st == 15:
            a("s_waitcnt vmcnt(0)")
            for ai in range(4): a(f"v_sub_f32 v{GR+4*ai+2}, 1.0, v{GR+4*ai}")
        if st == 11:
            a(f"s_mov_b32 s61, {WS_G}")
            for ai in range(4):
                a(f"buffer_load_dword v{GR+4*ai}, v23, s[36:39], s61 offen offset:{64*ai} sc1")
        for i in range(16):
            a(Ms[i])
            if i == 1 and st < 15: a("s_barrier")
            if i >= 1:
                for _ in range(2):
                    if q: a(q.pop(0))
            if i >= 9:
                for _ in range(3):
                    if extra: a(extra.pop(0))
        for s_ in q + extra: a(s_)
    a("s_waitcnt lgkmcnt(0)")
    YR = 96; OP = 112; T = 128
    for ai in range(4):
        g_ = GR + 4*ai
        for u in range(2):
            t = gacc(ai, u); yr = YR + (ai*2+u)*2; xo = XG + (ai*2+u)*4; T_ = T + 4*(u & 1)
            a(f"v_lshlrev_b32 v{T_}, 16, v{yr}"); a(f"v_and_b32 v{T_+1}, 0xffff0000, v{yr}")
            a(f"v_lshlrev_b32 v{T_+2}, 16, v{yr+1}"); a(f"v_and_b32 v{T_+3}, 0xffff0000, v{yr+1}")
            for h_ in range(2):
                a(f"v_pk_mul_f32 {vr(T_+2*h_,2)}, {vr(T_+2*h_,2)}, {vr(xo+2*h_,2)}")
                a(f"v_pk_mul_f32 {vr(T_+2*h_,2)}, {vr(T_+2*h_,2)}, {vr(g_+2,2)} op_sel_hi:[1,0]")
                a(f"v_pk_fma_f32 {vr(T_+2*h_,2)}, {vr(t+2*h_,2)}, {vr(g_,2)}, {vr(T_+2*h_,2)} op_sel_hi:[1,0,1]")
                a(f"v_cvt_pk_bf16_f32 v{OP+4*ai+2*u+h_}, v{T_+2*h_}, v{T_+2*h_+1}")
        o = OP + 4*ai
        a("s_nop 1")
        a(f"v_permlane16_swap_b32 v{o}, v{o+2}"); a(f"v_permlane16_swap_b32 v{o+1}, v{o+3}")
        a(f"s_mov_b32 s61, {16*ai*2048}")
        a(f"buffer_store_dwordx4 {vr(o,4)}, v8, s[28:31], s61 offen{opt.get('outfl', '')}")
    a("s_waitcnt vmcnt(0)")
    st_(7)
    stamp_dump(a, opt, 8)
    a("s_waitcnt vmcnt(0)")
    a("s_endpgm")

def a_waves(a, opt):
    a("s_sub_u32 s53, s50, 4")
    VA = 8; VW = 12
    a("v_lshrrev_b32 v2, 3, v0"); a("v_and_b32 v3, 7, v0"); a("v_lshrrev_b32 v4, 4, v0")
    a("s_lshl_b32 s55, s48, 7"); a("s_lshl_b32 s61, s53, 5"); a("s_add_u32 s55, s55, s61")
    a("v_add_u32 v5, s55, v2"); a("v_lshlrev_b32 v5, 11, v5")
    a("v_xor_b32 v6, v4, v3"); a(f"v_lshl_add_u32 v{VA}, v6, 4, v5")
    a("v_xor_b32 v6, 4, v6"); a(f"v_lshl_add_u32 v{VA+1}, v6, 4, v5"); a(f"v_add_u32 v{VA+1}, 16384, v{VA+1}")
    for i in range(2, 4): a(f"v_add_u32 v{VA+i}, 32768, v{VA+(i&1)}")
    a("v_and_b32 v6, 1, v4"); a("v_lshlrev_b32 v6, 1, v6"); a("v_xor_b32 v6, v6, v3")
    a("v_mul_u32_u24 v5, 6144, v2")
    a(f"s_mul_i32 s55, s53, {2*8*6144}"); a("s_lshl_b32 s61, s49, 7"); a("s_add_u32 s55, s55, s61")
    a("v_add_u32 v5, s55, v5")
    a(f"v_lshl_add_u32 v{VW}, v6, 4, v5")
    a("v_xor_b32 v6, 4, v6"); a(f"v_lshl_add_u32 v{VW+1}, v6, 4, v5"); a(f"v_add_u32 v{VW+1}, {8*6144}, v{VW+1}")
    WL = [(seg, r2) for seg in range(3) for r2 in range(2)]
    for i, (seg, r2) in enumerate(WL):
        if i >= 2: a(f"v_add_u32 v{VW+i}, {seg*2048}, v{VW + r2}")
    a("s_lshl_b32 s64, s53, 12")
    a("s_lshl_b32 s65, s53, 11"); a("s_add_u32 s65, s65, 16384")
    a("s_lshr_b32 s46, s52, 3"); a("s_add_u32 s46, s46, s52"); a("s_and_b32 s46, s46, 3"); a("s_lshl_b32 s46, s46, 2")
    a("s_lshl_b32 s66, s46, 7"); a(f"s_mul_i32 s67, s46, {64*6144}"); a("s_mov_b32 s68, 0")
    a("s_waitcnt lgkmcnt(0)")
    make_srd(a, 20, 4, NB["x"]); make_srd(a, 24, 6, NB["wqkv"])
    def prep():
        a("s_add_u32 s69, s64, s68"); a("s_add_u32 s55, s65, s68"); a("s_mov_b32 m0, s69")
    def issue(prepared=False):
        if not prepared: prep(); a("s_nop 0")
        fill = [f"s_add_u32 s68, s68, {ST1}", f"s_cmp_eq_u32 s68, {4*ST1}\ns_cselect_b32 s68, 0, s68", "s_nop 0"]
        for i in range(4):
            if i:
                a(f"s_add_u32 m0, s69, {i*1024}"); a(fill.pop(0))
            a(f"buffer_load_dwordx4 v{VA+i}, s[20:23], s66 offen lds")
        fill = ["s_add_u32 s66, s66, 128", "s_cmp_eq_u32 s66, 2048\ns_cselect_b32 s66, 0, s66"]
        for i, (seg, r2) in enumerate(WL):
            a(f"s_add_u32 m0, s55, {seg*8192 + r2*1024}"); a(fill.pop(0) if fill else "s_nop 0")
            a(f"buffer_load_dwordx4 v{VW+i}, s[24:27], s67 offen lds")
        a(f"s_add_u32 s67, s67, {64*6144}"); a(f"s_cmp_eq_u32 s67, {16*64*6144}"); a("s_cselect_b32 s67, 0, s67")
    issue(); issue()
    a("s_load_dwordx4 s[8:11], s[0:1], 32")
    a("s_load_dwordx4 s[4:7], s[0:1], 48")
    a("s_load_dwordx2 s[16:17], s[0:1], 72")
    a("s_load_dwordx2 s[18:19], s[0:1], 16")
    ramp = (1, 1, 1, 1, 2)
    issued = 2
    for i, n in enumerate(ramp):
        prep()
        a(f"s_waitcnt vmcnt({10*(issued - i - 1)})"); a("s_barrier")
        if i == 0: stamp(a, opt, 1)
        for k_ in range(n):
            issue(prepared=(k_ == 0)); issued += 1
        if i == 0:
            a("s_waitcnt lgkmcnt(0)")
            make_srd(a, 28, 8, NB["bk"]); make_srd(a, 32, 10, NB["bv"])
            make_srd(a, 36, 14, WS_USED); make_srd(a, 40, 4, NB["shift"]); make_srd(a, 44, 16, NB["gw"])
    i0 = len(ramp)
    a(f"s_mov_b32 s60, {i0}")
    a.label("Llloop")
    prep()
    a("s_add_u32 s60, s60, 1")
    a("s_waitcnt vmcnt(20)"); a("s_barrier")
    issue(prepared=True)
    a("s_cmp_lt_u32 s60, 13"); a("s_cbranch_scc1 Llloop")
    pl = Asm()
    pl("s_and_b32 s70, s2, 15"); pl("s_lshr_b32 s71, s2, 4")
    pl("v_lshrrev_b32 v20, 3, v0"); pl("v_and_b32 v21, 7, v0")
    pl("s_lshl_b32 s72, s70, 7"); pl("s_lshl_b32 s73, s53, 5"); pl("s_add_u32 s72, s72, s73")
    pl("v_lshl_add_u32 v22, v20, 2, s72")
    pl("s_lshl_b32 s73, s71, 6"); pl("v_lshl_add_u32 v23, v21, 3, s73")
    pl("v_lshlrev_b32 v24, 11, v22"); pl("v_lshl_add_u32 v24, v23, 1, v24")
    pl("v_subrev_u32 v25, 6144, v24")
    for r in range(7):
        if r: pl("v_add_u32 v25, 2048, v25")
        pl(f"buffer_load_dwordx4 {vr(32+4*r,4)}, v25, s[28:31], 0 offen nt")
    pl("v_add_u32 v26, 4096, v24")
    for r in range(4):
        pl(f"buffer_load_dwordx4 {vr(60+4*r,4)}, v{24 if r < 2 else 26}, s[32:35], 0 offen offset:{2048*(r & 1)} nt")
    partA = pl.lines; pl = Asm()
    pl("v_lshlrev_b32 v27, 3, v23")
    for q in range(4):
        pl(f"buffer_load_dwordx4 {vr(76+4*q,4)}, v27, s[40:43], 0 offen offset:{16*q}")
    pl("s_lshl_b32 s73, s48, 7"); pl("s_lshl_b32 s74, s49, 3"); pl("s_add_u32 s73, s73, s74"); pl("s_lshl_b32 s74, s53, 1"); pl("s_add_u32 s73, s73, s74")
    pl("v_lshrrev_b32 v28, 5, v0"); pl("v_add_u32 v28, s73, v28")
    pl("v_and_b32 v29, 31, v0"); pl("v_lshlrev_b32 v29, 4, v29")
    pl("v_lshl_add_u32 v30, v28, 11, v29")
    for i in range(4):
        pl(f"buffer_load_dwordx4 {vr(92+4*i,4)}, v30, s[20:23], 0 offen offset:{512*i}")
    for i in range(4):
        pl(f"buffer_load_dwordx4 {vr(108+4*i,4)}, v29, s[44:47], 0 offen offset:{512*i}")
    pl("v_lshlrev_b32 v31, 12, v23"); pl("v_lshl_add_u32 v31, v22, 1, v31")
    pl(f"s_mov_b32 s72, {WS_UT}")
    pl("s_mov_b32 s74, 0x05040100"); pl("s_mov_b32 s75, 0x07060302")
    partB = pl.lines
    a("v_mov_b32 v160, 0"); a("v_mov_b32 v161, 0"); a("v_mov_b32 v162, 0"); a("v_mov_b32 v163, 0")
    a("v_and_b32 v164, 1, v0"); a("v_lshlrev_b32 v164, 4, v164")
    a("s_waitcnt vmcnt(20)"); a("s_barrier")
    a(f"ds_write_b128 v164, v[160:163] offset:{F_E0}")
    for ln in partA: a(ln)
    a("s_waitcnt vmcnt(21)"); a("s_barrier")
    a(f"ds_write_b128 v164, v[160:163] offset:{F_E1}")
    for ln in partB: a(ln)
    a("s_lshl_b32 s54, s51, 7"); a("s_lshl_b32 s55, s52, 2"); a("s_add_u32 s54, s54, s55"); a("s_add_u32 s54, s54, s53")
    a("s_lshl_b32 s55, s54, 12")
    a("s_add_u32 s60, s6, s55"); a("s_addc_u32 s61, s7, 0")
    a("v_lshlrev_b32 v1, 2, v0"); a("v_subrev_u32 v3, 4, v1"); a("v_add_u32 v4, 252, v1")
    a("s_waitcnt vmcnt(23) lgkmcnt(0)"); a("s_barrier")
    a("v_and_b32 v165, 7, v0"); a("v_lshlrev_b32 v165, 4, v165"); a(f"v_add_u32 v165, {F_FL}, v165")
    a("ds_write_b128 v165, v[160:163]")
    a("s_mov_b32 s24, s60"); a("s_mov_b32 s25, s61"); a("s_mov_b32 s26, 4096"); a("s_mov_b32 s27, 0x00020000")
    E = 176; E1 = 192
    for j in range(16):
        a(f"buffer_load_dword v{E+j}, v1, s[24:27], 0 offen offset:{256*j} nt")
        if j == 0: a(f"buffer_load_dword v{E1}, v3, s[24:27], 0 offen")
        else:      a(f"buffer_load_dword v{E1+j}, v4, s[24:27], 0 offen offset:{256*(j-1)}")
    a("s_waitcnt vmcnt(40)")
    stamp(a, opt, 2)
    P = 128; KS = 140; VU = 148
    for c in range(8):
        cp, h = c >> 1, c & 1
        sel = "s75" if h else "s74"
        pb = P + 6*(c & 1); kb = KS + 4*(c & 1)
        for t in range(6): a(f"v_perm_b32 v{pb+t}, v{32+4*t+cp}, v{32+4*(t+1)+cp}, {sel}")
        for r in range(4): a(f"v_dot2_f32_bf16 v{kb+r}, v{pb+r+2}, v{76+2*c}, 0")
        for r in range(4): a(f"v_dot2_f32_bf16 v{kb+r}, v{pb+r}, v{76+2*c+1}, v{kb+r}")
        for r in range(4):
            if h: a(f"v_and_b32 v{VU+r}, 0xffff0000, v{60+4*r+cp}")
            else: a(f"v_lshlrev_b32 v{VU+r}, 16, v{60+4*r+cp}")
        for r in range(4): a(f"v_mul_f32 v{kb+r}, v{kb+r}, v{VU+r}")
        o = 152 + 2*(c & 3)
        a(f"v_cvt_pk_bf16_f32 v{o}, v{kb}, v{kb+1}"); a(f"v_cvt_pk_bf16_f32 v{o+1}, v{kb+2}, v{kb+3}")
        a(f"s_add_u32 s73, s72, {c*4096}")
        a(f"buffer_store_dwordx2 {vr(o,2)}, v31, s[36:39], s73 offen sc1")
    a("s_waitcnt vmcnt(40)")
    a("v_mov_b32 v128, 0")
    for i in range(16): a(f"v_dot2_f32_bf16 v128, v{92+i}, v{108+i}, v128")
    a("s_nop 3")
    for ctl in ("quad_perm:[1,0,3,2]", "quad_perm:[2,3,0,1]", "row_half_mirror", "row_mirror"):
        a(f"v_add_f32_dpp v128, v128, v128 {ctl} row_mask:0xf bank_mask:0xf"); a("s_nop 1")
    a("v_mov_b32 v129, v128"); a("s_nop 1")
    a("v_permlane16_swap_b32 v128, v129"); a("s_nop 1")
    a("v_add_f32 v128, v128, v129")
    a("v_mul_f32 v128, 0xbfb8aa3b, v128"); a("v_exp_f32 v128, v128"); a("s_nop 0")
    a("v_add_f32 v128, 1.0, v128"); a("v_rcp_f32 v128, v128")
    a("v_lshlrev_b32 v28, 2, v28"); a("v_and_b32 v29, 31, v0"); a("v_cmp_eq_u32 vcc, 0, v29")
    a("s_and_saveexec_b64 s[62:63], vcc")
    a(f"s_mov_b32 s73, {WS_G}")
    a("buffer_store_dword v128, v28, s[36:39], s73 offen sc1")
    a("s_mov_b64 exec, s[62:63]")
    stamp(a, opt, 3)
    a("v_lshlrev_b32 v2, 4, v0")
    a(f"s_mul_i32 s56, s53, {CWB}")
    a("v_mov_b32 v12, 0"); a("v_mov_b32 v13, 0"); a("v_mov_b32 v14, 0"); a("v_mov_b32 v15, 0")
    a(f"s_add_u32 s57, s56, {CF}")
    a("v_min_u32 v5, 29, v0"); a("v_lshl_add_u32 v5, v5, 4, s57")
    a("ds_write_b128 v5, v[12:15]")
    a("v_lshrrev_b32 v5, 3, v0"); a("v_and_b32 v5, 3, v5"); a(f"v_mul_u32_u24 v5, {CTS}, v5")
    a("v_and_b32 v6, 7, v0"); a("v_lshl_add_u32 v5, v6, 2, v5")
    a(f"s_add_u32 s57, s56, {8 + 4*1023}"); a("v_add_u32 v5, s57, v5")
    a("ds_write_b32 v5, v12")
    TW = 16
    for rho in range(4):
        a(f"s_add_u32 s57, s56, {rho*CTS + 256 + (4 if rho >= 2 else 0)}")
        a(f"v_sub_u32 v{TW+rho}, s57, v1")
    a("s_mov_b32 s59, 0xffff")
    a("s_waitcnt vmcnt(9)")
    S = 64; M = 80
    for j in range(16):
        a(f"v_alignbit_b32 v{S+j}, v{E+j}, v{E+j}, 16")
        a(f"v_bfi_b32 v{M+j}, s59, v{E+j}, v{E1+j}")
    for j in range(0, 16, 2):
        for rho in range(4):
            src = S if rho & 1 else M
            a(f"ds_write2st64_b32 v{TW+rho}, v{src+j}, v{src+j+1} offset0:{15-j} offset1:{14-j}")
    make_srd(a, 40, 12, 256); make_srd(a, 24, 18, NB["wo"])
    a("v_mov_b32 v9, 0"); a("v_mov_b32 v11, 1")
    a("s_lshl_b32 s60, s2, 7"); a(f"s_add_u32 s60, s60, {FL_U}"); a("v_mov_b32 v10, s60")
    a("s_waitcnt vmcnt(0)")
    lds_count_last(a, 9, E_ADC, 11, 8, 3, lambda: a("buffer_store_dword v11, v10, s[36:39], 0 offen sc1"))
    stamp(a, opt, 4)
    a("v_lshrrev_b32 v96, 3, v0"); a("v_and_b32 v97, 7, v0"); a("v_lshrrev_b32 v98, 4, v0")
    a("s_cmp_eq_u32 s53, 3"); a("s_cbranch_scc1 Lawo")
    a("s_lshl_b32 s60, s96, 7"); a("v_add_u32 v99, s60, v96"); a("v_lshlrev_b32 v99, 11, v99")
    a("v_xor_b32 v100, v98, v97"); a("v_lshl_add_u32 v20, v100, 4, v99")
    a("v_xor_b32 v100, 4, v100"); a("v_lshl_add_u32 v21, v100, 4, v99")
    a("s_mov_b32 s28, s36"); a("s_mov_b32 s29, s37"); a("s_mov_b32 s30, s38"); a("s_mov_b32 s31, s39")
    a("s_sub_u32 s60, s53, 1"); a("s_lshl_b32 s64, s60, 13"); a("s_lshl_b32 s66, s60, 17"); a(f"s_add_u32 s66, s66, {WS_O}"); a("s_mov_b32 s65, 128")
    a("s_branch Lawd")
    a.label("Lawo")
    a("v_and_b32 v100, 1, v98"); a("v_lshlrev_b32 v100, 1, v100"); a("v_xor_b32 v100, v100, v97")
    a("v_lshlrev_b32 v99, 11, v96"); a("s_lshl_b32 s61, s97, 7"); a("v_add_u32 v99, s61, v99")
    a("v_lshl_add_u32 v20, v100, 4, v99")
    a("v_xor_b32 v100, 4, v100"); a("v_lshl_add_u32 v21, v100, 4, v99")
    a("s_mov_b32 s28, s24"); a("s_mov_b32 s29, s25"); a("s_mov_b32 s30, s26"); a("s_mov_b32 s31, s27")
    a("s_mov_b32 s64, 16384"); a("s_mov_b32 s66, 0"); a("s_mov_b32 s65, 131072")
    a.label("Lawd")
    a("v_lshrrev_b32 v99, 4, v0"); a("s_lshl_b32 s60, s97, 6"); a("v_add_u32 v99, s60, v99"); a("v_lshlrev_b32 v99, 12, v99")
    a("v_and_b32 v100, 15, v0"); a("v_lshl_add_u32 v99, v100, 4, v99"); a("s_lshl_b32 s60, s96, 8"); a("v_add_u32 v26, s60, v99")
    a("s_cmp_eq_u32 s53, 0"); a("s_cbranch_scc1 Lupoll")
    a("s_lshl_b32 s60, s52, 5"); a("s_lshl_b32 s61, s53, 3"); a("s_add_u32 s60, s60, s61"); a("s_sub_u32 s60, s60, 8")
    a("v_lshrrev_b32 v96, 3, v0"); a("v_add_u32 v96, s60, v96"); a("v_lshlrev_b32 v96, 11, v96")
    a("v_and_b32 v97, 7, v0"); a("v_lshl_add_u32 v96, v97, 7, v96")
    a("s_lshr_b32 s60, s51, 2"); a("s_lshl_b32 s60, s60, 10")
    a("buffer_load_dword v98, v96, s[24:27], s60 offen")
    a("s_cmp_eq_u32 s53, 3"); a("s_cbranch_scc0 Lnpf")
    a("v_add_u32 v96, 16384, v96")
    a("buffer_load_dword v99, v96, s[24:27], s60 offen")
    a.label("Lnpf")
    lds_spin(a, 9, E_UR, 8, "eq", 1)
    a("s_branch Lugo")
    a.label("Lupoll")
    poll_zeroed(a, 100)
    a("s_lshl_b32 s60, s51, 1"); a("s_lshr_b32 s61, s52, 4"); a("s_add_u32 s60, s60, s61"); a("s_lshl_b32 s60, s60, 11"); a(f"s_add_u32 s60, s60, {FL_U}")
    a("v_and_b32 v102, 15, v0"); a("v_lshl_add_u32 v102, v102, 7, s60")
    poll16(a, 102, 100)
    a(f"ds_write_b32 v9, v11 offset:{E_UR}")
    a.label("Lugo")
    a(f"s_add_u32 s57, s55, {WS_UT}")
    for i in range(4):
        a(f"s_add_u32 m0, s56, {CF + 480 + i*1024}")
        a(f"s_add_u32 s60, s57, {i*1024}")
        a("buffer_load_dwordx4 v2, s[36:39], s60 offen sc1 lds")
    a("s_waitcnt vmcnt(0) lgkmcnt(0)")
    a("s_mov_b64 exec, 1")
    a(f"ds_add_u32 v9, v11 offset:{E_CRC}")
    a("s_mov_b64 exec, -1")
    stamp(a, opt, 5)
    def slot_base(st):
        sl = st % 6
        return (F_U + sl*ST3) if sl < 3 else (sl - 3)*ST3
    ORD = 64
    a(f"v_mov_b32 v27, {F_FL}")
    a("s_cmp_eq_u32 s53, 0"); a("s_cbranch_scc0 Lgload")
    a("s_lshl_b32 s60, s96, 11"); a(f"s_add_u32 s60, s60, {FL_O}")
    a("v_and_b32 v102, 15, v0"); a("v_lshl_add_u32 v102, v102, 7, s60")
    a("s_lshl_b32 s60, s97, 11"); a(f"s_add_u32 s60, s60, {FL_Y}")
    a("v_and_b32 v103, 15, v0"); a("v_lshl_add_u32 v103, v103, 7, s60")
    a("s_mov_b32 s70, 0"); a("s_mov_b32 s71, 0")
    def absorb():
        l0, l1 = lab("ab"), lab("ae")
        a("v_cmp_eq_u32 vcc, 1, v100"); a("s_nop 3")
        a("s_and_b32 s72, vcc_lo, 0xffff"); a("s_andn2_b32 s62, s72, s71")
        a.label(l0)
        a("s_cmp_eq_u32 s62, 0"); a(f"s_cbranch_scc1 {l1}")
        a("s_ff1_i32_b32 s47, s62"); a("s_lshl_b32 s60, 1, s47"); a("s_or_b32 s71, s71, s60"); a("s_andn2_b32 s62, s62, s60")
        a("s_add_u32 s47, s47, 1"); a("v_mov_b32 v101, s47"); a("s_lshl_b32 s60, s70, 2"); a("v_add_u32 v104, s60, v27")
        a(f"ds_write_b32 v104, v101 offset:{ORD}"); a("s_add_u32 s70, s70, 1")
        a(f"s_branch {l0}")
        a.label(l1)
    a("s_mov_b32 s61, 0")
    a.label("Lsync0")
    a("buffer_load_dword v100, v102, s[36:39], 0 offen sc1")
    a("s_mov_b32 s73, 0")
    a.label("Lsyncw")
    a(f"ds_read_b32 v105, v9 offset:{E_CD}"); a("s_waitcnt lgkmcnt(0)")
    a("v_readfirstlane_b32 s60, v105"); a("s_add_u32 s73, s73, 1")
    a("s_cmp_ge_u32 s60, 4"); a("s_cselect_b32 s60, 1, 0"); a("s_cmp_ge_u32 s70, 4"); a("s_cselect_b32 s62, 1, 0"); a("s_and_b32 s60, s60, s62"); a("s_cbranch_scc1 Lsync1")
    a("s_cmp_lt_u32 s73, 4"); a("s_cbranch_scc1 Lsyncw")
    a("s_waitcnt vmcnt(0)")
    absorb()
    a("s_cmp_eq_u32 s70, 16"); a("s_cbranch_scc1 Lsync1")
    a("s_add_u32 s61, s61, 1"); a(f"s_cmp_lt_u32 s61, {SPIN_MAX}"); a("s_cbranch_scc1 Lsync0")
    a("v_mov_b32 v100, 1"); absorb()
    a.label("Lsync1")
    stamp(a, opt, 6)
    first_after = {}
    issued_ = 3
    for i in range(16):
        n_ = 0
        while issued_ + n_ <= min(15, i + 5) and n_ < opt.get("gburst", 2): n_ += 1
        if n_: first_after[i] = (issued_, issued_ + n_ - 1)
        issued_ += n_
    def ensure(count):
        l0, l1 = lab("en"), lab("ex")
        a("s_mov_b32 s73, 0")
        a.label(l0)
        a(f"s_cmp_ge_u32 s70, {count}"); a(f"s_cbranch_scc1 {l1}")
        a("buffer_load_dword v100, v102, s[36:39], 0 offen sc1"); a("s_waitcnt vmcnt(0)")
        absorb()
        a("s_add_u32 s73, s73, 1"); a(f"s_cmp_lt_u32 s73, {SPIN_MAX}"); a(f"s_cbranch_scc1 {l0}")
        a("v_mov_b32 v100, 1"); absorb()
        a.label(l1)
    for i in range(16):
        if i in first_after: ensure(first_after[i][0] + 1)
        if i == 15: a("s_waitcnt vmcnt(0)")
        a("s_barrier")
        if i in first_after:
            nxt = first_after.get(i + 1, (first_after[i][1],))[0]
            ensure(max(first_after[i][1], nxt) + 1)
        if i == 9:
            a("buffer_load_dword v106, v103, s[36:39], 0 offen sc1")
        if i == 11:
            l = lab("sy"); l2 = lab("sz")
            a("s_mov_b32 s73, 0")
            a.label(l2)
            a("s_waitcnt vmcnt(0)")
            a("v_cmp_ne_u32 vcc, 1, v106"); a("s_add_u32 s73, s73, 1"); a("s_nop 3"); a("s_cmp_eq_u64 vcc, 0"); a(f"s_cbranch_scc1 {l}")
            a("buffer_load_dword v106, v103, s[36:39], 0 offen sc1")
            a(f"s_cmp_lt_u32 s73, {SPIN_MAX}"); a(f"s_cbranch_scc1 {l2}")
            a.label(l)
            for t in range(16):
                a(f"s_mov_b32 m0, {F_Y + t*1024}"); a(f"s_mov_b32 s61, {WS_YT + t*4*4096}")
                a("buffer_load_dwordx4 v26, s[36:39], s61 offen sc1 lds")
    a("s_branch Lgend")
    a.label("Lgload")
    def fetch_ord(k):
        a(f"ds_read_b32 v100, v27 offset:{ORD + 4*k}")
    def decode():
        a("v_readfirstlane_b32 s62, v100")
        a("s_sub_u32 s68, s62, 1"); a("s_and_b32 s68, s68, 15"); a("s_mul_i32 s68, s68, s65"); a("s_add_u32 s68, s68, s66")
    def take_ord(k, decoded=False):
        l0, l1 = lab("to"), lab("tx")
        if not decoded:
            a("s_waitcnt lgkmcnt(0)"); decode()
        a("s_cmp_lg_u32 s62, 0"); a(f"s_cbranch_scc1 {l1}")
        a("s_mov_b32 s61, 0")
        a.label(l0)
        fetch_ord(k); a("s_waitcnt lgkmcnt(0)"); decode()
        a("s_add_u32 s61, s61, 1"); a("s_cmp_lg_u32 s62, 0"); a(f"s_cbranch_scc1 {l1}")
        a(f"s_cmp_lt_u32 s61, {SPIN_MAX*8}"); a(f"s_cbranch_scc1 {l0}")
        a.label(l1)
        a("s_mov_b32 s67, s68")
    SC1 = "" if opt.get("nosc1") else " sc1"
    def issue_stage(st, nxt):
        sb = slot_base(st)
        for t in range(8):
            if t: a(f"s_add_u32 m0, s64, {sb + t*1024}"); a(f"s_add_u32 s60, s67, {t*16384}")
            a(f"buffer_load_dwordx4 v{20 + (t & 1)}, s[28:31], {'s67' if t == 0 else 's60'} offen{SC1} lds")
            if nxt is not None:
                if t == 1: fetch_ord(nxt)
                if t == 5: a("s_waitcnt lgkmcnt(0)"); decode()
    def prep_stage(st):
        a(f"s_add_u32 m0, s64, {slot_base(st)}")
    Q = []
    for st in range(3):
        fetch_ord(st); take_ord(st)
        if st == 2: lds_spin(a, 9, E_OC, 8, "ge", 4)
        prep_stage(st); a("s_nop 0")
        issue_stage(st, 3 if st == 2 else None); Q += [st]*8
        if st == 0: stamp(a, opt, 6)
    issued = 3
    for i in range(16):
        last = max(k for k, e in enumerate(Q) if e == i)
        n_after = len(Q) - 1 - last
        todo = []
        while issued + len(todo) <= min(15, i + 5) and len(todo) < opt.get("gburst", 2): todo.append(issued + len(todo))
        if todo:
            take_ord(todo[0], True); prep_stage(todo[0])
        a(f"s_waitcnt vmcnt({n_after})")
        if opt.get("gst"): a("s_memtime s[100:101]")
        a("s_barrier")
        if opt.get("gst"):
            a("s_waitcnt lgkmcnt(0)"); a("s_sub_u32 s100, s100, s80"); a(f"v_writelane_b32 v200, s100, {i}"); a("s_memtime s[100:101]")
            a("s_waitcnt lgkmcnt(0)"); a("s_sub_u32 s100, s100, s80"); a(f"v_writelane_b32 v200, s100, {16+i}")
        Q = Q[last + 1:]
        for k_, st in enumerate(todo):
            if k_:
                take_ord(st, True); prep_stage(st); a("s_nop 0")
            nxt = st + 1 if st + 1 <= 15 else None
            issue_stage(st, nxt); Q += [st]*8
        issued += len(todo)
    assert issued == 16
    if opt.get("gst"):
        a(f"s_add_u32 s76, s14, {WS_STAMP + (1 << 20)}"); a("s_addc_u32 s77, s15, 0"); a("s_mov_b32 s78, 0x1000000"); a("s_mov_b32 s79, 0x00020000")
        a("s_lshl_b32 s75, s2, 2"); a("s_add_u32 s75, s75, s53"); a("s_lshl_b32 s75, s75, 8")
        a("v_lshlrev_b32 v201, 2, v0"); a("buffer_store_dword v200, v201, s[76:79], s75 offen")
    a.label("Lgend")
    stamp(a, opt, 7)
    stamp_dump(a, opt, 8)
    a("s_waitcnt vmcnt(0)")

def build(opt=None):
    opt = opt or {}
    _lab[0] = 0
    a = Asm()
    if opt.get("aslist"): a(f"; @launch kernel={NAME} grid=(256,1,1) block=(512,1,1) lds=163840")
    else: a("; @launch grid=(256,1,1) block=(512,1,1) lds=163840")
    a('.amdgcn_target "amdgcn-amd-amdhsa--gfx950"')
    a(".text")
    a.lines = [l for l in a.lines]
    kernel(a, opt)
    a('.section .rodata,"a"')
    kernel_desc(a, NAME, vgpr=256, sgpr=102)
    return a.text().replace("None\n", "")

if __name__ == "__main__":
    opt = {}
    for o in sys.argv[2:]:
        k, _, v = o.partition("=")
        opt[k] = int(v) if v else 1
    open(sys.argv[1], "w").write(build(opt))
```

```python
import sys
from asmlib import *

WS_UT  = 4 << 20
WS_KVP = 8 << 20
WS_ZP  = 10 << 20
WS_G   = 11 << 20
WS_FL  = (11 << 20) | 0x80000
FL_KV, FL_U, FL_O, FL_Y = WS_FL, WS_FL + 32768, WS_FL + 65536, WS_FL + 98304
WS_O   = 12 << 20
WS_YT  = 16 << 20
WS_USED = 20 << 20
WS_STAMP = 24 << 20
LOG2E = 0x3fb8aa3b
EPS   = 0x358637bd
SPIN_MAX = 1 << 17
NAME = "gated_mix__linear_attn_block__ssm_conv_h3__prompt_kernel"

ST1 = 40960
CTS = 4160
CF  = 4 * CTS
CWB = 4 * CTS + 4608
F_FL = 4 * CWB
ST3 = 24576
F_U = F_FL + 256
F_SCR = F_U + 2 * ST3
F_Y = ST3
F_E0 = CWB - 32
F_E1 = 2 * CWB - 32
E_XF = F_E0
E_RF = F_E0 + 16
E_ADC, E_UR, E_CRC, E_OC, E_CD, E_KVC, E_KVR = (F_E1 + 4*k for k in range(7))
W_YC, W_YR = F_FL, F_FL + 4

def vr(a, n=1): return f"v{a}" if n == 1 else f"v[{a}:{a+n-1}]"

def stamp(a, opt, i):
    if opt.get("stamps"):
        a(f"s_memtime s[{80+2*i}:{81+2*i}]")
        if i == 0: a("s_memrealtime s[98:99]")
def stamp_dump(a, opt, n):
    if not opt.get("stamps"): return
    a("s_waitcnt vmcnt(0) lgkmcnt(0)")
    a(f"s_add_u32 s76, s14, {WS_STAMP}"); a("s_addc_u32 s77, s15, 0"); a("s_mov_b32 s78, 0x1000000"); a("s_mov_b32 s79, 0x00020000")
    a("s_lshl_b32 s75, s2, 3"); a("s_add_u32 s75, s75, s50"); a("s_lshl_b32 s75, s75, 6"); a("v_mov_b32 v1, s75")
    for i in range(1, n):
        a(f"s_sub_u32 s74, s{80+2*i}, s80"); a("v_mov_b32 v2, s74")
        a(f"buffer_store_dword v2, v1, s[76:79], 0 offen offset:{4*i}")
    a("s_memrealtime s[80:81]"); a("s_waitcnt lgkmcnt(0)"); a("v_mov_b32 v2, s80")
    a("buffer_store_dword v2, v1, s[76:79], 0 offen offset:60")
    a("v_mov_b32 v2, s98"); a("buffer_store_dword v2, v1, s[76:79], 0 offen offset:56")

def phi_pair(a, t, tmp):
    a(f"v_pk_mul_f32 {vr(tmp,2)}, {vr(t,2)}, s[56:57]")
    a(f"v_exp_f32_e64 v{tmp}, v{tmp} clamp")
    a(f"v_exp_f32_e64 v{tmp+1}, v{tmp+1} clamp")
    a(f"v_max_f32 v{t}, 0, v{t}")
    a(f"v_max_f32 v{t+1}, 0, v{t+1}")
    a(f"v_pk_add_f32 {vr(t,2)}, {vr(t,2)}, {vr(tmp,2)}")
    a(f"v_pk_add_f32 {vr(t,2)}, {vr(t,2)}, s[58:59]")

_lab = [0]
POLL = [" sc1"]
FLST = [" sc1"]
def lab(p):
    _lab[0] += 1
    return f"L{p}{_lab[0]}"

def lds_spin(a, vaddr, off, vtmp, cond, val):
    assert off < 65536
    l0, l1 = lab("sp"), lab("sx")
    a("s_mov_b32 s61, 0")
    a.label(l0)
    a(f"ds_read_b32 v{vtmp}, v{vaddr} offset:{off}"); a("s_waitcnt lgkmcnt(0)")
    a(f"v_readfirstlane_b32 s60, v{vtmp}"); a("s_add_u32 s61, s61, 1"); a(f"s_cmp_{cond}_u32 s60, {val}"); a(f"s_cbranch_scc1 {l1}")
    a(f"s_cmp_lt_u32 s61, {SPIN_MAX*8}"); a(f"s_cbranch_scc1 {l0}")
    a.label(l1)

def lds_count_last(a, vaddr, off, vone, vtmp, last, action):
    l = lab("cl")
    a("s_mov_b64 exec, 1")
    a(f"ds_add_rtn_u32 v{vtmp}, v{vaddr}, v{vone} offset:{off}"); a("s_waitcnt lgkmcnt(0)")
    a(f"v_readfirstlane_b32 s60, v{vtmp}"); a(f"s_cmp_eq_u32 s60, {last}"); a(f"s_cbranch_scc0 {l}")
    action()
    a.label(l)
    a("s_mov_b64 exec, -1")

def poll16(a, vaddr, vtmp, extra=None):
    l0, l1 = lab("pl"), lab("px")
    a("s_mov_b32 s61, 0")
    a.label(l0)
    a(f"buffer_load_dword v{vtmp}, v{vaddr}, s[36:39], 0 offen{POLL[0]}")
    if extra: a(f"ds_read_b32 v{vtmp+1}, v{extra[0]} offset:{extra[1]}")
    a("s_waitcnt vmcnt(0) lgkmcnt(0)")
    a(f"v_cmp_ne_u32 vcc, 1, v{vtmp}")
    if extra: a(f"v_readfirstlane_b32 s62, v{vtmp+1}")
    a("s_add_u32 s61, s61, 1"); a("s_nop 2")
    a("s_cmp_eq_u64 vcc, 0")
    if extra:
        a("s_cselect_b32 s60, 1, 0"); a(f"s_cmp_ge_u32 s62, {extra[2]}"); a("s_cselect_b32 s62, 1, 0"); a("s_and_b32 s60, s60, s62")
    a(f"s_cbranch_scc1 {l1}")
    a(f"s_cmp_lt_u32 s61, {SPIN_MAX}"); a(f"s_cbranch_scc1 {l0}")
    a.label(l1)

def poll_zeroed(a, vtmp):
    l0, l1 = lab("zl"), lab("zx")
    a("s_mov_b32 s61, 0"); a(f"v_mov_b32 v{vtmp+1}, 0")
    a.label(l0)
    a(f"buffer_load_dword v{vtmp}, v{vtmp+1}, s[40:43], 0 offen sc1"); a("s_waitcnt vmcnt(0)")
    a(f"v_readfirstlane_b32 s60, v{vtmp}"); a("s_add_u32 s61, s61, 1"); a("s_cmp_ge_u32 s60, 256"); a(f"s_cbranch_scc1 {l1}")
    a(f"s_cmp_lt_u32 s61, {SPIN_MAX}"); a(f"s_cbranch_scc1 {l0}")
    a.label(l1)

def kernel(a, opt):
    name = NAME
    kernel_begin(a, name)
    a("s_cmp_ge_u32 s2, 256")
    a("s_cbranch_scc1 Ldone")
    stamp(a, opt, 0)
    if opt.get("pad0"):
        a("s_memtime s[20:21]"); a("s_waitcnt lgkmcnt(0)"); a(f"s_add_u32 s22, s20, {opt['pad0']}")
        a.label("Lpad0"); a("s_memtime s[20:21]"); a("s_waitcnt lgkmcnt(0)"); a("s_cmp_lt_u32 s20, s22"); a("s_cbranch_scc1 Lpad0")
    a("s_load_dwordx4 s[4:7], s[0:1], 0")
    a("s_load_dwordx4 s[12:15], s[0:1], 88")
    a("v_lshrrev_b32 v1, 6, v0")
    a("v_and_b32 v0, 63, v0")
    a("v_readfirstlane_b32 s50, v1")
    a("s_and_b32 s51, s2, 7")
    a("s_lshr_b32 s52, s2, 3")
    a("s_lshl_b32 s53, s51, 3"); a("s_and_b32 s53, s53, 8"); a("s_and_b32 s54, s52, 7"); a("s_or_b32 s48, s53, s54")
    a("s_lshl_b32 s53, s51, 1"); a("s_and_b32 s53, s53, 12"); a("s_lshr_b32 s54, s52, 3"); a("s_or_b32 s49, s53, s54")
    if opt.get("jx"): a(f"s_xor_b32 s49, s49, {opt['jx']}")
    if opt.get("jperm", 1):
        a("s_lshr_b32 s53, s49, 2"); a("s_add_u32 s53, s53, 1"); a("s_and_b32 s53, s53, 2"); a("s_mul_i32 s53, s53, 6"); a("s_xor_b32 s49, s49, s53")
    a("s_and_b32 s53, s51, 3"); a("s_lshl_b32 s53, s53, 2"); a("s_and_b32 s54, s52, 3"); a("s_or_b32 s96, s53, s54")
    a("s_lshr_b32 s53, s51, 2"); a("s_lshl_b32 s53, s53, 3"); a("s_lshr_b32 s54, s52, 2"); a("s_or_b32 s97, s53, s54")
    a("s_cmp_ge_u32 s50, 4")
    a("s_cbranch_scc1 Laux")
    c_waves(a, opt)
    if opt.get("align"): a(f".p2align {opt['align']}")
    a.label("Laux")
    a_waves(a, opt)
    a.label("Ldone")
    a("s_endpgm")
    a.label("Lend")

def c_waves(a, opt):
    def acc(ai, c, u): return 64 + ((c * 2 + u) * 4 + ai) * 4
    def xf(buf, ai): return 160 + buf * 40 + ai * 4
    def wf(buf, c, u): return 160 + buf * 40 + 16 + (c * 2 + u) * 4
    XA = 8; WA = 12
    a("s_load_dwordx4 s[8:11], s[0:1], 56") if False else None
    a("s_setprio 2")
    a("s_and_b32 s53, s50, 1")
    a("s_lshr_b32 s54, s50, 1")
    a("v_and_b32 v2, 15, v0")
    a("v_lshrrev_b32 v3, 4, v0")
    a("v_lshrrev_b32 v4, 1, v2"); a("v_xor_b32 v4, v4, v3")
    a("s_lshl_b32 s55, s53, 13")
    a("v_lshlrev_b32 v5, 7, v2"); a("v_add_u32 v5, s55, v5")
    a(f"v_lshl_add_u32 v{XA}, v4, 4, v5")
    a("v_xor_b32 v6, 4, v4"); a(f"v_lshl_add_u32 v{XA+1}, v6, 4, v5")
    for kk in range(2): a(f"v_add_u32 v{XA+2+kk}, {2*ST1}, v{XA+kk}")
    a("v_bfe_u32 v6, v0, 2, 2")
    a("v_lshl_add_u32 v7, v3, 3, v6"); a("v_lshlrev_b32 v7, 7, v7")
    a("v_and_b32 v18, 3, v0"); a("v_lshl_add_u32 v7, v18, 3, v7")
    a("v_add_u32 v7, 16384, v7")
    a("v_bfe_u32 v18, v0, 3, 1"); a("v_bfe_u32 v19, v0, 4, 1"); a("v_lshl_or_b32 v18, v19, 1, v18")
    a("s_lshl_b32 s55, s54, 1")
    a("v_xor_b32 v18, s55, v18")
    a(f"v_lshl_add_u32 v{WA}, v18, 5, v7")
    a("v_xor_b32 v18, 1, v18"); a(f"v_lshl_add_u32 v{WA+1}, v18, 5, v7")
    for u in range(2): a(f"v_add_u32 v{WA+2+u}, {2*ST1}, v{WA+u}")
    for r in range(64, 160): a(f"v_mov_b32 v{r}, 0")
    a(f"s_mov_b32 s56, {LOG2E:#x}"); a(f"s_mov_b32 s57, {LOG2E:#x}")
    a(f"s_mov_b32 s58, {EPS:#x}"); a(f"s_mov_b32 s59, {EPS:#x}")
    a("s_waitcnt lgkmcnt(0)")
    make_srd(a, 36, 14, WS_USED); make_srd(a, 40, 12, 256)
    a("s_load_dwordx4 s[8:11], s[0:1], 64") ;
    a("s_load_dwordx2 s[16:17], s[0:1], 80")
    if opt.get("codepf", 0):
        a("s_cmp_lt_u32 s52, 2"); a("s_cbranch_scc0 Lnocp")
        a("s_getpc_b64 s[74:75]")
        a.label("Lpc")
        a(f"s_sub_u32 s74, s74, Lpc-{NAME}"); a("s_subb_u32 s75, s75, 0")
        a("s_lshl_b32 s55, s52, 2"); a("s_add_u32 s55, s55, s50"); a("s_lshl_b32 s55, s55, 6")
        a("v_add_u32 v18, s55, v0"); a(f"v_min_u32 v18, (Lend-{NAME}-4)/128, v18"); a("v_lshlrev_b32 v18, 7, v18")
        a("global_load_dword v21, v18, s[74:75]")
        a.label("Lnocp")
    KVT = opt.get("kvtouch")
    if KVT:
        a("s_load_dwordx4 s[24:27], s[0:1], 32")
        a("s_waitcnt lgkmcnt(0)")
        a("s_cmp_eq_u32 s54, 0"); a("s_cselect_b32 s28, s24, s26"); a("s_cselect_b32 s29, s25, s27"); a("s_cselect_b32 s55, 6144, 0")
        a(f"s_mov_b32 s30, {NB['bk']}"); a("s_mov_b32 s31, 0x00020000")
        a("s_and_b32 s61, s2, 15"); a("s_lshl_b32 s61, s61, 7"); a("s_lshl_b32 s63, s53, 6"); a("s_add_u32 s61, s61, s63")
        a("v_add_u32 v240, s61, v0"); a("v_lshlrev_b32 v240, 11, v240")
        a("s_lshr_b32 s61, s2, 4"); a("s_lshl_b32 s61, s61, 7"); a("s_sub_u32 s61, s61, s55")
        a("v_add_u32 v240, s61, v240")
    a("s_cmp_eq_u32 s50, 0"); a("s_cbranch_scc0 Lnz")
    a("s_lshl_b32 s55, s49, 4"); a("s_add_u32 s55, s55, s48"); a("s_lshl_b32 s55, s55, 7"); a(f"s_add_u32 s55, s55, {FL_KV}"); a("v_writelane_b32 v18, s55, 0")
    a("s_lshl_b32 s55, s2, 7"); a(f"s_add_u32 s55, s55, {FL_U}"); a("v_writelane_b32 v18, s55, 1")
    a("s_lshl_b32 s55, s48, 4"); a("s_add_u32 s55, s55, s49"); a("s_lshl_b32 s55, s55, 7"); a(f"s_add_u32 s55, s55, {FL_O}"); a("v_writelane_b32 v18, s55, 2")
    a("s_lshl_b32 s55, s51, 5"); a("s_add_u32 s55, s55, s52"); a("s_lshl_b32 s55, s55, 7"); a(f"s_add_u32 s55, s55, {FL_Y}"); a("v_writelane_b32 v18, s55, 3")
    a("v_mov_b32 v19, 0"); a("v_mov_b32 v20, 1")
    a("s_mov_b64 exec, 15")
    a("buffer_store_dword v19, v18, s[36:39], 0 offen sc1")
    if opt.get("atom_early"):
        a("s_waitcnt vmcnt(0)")
        a("s_mov_b64 exec, 1")
        a("buffer_atomic_add v20, v19, s[40:43], 0 offen sc1")
    a("s_mov_b64 exec, -1")
    a.label("Lnz")

    def reads(slot, kk, buf):
        hi = 2 if slot >= 2 else 0
        so = (slot & 1) * ST1
        X = [f"ds_read_b128 {vr(xf(buf,ai),4)}, v{XA+hi+kk} offset:{so + ai*2048}" for ai in range(4)]
        W = {}
        for c in range(3):
            for u in range(2):
                W[c, u] = [f"ds_read_b64_tr_b16 {vr(wf(buf,c,u)+2*sec,2)}, v{WA+hi+u} offset:{so + c*8192 + kk*4096 + sec*512}" for sec in range(2)]
        return [X[0]] + W[0, 0] + [X[1], X[2], X[3]] + W[0, 1] + W[1, 0] + W[1, 1] + W[2, 0] + W[2, 1]
    def mfmas(buf):
        L = []
        for c in range(3):
            for u in range(2):
                for ai in range(4):
                    d = vr(acc(ai, c, u), 4)
                    if c == 0: L.append(f"v_mfma_f32_16x16x32_bf16 {d}, {vr(wf(buf,c,u),4)}, {vr(xf(buf,ai),4)}, {d}")
                    else:      L.append(f"v_mfma_f32_16x16x32_bf16 {d}, {vr(xf(buf,ai),4)}, {vr(wf(buf,c,u),4)}, {d}")
        return L
    def step(buf, nxt, barrier=False):
        M = mfmas(buf); q = list(nxt)
        first = 4 if barrier else 0
        for i in range(24):
            a(M[i])
            if barrier and i == first - 1: a("s_barrier")
            if i >= first - (1 if barrier else 0) and q: a(q.pop(0))
        for s_ in q: a(s_)
    a("s_barrier")
    cst = opt.get("cst")
    def st_(i, j=None, g=None):
        k = g if opt.get("gstc") else (j if cst else i)
        if k is not None: stamp(a, opt, k)
    st_(1)
    for s in reads(0, 0, 0): a(s)
    a("s_mov_b32 s60, 0")
    if opt.get("align"): a(f".p2align {opt['align']}")
    a.label("Lcloop")
    for slot in range(4):
        for kk in range(2):
            a("s_waitcnt lgkmcnt(0)")
            if kk == 0:
                if KVT and slot == KVT[1]:
                    a(f"s_cmp_eq_u32 s60, {KVT[0]}"); a("s_cbranch_scc0 Lnkvt")
                    a("buffer_load_dword v241, v240, s[28:31], 0 offen"); a.label("Lnkvt")
                if slot == 0 and not opt.get("atom_early") and not opt.get("atom_none"):
                    a("s_cmp_eq_u32 s60, 2"); a("s_cselect_b32 s61, s50, 1"); a("s_cmp_eq_u32 s61, 0"); a("s_cbranch_scc0 Lnat")
                    a("s_waitcnt vmcnt(0)"); a("s_mov_b64 exec, 1")
                    a("buffer_atomic_add v20, v19, s[40:43], 0 offen sc1")
                    a("s_mov_b64 exec, -1"); a("s_nop 4")
                    a.label("Lnat")
                step(0, reads(slot, 1, 1))
            else:
                if slot == 3:
                    a("s_cmp_eq_u32 s60, 3"); a("s_cbranch_scc1 Lclast")
                step(1, reads((slot + 1) & 3, 0, 0), barrier=True)
    a("s_add_u32 s60, s60, 1")
    a("s_branch Lcloop")
    a.label("Lclast")
    step(1, [])
    st_(2, 1)

    TMP = 20
    KF = 160; VF = 176; ONES = 192; QF = 200
    def kf(u, ks): return KF + (u*2 + ks)*4
    def vf(u, ks): return VF + (u*2 + ks)*4
    a("s_nop 7")
    for u in range(2):
        for ai in range(4):
            t = acc(ai, 1, u); o = kf(u, ai >> 1) + (ai & 1)*2
            phi_pair(a, t, TMP); phi_pair(a, t + 2, TMP + 2)
            a(f"v_cvt_pk_bf16_f32 v{o}, v{t}, v{t+1}"); a(f"v_cvt_pk_bf16_f32 v{o+1}, v{t+2}, v{t+3}")
    for u in range(2):
        for ai in range(4):
            t = acc(ai, 2, u); o = vf(u, ai >> 1) + (ai & 1)*2
            a(f"v_cvt_pk_bf16_f32 v{o}, v{t}, v{t+1}"); a(f"v_cvt_pk_bf16_f32 v{o+1}, v{t+2}, v{t+3}")
    for r in range(4): a(f"v_mov_b32 v{ONES+r}, 0x3f803f80")
    KVA = 96; ZA = 112
    a("s_nop 1")
    for ks in range(2):
        for ud in range(2):
            for ue in range(2):
                d = vr(KVA + (ud*2+ue)*4, 4)
                a(f"v_mfma_f32_16x16x32_bf16 {d}, {vr(kf(ud,ks),4)}, {vr(vf(ue,ks),4)}, {'0' if ks == 0 else d}")
            d = vr(ZA + ud*4, 4)
            a(f"v_mfma_f32_16x16x32_bf16 {d}, {vr(kf(ud,ks),4)}, {vr(ONES,4)}, {'0' if ks == 0 else d}")
    st_(None, 2)
    def q_frags():
        for ai in range(4):
            for u in range(2):
                t = acc(ai, 0, u); o = QF + ai*4 + u*2
                phi_pair(a, t, 24); phi_pair(a, t + 2, 26)
                a(f"v_cvt_pk_bf16_f32 v{o}, v{t}, v{t+1}"); a(f"v_cvt_pk_bf16_f32 v{o+1}, v{t+2}, v{t+3}")
    a("v_mov_b32 v30, 0"); a("v_mov_b32 v31, 1")
    a(f"s_mul_i32 s55, s50, 3072"); a(f"s_add_u32 s55, s55, {F_SCR}"); a("s_xor_b32 s61, s50, 1"); a("s_mul_i32 s61, s61, 3072"); a(f"s_add_u32 s61, s61, {F_SCR}")
    a("v_lshlrev_b32 v6, 4, v0"); a("v_add_u32 v8, s55, v6"); a("v_add_u32 v9, s61, v6")
    a("s_lshl_b32 s55, s50, 2"); a("v_mov_b32 v13, s55"); a("s_xor_b32 s55, s55, 4"); a("v_mov_b32 v14, s55")
    a("s_lshl_b32 s55, s49, 1"); a("s_add_u32 s55, s55, s54"); a("s_lshl_b32 s55, s55, 4"); a("s_add_u32 s55, s55, s48")
    a("s_lshl_b32 s63, s55, 11"); a("s_lshl_b32 s61, s53, 10"); a("s_add_u32 s63, s63, s61"); a(f"s_add_u32 s63, s63, {WS_KVP}")
    a("s_lshl_b32 s62, s55, 7"); a("s_lshl_b32 s61, s53, 6"); a("s_add_u32 s62, s62, s61"); a(f"s_add_u32 s62, s62, {WS_ZP}")
    a("v_lshlrev_b32 v7, 4, v3")
    R = 32
    def half(wm):
        give = [KVA + 4*(2*(wm ^ 1)), KVA + 4*(2*(wm ^ 1) + 1), ZA + 4*(wm ^ 1)]
        keep = [KVA + 4*(2*wm), KVA + 4*(2*wm + 1), ZA + 4*wm]
        for q in range(3): a(f"ds_write_b128 v8, {vr(give[q],4)} offset:{q*1024}")
        a("s_waitcnt lgkmcnt(0)")
        a(f"ds_write_b32 v13, v31 offset:{E_RF}")
        lds_spin(a, 14, E_RF, 28, "eq", 1)
        for q in range(3): a(f"ds_read_b128 {vr(R+4*q,4)}, v9 offset:{q*1024}")
        a("s_waitcnt lgkmcnt(0)")
        for q in range(3):
            for r in range(4): a(f"v_add_f32 v{keep[q]+r}, v{keep[q]+r}, v{R+4*q+r}")
        for q in range(2):
            for p in range(2): a(f"v_cvt_pk_bf16_f32 v{R+12+2*q+p}, v{keep[q]+2*p}, v{keep[q]+2*p+1}")
        a(f"buffer_store_dwordx4 {vr(R+12,4)}, v6, s[36:39], s63 offen sc1")
        a("v_cmp_eq_u32 vcc, 0, v2")
        a("s_and_saveexec_b64 s[64:65], vcc")
        a(f"buffer_store_dwordx4 {vr(keep[2],4)}, v7, s[36:39], s62 offen sc1")
        a("s_mov_b64 exec, s[64:65]")
    a("s_nop 3")
    a("s_cmp_eq_u32 s53, 0"); a("s_cbranch_scc1 Lred0")
    half(1)
    a("s_branch Lredj")
    a.label("Lred0")
    half(0)
    a.label("Lredj")
    st_(None, 3)
    a("s_lshl_b32 s55, s49, 4"); a("s_add_u32 s55, s55, s48"); a("s_lshl_b32 s55, s55, 7"); a(f"s_add_u32 s55, s55, {FL_KV}"); a("v_mov_b32 v28, s55")
    a("s_waitcnt vmcnt(0)")
    lds_count_last(a, 30, E_KVC, 31, 29, 3, lambda: a("buffer_store_dword v31, v28, s[36:39], 0 offen sc1"))
    st_(None, 4)
    a.label("Lred1")
    a("s_lshl_b32 s55, s48, 7"); a("s_lshl_b32 s61, s53, 6"); a("s_add_u32 s55, s55, s61")
    a("v_add_u32 v5, s55, v2"); a("v_lshlrev_b32 v5, 11, v5")
    a("s_lshl_b32 s55, s49, 7"); a("s_lshl_b32 s61, s54, 6"); a("s_add_u32 s55, s55, s61")
    a("v_and_b32 v6, 1, v3"); a("v_lshlrev_b32 v6, 5, v6"); a("v_lshrrev_b32 v7, 1, v3"); a("v_lshl_add_u32 v6, v7, 4, v6")
    a("v_add3_u32 v5, v5, v6, s55")
    a(f"s_mul_i32 s55, s50, 4608"); a(f"s_add_u32 s55, s55, {F_SCR}"); a("s_xor_b32 s61, s50, 1"); a("s_mul_i32 s61, s61, 4608"); a(f"s_add_u32 s61, s61, {F_SCR}")
    a("v_lshlrev_b32 v6, 4, v0"); a("v_add_u32 v8, s55, v6"); a("v_add_u32 v9, s61, v6")
    a("v_and_b32 v7, 7, v0"); a("v_lshlrev_b32 v7, 4, v7"); a("s_add_u32 s55, s55, 4096"); a("v_add_u32 v10, s55, v7")
    a("v_lshlrev_b32 v7, 4, v3"); a("v_add_u32 v11, s55, v7"); a("s_add_u32 s61, s61, 4096"); a("v_add_u32 v12, s61, v7")
    a("s_lshl_b32 s55, s50, 2"); a("v_mov_b32 v13, s55"); a("s_xor_b32 s55, s55, 4"); a("v_mov_b32 v14, s55")
    a("s_lshl_b32 s55, s49, 1"); a("s_add_u32 s55, s55, s54"); a("s_lshl_b32 s55, s55, 4"); a("s_lshl_b32 s61, s53, 3"); a("s_add_u32 s55, s55, s61")
    a("s_lshl_b32 s68, s55, 11"); a(f"s_add_u32 s68, s68, {WS_KVP}")
    a("s_lshl_b32 s69, s55, 7"); a(f"s_add_u32 s69, s69, {WS_ZP}")
    a("s_lshl_b32 s53, s51, 7"); a("s_lshl_b32 s54, s52, 2"); a("s_add_u32 s53, s53, s54"); a("s_add_u32 s53, s53, s50")
    a(f"s_mul_i32 s54, s50, {CWB}")
    a("v_and_b32 v6, 3, v0"); a(f"v_mul_u32_u24 v6, {CTS}, v6")
    a("v_bfe_u32 v7, v0, 2, 2"); a("v_lshlrev_b32 v7, 3, v7"); a("v_sub_u32 v6, v6, v7")
    a("v_lshl_add_u32 v6, v3, 4, v6")
    a(f"s_add_u32 s55, s54, {8 + 24 + 448}"); a("v_add_u32 v16, s55, v6")
    a("v_lshlrev_b32 v6, 5, v2"); a("v_lshl_add_u32 v6, v3, 4, v6")
    a(f"s_add_u32 s55, s54, {CF + 448}"); a("v_add_u32 v17, s55, v6")
    a("s_lshl_b32 s55, s53, 1"); a("s_and_b32 s55, s55, 0xfffffffc")
    a("s_add_u32 s8, s8, s55"); a("s_addc_u32 s9, s9, 0")
    a("s_load_dword s70, s[8:9], 0")
    make_srd(a, 24, 4, NB["x"]); make_srd(a, 28, 16, NB["out"])
    GXA = 224; GWA = 228; XR = 232; GR = 32
    a("s_lshr_b32 s66, s50, 1"); a("s_and_b32 s67, s50, 1")
    a("s_lshl_b32 s55, s96, 7"); a("s_lshl_b32 s61, s66, 6"); a("s_add_u32 s55, s55, s61")
    a("v_add_u32 v20, s55, v2"); a("v_lshlrev_b32 v21, 11, v20")
    a("s_lshl_b32 s55, s97, 7"); a("s_lshl_b32 s61, s67, 6"); a("s_add_u32 s64, s55, s61")
    a("v_lshl_add_u32 v22, v3, 3, s64"); a("v_add_u32 v22, v21, v22"); a("v_lshlrev_b32 v23, 2, v20")
    a("v_lshrrev_b32 v24, 1, v2"); a("v_xor_b32 v24, v24, v3")
    a("s_lshl_b32 s55, s66, 13")
    a("v_lshlrev_b32 v25, 7, v2"); a("v_add_u32 v25, s55, v25")
    a(f"v_lshl_add_u32 v{GXA+2}, v24, 4, v25")
    a("v_xor_b32 v26, 4, v24"); a(f"v_lshl_add_u32 v{GXA+3}, v26, 4, v25")
    for kk in range(2): a(f"v_add_u32 v{GXA+kk}, {F_U}, v{GXA+2+kk}")
    a("v_bfe_u32 v26, v0, 2, 2")
    a("v_lshl_add_u32 v27, v3, 3, v26"); a("v_lshlrev_b32 v27, 7, v27")
    a("v_and_b32 v28, 3, v0"); a("v_lshl_add_u32 v27, v28, 3, v27"); a("v_add_u32 v27, 16384, v27")
    a("v_bfe_u32 v28, v0, 3, 1"); a("v_bfe_u32 v29, v0, 4, 1"); a("v_lshl_or_b32 v28, v29, 1, v28")
    a("s_lshl_b32 s55, s67, 1"); a("v_xor_b32 v28, s55, v28")
    a(f"v_lshl_add_u32 v{GWA+2}, v28, 5, v27")
    a("v_xor_b32 v28, 1, v28"); a(f"v_lshl_add_u32 v{GWA+3}, v28, 5, v27")
    for u in range(2): a(f"v_add_u32 v{GWA+u}, {F_U}, v{GWA+2+u}")
    SEL = 240
    a("v_lshrrev_b32 v6, 2, v2"); a("v_cmp_eq_u32 vcc, v6, v3")
    a("v_and_b32 v6, 1, v2"); a("v_lshlrev_b32 v6, 4, v6"); a("v_mov_b32 v7, 0x3f80"); a("v_lshlrev_b32 v6, v6, v7")
    a("v_cndmask_b32 v6, 0, v6, vcc")
    a("v_bfe_u32 v7, v2, 1, 1"); a("v_cmp_eq_u32 vcc, 0, v7")
    for r in range(8): a(f"v_mov_b32 v{SEL+r}, 0")
    a(f"v_cndmask_b32 v{SEL}, 0, v6, vcc"); a(f"v_cndmask_b32 v{SEL+1}, v6, 0, vcc" if False else f"v_cndmask_b32_e64 v{SEL+1}, v6, 0, vcc")
    a(f"v_mov_b32 v{SEL+6}, v{SEL}"); a(f"v_mov_b32 v{SEL+7}, v{SEL+1}")
    a("v_mov_b32 v7, v3")
    q_frags()
    st_(None, 5)
    a("s_cmp_eq_u32 s50, 1"); a("s_cbranch_scc0 Lkvw")
    poll_zeroed(a, 28)
    a("s_lshl_b32 s55, s49, 11"); a(f"s_add_u32 s55, s55, {FL_KV}")
    a("v_lshl_add_u32 v27, v2, 7, s55")
    poll16(a, 27, 28, extra=(30, E_KVC, 4))
    a(f"ds_write_b32 v30, v31 offset:{E_KVR}")
    a("s_branch Lkvg")
    a.label("Lkvw")
    lds_spin(a, 30, E_KVR, 28, "eq", 1)
    a.label("Lkvg")
    st_(3, 6)
    PK = 128; PR = 64; ZR = 120
    a("v_lshlrev_b32 v6, 4, v0")
    a(f"buffer_load_dwordx4 {vr(ZR,4)}, v6, s[36:39], s69 offen sc1")
    for p in range(8):
        for q in range(2):
            a(f"buffer_load_dwordx4 {vr(PK+8*p+4*q,4)}, v6, s[36:39], s68 offen offset:{q*1024} sc1")
        a("s_add_u32 s68, s68, 2048")
    a("s_waitcnt vmcnt(16)")
    for r in range(4): a(f"v_add_f32_dpp v{ZR+r}, v{ZR+r}, v{ZR+r} row_ror:8 row_mask:0xf bank_mask:0xf")
    for r in range(4): a(f"v_mov_b32 v{ZR+4+r}, v{ZR+r}")
    a("s_nop 1")
    for r in range(4): a(f"v_permlane16_swap_b32 v{ZR+r}, v{ZR+4+r}")
    a("s_nop 1")
    for r in range(4): a(f"v_add_f32 v{ZR+r}, v{ZR+r}, v{ZR+4+r}")
    for r in range(4): a(f"v_mov_b32 v{ZR+4+r}, v{ZR+r}")
    a("s_nop 1")
    for r in range(4): a(f"v_permlane32_swap_b32 v{ZR+r}, v{ZR+4+r}")
    a("s_nop 1")
    for r in range(4): a(f"v_add_f32 v{ZR+r}, v{ZR+r}, v{ZR+4+r}")
    a(f"ds_write_b128 v10, {vr(ZR,4)}")
    for p in range(8):
        a(f"s_waitcnt vmcnt({14-2*p})")
        for q in range(2):
            for h_ in range(2):
                d = vr(PR + 4*(2*q + h_), 4)
                a(f"v_mfma_f32_16x16x32_bf16 {d}, {vr(SEL+4*h_,4)}, {vr(PK+8*p+4*q,4)}, {'0' if p == 0 else d}")
    a("s_nop 7")
    for q in range(4):
        a(f"ds_write_b128 v8, {vr(PR+4*q,4)} offset:{q*1024}")
    a("s_waitcnt lgkmcnt(0)")
    a(f"ds_write_b32 v13, v31 offset:{E_XF}")
    lds_spin(a, 14, E_XF, 28, "eq", 1)
    SB = 80
    for q in range(4):
        a(f"ds_read_b128 {vr(SB+4*q,4)}, v9 offset:{q*1024}")
    for ud in range(2):
        a(f"ds_read_b128 {vr(96+4*ud,4)}, v11 offset:{ud*64}"); a(f"ds_read_b128 {vr(104+4*ud,4)}, v12 offset:{ud*64}")
    a("s_waitcnt lgkmcnt(0)")
    for r in range(16): a(f"v_add_f32 v{PR+r}, v{PR+r}, v{SB+r}")
    for r in range(8): a(f"v_add_f32 v{96+r}, v{96+r}, v{104+r}")
    KA = 112; ZF = 120
    for ue in range(2):
        for ud in range(2):
            t = PR + (ud*2+ue)*4
            a(f"v_cvt_pk_bf16_f32 v{KA+4*ue+2*ud}, v{t}, v{t+1}"); a(f"v_cvt_pk_bf16_f32 v{KA+4*ue+2*ud+1}, v{t+2}, v{t+3}")
    for ud in range(2):
        t = 96 + 4*ud
        a(f"v_cvt_pk_bf16_f32 v{ZF+2*ud}, v{t}, v{t+1}"); a(f"v_cvt_pk_bf16_f32 v{ZF+2*ud+1}, v{t+2}, v{t+3}")
    a("s_nop 1")
    O = 128
    for ai in range(4):
        for ue in range(2):
            a(f"v_mfma_f32_16x16x32_bf16 {vr(O+(ai*3+ue)*4,4)}, {vr(KA+4*ue,4)}, {vr(QF+4*ai,4)}, 0")
        a(f"v_mfma_f32_16x16x32_bf16 {vr(O+(ai*3+2)*4,4)}, {vr(ZF,4)}, {vr(QF+4*ai,4)}, 0")
    a("s_nop 7")
    OP = 64
    for ai in range(4):
        dn = O + (ai*3+2)*4
        a(f"v_add_f32 v{dn}, s58, v{dn}")
        a(f"v_rcp_f32 v{dn}, v{dn}")
        a("s_nop 0")
        for ue in range(2):
            t = O + (ai*3+ue)*4
            for r in range(4): a(f"v_mul_f32 v{t+r}, v{t+r}, v{dn}")
            a(f"v_cvt_pk_bf16_f32 v{OP+4*ai+2*ue}, v{t}, v{t+1}"); a(f"v_cvt_pk_bf16_f32 v{OP+4*ai+2*ue+1}, v{t+2}, v{t+3}")
        o = OP + 4*ai
        a("s_nop 1")
        a(f"v_permlane16_swap_b32 v{o}, v{o+2}"); a(f"v_permlane16_swap_b32 v{o+1}, v{o+3}")
        a(f"s_mov_b32 s60, {WS_O + 16*ai*2048}")
        a(f"buffer_store_dwordx4 {vr(o,4)}, v5, s[36:39], s60 offen sc1")
    st_(4, 7)
    a("s_lshl_b32 s55, s53, 12")
    a("s_mov_b32 s58, s70")
    def publish_o():
        a("s_lshl_b32 s57, s48, 4"); a("s_add_u32 s57, s57, s49"); a("s_lshl_b32 s57, s57, 7"); a(f"s_add_u32 s57, s57, {FL_O}"); a("v_mov_b32 v28, s57")
        lds_spin(a, 30, E_ADC, 29, "ge", 4)
        a("s_waitcnt vmcnt(0)")
        lds_count_last(a, 30, E_OC, 31, 29, 3, lambda: a("buffer_store_dword v31, v28, s[36:39], 0 offen sc1"))
        a("s_nop 4")
    a("s_mov_b32 s71, 0")
    a(f"ds_read_b32 v29, v30 offset:{E_CRC}"); a("s_waitcnt lgkmcnt(0)")
    a("v_readfirstlane_b32 s60, v29"); a("s_cmp_ge_u32 s60, 4"); a("s_cbranch_scc1 Lconv")
    publish_o()
    a("s_mov_b32 s71, 1")
    lds_spin(a, 30, E_CRC, 29, "ge", 4)
    a.label("Lconv")
    st_(5)
    FR = 96; ACC = 32
    def tf(b, k1): return FR + b*64 + k1*4
    def ff(b, n1): return FR + b*64 + 32 + n1*4
    def rd(b):
        L = []
        for i in range(8):
            L.append(f"ds_read_b64 {vr(tf(b,i),2)}, v16 offset:{512*(7-i)}")
            L.append(f"ds_read_b64 {vr(tf(b,i)+2,2)}, v16 offset:{512*(7-i)+8}")
            L.append(f"ds_read_b128 {vr(ff(b,i),4)}, v17 offset:{512*i}")
        return L
    def mm(b, first):
        L = []; seen = set()
        for k1 in range(8):
            for n1 in range(8 - k1):
                t = k1 + n1
                d = vr(ACC + 4*t, 4)
                c = "0" if (first and t not in seen) else d
                seen.add(t)
                L.append(f"v_mfma_f32_16x16x32_bf16 {d}, {vr(tf(b,k1),4)}, {vr(ff(b,n1),4)}, {c}")
        return L
    for s_ in rd(0): a(s_)
    a("v_subrev_u32 v16, 64, v16"); a("v_subrev_u32 v17, 64, v17")
    a("s_lshr_b32 s57, s58, 16"); a("s_and_b32 s60, s58, 0xffff"); a("s_and_b32 s61, s53, 1"); a("s_cmp_eq_u32 s61, 0"); a("s_cselect_b32 s57, s60, s57")
    a("v_lshrrev_b32 v5, 3, v2"); a("v_add_u32 v5, 2, v5"); a("v_cmp_eq_u32 vcc, v5, v7")
    a("v_and_b32 v5, 1, v2"); a("v_lshlrev_b32 v5, 4, v5"); a("v_mov_b32 v6, s57"); a("v_lshlrev_b32 v6, v5, v6")
    a("v_cndmask_b32 v6, 0, v6, vcc")
    a("v_bfe_u32 v5, v2, 1, 2")
    for w_ in range(4):
        a(f"v_cmp_eq_u32 vcc, {w_}, v5"); a("s_nop 1"); a(f"v_cndmask_b32 v{24+w_}, 0, v6, vcc")
    DF = 24
    def resid(b, first, last):
        Ms = mm(b, first)
        if first: Ms += [f"v_mfma_f32_16x16x32_bf16 {vr(ACC+4*t,4)}, {vr(DF,4)}, {vr(ff(b,t),4)}, {vr(ACC+4*t,4)}" for t in range(8)]
        R_ = [] if last else rd(b ^ 1)
        a("s_waitcnt lgkmcnt(0)")
        for m_ in Ms:
            a(m_)
            if R_: a(R_.pop(0))
        if not last:
            a("v_subrev_u32 v16, 64, v16"); a("v_subrev_u32 v17, 64, v17")
    resid(0, True, False); resid(1, False, False)
    a("s_cmp_eq_u32 s71, 0"); a("s_cbranch_scc0 Lpubd")
    publish_o()
    a.label("Lpubd")
    for ai in range(4):
        a(f"s_mov_b32 s61, {16*ai*2048}")
        for u in range(2):
            a(f"buffer_load_dwordx2 {vr(XR+(ai*2+u)*2,2)}, v22, s[24:27], s61 offen offset:{32*u}")
    a("s_mov_b32 s60, 0")
    if opt.get("align"): a(f".p2align {opt['align']}")
    a.label("Lcl")
    resid(0, False, False); resid(1, False, False)
    a("s_add_u32 s60, s60, 1"); a("s_cmp_lt_u32 s60, 2"); a("s_cbranch_scc1 Lcl")
    resid(0, False, False); resid(1, False, True)
    a("v_lshlrev_b32 v5, 5, v2"); a("v_lshl_add_u32 v5, v7, 3, v5")
    a(f"s_add_u32 s56, s55, {WS_YT}")
    a("s_nop 7")
    for t in range(8):
        y = ACC + 4*t
        a(f"v_cvt_pk_bf16_f32 v{y}, v{y}, v{y+1}"); a(f"v_cvt_pk_bf16_f32 v{y+1}, v{y+2}, v{y+3}")
        a(f"buffer_store_dwordx2 {vr(y,2)}, v5, s[36:39], s56 offen offset:{512*t} sc1")

    NS = 6
    def gacc(ai, u): return 64 + (u*4 + ai)*4
    def gxf(buf, kk, ai): return 96 + buf*48 + (kk*4 + ai)*4
    def gwf(buf, kk, u): return 96 + buf*48 + 32 + (kk*2 + u)*4
    def greads(st, buf):
        slot = st % NS
        hi = 0 if slot < 3 else 2
        so = (slot % 3) * ST3
        L = []
        for kk in range(2):
            X = [f"ds_read_b128 {vr(gxf(buf,kk,ai),4)}, v{GXA+hi+kk} offset:{so + ai*2048}" for ai in range(4)]
            W = [[f"ds_read_b64_tr_b16 {vr(gwf(buf,kk,u)+2*sec,2)}, v{GWA+hi+u} offset:{so + kk*4096 + sec*512}" for sec in range(2)] for u in range(2)]
            L += W[0] + [X[0], X[1]] + W[1] + [X[2], X[3]]
        return L
    def gmfmas(buf, first=False):
        return [f"v_mfma_f32_16x16x32_bf16 {vr(gacc(ai,u),4)}, {vr(gwf(buf,kk,u),4)}, {vr(gxf(buf,kk,ai),4)}, {'0' if first and kk == 0 else vr(gacc(ai,u),4)}"
                for kk in range(2) for u in range(2) for ai in range(4)]
    XG = 192
    xg = []
    for ai in range(4):
        for u in range(2):
            xr = XR + (ai*2+u)*2; o = XG + (ai*2+u)*4
            xg += [f"v_lshlrev_b32 v{o}, 16, v{xr}", f"v_and_b32 v{o+1}, 0xffff0000, v{xr}",
                   f"v_lshlrev_b32 v{o+2}, 16, v{xr+1}", f"v_and_b32 v{o+3}, 0xffff0000, v{xr+1}"]
    a("s_mov_b64 exec, 1"); a(f"ds_add_u32 v30, v31 offset:{E_CD}"); a("s_mov_b64 exec, -1")
    a(f"v_mov_b32 v30, {F_FL}")
    a("s_barrier")
    st_(6, None, 1)
    for s_ in greads(0, 0): a(s_)
    for st in range(16):
        buf = st & 1
        Ms = gmfmas(buf, st == 0)
        q = greads(st + 1, buf ^ 1) if st < 15 else []
        if st == 15:
            q = [f"ds_read_b64_tr_b16 {vr(96+(ai*2+u)*2,2)}, v6 offset:{u*16*256 + ai*32}" for ai in range(4) for u in range(2)]
        extra = []
        if 5 <= st < 15:
            n = -(-len(xg) // 10)
            extra = xg[(st-5)*n:(st-4)*n]
        a("s_waitcnt lgkmcnt(0)")
        if st in (4, 8, 12, 15): st_(None, None, {4: 2, 8: 3, 12: 4, 15: 5}[st])
        if st == 4:
            a("s_waitcnt vmcnt(0)")
            a("s_lshr_b32 s65, s53, 2"); a("s_lshl_b32 s65, s65, 7"); a(f"s_add_u32 s65, s65, {FL_Y}"); a("v_mov_b32 v28, s65")
            lds_count_last(a, 30, 0, 31, 29, 3, lambda: a("buffer_store_dword v31, v28, s[36:39], 0 offen sc1"))
            a("s_nop 4")
        if st == 13:
            a("v_bfe_u32 v6, v0, 2, 2"); a("v_lshl_add_u32 v6, v7, 2, v6")
            a("s_lshl_b32 s57, s67, 5"); a("v_add_u32 v6, s57, v6"); a("v_lshlrev_b32 v6, 8, v6")
            a("v_and_b32 v5, 3, v0"); a("v_lshl_add_u32 v6, v5, 3, v6")
            a("s_lshl_b32 s57, s66, 7"); a(f"s_add_u32 s57, s57, {F_Y}"); a("v_add_u32 v6, s57, v6")
            a("v_and_b32 v8, 1, v7"); a("v_lshlrev_b32 v8, 5, v8"); a("v_lshrrev_b32 v9, 1, v7"); a("v_lshl_add_u32 v8, v9, 4, v8")
            a("v_add3_u32 v8, v21, v8, s64")
        if st == 15:
            a("s_waitcnt vmcnt(0)")
            for ai in range(4): a(f"v_sub_f32 v{GR+4*ai+2}, 1.0, v{GR+4*ai}")
        if st == 11:
            a(f"s_mov_b32 s61, {WS_G}")
            for ai in range(4):
                a(f"buffer_load_dword v{GR+4*ai}, v23, s[36:39], s61 offen offset:{64*ai} sc1")
        for i in range(16):
            a(Ms[i])
            if i == 1 and st < 15: a("s_barrier")
            if i >= 1:
                for _ in range(2):
                    if q: a(q.pop(0))
            if i >= 9:
                for _ in range(3):
                    if extra: a(extra.pop(0))
        for s_ in q + extra: a(s_)
    a("s_waitcnt lgkmcnt(0)")
    st_(None, None, 6)
    YR = 96; OP = 112; T = 128
    for ai in range(4):
        g_ = GR + 4*ai
        for u in range(2):
            t = gacc(ai, u); yr = YR + (ai*2+u)*2; xo = XG + (ai*2+u)*4; T_ = T + 4*(u & 1)
            a(f"v_lshlrev_b32 v{T_}, 16, v{yr}"); a(f"v_and_b32 v{T_+1}, 0xffff0000, v{yr}")
            a(f"v_lshlrev_b32 v{T_+2}, 16, v{yr+1}"); a(f"v_and_b32 v{T_+3}, 0xffff0000, v{yr+1}")
            for h_ in range(2):
                a(f"v_pk_mul_f32 {vr(T_+2*h_,2)}, {vr(T_+2*h_,2)}, {vr(xo+2*h_,2)}")
                a(f"v_pk_mul_f32 {vr(T_+2*h_,2)}, {vr(T_+2*h_,2)}, {vr(g_+2,2)} op_sel_hi:[1,0]")
                a(f"v_pk_fma_f32 {vr(T_+2*h_,2)}, {vr(t+2*h_,2)}, {vr(g_,2)}, {vr(T_+2*h_,2)} op_sel_hi:[1,0,1]")
                a(f"v_cvt_pk_bf16_f32 v{OP+4*ai+2*u+h_}, v{T_+2*h_}, v{T_+2*h_+1}")
        o = OP + 4*ai
        a("s_nop 1")
        a(f"v_permlane16_swap_b32 v{o}, v{o+2}"); a(f"v_permlane16_swap_b32 v{o+1}, v{o+3}")
        a(f"s_mov_b32 s61, {16*ai*2048}")
        a(f"buffer_store_dwordx4 {vr(o,4)}, v8, s[28:31], s61 offen{opt.get('outfl', '')}")
    a("s_waitcnt vmcnt(0)")
    st_(7, None, 7)
    stamp_dump(a, opt, 8)
    a("s_waitcnt vmcnt(0)")
    a("s_endpgm")

def a_waves(a, opt):
    a("s_sub_u32 s53, s50, 4")
    VA = 8; VW = 12
    a("v_lshrrev_b32 v2, 3, v0"); a("v_and_b32 v3, 7, v0"); a("v_lshrrev_b32 v4, 4, v0")
    a("s_lshl_b32 s55, s48, 7"); a("s_lshl_b32 s61, s53, 5"); a("s_add_u32 s55, s55, s61")
    a("v_add_u32 v5, s55, v2"); a("v_lshlrev_b32 v5, 11, v5")
    a("v_xor_b32 v6, v4, v3"); a(f"v_lshl_add_u32 v{VA}, v6, 4, v5")
    a("v_xor_b32 v6, 4, v6"); a(f"v_lshl_add_u32 v{VA+1}, v6, 4, v5"); a(f"v_add_u32 v{VA+1}, 16384, v{VA+1}")
    for i in range(2, 4): a(f"v_add_u32 v{VA+i}, 32768, v{VA+(i&1)}")
    a("v_and_b32 v6, 1, v4"); a("v_lshlrev_b32 v6, 1, v6"); a("v_xor_b32 v6, v6, v3")
    a("v_mul_u32_u24 v5, 6144, v2")
    a(f"s_mul_i32 s55, s53, {2*8*6144}"); a("s_lshl_b32 s61, s49, 7"); a("s_add_u32 s55, s55, s61")
    a("v_add_u32 v5, s55, v5")
    a(f"v_lshl_add_u32 v{VW}, v6, 4, v5")
    a("v_xor_b32 v6, 4, v6"); a(f"v_lshl_add_u32 v{VW+1}, v6, 4, v5"); a(f"v_add_u32 v{VW+1}, {8*6144}, v{VW+1}")
    WL = [(seg, r2) for seg in range(3) for r2 in range(2)]
    for i, (seg, r2) in enumerate(WL):
        if i >= 2: a(f"v_add_u32 v{VW+i}, {seg*2048}, v{VW + r2}")
    a("s_lshl_b32 s64, s53, 12")
    a("s_lshl_b32 s65, s53, 11"); a("s_add_u32 s65, s65, 16384")
    a("s_lshr_b32 s46, s52, 3"); a("s_add_u32 s46, s46, s52"); a("s_and_b32 s46, s46, 3"); a("s_lshl_b32 s46, s46, 2")
    a("s_lshl_b32 s66, s46, 7"); a(f"s_mul_i32 s67, s46, {64*6144}"); a("s_mov_b32 s68, 0")
    a("s_waitcnt lgkmcnt(0)")
    make_srd(a, 20, 4, NB["x"]); make_srd(a, 24, 6, NB["wqkv"])
    def prep():
        a("s_add_u32 s69, s64, s68"); a("s_add_u32 s55, s65, s68"); a("s_mov_b32 m0, s69")
    def issue(prepared=False):
        if not prepared: prep(); a("s_nop 0")
        fill = [f"s_add_u32 s68, s68, {ST1}", f"s_cmp_eq_u32 s68, {4*ST1}\ns_cselect_b32 s68, 0, s68", "s_nop 0"]
        for i in range(4):
            if i:
                a(f"s_add_u32 m0, s69, {i*1024}"); a(fill.pop(0))
            a(f"buffer_load_dwordx4 v{VA+i}, s[20:23], s66 offen lds")
        fill = ["s_add_u32 s66, s66, 128", "s_cmp_eq_u32 s66, 2048\ns_cselect_b32 s66, 0, s66"]
        for i, (seg, r2) in enumerate(WL):
            a(f"s_add_u32 m0, s55, {seg*8192 + r2*1024}"); a(fill.pop(0) if fill else "s_nop 0")
            a(f"buffer_load_dwordx4 v{VW+i}, s[24:27], s67 offen lds")
        a(f"s_add_u32 s67, s67, {64*6144}"); a(f"s_cmp_eq_u32 s67, {16*64*6144}"); a("s_cselect_b32 s67, 0, s67")
    issue(); issue()
    a("s_load_dwordx4 s[8:11], s[0:1], 32")
    a("s_load_dwordx4 s[4:7], s[0:1], 48")
    a("s_load_dwordx2 s[16:17], s[0:1], 72")
    a("s_load_dwordx2 s[18:19], s[0:1], 16")
    ramp = (1, 1, 1, 1, 2)
    issued = 2
    for i, n in enumerate(ramp):
        prep()
        a(f"s_waitcnt vmcnt({10*(issued - i - 1)})"); a("s_barrier")
        if i == 0: stamp(a, opt, 1)
        for k_ in range(n):
            issue(prepared=(k_ == 0)); issued += 1
        if i == 0:
            a("s_waitcnt lgkmcnt(0)")
            make_srd(a, 28, 8, NB["bk"]); make_srd(a, 32, 10, NB["bv"])
            make_srd(a, 36, 14, WS_USED); make_srd(a, 40, 4, NB["shift"]); make_srd(a, 44, 16, NB["gw"])
    i0 = len(ramp)
    a(f"s_mov_b32 s60, {i0}")
    if opt.get("align"): a(f".p2align {opt['align']}")
    a.label("Llloop")
    prep()
    a("s_add_u32 s60, s60, 1")
    a("s_waitcnt vmcnt(20)"); a("s_barrier")
    issue(prepared=True)
    a("s_cmp_lt_u32 s60, 13"); a("s_cbranch_scc1 Llloop")
    NTKV = "" if opt.get("kvtouch") else " nt"
    pl = Asm()
    pl("s_and_b32 s70, s2, 15"); pl("s_lshr_b32 s71, s2, 4")
    pl("v_lshrrev_b32 v20, 3, v0"); pl("v_and_b32 v21, 7, v0")
    pl("s_lshl_b32 s72, s70, 7"); pl("s_lshl_b32 s73, s53, 5"); pl("s_add_u32 s72, s72, s73")
    pl("v_lshl_add_u32 v22, v20, 2, s72")
    pl("s_lshl_b32 s73, s71, 6"); pl("v_lshl_add_u32 v23, v21, 3, s73")
    pl("v_lshlrev_b32 v24, 11, v22"); pl("v_lshl_add_u32 v24, v23, 1, v24")
    pl("v_subrev_u32 v25, 6144, v24")
    for r in range(7):
        if r: pl("v_add_u32 v25, 2048, v25")
        pl(f"buffer_load_dwordx4 {vr(32+4*r,4)}, v25, s[28:31], 0 offen{NTKV}")
    pl("v_add_u32 v26, 4096, v24")
    for r in range(4):
        pl(f"buffer_load_dwordx4 {vr(60+4*r,4)}, v{24 if r < 2 else 26}, s[32:35], 0 offen offset:{2048*(r & 1)}{NTKV}")
    partA = pl.lines; pl = Asm()
    pl("v_lshlrev_b32 v27, 3, v23")
    for q in range(4):
        pl(f"buffer_load_dwordx4 {vr(76+4*q,4)}, v27, s[40:43], 0 offen offset:{16*q}")
    pl("s_lshl_b32 s73, s48, 7"); pl("s_lshl_b32 s74, s49, 3"); pl("s_add_u32 s73, s73, s74"); pl("s_lshl_b32 s74, s53, 1"); pl("s_add_u32 s73, s73, s74")
    pl("v_lshrrev_b32 v28, 5, v0"); pl("v_add_u32 v28, s73, v28")
    pl("v_and_b32 v29, 31, v0"); pl("v_lshlrev_b32 v29, 4, v29")
    pl("v_lshl_add_u32 v30, v28, 11, v29")
    for i in range(4):
        pl(f"buffer_load_dwordx4 {vr(92+4*i,4)}, v30, s[20:23], 0 offen offset:{512*i}")
    for i in range(4):
        pl(f"buffer_load_dwordx4 {vr(108+4*i,4)}, v29, s[44:47], 0 offen offset:{512*i}")
    pl("v_lshlrev_b32 v31, 12, v23"); pl("v_lshl_add_u32 v31, v22, 1, v31")
    pl(f"s_mov_b32 s72, {WS_UT}")
    pl("s_mov_b32 s74, 0x05040100"); pl("s_mov_b32 s75, 0x07060302")
    partB = pl.lines
    a("v_mov_b32 v160, 0"); a("v_mov_b32 v161, 0"); a("v_mov_b32 v162, 0"); a("v_mov_b32 v163, 0")
    a("v_and_b32 v164, 1, v0"); a("v_lshlrev_b32 v164, 4, v164")
    a("s_waitcnt vmcnt(20)"); a("s_barrier")
    a(f"ds_write_b128 v164, v[160:163] offset:{F_E0}")
    for ln in partA: a(ln)
    a("s_waitcnt vmcnt(21)"); a("s_barrier")
    a(f"ds_write_b128 v164, v[160:163] offset:{F_E1}")
    for ln in partB: a(ln)
    a("s_lshl_b32 s54, s51, 7"); a("s_lshl_b32 s55, s52, 2"); a("s_add_u32 s54, s54, s55"); a("s_add_u32 s54, s54, s53")
    a("s_lshl_b32 s55, s54, 12")
    a("s_add_u32 s60, s6, s55"); a("s_addc_u32 s61, s7, 0")
    a("v_lshlrev_b32 v1, 2, v0"); a("v_subrev_u32 v3, 4, v1"); a("v_add_u32 v4, 252, v1")
    a("s_waitcnt vmcnt(23) lgkmcnt(0)"); a("s_barrier")
    a("v_and_b32 v165, 7, v0"); a("v_lshlrev_b32 v165, 4, v165"); a(f"v_add_u32 v165, {F_FL}, v165")
    a("ds_write_b128 v165, v[160:163]")
    a("s_mov_b32 s24, s60"); a("s_mov_b32 s25, s61"); a("s_mov_b32 s26, 4096"); a("s_mov_b32 s27, 0x00020000")
    E = 176; E1 = 192
    for j in range(16):
        a(f"buffer_load_dword v{E+j}, v1, s[24:27], 0 offen offset:{256*j} nt")
        if j == 0: a(f"buffer_load_dword v{E1}, v3, s[24:27], 0 offen")
        else:      a(f"buffer_load_dword v{E1+j}, v4, s[24:27], 0 offen offset:{256*(j-1)}")
    a("s_waitcnt vmcnt(40)")
    stamp(a, opt, 2)
    P = 128; KS = 140; VU = 148
    for c in range(8):
        cp, h = c >> 1, c & 1
        sel = "s75" if h else "s74"
        pb = P + 6*(c & 1); kb = KS + 4*(c & 1)
        for t in range(6): a(f"v_perm_b32 v{pb+t}, v{32+4*t+cp}, v{32+4*(t+1)+cp}, {sel}")
        for r in range(4): a(f"v_dot2_f32_bf16 v{kb+r}, v{pb+r+2}, v{76+2*c}, 0")
        for r in range(4): a(f"v_dot2_f32_bf16 v{kb+r}, v{pb+r}, v{76+2*c+1}, v{kb+r}")
        for r in range(4):
            if h: a(f"v_and_b32 v{VU+r}, 0xffff0000, v{60+4*r+cp}")
            else: a(f"v_lshlrev_b32 v{VU+r}, 16, v{60+4*r+cp}")
        for r in range(4): a(f"v_mul_f32 v{kb+r}, v{kb+r}, v{VU+r}")
        o = 152 + 2*(c & 3)
        a(f"v_cvt_pk_bf16_f32 v{o}, v{kb}, v{kb+1}"); a(f"v_cvt_pk_bf16_f32 v{o+1}, v{kb+2}, v{kb+3}")
        a(f"s_add_u32 s73, s72, {c*4096}")
        a(f"buffer_store_dwordx2 {vr(o,2)}, v31, s[36:39], s73 offen sc1")
    a("s_waitcnt vmcnt(40)")
    a("v_mov_b32 v128, 0")
    for i in range(16): a(f"v_dot2_f32_bf16 v128, v{92+i}, v{108+i}, v128")
    a("s_nop 3")
    for ctl in ("quad_perm:[1,0,3,2]", "quad_perm:[2,3,0,1]", "row_half_mirror", "row_mirror"):
        a(f"v_add_f32_dpp v128, v128, v128 {ctl} row_mask:0xf bank_mask:0xf"); a("s_nop 1")
    a("v_mov_b32 v129, v128"); a("s_nop 1")
    a("v_permlane16_swap_b32 v128, v129"); a("s_nop 1")
    a("v_add_f32 v128, v128, v129")
    a("v_mul_f32 v128, 0xbfb8aa3b, v128"); a("v_exp_f32 v128, v128"); a("s_nop 0")
    a("v_add_f32 v128, 1.0, v128"); a("v_rcp_f32 v128, v128")
    a("v_lshlrev_b32 v28, 2, v28"); a("v_and_b32 v29, 31, v0"); a("v_cmp_eq_u32 vcc, 0, v29")
    a("s_and_saveexec_b64 s[62:63], vcc")
    a(f"s_mov_b32 s73, {WS_G}")
    a("buffer_store_dword v128, v28, s[36:39], s73 offen sc1")
    a("s_mov_b64 exec, s[62:63]")
    stamp(a, opt, 3)
    a("v_lshlrev_b32 v2, 4, v0")
    a(f"s_mul_i32 s56, s53, {CWB}")
    a("v_mov_b32 v12, 0"); a("v_mov_b32 v13, 0"); a("v_mov_b32 v14, 0"); a("v_mov_b32 v15, 0")
    a(f"s_add_u32 s57, s56, {CF}")
    a("v_min_u32 v5, 29, v0"); a("v_lshl_add_u32 v5, v5, 4, s57")
    a("ds_write_b128 v5, v[12:15]")
    a("v_lshrrev_b32 v5, 3, v0"); a("v_and_b32 v5, 3, v5"); a(f"v_mul_u32_u24 v5, {CTS}, v5")
    a("v_and_b32 v6, 7, v0"); a("v_lshl_add_u32 v5, v6, 2, v5")
    a(f"s_add_u32 s57, s56, {8 + 4*1023}"); a("v_add_u32 v5, s57, v5")
    a("ds_write_b32 v5, v12")
    TW = 16
    for rho in range(4):
        a(f"s_add_u32 s57, s56, {rho*CTS + 256 + (4 if rho >= 2 else 0)}")
        a(f"v_sub_u32 v{TW+rho}, s57, v1")
    a("s_mov_b32 s59, 0xffff")
    a("s_waitcnt vmcnt(9)")
    S = 64; M = 80
    for j in range(16):
        a(f"v_alignbit_b32 v{S+j}, v{E+j}, v{E+j}, 16")
        a(f"v_bfi_b32 v{M+j}, s59, v{E+j}, v{E1+j}")
    for j in range(0, 16, 2):
        for rho in range(4):
            src = S if rho & 1 else M
            a(f"ds_write2st64_b32 v{TW+rho}, v{src+j}, v{src+j+1} offset0:{15-j} offset1:{14-j}")
    make_srd(a, 40, 12, 256); make_srd(a, 24, 18, NB["wo"])
    a("v_mov_b32 v9, 0"); a("v_mov_b32 v11, 1")
    a("s_lshl_b32 s60, s2, 7"); a(f"s_add_u32 s60, s60, {FL_U}"); a("v_mov_b32 v10, s60")
    a("s_waitcnt vmcnt(0)")
    lds_count_last(a, 9, E_ADC, 11, 8, 3, lambda: a("buffer_store_dword v11, v10, s[36:39], 0 offen sc1"))
    stamp(a, opt, 4)
    a("v_lshrrev_b32 v96, 3, v0"); a("v_and_b32 v97, 7, v0"); a("v_lshrrev_b32 v98, 4, v0")
    a("s_cmp_eq_u32 s53, 3"); a("s_cbranch_scc1 Lawo")
    a("s_lshl_b32 s60, s96, 7"); a("v_add_u32 v99, s60, v96"); a("v_lshlrev_b32 v99, 11, v99")
    a("v_xor_b32 v100, v98, v97"); a("v_lshl_add_u32 v20, v100, 4, v99")
    a("v_xor_b32 v100, 4, v100"); a("v_lshl_add_u32 v21, v100, 4, v99")
    a("s_mov_b32 s28, s36"); a("s_mov_b32 s29, s37"); a("s_mov_b32 s30, s38"); a("s_mov_b32 s31, s39")
    a("s_sub_u32 s60, s53, 1"); a("s_lshl_b32 s64, s60, 13"); a("s_lshl_b32 s66, s60, 17"); a(f"s_add_u32 s66, s66, {WS_O}"); a("s_mov_b32 s65, 128")
    a("s_branch Lawd")
    a.label("Lawo")
    a("v_and_b32 v100, 1, v98"); a("v_lshlrev_b32 v100, 1, v100"); a("v_xor_b32 v100, v100, v97")
    a("v_lshlrev_b32 v99, 11, v96"); a("s_lshl_b32 s61, s97, 7"); a("v_add_u32 v99, s61, v99")
    a("v_lshl_add_u32 v20, v100, 4, v99")
    a("v_xor_b32 v100, 4, v100"); a("v_lshl_add_u32 v21, v100, 4, v99")
    a("s_mov_b32 s28, s24"); a("s_mov_b32 s29, s25"); a("s_mov_b32 s30, s26"); a("s_mov_b32 s31, s27")
    a("s_mov_b32 s64, 16384"); a("s_mov_b32 s66, 0"); a("s_mov_b32 s65, 131072")
    a.label("Lawd")
    a("v_lshrrev_b32 v99, 4, v0"); a("s_lshl_b32 s60, s97, 6"); a("v_add_u32 v99, s60, v99"); a("v_lshlrev_b32 v99, 12, v99")
    a("v_and_b32 v100, 15, v0"); a("v_lshl_add_u32 v99, v100, 4, v99"); a("s_lshl_b32 s60, s96, 8"); a("v_add_u32 v26, s60, v99")
    a("s_cmp_eq_u32 s53, 0"); a("s_cbranch_scc1 Lupoll")
    a("s_lshl_b32 s60, s52, 5"); a("s_lshl_b32 s61, s53, 3"); a("s_add_u32 s60, s60, s61"); a("s_sub_u32 s60, s60, 8")
    a("v_lshrrev_b32 v96, 3, v0"); a("v_add_u32 v96, s60, v96"); a("v_lshlrev_b32 v96, 11, v96")
    a("v_and_b32 v97, 7, v0"); a("v_lshl_add_u32 v96, v97, 7, v96")
    a("s_lshr_b32 s60, s51, 2"); a("s_lshl_b32 s60, s60, 10")
    a("buffer_load_dword v98, v96, s[24:27], s60 offen")
    a("s_cmp_eq_u32 s53, 3"); a("s_cbranch_scc0 Lnpf")
    a("v_add_u32 v96, 16384, v96")
    a("buffer_load_dword v99, v96, s[24:27], s60 offen")
    a.label("Lnpf")
    lds_spin(a, 9, E_UR, 8, "eq", 1)
    a("s_branch Lugo")
    a.label("Lupoll")
    poll_zeroed(a, 100)
    a("s_lshl_b32 s60, s51, 1"); a("s_lshr_b32 s61, s52, 4"); a("s_add_u32 s60, s60, s61"); a("s_lshl_b32 s60, s60, 11"); a(f"s_add_u32 s60, s60, {FL_U}")
    a("v_and_b32 v102, 15, v0"); a("v_lshl_add_u32 v102, v102, 7, s60")
    poll16(a, 102, 100)
    a(f"ds_write_b32 v9, v11 offset:{E_UR}")
    a.label("Lugo")
    a(f"s_add_u32 s57, s55, {WS_UT}")
    for i in range(4):
        a(f"s_add_u32 m0, s56, {CF + 480 + i*1024}")
        a(f"s_add_u32 s60, s57, {i*1024}")
        a("buffer_load_dwordx4 v2, s[36:39], s60 offen sc1 lds")
    a("s_waitcnt vmcnt(0) lgkmcnt(0)")
    a("s_mov_b64 exec, 1")
    a(f"ds_add_u32 v9, v11 offset:{E_CRC}")
    a("s_mov_b64 exec, -1")
    stamp(a, opt, 5)
    def slot_base(st):
        sl = st % 6
        return (F_U + sl*ST3) if sl < 3 else (sl - 3)*ST3
    ORD = 64
    a(f"v_mov_b32 v27, {F_FL}")
    a("s_cmp_eq_u32 s53, 0"); a("s_cbranch_scc0 Lgload")
    a("s_lshl_b32 s60, s96, 11"); a(f"s_add_u32 s60, s60, {FL_O}")
    a("v_and_b32 v102, 15, v0"); a("v_lshl_add_u32 v102, v102, 7, s60")
    a("s_lshl_b32 s60, s97, 11"); a(f"s_add_u32 s60, s60, {FL_Y}")
    a("v_and_b32 v103, 15, v0"); a("v_lshl_add_u32 v103, v103, 7, s60")
    a("s_mov_b32 s70, 0"); a("s_mov_b32 s71, 0")
    def absorb():
        l0, l1 = lab("ab"), lab("ae")
        a("v_cmp_eq_u32 vcc, 1, v100"); a("s_nop 3")
        a("s_and_b32 s72, vcc_lo, 0xffff"); a("s_andn2_b32 s62, s72, s71")
        a.label(l0)
        a("s_cmp_eq_u32 s62, 0"); a(f"s_cbranch_scc1 {l1}")
        a("s_ff1_i32_b32 s47, s62"); a("s_lshl_b32 s60, 1, s47"); a("s_or_b32 s71, s71, s60"); a("s_andn2_b32 s62, s62, s60")
        a("s_add_u32 s47, s47, 1"); a("v_mov_b32 v101, s47"); a("s_lshl_b32 s60, s70, 2"); a("v_add_u32 v104, s60, v27")
        a(f"ds_write_b32 v104, v101 offset:{ORD}"); a("s_add_u32 s70, s70, 1")
        a(f"s_branch {l0}")
        a.label(l1)
    a("s_mov_b32 s61, 0")
    a.label("Lsync0")
    a(f"buffer_load_dword v100, v102, s[36:39], 0 offen{POLL[0]}")
    a("s_mov_b32 s73, 0")
    a.label("Lsyncw")
    a(f"ds_read_b32 v105, v9 offset:{E_CD}"); a("s_waitcnt lgkmcnt(0)")
    a("v_readfirstlane_b32 s60, v105"); a("s_add_u32 s73, s73, 1")
    a("s_cmp_ge_u32 s60, 4"); a("s_cselect_b32 s60, 1, 0"); a("s_cmp_ge_u32 s70, 4"); a("s_cselect_b32 s62, 1, 0"); a("s_and_b32 s60, s60, s62"); a("s_cbranch_scc1 Lsync1")
    a("s_cmp_lt_u32 s73, 4"); a("s_cbranch_scc1 Lsyncw")
    a("s_waitcnt vmcnt(0)")
    absorb()
    a("s_cmp_eq_u32 s70, 16"); a("s_cbranch_scc1 Lsync1")
    a("s_add_u32 s61, s61, 1"); a(f"s_cmp_lt_u32 s61, {SPIN_MAX}"); a("s_cbranch_scc1 Lsync0")
    a("v_mov_b32 v100, 1"); absorb()
    a.label("Lsync1")
    stamp(a, opt, 6)
    first_after = {}
    issued_ = 3
    for i in range(16):
        n_ = 0
        while issued_ + n_ <= min(15, i + 5) and n_ < opt.get("gburst", 2): n_ += 1
        if n_: first_after[i] = (issued_, issued_ + n_ - 1)
        issued_ += n_
    def ensure(count):
        l0, l1 = lab("en"), lab("ex")
        a("s_mov_b32 s73, 0")
        a.label(l0)
        a(f"s_cmp_ge_u32 s70, {count}"); a(f"s_cbranch_scc1 {l1}")
        a(f"buffer_load_dword v100, v102, s[36:39], 0 offen{POLL[0]}"); a("s_waitcnt vmcnt(0)")
        absorb()
        a("s_add_u32 s73, s73, 1"); a(f"s_cmp_lt_u32 s73, {SPIN_MAX}"); a(f"s_cbranch_scc1 {l0}")
        a("v_mov_b32 v100, 1"); absorb()
        a.label(l1)
    for i in range(16):
        if i in first_after: ensure(first_after[i][0] + 1)
        if i == 15: a("s_waitcnt vmcnt(0)")
        a("s_barrier")
        if i in first_after:
            nxt = first_after.get(i + 1, (first_after[i][1],))[0]
            ensure(max(first_after[i][1], nxt) + 1)
        if i == 9:
            a("buffer_load_dword v106, v103, s[36:39], 0 offen sc1")
        if i == 11:
            l = lab("sy"); l2 = lab("sz")
            a("s_mov_b32 s73, 0")
            a.label(l2)
            a("s_waitcnt vmcnt(0)")
            a("v_cmp_ne_u32 vcc, 1, v106"); a("s_add_u32 s73, s73, 1"); a("s_nop 3"); a("s_cmp_eq_u64 vcc, 0"); a(f"s_cbranch_scc1 {l}")
            a("buffer_load_dword v106, v103, s[36:39], 0 offen sc1")
            a(f"s_cmp_lt_u32 s73, {SPIN_MAX}"); a(f"s_cbranch_scc1 {l2}")
            a.label(l)
            for t in range(16):
                a(f"s_mov_b32 m0, {F_Y + t*1024}"); a(f"s_mov_b32 s61, {WS_YT + t*4*4096}")
                a("buffer_load_dwordx4 v26, s[36:39], s61 offen sc1 lds")
    a("s_branch Lgend")
    a.label("Lgload")
    def fetch_ord(k):
        a(f"ds_read_b32 v100, v27 offset:{ORD + 4*k}")
    def decode():
        a("v_readfirstlane_b32 s62, v100")
        a("s_sub_u32 s68, s62, 1"); a("s_and_b32 s68, s68, 15"); a("s_mul_i32 s68, s68, s65"); a("s_add_u32 s68, s68, s66")
    def take_ord(k, decoded=False):
        l0, l1 = lab("to"), lab("tx")
        if not decoded:
            a("s_waitcnt lgkmcnt(0)"); decode()
        a("s_cmp_lg_u32 s62, 0"); a(f"s_cbranch_scc1 {l1}")
        a("s_mov_b32 s61, 0")
        a.label(l0)
        fetch_ord(k); a("s_waitcnt lgkmcnt(0)"); decode()
        a("s_add_u32 s61, s61, 1"); a("s_cmp_lg_u32 s62, 0"); a(f"s_cbranch_scc1 {l1}")
        a(f"s_cmp_lt_u32 s61, {SPIN_MAX*8}"); a(f"s_cbranch_scc1 {l0}")
        a.label(l1)
        a("s_mov_b32 s67, s68")
    SC1 = "" if opt.get("nosc1") else " sc1"
    def issue_stage(st, nxt):
        sb = slot_base(st)
        for t in range(8):
            if t: a(f"s_add_u32 m0, s64, {sb + t*1024}"); a(f"s_add_u32 s60, s67, {t*16384}")
            a(f"buffer_load_dwordx4 v{20 + (t & 1)}, s[28:31], {'s67' if t == 0 else 's60'} offen{SC1} lds")
            if nxt is not None:
                if t == 1: fetch_ord(nxt)
                if t == 5: a("s_waitcnt lgkmcnt(0)"); decode()
    def prep_stage(st):
        a(f"s_add_u32 m0, s64, {slot_base(st)}")
    Q = []
    for st in range(3):
        fetch_ord(st); take_ord(st)
        if st == 2: lds_spin(a, 9, E_OC, 8, "ge", 4)
        prep_stage(st); a("s_nop 0")
        issue_stage(st, 3 if st == 2 else None); Q += [st]*8
        if st == 0: stamp(a, opt, 6)
    issued = 3
    for i in range(16):
        last = max(k for k, e in enumerate(Q) if e == i)
        n_after = len(Q) - 1 - last
        todo = []
        while issued + len(todo) <= min(15, i + 5) and len(todo) < opt.get("gburst", 2): todo.append(issued + len(todo))
        if todo:
            take_ord(todo[0], True); prep_stage(todo[0])
        a(f"s_waitcnt vmcnt({n_after})")
        if opt.get("gst"): a("s_memtime s[100:101]")
        a("s_barrier")
        if opt.get("gst"):
            a("s_waitcnt lgkmcnt(0)"); a("s_sub_u32 s100, s100, s80"); a(f"v_writelane_b32 v200, s100, {i}"); a("s_memtime s[100:101]")
            a("s_waitcnt lgkmcnt(0)"); a("s_sub_u32 s100, s100, s80"); a(f"v_writelane_b32 v200, s100, {16+i}")
        Q = Q[last + 1:]
        for k_, st in enumerate(todo):
            if k_:
                take_ord(st, True); prep_stage(st); a("s_nop 0")
            nxt = st + 1 if st + 1 <= 15 else None
            issue_stage(st, nxt); Q += [st]*8
        issued += len(todo)
    assert issued == 16
    if opt.get("gst"):
        a(f"s_add_u32 s76, s14, {WS_STAMP + (1 << 20)}"); a("s_addc_u32 s77, s15, 0"); a("s_mov_b32 s78, 0x1000000"); a("s_mov_b32 s79, 0x00020000")
        a("s_lshl_b32 s75, s2, 2"); a("s_add_u32 s75, s75, s53"); a("s_lshl_b32 s75, s75, 8")
        a("v_lshlrev_b32 v201, 2, v0"); a("buffer_store_dword v200, v201, s[76:79], s75 offen")
    a.label("Lgend")
    stamp(a, opt, 7)
    stamp_dump(a, opt, 8)
    a("s_waitcnt vmcnt(0)")

def build(opt=None):
    opt = opt or {}
    _lab[0] = 0
    POLL[0] = opt.get("pollfl", " sc1")
    a = Asm()
    if opt.get("aslist"): a(f"; @launch kernel={NAME} grid=(256,1,1) block=(512,1,1) lds=163840")
    else: a("; @launch grid=(256,1,1) block=(512,1,1) lds=163840")
    a('.amdgcn_target "amdgcn-amd-amdhsa--gfx950"')
    a(".text")
    a.lines = [l for l in a.lines]
    kernel(a, opt)
    a('.section .rodata,"a"')
    kernel_desc(a, NAME, vgpr=256, sgpr=102)
    return a.text().replace("None\n", "")

if __name__ == "__main__":
    opt = {}
    for o in sys.argv[2:]:
        k, _, v = o.partition("=")
        opt[k] = int(v) if v else 1
    open(sys.argv[1], "w").write(build(opt))
```

```python
import sys
from asmlib import *

WS_UT  = 4 << 20
WS_KVP = 8 << 20
WS_ZP  = 10 << 20
WS_G   = 11 << 20
WS_FL  = (11 << 20) | 0x80000
FL_KV, FL_U, FL_O, FL_Y = WS_FL, WS_FL + 32768, WS_FL + 65536, WS_FL + 98304
WS_O   = 12 << 20
WS_YT  = 16 << 20
WS_USED = 20 << 20
WS_STAMP = 24 << 20
LOG2E = 0x3fb8aa3b
EPS   = 0x358637bd
SPIN_MAX = 1 << 17
NAME = "gated_mix__linear_attn_block__ssm_conv_h3__prompt_kernel"

ST1 = 40960
CTS = 4160
CF  = 4 * CTS
CWB = 4 * CTS + 4608
F_FL = 4 * CWB
ST3 = 24576
F_U = F_FL + 256
F_SCR = F_U + 2 * ST3
F_Y = ST3
F_E0 = CWB - 32
F_E1 = 2 * CWB - 32
E_XF = F_E0
E_RF = F_E0 + 16
E_ADC, E_UR, E_CRC, E_OC, E_CD, E_KVC, E_KVR = (F_E1 + 4*k for k in range(7))
W_YC, W_YR = F_FL, F_FL + 4

def vr(a, n=1): return f"v{a}" if n == 1 else f"v[{a}:{a+n-1}]"

def stamp(a, opt, i):
    if opt.get("stamps"):
        a(f"s_memtime s[{80+2*i}:{81+2*i}]")
        if i == 0: a("s_memrealtime s[98:99]")
def stamp_dump(a, opt, n):
    if not opt.get("stamps"): return
    a("s_waitcnt vmcnt(0) lgkmcnt(0)")
    a(f"s_add_u32 s76, s14, {WS_STAMP}"); a("s_addc_u32 s77, s15, 0"); a("s_mov_b32 s78, 0x1000000"); a("s_mov_b32 s79, 0x00020000")
    a("s_lshl_b32 s75, s2, 3"); a("s_add_u32 s75, s75, s50"); a("s_lshl_b32 s75, s75, 6"); a("v_mov_b32 v1, s75")
    for i in range(1, n):
        a(f"s_sub_u32 s74, s{80+2*i}, s80"); a("v_mov_b32 v2, s74")
        a(f"buffer_store_dword v2, v1, s[76:79], 0 offen offset:{4*i}")
    a("s_memrealtime s[80:81]"); a("s_waitcnt lgkmcnt(0)"); a("v_mov_b32 v2, s80")
    a("buffer_store_dword v2, v1, s[76:79], 0 offen offset:60")
    a("v_mov_b32 v2, s98"); a("buffer_store_dword v2, v1, s[76:79], 0 offen offset:56")

def phi_pair(a, t, tmp):
    a(f"v_pk_mul_f32 {vr(tmp,2)}, {vr(t,2)}, s[56:57]")
    a(f"v_exp_f32_e64 v{tmp}, v{tmp} clamp")
    a(f"v_exp_f32_e64 v{tmp+1}, v{tmp+1} clamp")
    a(f"v_max_f32 v{t}, 0, v{t}")
    a(f"v_max_f32 v{t+1}, 0, v{t+1}")
    a(f"v_pk_add_f32 {vr(t,2)}, {vr(t,2)}, {vr(tmp,2)}")
    a(f"v_pk_add_f32 {vr(t,2)}, {vr(t,2)}, s[58:59]")

def phi_group(a, ts, tmp):
    for i, t in enumerate(ts): a(f"v_pk_mul_f32 {vr(tmp+2*i,2)}, {vr(t,2)}, s[56:57]")
    for i, t in enumerate(ts):
        a(f"v_exp_f32_e64 v{tmp+2*i}, v{tmp+2*i} clamp"); a(f"v_exp_f32_e64 v{tmp+2*i+1}, v{tmp+2*i+1} clamp")
    for i, t in enumerate(ts):
        a(f"v_max_f32 v{t}, 0, v{t}"); a(f"v_max_f32 v{t+1}, 0, v{t+1}")
    for i, t in enumerate(ts): a(f"v_pk_add_f32 {vr(t,2)}, {vr(t,2)}, {vr(tmp+2*i,2)}")
    for i, t in enumerate(ts): a(f"v_pk_add_f32 {vr(t,2)}, {vr(t,2)}, s[58:59]")

_lab = [0]
POLL = [" sc1"]
FLST = [" sc1"]
def lab(p):
    _lab[0] += 1
    return f"L{p}{_lab[0]}"

def lds_spin(a, vaddr, off, vtmp, cond, val):
    assert off < 65536
    l0, l1 = lab("sp"), lab("sx")
    a("s_mov_b32 s61, 0")
    a.label(l0)
    a(f"ds_read_b32 v{vtmp}, v{vaddr} offset:{off}"); a("s_waitcnt lgkmcnt(0)")
    a(f"v_readfirstlane_b32 s60, v{vtmp}"); a("s_add_u32 s61, s61, 1"); a(f"s_cmp_{cond}_u32 s60, {val}"); a(f"s_cbranch_scc1 {l1}")
    a(f"s_cmp_lt_u32 s61, {SPIN_MAX*8}"); a(f"s_cbranch_scc1 {l0}")
    a.label(l1)

def lds_count_last(a, vaddr, off, vone, vtmp, last, action):
    l = lab("cl")
    a("s_mov_b64 exec, 1")
    a(f"ds_add_rtn_u32 v{vtmp}, v{vaddr}, v{vone} offset:{off}"); a("s_waitcnt lgkmcnt(0)")
    a(f"v_readfirstlane_b32 s60, v{vtmp}"); a(f"s_cmp_eq_u32 s60, {last}"); a(f"s_cbranch_scc0 {l}")
    action()
    a.label(l)
    a("s_mov_b64 exec, -1")

def poll16(a, vaddr, vtmp, extra=None):
    l0, l1 = lab("pl"), lab("px")
    a("s_mov_b32 s61, 0")
    a.label(l0)
    a(f"buffer_load_dword v{vtmp}, v{vaddr}, s[36:39], 0 offen{POLL[0]}")
    if extra: a(f"ds_read_b32 v{vtmp+1}, v{extra[0]} offset:{extra[1]}")
    a("s_waitcnt vmcnt(0) lgkmcnt(0)")
    a(f"v_cmp_ne_u32 vcc, 1, v{vtmp}")
    if extra: a(f"v_readfirstlane_b32 s62, v{vtmp+1}")
    a("s_add_u32 s61, s61, 1"); a("s_nop 2")
    a("s_cmp_eq_u64 vcc, 0")
    if extra:
        a("s_cselect_b32 s60, 1, 0"); a(f"s_cmp_ge_u32 s62, {extra[2]}"); a("s_cselect_b32 s62, 1, 0"); a("s_and_b32 s60, s60, s62")
    a(f"s_cbranch_scc1 {l1}")
    a(f"s_cmp_lt_u32 s61, {SPIN_MAX}"); a(f"s_cbranch_scc1 {l0}")
    a.label(l1)

def poll_zeroed(a, vtmp):
    l0, l1 = lab("zl"), lab("zx")
    a("s_mov_b32 s61, 0"); a(f"v_mov_b32 v{vtmp+1}, 0")
    a.label(l0)
    a(f"buffer_load_dword v{vtmp}, v{vtmp+1}, s[40:43], 0 offen sc1"); a("s_waitcnt vmcnt(0)")
    a(f"v_readfirstlane_b32 s60, v{vtmp}"); a("s_add_u32 s61, s61, 1"); a("s_cmp_ge_u32 s60, 256"); a(f"s_cbranch_scc1 {l1}")
    a(f"s_cmp_lt_u32 s61, {SPIN_MAX}"); a(f"s_cbranch_scc1 {l0}")
    a.label(l1)

def kernel(a, opt):
    name = NAME
    kernel_begin(a, name)
    a("s_cmp_ge_u32 s2, 256")
    a("s_cbranch_scc1 Ldone")
    stamp(a, opt, 0)
    if opt.get("pad0"):
        a("s_memtime s[20:21]"); a("s_waitcnt lgkmcnt(0)"); a(f"s_add_u32 s22, s20, {opt['pad0']}")
        a.label("Lpad0"); a("s_memtime s[20:21]"); a("s_waitcnt lgkmcnt(0)"); a("s_cmp_lt_u32 s20, s22"); a("s_cbranch_scc1 Lpad0")
    a("s_load_dwordx4 s[4:7], s[0:1], 0")
    a("s_load_dwordx4 s[12:15], s[0:1], 88")
    a("v_lshrrev_b32 v1, 6, v0")
    a("v_and_b32 v0, 63, v0")
    a("v_readfirstlane_b32 s50, v1")
    a("s_and_b32 s51, s2, 7")
    a("s_lshr_b32 s52, s2, 3")
    a("s_lshl_b32 s53, s51, 3"); a("s_and_b32 s53, s53, 8"); a("s_and_b32 s54, s52, 7"); a("s_or_b32 s48, s53, s54")
    a("s_lshl_b32 s53, s51, 1"); a("s_and_b32 s53, s53, 12"); a("s_lshr_b32 s54, s52, 3"); a("s_or_b32 s49, s53, s54")
    if opt.get("jx"): a(f"s_xor_b32 s49, s49, {opt['jx']}")
    if opt.get("jperm", 1):
        a("s_lshr_b32 s53, s49, 2"); a("s_add_u32 s53, s53, 1"); a("s_and_b32 s53, s53, 2"); a("s_mul_i32 s53, s53, 6"); a("s_xor_b32 s49, s49, s53")
    a("s_and_b32 s53, s51, 3"); a("s_lshl_b32 s53, s53, 2"); a("s_and_b32 s54, s52, 3"); a("s_or_b32 s96, s53, s54")
    a("s_lshr_b32 s53, s51, 2"); a("s_lshl_b32 s53, s53, 3"); a("s_lshr_b32 s54, s52, 2"); a("s_or_b32 s97, s53, s54")
    a("s_cmp_ge_u32 s50, 4")
    a("s_cbranch_scc1 Laux")
    c_waves(a, opt)
    a(f".p2align {opt.get('align', 6)}")
    a.label("Laux")
    a_waves(a, opt)
    a.label("Ldone")
    a("s_endpgm")
    a.label("Lend")

def c_waves(a, opt):
    def acc(ai, c, u): return 64 + ((c * 2 + u) * 4 + ai) * 4
    def xf(buf, ai): return 160 + buf * 40 + ai * 4
    def wf(buf, c, u): return 160 + buf * 40 + 16 + (c * 2 + u) * 4
    XA = 8; WA = 12
    a("s_load_dwordx4 s[8:11], s[0:1], 56") if False else None
    a("s_setprio 2")
    a("s_and_b32 s53, s50, 1")
    a("s_lshr_b32 s54, s50, 1")
    a("v_and_b32 v2, 15, v0")
    a("v_lshrrev_b32 v3, 4, v0")
    a("v_lshrrev_b32 v4, 1, v2"); a("v_xor_b32 v4, v4, v3")
    a("s_lshl_b32 s55, s53, 13")
    a("v_lshlrev_b32 v5, 7, v2"); a("v_add_u32 v5, s55, v5")
    a(f"v_lshl_add_u32 v{XA}, v4, 4, v5")
    a("v_xor_b32 v6, 4, v4"); a(f"v_lshl_add_u32 v{XA+1}, v6, 4, v5")
    for kk in range(2): a(f"v_add_u32 v{XA+2+kk}, {2*ST1}, v{XA+kk}")
    a("v_bfe_u32 v6, v0, 2, 2")
    a("v_lshl_add_u32 v7, v3, 3, v6"); a("v_lshlrev_b32 v7, 7, v7")
    a("v_and_b32 v18, 3, v0"); a("v_lshl_add_u32 v7, v18, 3, v7")
    a("v_add_u32 v7, 16384, v7")
    a("v_bfe_u32 v18, v0, 3, 1"); a("v_bfe_u32 v19, v0, 4, 1"); a("v_lshl_or_b32 v18, v19, 1, v18")
    a("s_lshl_b32 s55, s54, 1")
    a("v_xor_b32 v18, s55, v18")
    a(f"v_lshl_add_u32 v{WA}, v18, 5, v7")
    a("v_xor_b32 v18, 1, v18"); a(f"v_lshl_add_u32 v{WA+1}, v18, 5, v7")
    for u in range(2): a(f"v_add_u32 v{WA+2+u}, {2*ST1}, v{WA+u}")
    for r in range(64, 160): a(f"v_mov_b32 v{r}, 0")
    a(f"s_mov_b32 s56, {LOG2E:#x}"); a(f"s_mov_b32 s57, {LOG2E:#x}")
    a(f"s_mov_b32 s58, {EPS:#x}"); a(f"s_mov_b32 s59, {EPS:#x}")
    a("s_waitcnt lgkmcnt(0)")
    make_srd(a, 36, 14, WS_USED); make_srd(a, 40, 12, 256)
    a("s_load_dwordx4 s[8:11], s[0:1], 64") ;
    a("s_load_dwordx2 s[16:17], s[0:1], 80")
    if opt.get("codepf", 0):
        a("s_cmp_lt_u32 s52, 2"); a("s_cbranch_scc0 Lnocp")
        a("s_getpc_b64 s[74:75]")
        a.label("Lpc")
        a(f"s_sub_u32 s74, s74, Lpc-{NAME}"); a("s_subb_u32 s75, s75, 0")
        a("s_lshl_b32 s55, s52, 2"); a("s_add_u32 s55, s55, s50"); a("s_lshl_b32 s55, s55, 6")
        a("v_add_u32 v18, s55, v0"); a(f"v_min_u32 v18, (Lend-{NAME}-4)/128, v18"); a("v_lshlrev_b32 v18, 7, v18")
        a("global_load_dword v21, v18, s[74:75]")
        a.label("Lnocp")
    KVT = opt.get("kvtouch")
    if KVT:
        a("s_load_dwordx4 s[24:27], s[0:1], 32")
        a("s_waitcnt lgkmcnt(0)")
        a("s_cmp_eq_u32 s54, 0"); a("s_cselect_b32 s28, s24, s26"); a("s_cselect_b32 s29, s25, s27"); a("s_cselect_b32 s55, 6144, 0")
        a(f"s_mov_b32 s30, {NB['bk']}"); a("s_mov_b32 s31, 0x00020000")
        a("s_and_b32 s61, s2, 15"); a("s_lshl_b32 s61, s61, 7"); a("s_lshl_b32 s63, s53, 6"); a("s_add_u32 s61, s61, s63")
        a("v_add_u32 v240, s61, v0"); a("v_lshlrev_b32 v240, 11, v240")
        a("s_lshr_b32 s61, s2, 4"); a("s_lshl_b32 s61, s61, 7"); a("s_sub_u32 s61, s61, s55")
        a("v_add_u32 v240, s61, v240")
    a("s_cmp_eq_u32 s50, 0"); a("s_cbranch_scc0 Lnz")
    a("s_lshl_b32 s55, s49, 4"); a("s_add_u32 s55, s55, s48"); a("s_lshl_b32 s55, s55, 7"); a(f"s_add_u32 s55, s55, {FL_KV}"); a("v_writelane_b32 v18, s55, 0")
    a("s_lshl_b32 s55, s2, 7"); a(f"s_add_u32 s55, s55, {FL_U}"); a("v_writelane_b32 v18, s55, 1")
    a("s_lshl_b32 s55, s48, 4"); a("s_add_u32 s55, s55, s49"); a("s_lshl_b32 s55, s55, 7"); a(f"s_add_u32 s55, s55, {FL_O}"); a("v_writelane_b32 v18, s55, 2")
    a("s_lshl_b32 s55, s51, 5"); a("s_add_u32 s55, s55, s52"); a("s_lshl_b32 s55, s55, 7"); a(f"s_add_u32 s55, s55, {FL_Y}"); a("v_writelane_b32 v18, s55, 3")
    a("v_mov_b32 v19, 0"); a("v_mov_b32 v20, 1")
    a("s_mov_b64 exec, 15")
    a("buffer_store_dword v19, v18, s[36:39], 0 offen sc1")
    if opt.get("atom_early"):
        a("s_waitcnt vmcnt(0)")
        a("s_mov_b64 exec, 1")
        a("buffer_atomic_add v20, v19, s[40:43], 0 offen sc1")
    a("s_mov_b64 exec, -1")
    a.label("Lnz")

    def reads(slot, kk, buf):
        hi = 2 if slot >= 2 else 0
        so = (slot & 1) * ST1
        X = [f"ds_read_b128 {vr(xf(buf,ai),4)}, v{XA+hi+kk} offset:{so + ai*2048}" for ai in range(4)]
        W = {}
        for c in range(3):
            for u in range(2):
                W[c, u] = [f"ds_read_b64_tr_b16 {vr(wf(buf,c,u)+2*sec,2)}, v{WA+hi+u} offset:{so + c*8192 + kk*4096 + sec*512}" for sec in range(2)]
        return [X[0]] + W[0, 0] + [X[1], X[2], X[3]] + W[0, 1] + W[1, 0] + W[1, 1] + W[2, 0] + W[2, 1]
    def mfmas(buf):
        L = []
        for c in range(3):
            for u in range(2):
                for ai in range(4):
                    d = vr(acc(ai, c, u), 4)
                    if c == 0: L.append(f"v_mfma_f32_16x16x32_bf16 {d}, {vr(wf(buf,c,u),4)}, {vr(xf(buf,ai),4)}, {d}")
                    else:      L.append(f"v_mfma_f32_16x16x32_bf16 {d}, {vr(xf(buf,ai),4)}, {vr(wf(buf,c,u),4)}, {d}")
        return L
    def step(buf, nxt, barrier=False):
        M = mfmas(buf); q = list(nxt)
        first = 4 if barrier else 0
        for i in range(24):
            a(M[i])
            if barrier and i == first - 1: a("s_barrier")
            if i >= first - (1 if barrier else 0) and q: a(q.pop(0))
        for s_ in q: a(s_)
    a("s_barrier")
    cst = opt.get("cst")
    def st_(i, j=None, g=None):
        k = g if opt.get("gstc") else (j if cst else i)
        if k is not None: stamp(a, opt, k)
    st_(1)
    for s in reads(0, 0, 0): a(s)
    a("s_mov_b32 s60, 0")
    a(f".p2align {opt.get('align', 6)}")
    a.label("Lcloop")
    for slot in range(4):
        for kk in range(2):
            a("s_waitcnt lgkmcnt(0)")
            if kk == 0:
                if KVT and slot == KVT[1]:
                    a(f"s_cmp_eq_u32 s60, {KVT[0]}"); a("s_cbranch_scc0 Lnkvt")
                    a("buffer_load_dword v241, v240, s[28:31], 0 offen"); a.label("Lnkvt")
                if slot == 0 and not opt.get("atom_early") and not opt.get("atom_none"):
                    a("s_cmp_eq_u32 s60, 2"); a("s_cselect_b32 s61, s50, 1"); a("s_cmp_eq_u32 s61, 0"); a("s_cbranch_scc0 Lnat")
                    a("s_waitcnt vmcnt(0)"); a("s_mov_b64 exec, 1")
                    a("buffer_atomic_add v20, v19, s[40:43], 0 offen sc1")
                    a("s_mov_b64 exec, -1"); a("s_nop 4")
                    a.label("Lnat")
                step(0, reads(slot, 1, 1))
            else:
                if slot == 3:
                    a("s_cmp_eq_u32 s60, 3"); a("s_cbranch_scc1 Lclast")
                step(1, reads((slot + 1) & 3, 0, 0), barrier=True)
    a("s_add_u32 s60, s60, 1")
    a("s_branch Lcloop")
    a.label("Lclast")
    step(1, [])
    st_(2, 1)

    TMP = 20
    KF = 160; VF = 176; ONES = 192; QF = 200
    def kf(u, ks): return KF + (u*2 + ks)*4
    def vf(u, ks): return VF + (u*2 + ks)*4
    a("s_nop 7")
    for u in range(2):
        for a2 in range(2):
            tiles = [2*a2, 2*a2 + 1]
            phi_group(a, [acc(ai, 1, u) + 2*h_ for ai in tiles for h_ in range(2)], 24)
            for ai in tiles:
                t = acc(ai, 1, u); o = kf(u, ai >> 1) + (ai & 1)*2
                a(f"v_cvt_pk_bf16_f32 v{o}, v{t}, v{t+1}"); a(f"v_cvt_pk_bf16_f32 v{o+1}, v{t+2}, v{t+3}")
    for u in range(2):
        for ai in range(4):
            t = acc(ai, 2, u); o = vf(u, ai >> 1) + (ai & 1)*2
            a(f"v_cvt_pk_bf16_f32 v{o}, v{t}, v{t+1}"); a(f"v_cvt_pk_bf16_f32 v{o+1}, v{t+2}, v{t+3}")
    for r in range(4): a(f"v_mov_b32 v{ONES+r}, 0x3f803f80")
    KVA = 96; ZA = 112
    a("s_nop 1")
    for ks in range(2):
        for ud in range(2):
            for ue in range(2):
                d = vr(KVA + (ud*2+ue)*4, 4)
                a(f"v_mfma_f32_16x16x32_bf16 {d}, {vr(kf(ud,ks),4)}, {vr(vf(ue,ks),4)}, {'0' if ks == 0 else d}")
            d = vr(ZA + ud*4, 4)
            a(f"v_mfma_f32_16x16x32_bf16 {d}, {vr(kf(ud,ks),4)}, {vr(ONES,4)}, {'0' if ks == 0 else d}")
    st_(None, 2)
    def q_frags():
        for ai in range(4):
            phi_group(a, [acc(ai, 0, u) + 2*h_ for u in range(2) for h_ in range(2)], 32)
            for u in range(2):
                t = acc(ai, 0, u); o = QF + ai*4 + u*2
                a(f"v_cvt_pk_bf16_f32 v{o}, v{t}, v{t+1}"); a(f"v_cvt_pk_bf16_f32 v{o+1}, v{t+2}, v{t+3}")
    a("v_mov_b32 v30, 0"); a("v_mov_b32 v31, 1")
    a(f"s_mul_i32 s55, s50, 3072"); a(f"s_add_u32 s55, s55, {F_SCR}"); a("s_xor_b32 s61, s50, 1"); a("s_mul_i32 s61, s61, 3072"); a(f"s_add_u32 s61, s61, {F_SCR}")
    a("v_lshlrev_b32 v6, 4, v0"); a("v_add_u32 v8, s55, v6"); a("v_add_u32 v9, s61, v6")
    a("s_lshl_b32 s55, s50, 2"); a("v_mov_b32 v13, s55"); a("s_xor_b32 s55, s55, 4"); a("v_mov_b32 v14, s55")
    a("s_lshl_b32 s55, s49, 1"); a("s_add_u32 s55, s55, s54"); a("s_lshl_b32 s55, s55, 4"); a("s_add_u32 s55, s55, s48")
    a("s_lshl_b32 s63, s55, 11"); a("s_lshl_b32 s61, s53, 10"); a("s_add_u32 s63, s63, s61"); a(f"s_add_u32 s63, s63, {WS_KVP}")
    a("s_lshl_b32 s62, s55, 7"); a("s_lshl_b32 s61, s53, 6"); a("s_add_u32 s62, s62, s61"); a(f"s_add_u32 s62, s62, {WS_ZP}")
    a("v_lshlrev_b32 v7, 4, v3")
    R = 32
    def half(wm):
        give = [KVA + 4*(2*(wm ^ 1)), KVA + 4*(2*(wm ^ 1) + 1), ZA + 4*(wm ^ 1)]
        keep = [KVA + 4*(2*wm), KVA + 4*(2*wm + 1), ZA + 4*wm]
        for q in range(3): a(f"ds_write_b128 v8, {vr(give[q],4)} offset:{q*1024}")
        a("s_waitcnt lgkmcnt(0)")
        a(f"ds_write_b32 v13, v31 offset:{E_RF}")
        lds_spin(a, 14, E_RF, 28, "eq", 1)
        for q in range(3): a(f"ds_read_b128 {vr(R+4*q,4)}, v9 offset:{q*1024}")
        a("s_waitcnt lgkmcnt(0)")
        for q in range(3):
            for r in range(4): a(f"v_add_f32 v{keep[q]+r}, v{keep[q]+r}, v{R+4*q+r}")
        for q in range(2):
            for p in range(2): a(f"v_cvt_pk_bf16_f32 v{R+12+2*q+p}, v{keep[q]+2*p}, v{keep[q]+2*p+1}")
        a(f"buffer_store_dwordx4 {vr(R+12,4)}, v6, s[36:39], s63 offen sc1")
        a("v_cmp_eq_u32 vcc, 0, v2")
        a("s_and_saveexec_b64 s[64:65], vcc")
        a(f"buffer_store_dwordx4 {vr(keep[2],4)}, v7, s[36:39], s62 offen sc1")
        a("s_mov_b64 exec, s[64:65]")
    a("s_nop 3")
    a("s_cmp_eq_u32 s53, 0"); a("s_cbranch_scc1 Lred0")
    half(1)
    a("s_branch Lredj")
    a.label("Lred0")
    half(0)
    a.label("Lredj")
    st_(None, 3)
    a("s_lshl_b32 s55, s49, 4"); a("s_add_u32 s55, s55, s48"); a("s_lshl_b32 s55, s55, 7"); a(f"s_add_u32 s55, s55, {FL_KV}"); a("v_mov_b32 v28, s55")
    a("s_waitcnt vmcnt(0)")
    lds_count_last(a, 30, E_KVC, 31, 29, 3, lambda: a("buffer_store_dword v31, v28, s[36:39], 0 offen sc1"))
    st_(None, 4)
    a.label("Lred1")
    a("s_lshl_b32 s55, s48, 7"); a("s_lshl_b32 s61, s53, 6"); a("s_add_u32 s55, s55, s61")
    a("v_add_u32 v5, s55, v2"); a("v_lshlrev_b32 v5, 11, v5")
    a("s_lshl_b32 s55, s49, 7"); a("s_lshl_b32 s61, s54, 6"); a("s_add_u32 s55, s55, s61")
    a("v_and_b32 v6, 1, v3"); a("v_lshlrev_b32 v6, 5, v6"); a("v_lshrrev_b32 v7, 1, v3"); a("v_lshl_add_u32 v6, v7, 4, v6")
    a("v_add3_u32 v5, v5, v6, s55")
    a(f"s_mul_i32 s55, s50, 4608"); a(f"s_add_u32 s55, s55, {F_SCR}"); a("s_xor_b32 s61, s50, 1"); a("s_mul_i32 s61, s61, 4608"); a(f"s_add_u32 s61, s61, {F_SCR}")
    a("v_lshlrev_b32 v6, 4, v0"); a("v_add_u32 v8, s55, v6"); a("v_add_u32 v9, s61, v6")
    a("v_and_b32 v7, 7, v0"); a("v_lshlrev_b32 v7, 4, v7"); a("s_add_u32 s55, s55, 4096"); a("v_add_u32 v10, s55, v7")
    a("v_lshlrev_b32 v7, 4, v3"); a("v_add_u32 v11, s55, v7"); a("s_add_u32 s61, s61, 4096"); a("v_add_u32 v12, s61, v7")
    a("s_lshl_b32 s55, s50, 2"); a("v_mov_b32 v13, s55"); a("s_xor_b32 s55, s55, 4"); a("v_mov_b32 v14, s55")
    a("s_lshl_b32 s55, s49, 1"); a("s_add_u32 s55, s55, s54"); a("s_lshl_b32 s55, s55, 4"); a("s_lshl_b32 s61, s53, 3"); a("s_add_u32 s55, s55, s61")
    a("s_lshl_b32 s68, s55, 11"); a(f"s_add_u32 s68, s68, {WS_KVP}")
    a("s_lshl_b32 s69, s55, 7"); a(f"s_add_u32 s69, s69, {WS_ZP}")
    a("s_lshl_b32 s53, s51, 7"); a("s_lshl_b32 s54, s52, 2"); a("s_add_u32 s53, s53, s54"); a("s_add_u32 s53, s53, s50")
    a(f"s_mul_i32 s54, s50, {CWB}")
    a("v_and_b32 v6, 3, v0"); a(f"v_mul_u32_u24 v6, {CTS}, v6")
    a("v_bfe_u32 v7, v0, 2, 2"); a("v_lshlrev_b32 v7, 3, v7"); a("v_sub_u32 v6, v6, v7")
    a("v_lshl_add_u32 v6, v3, 4, v6")
    a(f"s_add_u32 s55, s54, {8 + 24 + 448}"); a("v_add_u32 v16, s55, v6")
    a("v_lshlrev_b32 v6, 5, v2"); a("v_lshl_add_u32 v6, v3, 4, v6")
    a(f"s_add_u32 s55, s54, {CF + 448}"); a("v_add_u32 v17, s55, v6")
    a("s_lshl_b32 s55, s53, 1"); a("s_and_b32 s55, s55, 0xfffffffc")
    a("s_add_u32 s8, s8, s55"); a("s_addc_u32 s9, s9, 0")
    a("s_load_dword s70, s[8:9], 0")
    make_srd(a, 24, 4, NB["x"]); make_srd(a, 28, 16, NB["out"])
    GXA = 224; GWA = 228; XR = 232; GR = 32
    a("s_lshr_b32 s66, s50, 1"); a("s_and_b32 s67, s50, 1")
    a("s_lshl_b32 s55, s96, 7"); a("s_lshl_b32 s61, s66, 6"); a("s_add_u32 s55, s55, s61")
    a("v_add_u32 v20, s55, v2"); a("v_lshlrev_b32 v21, 11, v20")
    a("s_lshl_b32 s55, s97, 7"); a("s_lshl_b32 s61, s67, 6"); a("s_add_u32 s64, s55, s61")
    a("v_lshl_add_u32 v22, v3, 3, s64"); a("v_add_u32 v22, v21, v22"); a("v_lshlrev_b32 v23, 2, v20")
    a("v_lshrrev_b32 v24, 1, v2"); a("v_xor_b32 v24, v24, v3")
    a("s_lshl_b32 s55, s66, 13")
    a("v_lshlrev_b32 v25, 7, v2"); a("v_add_u32 v25, s55, v25")
    a(f"v_lshl_add_u32 v{GXA+2}, v24, 4, v25")
    a("v_xor_b32 v26, 4, v24"); a(f"v_lshl_add_u32 v{GXA+3}, v26, 4, v25")
    for kk in range(2): a(f"v_add_u32 v{GXA+kk}, {F_U}, v{GXA+2+kk}")
    a("v_bfe_u32 v26, v0, 2, 2")
    a("v_lshl_add_u32 v27, v3, 3, v26"); a("v_lshlrev_b32 v27, 7, v27")
    a("v_and_b32 v28, 3, v0"); a("v_lshl_add_u32 v27, v28, 3, v27"); a("v_add_u32 v27, 16384, v27")
    a("v_bfe_u32 v28, v0, 3, 1"); a("v_bfe_u32 v29, v0, 4, 1"); a("v_lshl_or_b32 v28, v29, 1, v28")
    a("s_lshl_b32 s55, s67, 1"); a("v_xor_b32 v28, s55, v28")
    a(f"v_lshl_add_u32 v{GWA+2}, v28, 5, v27")
    a("v_xor_b32 v28, 1, v28"); a(f"v_lshl_add_u32 v{GWA+3}, v28, 5, v27")
    for u in range(2): a(f"v_add_u32 v{GWA+u}, {F_U}, v{GWA+2+u}")
    SEL = 240
    a("v_lshrrev_b32 v6, 2, v2"); a("v_cmp_eq_u32 vcc, v6, v3")
    a("v_and_b32 v6, 1, v2"); a("v_lshlrev_b32 v6, 4, v6"); a("v_mov_b32 v7, 0x3f80"); a("v_lshlrev_b32 v6, v6, v7")
    a("v_cndmask_b32 v6, 0, v6, vcc")
    a("v_bfe_u32 v7, v2, 1, 1"); a("v_cmp_eq_u32 vcc, 0, v7")
    for r in range(8): a(f"v_mov_b32 v{SEL+r}, 0")
    a(f"v_cndmask_b32 v{SEL}, 0, v6, vcc"); a(f"v_cndmask_b32 v{SEL+1}, v6, 0, vcc" if False else f"v_cndmask_b32_e64 v{SEL+1}, v6, 0, vcc")
    a(f"v_mov_b32 v{SEL+6}, v{SEL}"); a(f"v_mov_b32 v{SEL+7}, v{SEL+1}")
    a("v_mov_b32 v7, v3")
    q_frags()
    st_(None, 5)
    a("s_cmp_eq_u32 s50, 1"); a("s_cbranch_scc0 Lkvw")
    poll_zeroed(a, 28)
    a("s_lshl_b32 s55, s49, 11"); a(f"s_add_u32 s55, s55, {FL_KV}")
    a("v_lshl_add_u32 v27, v2, 7, s55")
    poll16(a, 27, 28, extra=(30, E_KVC, 4))
    a(f"ds_write_b32 v30, v31 offset:{E_KVR}")
    a("s_branch Lkvg")
    a.label("Lkvw")
    lds_spin(a, 30, E_KVR, 28, "eq", 1)
    a.label("Lkvg")
    st_(3, 6)
    PK = 128; PR = 64; ZR = 120
    a("v_lshlrev_b32 v6, 4, v0")
    a(f"buffer_load_dwordx4 {vr(ZR,4)}, v6, s[36:39], s69 offen sc1")
    for p in range(8):
        for q in range(2):
            a(f"buffer_load_dwordx4 {vr(PK+8*p+4*q,4)}, v6, s[36:39], s68 offen offset:{q*1024} sc1")
        a("s_add_u32 s68, s68, 2048")
    a("s_waitcnt vmcnt(16)")
    for r in range(4): a(f"v_add_f32_dpp v{ZR+r}, v{ZR+r}, v{ZR+r} row_ror:8 row_mask:0xf bank_mask:0xf")
    for r in range(4): a(f"v_mov_b32 v{ZR+4+r}, v{ZR+r}")
    a("s_nop 1")
    for r in range(4): a(f"v_permlane16_swap_b32 v{ZR+r}, v{ZR+4+r}")
    a("s_nop 1")
    for r in range(4): a(f"v_add_f32 v{ZR+r}, v{ZR+r}, v{ZR+4+r}")
    for r in range(4): a(f"v_mov_b32 v{ZR+4+r}, v{ZR+r}")
    a("s_nop 1")
    for r in range(4): a(f"v_permlane32_swap_b32 v{ZR+r}, v{ZR+4+r}")
    a("s_nop 1")
    for r in range(4): a(f"v_add_f32 v{ZR+r}, v{ZR+r}, v{ZR+4+r}")
    a(f"ds_write_b128 v10, {vr(ZR,4)}")
    for p in range(8):
        a(f"s_waitcnt vmcnt({14-2*p})")
        for q in range(2):
            for h_ in range(2):
                d = vr(PR + 4*(2*q + h_), 4)
                a(f"v_mfma_f32_16x16x32_bf16 {d}, {vr(SEL+4*h_,4)}, {vr(PK+8*p+4*q,4)}, {'0' if p == 0 else d}")
    a("s_nop 7")
    for q in range(4):
        a(f"ds_write_b128 v8, {vr(PR+4*q,4)} offset:{q*1024}")
    a("s_waitcnt lgkmcnt(0)")
    a(f"ds_write_b32 v13, v31 offset:{E_XF}")
    lds_spin(a, 14, E_XF, 28, "eq", 1)
    SB = 80
    for q in range(4):
        a(f"ds_read_b128 {vr(SB+4*q,4)}, v9 offset:{q*1024}")
    for ud in range(2):
        a(f"ds_read_b128 {vr(96+4*ud,4)}, v11 offset:{ud*64}"); a(f"ds_read_b128 {vr(104+4*ud,4)}, v12 offset:{ud*64}")
    a("s_waitcnt lgkmcnt(0)")
    for r in range(16): a(f"v_add_f32 v{PR+r}, v{PR+r}, v{SB+r}")
    for r in range(8): a(f"v_add_f32 v{96+r}, v{96+r}, v{104+r}")
    KA = 112; ZF = 120
    for ue in range(2):
        for ud in range(2):
            t = PR + (ud*2+ue)*4
            a(f"v_cvt_pk_bf16_f32 v{KA+4*ue+2*ud}, v{t}, v{t+1}"); a(f"v_cvt_pk_bf16_f32 v{KA+4*ue+2*ud+1}, v{t+2}, v{t+3}")
    for ud in range(2):
        t = 96 + 4*ud
        a(f"v_cvt_pk_bf16_f32 v{ZF+2*ud}, v{t}, v{t+1}"); a(f"v_cvt_pk_bf16_f32 v{ZF+2*ud+1}, v{t+2}, v{t+3}")
    a("s_nop 1")
    O = 128
    for ai in range(4):
        for ue in range(2):
            a(f"v_mfma_f32_16x16x32_bf16 {vr(O+(ai*3+ue)*4,4)}, {vr(KA+4*ue,4)}, {vr(QF+4*ai,4)}, 0")
        a(f"v_mfma_f32_16x16x32_bf16 {vr(O+(ai*3+2)*4,4)}, {vr(ZF,4)}, {vr(QF+4*ai,4)}, 0")
    a("s_nop 7")
    OP = 64
    for ai in range(4):
        dn = O + (ai*3+2)*4
        a(f"v_add_f32 v{dn}, s58, v{dn}")
        a(f"v_rcp_f32 v{dn}, v{dn}")
        a("s_nop 0")
        for ue in range(2):
            t = O + (ai*3+ue)*4
            for r in range(4): a(f"v_mul_f32 v{t+r}, v{t+r}, v{dn}")
            a(f"v_cvt_pk_bf16_f32 v{OP+4*ai+2*ue}, v{t}, v{t+1}"); a(f"v_cvt_pk_bf16_f32 v{OP+4*ai+2*ue+1}, v{t+2}, v{t+3}")
        o = OP + 4*ai
        a("s_nop 1")
        a(f"v_permlane16_swap_b32 v{o}, v{o+2}"); a(f"v_permlane16_swap_b32 v{o+1}, v{o+3}")
        a(f"s_mov_b32 s60, {WS_O + 16*ai*2048}")
        a(f"buffer_store_dwordx4 {vr(o,4)}, v5, s[36:39], s60 offen sc1")
    st_(4, 7)
    a("s_lshl_b32 s55, s53, 12")
    a("s_mov_b32 s58, s70")
    def publish_o():
        a("s_lshl_b32 s57, s48, 4"); a("s_add_u32 s57, s57, s49"); a("s_lshl_b32 s57, s57, 7"); a(f"s_add_u32 s57, s57, {FL_O}"); a("v_mov_b32 v28, s57")
        lds_spin(a, 30, E_ADC, 29, "ge", 4)
        a("s_waitcnt vmcnt(0)")
        lds_count_last(a, 30, E_OC, 31, 29, 3, lambda: a("buffer_store_dword v31, v28, s[36:39], 0 offen sc1"))
        a("s_nop 4")
    a("s_mov_b32 s71, 0")
    a(f"ds_read_b32 v29, v30 offset:{E_CRC}"); a("s_waitcnt lgkmcnt(0)")
    a("v_readfirstlane_b32 s60, v29"); a("s_cmp_ge_u32 s60, 4"); a("s_cbranch_scc1 Lconv")
    publish_o()
    a("s_mov_b32 s71, 1")
    lds_spin(a, 30, E_CRC, 29, "ge", 4)
    a.label("Lconv")
    st_(5)
    FR = 96; ACC = 32
    def tf(b, k1): return FR + b*64 + k1*4
    def ff(b, n1): return FR + b*64 + 32 + n1*4
    def rd(b):
        L = []
        for i in range(8):
            L.append(f"ds_read_b64 {vr(tf(b,i),2)}, v16 offset:{512*(7-i)}")
            L.append(f"ds_read_b64 {vr(tf(b,i)+2,2)}, v16 offset:{512*(7-i)+8}")
            L.append(f"ds_read_b128 {vr(ff(b,i),4)}, v17 offset:{512*i}")
        return L
    def mm(b, first):
        L = []; seen = set()
        for k1 in range(8):
            for n1 in range(8 - k1):
                t = k1 + n1
                d = vr(ACC + 4*t, 4)
                c = "0" if (first and t not in seen) else d
                seen.add(t)
                L.append(f"v_mfma_f32_16x16x32_bf16 {d}, {vr(tf(b,k1),4)}, {vr(ff(b,n1),4)}, {c}")
        return L
    for s_ in rd(0): a(s_)
    a("v_subrev_u32 v16, 64, v16"); a("v_subrev_u32 v17, 64, v17")
    a("s_lshr_b32 s57, s58, 16"); a("s_and_b32 s60, s58, 0xffff"); a("s_and_b32 s61, s53, 1"); a("s_cmp_eq_u32 s61, 0"); a("s_cselect_b32 s57, s60, s57")
    a("v_lshrrev_b32 v5, 3, v2"); a("v_add_u32 v5, 2, v5"); a("v_cmp_eq_u32 vcc, v5, v7")
    a("v_and_b32 v5, 1, v2"); a("v_lshlrev_b32 v5, 4, v5"); a("v_mov_b32 v6, s57"); a("v_lshlrev_b32 v6, v5, v6")
    a("v_cndmask_b32 v6, 0, v6, vcc")
    a("v_bfe_u32 v5, v2, 1, 2")
    for w_ in range(4):
        a(f"v_cmp_eq_u32 vcc, {w_}, v5"); a("s_nop 1"); a(f"v_cndmask_b32 v{24+w_}, 0, v6, vcc")
    DF = 24
    def resid(b, first, last):
        Ms = mm(b, first)
        if first: Ms += [f"v_mfma_f32_16x16x32_bf16 {vr(ACC+4*t,4)}, {vr(DF,4)}, {vr(ff(b,t),4)}, {vr(ACC+4*t,4)}" for t in range(8)]
        R_ = [] if last else rd(b ^ 1)
        a("s_waitcnt lgkmcnt(0)")
        for m_ in Ms:
            a(m_)
            if R_: a(R_.pop(0))
        if not last:
            a("v_subrev_u32 v16, 64, v16"); a("v_subrev_u32 v17, 64, v17")
    resid(0, True, False); resid(1, False, False)
    a("s_cmp_eq_u32 s71, 0"); a("s_cbranch_scc0 Lpubd")
    publish_o()
    a.label("Lpubd")
    for ai in range(4):
        a(f"s_mov_b32 s61, {16*ai*2048}")
        for u in range(2):
            a(f"buffer_load_dwordx2 {vr(XR+(ai*2+u)*2,2)}, v22, s[24:27], s61 offen offset:{32*u}")
    a("s_mov_b32 s60, 0")
    a(f".p2align {opt.get('align', 6)}")
    a.label("Lcl")
    resid(0, False, False); resid(1, False, False)
    a("s_add_u32 s60, s60, 1"); a("s_cmp_lt_u32 s60, 2"); a("s_cbranch_scc1 Lcl")
    resid(0, False, False); resid(1, False, True)
    a("v_lshlrev_b32 v5, 5, v2"); a("v_lshl_add_u32 v5, v7, 3, v5")
    a(f"s_add_u32 s56, s55, {WS_YT}")
    a("s_nop 7")
    for t in range(8):
        y = ACC + 4*t
        a(f"v_cvt_pk_bf16_f32 v{y}, v{y}, v{y+1}"); a(f"v_cvt_pk_bf16_f32 v{y+1}, v{y+2}, v{y+3}")
        a(f"buffer_store_dwordx2 {vr(y,2)}, v5, s[36:39], s56 offen offset:{512*t} sc1")

    NS = 6
    def gacc(ai, u): return 64 + (u*4 + ai)*4
    def gxf(buf, kk, ai): return 96 + buf*48 + (kk*4 + ai)*4
    def gwf(buf, kk, u): return 96 + buf*48 + 32 + (kk*2 + u)*4
    def greads(st, buf):
        slot = st % NS
        hi = 0 if slot < 3 else 2
        so = (slot % 3) * ST3
        L = []
        for kk in range(2):
            X = [f"ds_read_b128 {vr(gxf(buf,kk,ai),4)}, v{GXA+hi+kk} offset:{so + ai*2048}" for ai in range(4)]
            W = [[f"ds_read_b64_tr_b16 {vr(gwf(buf,kk,u)+2*sec,2)}, v{GWA+hi+u} offset:{so + kk*4096 + sec*512}" for sec in range(2)] for u in range(2)]
            L += W[0] + [X[0], X[1]] + W[1] + [X[2], X[3]]
        return L
    def gmfmas(buf, first=False):
        return [f"v_mfma_f32_16x16x32_bf16 {vr(gacc(ai,u),4)}, {vr(gwf(buf,kk,u),4)}, {vr(gxf(buf,kk,ai),4)}, {'0' if first and kk == 0 else vr(gacc(ai,u),4)}"
                for kk in range(2) for u in range(2) for ai in range(4)]
    XG = 192
    xg = []
    for ai in range(4):
        for u in range(2):
            xr = XR + (ai*2+u)*2; o = XG + (ai*2+u)*4
            xg += [f"v_lshlrev_b32 v{o}, 16, v{xr}", f"v_and_b32 v{o+1}, 0xffff0000, v{xr}",
                   f"v_lshlrev_b32 v{o+2}, 16, v{xr+1}", f"v_and_b32 v{o+3}, 0xffff0000, v{xr+1}"]
    a("s_mov_b64 exec, 1"); a(f"ds_add_u32 v30, v31 offset:{E_CD}"); a("s_mov_b64 exec, -1")
    a(f"v_mov_b32 v30, {F_FL}")
    a("s_barrier")
    st_(6, None, 1)
    for s_ in greads(0, 0): a(s_)
    for st in range(16):
        buf = st & 1
        Ms = gmfmas(buf, st == 0)
        q = greads(st + 1, buf ^ 1) if st < 15 else []
        if st == 15:
            q = [f"ds_read_b64_tr_b16 {vr(96+(ai*2+u)*2,2)}, v6 offset:{u*16*256 + ai*32}" for ai in range(4) for u in range(2)]
        extra = []
        if 5 <= st < 15:
            n = -(-len(xg) // 10)
            extra = xg[(st-5)*n:(st-4)*n]
        a("s_waitcnt lgkmcnt(0)")
        if st in (4, 8, 12, 15): st_(None, None, {4: 2, 8: 3, 12: 4, 15: 5}[st])
        if st == 4:
            a("s_waitcnt vmcnt(0)")
            a("s_lshr_b32 s65, s53, 2"); a("s_lshl_b32 s65, s65, 7"); a(f"s_add_u32 s65, s65, {FL_Y}"); a("v_mov_b32 v28, s65")
            lds_count_last(a, 30, 0, 31, 29, 3, lambda: a("buffer_store_dword v31, v28, s[36:39], 0 offen sc1"))
            a("s_nop 4")
        if st == 13:
            a("v_bfe_u32 v6, v0, 2, 2"); a("v_lshl_add_u32 v6, v7, 2, v6")
            a("s_lshl_b32 s57, s67, 5"); a("v_add_u32 v6, s57, v6"); a("v_lshlrev_b32 v6, 8, v6")
            a("v_and_b32 v5, 3, v0"); a("v_lshl_add_u32 v6, v5, 3, v6")
            a("s_lshl_b32 s57, s66, 7"); a(f"s_add_u32 s57, s57, {F_Y}"); a("v_add_u32 v6, s57, v6")
            a("v_and_b32 v8, 1, v7"); a("v_lshlrev_b32 v8, 5, v8"); a("v_lshrrev_b32 v9, 1, v7"); a("v_lshl_add_u32 v8, v9, 4, v8")
            a("v_add3_u32 v8, v21, v8, s64")
        if st == 15:
            a("s_waitcnt vmcnt(0)")
            for ai in range(4): a(f"v_sub_f32 v{GR+4*ai+2}, 1.0, v{GR+4*ai}")
        if st == 11:
            a(f"s_mov_b32 s61, {WS_G}")
            for ai in range(4):
                a(f"buffer_load_dword v{GR+4*ai}, v23, s[36:39], s61 offen offset:{64*ai} sc1")
        for i in range(16):
            a(Ms[i])
            if i == 1 and st < 15: a("s_barrier")
            if i >= 1:
                for _ in range(2):
                    if q: a(q.pop(0))
            if i >= 9:
                for _ in range(3):
                    if extra: a(extra.pop(0))
        for s_ in q + extra: a(s_)
    a("s_waitcnt lgkmcnt(0)")
    st_(None, None, 6)
    YR = 96; OP = 112; T = 128
    for ai in range(4):
        g_ = GR + 4*ai
        for u in range(2):
            t = gacc(ai, u); yr = YR + (ai*2+u)*2; xo = XG + (ai*2+u)*4; T_ = T + 4*(u & 1)
            a(f"v_lshlrev_b32 v{T_}, 16, v{yr}"); a(f"v_and_b32 v{T_+1}, 0xffff0000, v{yr}")
            a(f"v_lshlrev_b32 v{T_+2}, 16, v{yr+1}"); a(f"v_and_b32 v{T_+3}, 0xffff0000, v{yr+1}")
            for h_ in range(2):
                a(f"v_pk_mul_f32 {vr(T_+2*h_,2)}, {vr(T_+2*h_,2)}, {vr(xo+2*h_,2)}")
                a(f"v_pk_mul_f32 {vr(T_+2*h_,2)}, {vr(T_+2*h_,2)}, {vr(g_+2,2)} op_sel_hi:[1,0]")
                a(f"v_pk_fma_f32 {vr(T_+2*h_,2)}, {vr(t+2*h_,2)}, {vr(g_,2)}, {vr(T_+2*h_,2)} op_sel_hi:[1,0,1]")
                a(f"v_cvt_pk_bf16_f32 v{OP+4*ai+2*u+h_}, v{T_+2*h_}, v{T_+2*h_+1}")
        o = OP + 4*ai
        a("s_nop 1")
        a(f"v_permlane16_swap_b32 v{o}, v{o+2}"); a(f"v_permlane16_swap_b32 v{o+1}, v{o+3}")
        a(f"s_mov_b32 s61, {16*ai*2048}")
        a(f"buffer_store_dwordx4 {vr(o,4)}, v8, s[28:31], s61 offen{opt.get('outfl', '')}")
    a("s_waitcnt vmcnt(0)")
    st_(7, None, 7)
    stamp_dump(a, opt, 8)
    a("s_waitcnt vmcnt(0)")
    a("s_endpgm")

def a_waves(a, opt):
    a("s_sub_u32 s53, s50, 4")
    VA = 8; VW = 12
    a("v_lshrrev_b32 v2, 3, v0"); a("v_and_b32 v3, 7, v0"); a("v_lshrrev_b32 v4, 4, v0")
    a("s_lshl_b32 s55, s48, 7"); a("s_lshl_b32 s61, s53, 5"); a("s_add_u32 s55, s55, s61")
    a("v_add_u32 v5, s55, v2"); a("v_lshlrev_b32 v5, 11, v5")
    a("v_xor_b32 v6, v4, v3"); a(f"v_lshl_add_u32 v{VA}, v6, 4, v5")
    a("v_xor_b32 v6, 4, v6"); a(f"v_lshl_add_u32 v{VA+1}, v6, 4, v5"); a(f"v_add_u32 v{VA+1}, 16384, v{VA+1}")
    for i in range(2, 4): a(f"v_add_u32 v{VA+i}, 32768, v{VA+(i&1)}")
    a("v_and_b32 v6, 1, v4"); a("v_lshlrev_b32 v6, 1, v6"); a("v_xor_b32 v6, v6, v3")
    a("v_mul_u32_u24 v5, 6144, v2")
    a(f"s_mul_i32 s55, s53, {2*8*6144}"); a("s_lshl_b32 s61, s49, 7"); a("s_add_u32 s55, s55, s61")
    a("v_add_u32 v5, s55, v5")
    a(f"v_lshl_add_u32 v{VW}, v6, 4, v5")
    a("v_xor_b32 v6, 4, v6"); a(f"v_lshl_add_u32 v{VW+1}, v6, 4, v5"); a(f"v_add_u32 v{VW+1}, {8*6144}, v{VW+1}")
    WL = [(seg, r2) for seg in range(3) for r2 in range(2)]
    for i, (seg, r2) in enumerate(WL):
        if i >= 2: a(f"v_add_u32 v{VW+i}, {seg*2048}, v{VW + r2}")
    a("s_lshl_b32 s64, s53, 12")
    a("s_lshl_b32 s65, s53, 11"); a("s_add_u32 s65, s65, 16384")
    a("s_lshr_b32 s46, s52, 3"); a("s_add_u32 s46, s46, s52"); a("s_and_b32 s46, s46, 3"); a("s_lshl_b32 s46, s46, 2")
    a("s_lshl_b32 s66, s46, 7"); a(f"s_mul_i32 s67, s46, {64*6144}"); a("s_mov_b32 s68, 0")
    a("s_waitcnt lgkmcnt(0)")
    make_srd(a, 20, 4, NB["x"]); make_srd(a, 24, 6, NB["wqkv"])
    def prep():
        a("s_add_u32 s69, s64, s68"); a("s_add_u32 s55, s65, s68"); a("s_mov_b32 m0, s69")
    def issue(prepared=False):
        if not prepared: prep(); a("s_nop 0")
        fill = [f"s_add_u32 s68, s68, {ST1}", f"s_cmp_eq_u32 s68, {4*ST1}\ns_cselect_b32 s68, 0, s68", "s_nop 0"]
        for i in range(4):
            if i:
                a(f"s_add_u32 m0, s69, {i*1024}"); a(fill.pop(0))
            a(f"buffer_load_dwordx4 v{VA+i}, s[20:23], s66 offen lds")
        fill = ["s_add_u32 s66, s66, 128", "s_cmp_eq_u32 s66, 2048\ns_cselect_b32 s66, 0, s66"]
        for i, (seg, r2) in enumerate(WL):
            a(f"s_add_u32 m0, s55, {seg*8192 + r2*1024}"); a(fill.pop(0) if fill else "s_nop 0")
            a(f"buffer_load_dwordx4 v{VW+i}, s[24:27], s67 offen lds")
        a(f"s_add_u32 s67, s67, {64*6144}"); a(f"s_cmp_eq_u32 s67, {16*64*6144}"); a("s_cselect_b32 s67, 0, s67")
    issue(); issue()
    a("s_load_dwordx4 s[8:11], s[0:1], 32")
    a("s_load_dwordx4 s[4:7], s[0:1], 48")
    a("s_load_dwordx2 s[16:17], s[0:1], 72")
    a("s_load_dwordx2 s[18:19], s[0:1], 16")
    ramp = (1, 1, 1, 1, 2)
    issued = 2
    for i, n in enumerate(ramp):
        prep()
        a(f"s_waitcnt vmcnt({10*(issued - i - 1)})"); a("s_barrier")
        if i == 0: stamp(a, opt, 1)
        for k_ in range(n):
            issue(prepared=(k_ == 0)); issued += 1
        if i == 0:
            a("s_waitcnt lgkmcnt(0)")
            make_srd(a, 28, 8, NB["bk"]); make_srd(a, 32, 10, NB["bv"])
            make_srd(a, 36, 14, WS_USED); make_srd(a, 40, 4, NB["shift"]); make_srd(a, 44, 16, NB["gw"])
    i0 = len(ramp)
    a(f"s_mov_b32 s60, {i0}")
    a(f".p2align {opt.get('align', 6)}")
    a.label("Llloop")
    prep()
    a("s_add_u32 s60, s60, 1")
    a("s_waitcnt vmcnt(20)"); a("s_barrier")
    issue(prepared=True)
    a("s_cmp_lt_u32 s60, 13"); a("s_cbranch_scc1 Llloop")
    NTKV = "" if opt.get("kvtouch") else " nt"
    pl = Asm()
    pl("s_and_b32 s70, s2, 15"); pl("s_lshr_b32 s71, s2, 4")
    pl("v_lshrrev_b32 v20, 3, v0"); pl("v_and_b32 v21, 7, v0")
    pl("s_lshl_b32 s72, s70, 7"); pl("s_lshl_b32 s73, s53, 5"); pl("s_add_u32 s72, s72, s73")
    pl("v_lshl_add_u32 v22, v20, 2, s72")
    pl("s_lshl_b32 s73, s71, 6"); pl("v_lshl_add_u32 v23, v21, 3, s73")
    pl("v_lshlrev_b32 v24, 11, v22"); pl("v_lshl_add_u32 v24, v23, 1, v24")
    pl("v_subrev_u32 v25, 6144, v24")
    for r in range(7):
        if r: pl("v_add_u32 v25, 2048, v25")
        pl(f"buffer_load_dwordx4 {vr(32+4*r,4)}, v25, s[28:31], 0 offen{NTKV}")
    pl("v_add_u32 v26, 4096, v24")
    for r in range(4):
        pl(f"buffer_load_dwordx4 {vr(60+4*r,4)}, v{24 if r < 2 else 26}, s[32:35], 0 offen offset:{2048*(r & 1)}{NTKV}")
    partA = pl.lines; pl = Asm()
    pl("v_lshlrev_b32 v27, 3, v23")
    for q in range(4):
        pl(f"buffer_load_dwordx4 {vr(76+4*q,4)}, v27, s[40:43], 0 offen offset:{16*q}")
    pl("s_lshl_b32 s73, s48, 7"); pl("s_lshl_b32 s74, s49, 3"); pl("s_add_u32 s73, s73, s74"); pl("s_lshl_b32 s74, s53, 1"); pl("s_add_u32 s73, s73, s74")
    pl("v_lshrrev_b32 v28, 5, v0"); pl("v_add_u32 v28, s73, v28")
    pl("v_and_b32 v29, 31, v0"); pl("v_lshlrev_b32 v29, 4, v29")
    pl("v_lshl_add_u32 v30, v28, 11, v29")
    for i in range(4):
        pl(f"buffer_load_dwordx4 {vr(92+4*i,4)}, v30, s[20:23], 0 offen offset:{512*i}")
    for i in range(4):
        pl(f"buffer_load_dwordx4 {vr(108+4*i,4)}, v29, s[44:47], 0 offen offset:{512*i}")
    pl("v_lshlrev_b32 v31, 12, v23"); pl("v_lshl_add_u32 v31, v22, 1, v31")
    pl(f"s_mov_b32 s72, {WS_UT}")
    pl("s_mov_b32 s74, 0x05040100"); pl("s_mov_b32 s75, 0x07060302")
    partB = pl.lines
    a("v_mov_b32 v160, 0"); a("v_mov_b32 v161, 0"); a("v_mov_b32 v162, 0"); a("v_mov_b32 v163, 0")
    a("v_and_b32 v164, 1, v0"); a("v_lshlrev_b32 v164, 4, v164")
    a("s_waitcnt vmcnt(20)"); a("s_barrier")
    a(f"ds_write_b128 v164, v[160:163] offset:{F_E0}")
    for ln in partA: a(ln)
    a("s_waitcnt vmcnt(21)"); a("s_barrier")
    a(f"ds_write_b128 v164, v[160:163] offset:{F_E1}")
    for ln in partB: a(ln)
    a("s_lshl_b32 s54, s51, 7"); a("s_lshl_b32 s55, s52, 2"); a("s_add_u32 s54, s54, s55"); a("s_add_u32 s54, s54, s53")
    a("s_lshl_b32 s55, s54, 12")
    a("s_add_u32 s60, s6, s55"); a("s_addc_u32 s61, s7, 0")
    a("v_lshlrev_b32 v1, 2, v0"); a("v_subrev_u32 v3, 4, v1"); a("v_add_u32 v4, 252, v1")
    a("s_waitcnt vmcnt(23) lgkmcnt(0)"); a("s_barrier")
    a("v_and_b32 v165, 7, v0"); a("v_lshlrev_b32 v165, 4, v165"); a(f"v_add_u32 v165, {F_FL}, v165")
    a("ds_write_b128 v165, v[160:163]")
    a("s_mov_b32 s24, s60"); a("s_mov_b32 s25, s61"); a("s_mov_b32 s26, 4096"); a("s_mov_b32 s27, 0x00020000")
    E = 176; E1 = 192
    for j in range(16):
        a(f"buffer_load_dword v{E+j}, v1, s[24:27], 0 offen offset:{256*j} nt")
        if j == 0: a(f"buffer_load_dword v{E1}, v3, s[24:27], 0 offen")
        else:      a(f"buffer_load_dword v{E1+j}, v4, s[24:27], 0 offen offset:{256*(j-1)}")
    a("s_waitcnt vmcnt(40)")
    stamp(a, opt, 2)
    P = 128; KS = 140; VU = 148
    for c in range(8):
        cp, h = c >> 1, c & 1
        sel = "s75" if h else "s74"
        pb = P + 6*(c & 1); kb = KS + 4*(c & 1)
        for t in range(6): a(f"v_perm_b32 v{pb+t}, v{32+4*t+cp}, v{32+4*(t+1)+cp}, {sel}")
        for r in range(4): a(f"v_dot2_f32_bf16 v{kb+r}, v{pb+r+2}, v{76+2*c}, 0")
        for r in range(4): a(f"v_dot2_f32_bf16 v{kb+r}, v{pb+r}, v{76+2*c+1}, v{kb+r}")
        for r in range(4):
            if h: a(f"v_and_b32 v{VU+r}, 0xffff0000, v{60+4*r+cp}")
            else: a(f"v_lshlrev_b32 v{VU+r}, 16, v{60+4*r+cp}")
        for r in range(4): a(f"v_mul_f32 v{kb+r}, v{kb+r}, v{VU+r}")
        o = 152 + 2*(c & 3)
        a(f"v_cvt_pk_bf16_f32 v{o}, v{kb}, v{kb+1}"); a(f"v_cvt_pk_bf16_f32 v{o+1}, v{kb+2}, v{kb+3}")
        a(f"s_add_u32 s73, s72, {c*4096}")
        a(f"buffer_store_dwordx2 {vr(o,2)}, v31, s[36:39], s73 offen sc1")
    a("s_waitcnt vmcnt(40)")
    a("v_mov_b32 v128, 0")
    for i in range(16): a(f"v_dot2_f32_bf16 v128, v{92+i}, v{108+i}, v128")
    a("s_nop 3")
    for ctl in ("quad_perm:[1,0,3,2]", "quad_perm:[2,3,0,1]", "row_half_mirror", "row_mirror"):
        a(f"v_add_f32_dpp v128, v128, v128 {ctl} row_mask:0xf bank_mask:0xf"); a("s_nop 1")
    a("v_mov_b32 v129, v128"); a("s_nop 1")
    a("v_permlane16_swap_b32 v128, v129"); a("s_nop 1")
    a("v_add_f32 v128, v128, v129")
    a("v_mul_f32 v128, 0xbfb8aa3b, v128"); a("v_exp_f32 v128, v128"); a("s_nop 0")
    a("v_add_f32 v128, 1.0, v128"); a("v_rcp_f32 v128, v128")
    a("v_lshlrev_b32 v28, 2, v28"); a("v_and_b32 v29, 31, v0"); a("v_cmp_eq_u32 vcc, 0, v29")
    a("s_and_saveexec_b64 s[62:63], vcc")
    a(f"s_mov_b32 s73, {WS_G}")
    a("buffer_store_dword v128, v28, s[36:39], s73 offen sc1")
    a("s_mov_b64 exec, s[62:63]")
    stamp(a, opt, 3)
    a("v_lshlrev_b32 v2, 4, v0")
    a(f"s_mul_i32 s56, s53, {CWB}")
    a("v_mov_b32 v12, 0"); a("v_mov_b32 v13, 0"); a("v_mov_b32 v14, 0"); a("v_mov_b32 v15, 0")
    a(f"s_add_u32 s57, s56, {CF}")
    a("v_min_u32 v5, 29, v0"); a("v_lshl_add_u32 v5, v5, 4, s57")
    a("ds_write_b128 v5, v[12:15]")
    a("v_lshrrev_b32 v5, 3, v0"); a("v_and_b32 v5, 3, v5"); a(f"v_mul_u32_u24 v5, {CTS}, v5")
    a("v_and_b32 v6, 7, v0"); a("v_lshl_add_u32 v5, v6, 2, v5")
    a(f"s_add_u32 s57, s56, {8 + 4*1023}"); a("v_add_u32 v5, s57, v5")
    a("ds_write_b32 v5, v12")
    TW = 16
    for rho in range(4):
        a(f"s_add_u32 s57, s56, {rho*CTS + 256 + (4 if rho >= 2 else 0)}")
        a(f"v_sub_u32 v{TW+rho}, s57, v1")
    a("s_mov_b32 s59, 0xffff")
    a("s_waitcnt vmcnt(9)")
    S = 64; M = 80
    for j in range(16):
        a(f"v_alignbit_b32 v{S+j}, v{E+j}, v{E+j}, 16")
        a(f"v_bfi_b32 v{M+j}, s59, v{E+j}, v{E1+j}")
    for j in range(0, 16, 2):
        for rho in range(4):
            src = S if rho & 1 else M
            a(f"ds_write2st64_b32 v{TW+rho}, v{src+j}, v{src+j+1} offset0:{15-j} offset1:{14-j}")
    make_srd(a, 40, 12, 256); make_srd(a, 24, 18, NB["wo"])
    a("v_mov_b32 v9, 0"); a("v_mov_b32 v11, 1")
    a("s_lshl_b32 s60, s2, 7"); a(f"s_add_u32 s60, s60, {FL_U}"); a("v_mov_b32 v10, s60")
    a("s_waitcnt vmcnt(0)")
    lds_count_last(a, 9, E_ADC, 11, 8, 3, lambda: a("buffer_store_dword v11, v10, s[36:39], 0 offen sc1"))
    stamp(a, opt, 4)
    a("v_lshrrev_b32 v96, 3, v0"); a("v_and_b32 v97, 7, v0"); a("v_lshrrev_b32 v98, 4, v0")
    a("s_cmp_eq_u32 s53, 3"); a("s_cbranch_scc1 Lawo")
    a("s_lshl_b32 s60, s96, 7"); a("v_add_u32 v99, s60, v96"); a("v_lshlrev_b32 v99, 11, v99")
    a("v_xor_b32 v100, v98, v97"); a("v_lshl_add_u32 v20, v100, 4, v99")
    a("v_xor_b32 v100, 4, v100"); a("v_lshl_add_u32 v21, v100, 4, v99")
    a("s_mov_b32 s28, s36"); a("s_mov_b32 s29, s37"); a("s_mov_b32 s30, s38"); a("s_mov_b32 s31, s39")
    a("s_sub_u32 s60, s53, 1"); a("s_lshl_b32 s64, s60, 13"); a("s_lshl_b32 s66, s60, 17"); a(f"s_add_u32 s66, s66, {WS_O}"); a("s_mov_b32 s65, 128")
    a("s_branch Lawd")
    a.label("Lawo")
    a("v_and_b32 v100, 1, v98"); a("v_lshlrev_b32 v100, 1, v100"); a("v_xor_b32 v100, v100, v97")
    a("v_lshlrev_b32 v99, 11, v96"); a("s_lshl_b32 s61, s97, 7"); a("v_add_u32 v99, s61, v99")
    a("v_lshl_add_u32 v20, v100, 4, v99")
    a("v_xor_b32 v100, 4, v100"); a("v_lshl_add_u32 v21, v100, 4, v99")
    a("s_mov_b32 s28, s24"); a("s_mov_b32 s29, s25"); a("s_mov_b32 s30, s26"); a("s_mov_b32 s31, s27")
    a("s_mov_b32 s64, 16384"); a("s_mov_b32 s66, 0"); a("s_mov_b32 s65, 131072")
    a.label("Lawd")
    a("v_lshrrev_b32 v99, 4, v0"); a("s_lshl_b32 s60, s97, 6"); a("v_add_u32 v99, s60, v99"); a("v_lshlrev_b32 v99, 12, v99")
    a("v_and_b32 v100, 15, v0"); a("v_lshl_add_u32 v99, v100, 4, v99"); a("s_lshl_b32 s60, s96, 8"); a("v_add_u32 v26, s60, v99")
    a("s_cmp_eq_u32 s53, 0"); a("s_cbranch_scc1 Lupoll")
    a("s_lshl_b32 s60, s52, 5"); a("s_lshl_b32 s61, s53, 3"); a("s_add_u32 s60, s60, s61"); a("s_sub_u32 s60, s60, 8")
    a("v_lshrrev_b32 v96, 3, v0"); a("v_add_u32 v96, s60, v96"); a("v_lshlrev_b32 v96, 11, v96")
    a("v_and_b32 v97, 7, v0"); a("v_lshl_add_u32 v96, v97, 7, v96")
    a("s_lshr_b32 s60, s51, 2"); a("s_lshl_b32 s60, s60, 10")
    a("buffer_load_dword v98, v96, s[24:27], s60 offen")
    a("s_cmp_eq_u32 s53, 3"); a("s_cbranch_scc0 Lnpf")
    a("v_add_u32 v96, 16384, v96")
    a("buffer_load_dword v99, v96, s[24:27], s60 offen")
    a.label("Lnpf")
    lds_spin(a, 9, E_UR, 8, "eq", 1)
    a("s_branch Lugo")
    a.label("Lupoll")
    poll_zeroed(a, 100)
    a("s_lshl_b32 s60, s51, 1"); a("s_lshr_b32 s61, s52, 4"); a("s_add_u32 s60, s60, s61"); a("s_lshl_b32 s60, s60, 11"); a(f"s_add_u32 s60, s60, {FL_U}")
    a("v_and_b32 v102, 15, v0"); a("v_lshl_add_u32 v102, v102, 7, s60")
    poll16(a, 102, 100)
    a(f"ds_write_b32 v9, v11 offset:{E_UR}")
    a.label("Lugo")
    a(f"s_add_u32 s57, s55, {WS_UT}")
    for i in range(4):
        a(f"s_add_u32 m0, s56, {CF + 480 + i*1024}")
        a(f"s_add_u32 s60, s57, {i*1024}")
        a("buffer_load_dwordx4 v2, s[36:39], s60 offen sc1 lds")
    a("s_waitcnt vmcnt(0) lgkmcnt(0)")
    a("s_mov_b64 exec, 1")
    a(f"ds_add_u32 v9, v11 offset:{E_CRC}")
    a("s_mov_b64 exec, -1")
    stamp(a, opt, 5)
    def slot_base(st):
        sl = st % 6
        return (F_U + sl*ST3) if sl < 3 else (sl - 3)*ST3
    ORD = 64
    a(f"v_mov_b32 v27, {F_FL}")
    a("s_cmp_eq_u32 s53, 0"); a("s_cbranch_scc0 Lgload")
    a("s_lshl_b32 s60, s96, 11"); a(f"s_add_u32 s60, s60, {FL_O}")
    a("v_and_b32 v102, 15, v0"); a("v_lshl_add_u32 v102, v102, 7, s60")
    a("s_lshl_b32 s60, s97, 11"); a(f"s_add_u32 s60, s60, {FL_Y}")
    a("v_and_b32 v103, 15, v0"); a("v_lshl_add_u32 v103, v103, 7, s60")
    a("s_mov_b32 s70, 0"); a("s_mov_b32 s71, 0")
    def absorb():
        l0, l1 = lab("ab"), lab("ae")
        a("v_cmp_eq_u32 vcc, 1, v100"); a("s_nop 3")
        a("s_and_b32 s72, vcc_lo, 0xffff"); a("s_andn2_b32 s62, s72, s71")
        a.label(l0)
        a("s_cmp_eq_u32 s62, 0"); a(f"s_cbranch_scc1 {l1}")
        a("s_ff1_i32_b32 s47, s62"); a("s_lshl_b32 s60, 1, s47"); a("s_or_b32 s71, s71, s60"); a("s_andn2_b32 s62, s62, s60")
        a("s_add_u32 s47, s47, 1"); a("v_mov_b32 v101, s47"); a("s_lshl_b32 s60, s70, 2"); a("v_add_u32 v104, s60, v27")
        a(f"ds_write_b32 v104, v101 offset:{ORD}"); a("s_add_u32 s70, s70, 1")
        a(f"s_branch {l0}")
        a.label(l1)
    a("s_mov_b32 s61, 0")
    a.label("Lsync0")
    a(f"buffer_load_dword v100, v102, s[36:39], 0 offen{POLL[0]}")
    a("s_mov_b32 s73, 0")
    a.label("Lsyncw")
    a(f"ds_read_b32 v105, v9 offset:{E_CD}"); a("s_waitcnt lgkmcnt(0)")
    a("v_readfirstlane_b32 s60, v105"); a("s_add_u32 s73, s73, 1")
    a("s_cmp_ge_u32 s60, 4"); a("s_cselect_b32 s60, 1, 0"); a("s_cmp_ge_u32 s70, 4"); a("s_cselect_b32 s62, 1, 0"); a("s_and_b32 s60, s60, s62"); a("s_cbranch_scc1 Lsync1")
    a("s_cmp_lt_u32 s73, 4"); a("s_cbranch_scc1 Lsyncw")
    a("s_waitcnt vmcnt(0)")
    absorb()
    a("s_cmp_eq_u32 s70, 16"); a("s_cbranch_scc1 Lsync1")
    a("s_add_u32 s61, s61, 1"); a(f"s_cmp_lt_u32 s61, {SPIN_MAX}"); a("s_cbranch_scc1 Lsync0")
    a("v_mov_b32 v100, 1"); absorb()
    a.label("Lsync1")
    stamp(a, opt, 6)
    first_after = {}
    issued_ = 3
    for i in range(16):
        n_ = 0
        while issued_ + n_ <= min(15, i + 5) and n_ < opt.get("gburst", 2): n_ += 1
        if n_: first_after[i] = (issued_, issued_ + n_ - 1)
        issued_ += n_
    def ensure(count):
        l0, l1 = lab("en"), lab("ex")
        a("s_mov_b32 s73, 0")
        a.label(l0)
        a(f"s_cmp_ge_u32 s70, {count}"); a(f"s_cbranch_scc1 {l1}")
        a(f"buffer_load_dword v100, v102, s[36:39], 0 offen{POLL[0]}"); a("s_waitcnt vmcnt(0)")
        absorb()
        a("s_add_u32 s73, s73, 1"); a(f"s_cmp_lt_u32 s73, {SPIN_MAX}"); a(f"s_cbranch_scc1 {l0}")
        a("v_mov_b32 v100, 1"); absorb()
        a.label(l1)
    for i in range(16):
        if i in first_after: ensure(first_after[i][0] + 1)
        if i == 15: a("s_waitcnt vmcnt(0)")
        a("s_barrier")
        if i in first_after:
            nxt = first_after.get(i + 1, (first_after[i][1],))[0]
            ensure(max(first_after[i][1], nxt) + 1)
        if i == 9:
            a("buffer_load_dword v106, v103, s[36:39], 0 offen sc1")
        if i == 11:
            l = lab("sy"); l2 = lab("sz")
            a("s_mov_b32 s73, 0")
            a.label(l2)
            a("s_waitcnt vmcnt(0)")
            a("v_cmp_ne_u32 vcc, 1, v106"); a("s_add_u32 s73, s73, 1"); a("s_nop 3"); a("s_cmp_eq_u64 vcc, 0"); a(f"s_cbranch_scc1 {l}")
            a("buffer_load_dword v106, v103, s[36:39], 0 offen sc1")
            a(f"s_cmp_lt_u32 s73, {SPIN_MAX}"); a(f"s_cbranch_scc1 {l2}")
            a.label(l)
            for t in range(16):
                a(f"s_mov_b32 m0, {F_Y + t*1024}"); a(f"s_mov_b32 s61, {WS_YT + t*4*4096}")
                a("buffer_load_dwordx4 v26, s[36:39], s61 offen sc1 lds")
    a("s_branch Lgend")
    a.label("Lgload")
    def fetch_ord(k):
        a(f"ds_read_b32 v100, v27 offset:{ORD + 4*k}")
    def decode():
        a("v_readfirstlane_b32 s62, v100")
        a("s_sub_u32 s68, s62, 1"); a("s_and_b32 s68, s68, 15"); a("s_mul_i32 s68, s68, s65"); a("s_add_u32 s68, s68, s66")
    def take_ord(k, decoded=False):
        l0, l1 = lab("to"), lab("tx")
        if not decoded:
            a("s_waitcnt lgkmcnt(0)"); decode()
        a("s_cmp_lg_u32 s62, 0"); a(f"s_cbranch_scc1 {l1}")
        a("s_mov_b32 s61, 0")
        a.label(l0)
        fetch_ord(k); a("s_waitcnt lgkmcnt(0)"); decode()
        a("s_add_u32 s61, s61, 1"); a("s_cmp_lg_u32 s62, 0"); a(f"s_cbranch_scc1 {l1}")
        a(f"s_cmp_lt_u32 s61, {SPIN_MAX*8}"); a(f"s_cbranch_scc1 {l0}")
        a.label(l1)
        a("s_mov_b32 s67, s68")
    SC1 = "" if opt.get("nosc1") else " sc1"
    def issue_stage(st, nxt):
        sb = slot_base(st)
        for t in range(8):
            if t: a(f"s_add_u32 m0, s64, {sb + t*1024}"); a(f"s_add_u32 s60, s67, {t*16384}")
            a(f"buffer_load_dwordx4 v{20 + (t & 1)}, s[28:31], {'s67' if t == 0 else 's60'} offen{SC1} lds")
            if nxt is not None:
                if t == 1: fetch_ord(nxt)
                if t == 5: a("s_waitcnt lgkmcnt(0)"); decode()
    def prep_stage(st):
        a(f"s_add_u32 m0, s64, {slot_base(st)}")
    Q = []
    for st in range(3):
        fetch_ord(st); take_ord(st)
        if st == 2: lds_spin(a, 9, E_OC, 8, "ge", 4)
        prep_stage(st); a("s_nop 0")
        issue_stage(st, 3 if st == 2 else None); Q += [st]*8
        if st == 0: stamp(a, opt, 6)
    issued = 3
    for i in range(16):
        last = max(k for k, e in enumerate(Q) if e == i)
        n_after = len(Q) - 1 - last
        todo = []
        while issued + len(todo) <= min(15, i + 5) and len(todo) < opt.get("gburst", 2): todo.append(issued + len(todo))
        if todo:
            take_ord(todo[0], True); prep_stage(todo[0])
        a(f"s_waitcnt vmcnt({n_after})")
        if opt.get("gst"): a("s_memtime s[100:101]")
        a("s_barrier")
        if opt.get("gst"):
            a("s_waitcnt lgkmcnt(0)"); a("s_sub_u32 s100, s100, s80"); a(f"v_writelane_b32 v200, s100, {i}"); a("s_memtime s[100:101]")
            a("s_waitcnt lgkmcnt(0)"); a("s_sub_u32 s100, s100, s80"); a(f"v_writelane_b32 v200, s100, {16+i}")
        Q = Q[last + 1:]
        for k_, st in enumerate(todo):
            if k_:
                take_ord(st, True); prep_stage(st); a("s_nop 0")
            nxt = st + 1 if st + 1 <= 15 else None
            issue_stage(st, nxt); Q += [st]*8
        issued += len(todo)
    assert issued == 16
    if opt.get("gst"):
        a(f"s_add_u32 s76, s14, {WS_STAMP + (1 << 20)}"); a("s_addc_u32 s77, s15, 0"); a("s_mov_b32 s78, 0x1000000"); a("s_mov_b32 s79, 0x00020000")
        a("s_lshl_b32 s75, s2, 2"); a("s_add_u32 s75, s75, s53"); a("s_lshl_b32 s75, s75, 8")
        a("v_lshlrev_b32 v201, 2, v0"); a("buffer_store_dword v200, v201, s[76:79], s75 offen")
    a.label("Lgend")
    stamp(a, opt, 7)
    stamp_dump(a, opt, 8)
    a("s_waitcnt vmcnt(0)")

HEADER = """
"""

def build(opt=None):
    opt = opt or {}
    _lab[0] = 0
    POLL[0] = opt.get("pollfl", " sc1")
    a = Asm()
    for ln in HEADER.strip("\n").split("\n"): a(ln)
    if opt.get("aslist"): a(f"; @launch kernel={NAME} grid=(256,1,1) block=(512,1,1) lds=163840")
    else: a("; @launch grid=(256,1,1) block=(512,1,1) lds=163840")
    a('.amdgcn_target "amdgcn-amd-amdhsa--gfx950"')
    a(".text")
    a.lines = [l for l in a.lines]
    kernel(a, opt)
    a('.section .rodata,"a"')
    kernel_desc(a, NAME, vgpr=256, sgpr=102)
    return a.text().replace("None\n", "")

if __name__ == "__main__":
    opt = {}
    for o in sys.argv[2:]:
        k, _, v = o.partition("=")
        opt[k] = int(v) if v else 1
    open(sys.argv[1], "w").write(build(opt))
```

```python
import sys
from asmlib import *

WS_UT  = 4 << 20
WS_KVP = 8 << 20
WS_ZP  = 10 << 20
WS_G   = 11 << 20
WS_FL  = (11 << 20) | 0x80000
FL_KV, FL_U, FL_O, FL_Y = WS_FL, WS_FL + 32768, WS_FL + 65536, WS_FL + 98304
WS_O   = 12 << 20
WS_YT  = 16 << 20
WS_USED = 20 << 20
WS_STAMP = 24 << 20
LOG2E = 0x3fb8aa3b
EPS   = 0x358637bd
SPIN_MAX = 1 << 17
NAME = "gated_mix__linear_attn_block__ssm_conv_h3__prompt_kernel"

ST1 = 40960
CTS = 4160
CF  = 4 * CTS
CWB = 4 * CTS + 4608
F_FL = 4 * CWB
ST3 = 24576
F_U = F_FL + 256
F_SCR = F_U + 2 * ST3
F_Y = ST3
F_E0 = CWB - 32
F_E1 = 2 * CWB - 32
E_XF = F_E0
E_RF = F_E0 + 16
E_ADC, E_UR, E_CRC, E_OC, E_CD, E_KVC, E_KVR = (F_E1 + 4*k for k in range(7))
W_YC, W_YR = F_FL, F_FL + 4

def vr(a, n=1): return f"v{a}" if n == 1 else f"v[{a}:{a+n-1}]"

def stamp(a, opt, i):
    if opt.get("stamps"):
        a(f"s_memtime s[{80+2*i}:{81+2*i}]")
        if i == 0: a("s_memrealtime s[98:99]")
def stamp_dump(a, opt, n):
    if not opt.get("stamps"): return
    a("s_waitcnt vmcnt(0) lgkmcnt(0)")
    a(f"s_add_u32 s76, s14, {WS_STAMP}"); a("s_addc_u32 s77, s15, 0"); a("s_mov_b32 s78, 0x1000000"); a("s_mov_b32 s79, 0x00020000")
    a("s_lshl_b32 s75, s2, 3"); a("s_add_u32 s75, s75, s50"); a("s_lshl_b32 s75, s75, 6"); a("v_mov_b32 v1, s75")
    for i in range(1, n):
        a(f"s_sub_u32 s74, s{80+2*i}, s80"); a("v_mov_b32 v2, s74")
        a(f"buffer_store_dword v2, v1, s[76:79], 0 offen offset:{4*i}")
    a("s_memrealtime s[80:81]"); a("s_waitcnt lgkmcnt(0)"); a("v_mov_b32 v2, s80")
    a("buffer_store_dword v2, v1, s[76:79], 0 offen offset:60")
    a("v_mov_b32 v2, s98"); a("buffer_store_dword v2, v1, s[76:79], 0 offen offset:56")

def phi_pair(a, t, tmp):
    a(f"v_pk_mul_f32 {vr(tmp,2)}, {vr(t,2)}, s[56:57]")
    a(f"v_exp_f32_e64 v{tmp}, v{tmp} clamp")
    a(f"v_exp_f32_e64 v{tmp+1}, v{tmp+1} clamp")
    a(f"v_max_f32 v{t}, 0, v{t}")
    a(f"v_max_f32 v{t+1}, 0, v{t+1}")
    a(f"v_pk_add_f32 {vr(t,2)}, {vr(t,2)}, {vr(tmp,2)}")
    a(f"v_pk_add_f32 {vr(t,2)}, {vr(t,2)}, s[58:59]")

def phi_group(a, ts, tmp):
    for i, t in enumerate(ts): a(f"v_pk_mul_f32 {vr(tmp+2*i,2)}, {vr(t,2)}, s[56:57]")
    for i, t in enumerate(ts):
        a(f"v_exp_f32_e64 v{tmp+2*i}, v{tmp+2*i} clamp"); a(f"v_exp_f32_e64 v{tmp+2*i+1}, v{tmp+2*i+1} clamp")
    for i, t in enumerate(ts):
        a(f"v_max_f32 v{t}, 0, v{t}"); a(f"v_max_f32 v{t+1}, 0, v{t+1}")
    for i, t in enumerate(ts): a(f"v_pk_add_f32 {vr(t,2)}, {vr(t,2)}, {vr(tmp+2*i,2)}")
    for i, t in enumerate(ts): a(f"v_pk_add_f32 {vr(t,2)}, {vr(t,2)}, s[58:59]")

_lab = [0]
POLL = [" sc1"]
FLST = [" sc1"]
def lab(p):
    _lab[0] += 1
    return f"L{p}{_lab[0]}"

def lds_spin(a, vaddr, off, vtmp, cond, val):
    assert off < 65536
    l0, l1 = lab("sp"), lab("sx")
    a("s_mov_b32 s61, 0")
    a.label(l0)
    a(f"ds_read_b32 v{vtmp}, v{vaddr} offset:{off}"); a("s_waitcnt lgkmcnt(0)")
    a(f"v_readfirstlane_b32 s60, v{vtmp}"); a("s_add_u32 s61, s61, 1"); a(f"s_cmp_{cond}_u32 s60, {val}"); a(f"s_cbranch_scc1 {l1}")
    a(f"s_cmp_lt_u32 s61, {SPIN_MAX*8}"); a(f"s_cbranch_scc1 {l0}")
    a.label(l1)

def lds_count_last(a, vaddr, off, vone, vtmp, last, action):
    l = lab("cl")
    a("s_mov_b64 exec, 1")
    a(f"ds_add_rtn_u32 v{vtmp}, v{vaddr}, v{vone} offset:{off}"); a("s_waitcnt lgkmcnt(0)")
    a(f"v_readfirstlane_b32 s60, v{vtmp}"); a(f"s_cmp_eq_u32 s60, {last}"); a(f"s_cbranch_scc0 {l}")
    action()
    a.label(l)
    a("s_mov_b64 exec, -1")

def poll16(a, vaddr, vtmp, extra=None):
    l0, l1 = lab("pl"), lab("px")
    a("s_mov_b32 s61, 0")
    a.label(l0)
    a(f"buffer_load_dword v{vtmp}, v{vaddr}, s[36:39], 0 offen{POLL[0]}")
    if extra: a(f"ds_read_b32 v{vtmp+1}, v{extra[0]} offset:{extra[1]}")
    a("s_waitcnt vmcnt(0) lgkmcnt(0)")
    a(f"v_cmp_ne_u32 vcc, 1, v{vtmp}")
    if extra: a(f"v_readfirstlane_b32 s62, v{vtmp+1}")
    a("s_add_u32 s61, s61, 1"); a("s_nop 2")
    a("s_cmp_eq_u64 vcc, 0")
    if extra:
        a("s_cselect_b32 s60, 1, 0"); a(f"s_cmp_ge_u32 s62, {extra[2]}"); a("s_cselect_b32 s62, 1, 0"); a("s_and_b32 s60, s60, s62")
    a(f"s_cbranch_scc1 {l1}")
    a(f"s_cmp_lt_u32 s61, {SPIN_MAX}"); a(f"s_cbranch_scc1 {l0}")
    a.label(l1)

def poll_zeroed(a, vtmp):
    l0, l1 = lab("zl"), lab("zx")
    a("s_mov_b32 s61, 0"); a(f"v_mov_b32 v{vtmp+1}, 0")
    a.label(l0)
    a(f"buffer_load_dword v{vtmp}, v{vtmp+1}, s[40:43], 0 offen sc1"); a("s_waitcnt vmcnt(0)")
    a(f"v_readfirstlane_b32 s60, v{vtmp}"); a("s_add_u32 s61, s61, 1"); a("s_cmp_ge_u32 s60, 256"); a(f"s_cbranch_scc1 {l1}")
    a(f"s_cmp_lt_u32 s61, {SPIN_MAX}"); a(f"s_cbranch_scc1 {l0}")
    a.label(l1)

def kernel(a, opt):
    name = NAME
    kernel_begin(a, name)
    a("s_cmp_ge_u32 s2, 256")
    a("s_cbranch_scc1 Ldone")
    stamp(a, opt, 0)
    if opt.get("pad0"):
        a("s_memtime s[20:21]"); a("s_waitcnt lgkmcnt(0)"); a(f"s_add_u32 s22, s20, {opt['pad0']}")
        a.label("Lpad0"); a("s_memtime s[20:21]"); a("s_waitcnt lgkmcnt(0)"); a("s_cmp_lt_u32 s20, s22"); a("s_cbranch_scc1 Lpad0")
    a("s_load_dwordx4 s[4:7], s[0:1], 0")
    a("s_load_dwordx4 s[12:15], s[0:1], 88")
    a("v_lshrrev_b32 v1, 6, v0")
    a("v_and_b32 v0, 63, v0")
    a("v_readfirstlane_b32 s50, v1")
    a("s_and_b32 s51, s2, 7")
    a("s_lshr_b32 s52, s2, 3")
    a("s_lshl_b32 s53, s51, 3"); a("s_and_b32 s53, s53, 8"); a("s_and_b32 s54, s52, 7"); a("s_or_b32 s48, s53, s54")
    a("s_lshl_b32 s53, s51, 1"); a("s_and_b32 s53, s53, 12"); a("s_lshr_b32 s54, s52, 3"); a("s_or_b32 s49, s53, s54")
    if opt.get("jx"): a(f"s_xor_b32 s49, s49, {opt['jx']}")
    if opt.get("jperm", 1):
        a("s_lshr_b32 s53, s49, 2"); a("s_add_u32 s53, s53, 1"); a("s_and_b32 s53, s53, 2"); a("s_mul_i32 s53, s53, 6"); a("s_xor_b32 s49, s49, s53")
    a("s_and_b32 s53, s51, 3"); a("s_lshl_b32 s53, s53, 2"); a("s_and_b32 s54, s52, 3"); a("s_or_b32 s96, s53, s54")
    a("s_lshr_b32 s53, s51, 2"); a("s_lshl_b32 s53, s53, 3"); a("s_lshr_b32 s54, s52, 2"); a("s_or_b32 s97, s53, s54")
    a("s_cmp_ge_u32 s50, 4")
    a("s_cbranch_scc1 Laux")
    c_waves(a, opt)
    a(f".p2align {opt.get('align', 6)}")
    a.label("Laux")
    a_waves(a, opt)
    a.label("Ldone")
    a("s_endpgm")
    a.label("Lend")

def c_waves(a, opt):
    def acc(ai, c, u): return 64 + ((c * 2 + u) * 4 + ai) * 4
    def xf(buf, ai): return 160 + buf * 40 + ai * 4
    def wf(buf, c, u): return 160 + buf * 40 + 16 + (c * 2 + u) * 4
    XA = 8; WA = 12
    a("s_load_dwordx4 s[8:11], s[0:1], 56") if False else None
    a("s_setprio 2")
    a("s_and_b32 s53, s50, 1")
    a("s_lshr_b32 s54, s50, 1")
    a("v_and_b32 v2, 15, v0")
    a("v_lshrrev_b32 v3, 4, v0")
    a("v_lshrrev_b32 v4, 1, v2"); a("v_xor_b32 v4, v4, v3")
    a("s_lshl_b32 s55, s53, 13")
    a("v_lshlrev_b32 v5, 7, v2"); a("v_add_u32 v5, s55, v5")
    a(f"v_lshl_add_u32 v{XA}, v4, 4, v5")
    a("v_xor_b32 v6, 4, v4"); a(f"v_lshl_add_u32 v{XA+1}, v6, 4, v5")
    for kk in range(2): a(f"v_add_u32 v{XA+2+kk}, {2*ST1}, v{XA+kk}")
    a("v_bfe_u32 v6, v0, 2, 2")
    a("v_lshl_add_u32 v7, v3, 3, v6"); a("v_lshlrev_b32 v7, 7, v7")
    a("v_and_b32 v18, 3, v0"); a("v_lshl_add_u32 v7, v18, 3, v7")
    a("v_add_u32 v7, 16384, v7")
    a("v_bfe_u32 v18, v0, 3, 1"); a("v_bfe_u32 v19, v0, 4, 1"); a("v_lshl_or_b32 v18, v19, 1, v18")
    a("s_lshl_b32 s55, s54, 1")
    a("v_xor_b32 v18, s55, v18")
    a(f"v_lshl_add_u32 v{WA}, v18, 5, v7")
    a("v_xor_b32 v18, 1, v18"); a(f"v_lshl_add_u32 v{WA+1}, v18, 5, v7")
    for u in range(2): a(f"v_add_u32 v{WA+2+u}, {2*ST1}, v{WA+u}")
    for r in range(64, 160): a(f"v_mov_b32 v{r}, 0")
    a(f"s_mov_b32 s56, {LOG2E:#x}"); a(f"s_mov_b32 s57, {LOG2E:#x}")
    a(f"s_mov_b32 s58, {EPS:#x}"); a(f"s_mov_b32 s59, {EPS:#x}")
    a("s_waitcnt lgkmcnt(0)")
    make_srd(a, 36, 14, WS_USED); make_srd(a, 40, 12, 256)
    a("s_load_dwordx4 s[8:11], s[0:1], 64") ;
    a("s_load_dwordx2 s[16:17], s[0:1], 80")
    if opt.get("codepf", 0):
        a("s_cmp_lt_u32 s52, 2"); a("s_cbranch_scc0 Lnocp")
        a("s_getpc_b64 s[74:75]")
        a.label("Lpc")
        a(f"s_sub_u32 s74, s74, Lpc-{NAME}"); a("s_subb_u32 s75, s75, 0")
        a("s_lshl_b32 s55, s52, 2"); a("s_add_u32 s55, s55, s50"); a("s_lshl_b32 s55, s55, 6")
        a("v_add_u32 v18, s55, v0"); a(f"v_min_u32 v18, (Lend-{NAME}-4)/128, v18"); a("v_lshlrev_b32 v18, 7, v18")
        a("global_load_dword v21, v18, s[74:75]")
        a.label("Lnocp")
    KVT = opt.get("kvtouch")
    if KVT:
        a("s_load_dwordx4 s[24:27], s[0:1], 32")
        a("s_waitcnt lgkmcnt(0)")
        a("s_cmp_eq_u32 s54, 0"); a("s_cselect_b32 s28, s24, s26"); a("s_cselect_b32 s29, s25, s27"); a("s_cselect_b32 s55, 6144, 0")
        a(f"s_mov_b32 s30, {NB['bk']}"); a("s_mov_b32 s31, 0x00020000")
        a("s_and_b32 s61, s2, 15"); a("s_lshl_b32 s61, s61, 7"); a("s_lshl_b32 s63, s53, 6"); a("s_add_u32 s61, s61, s63")
        a("v_add_u32 v240, s61, v0"); a("v_lshlrev_b32 v240, 11, v240")
        a("s_lshr_b32 s61, s2, 4"); a("s_lshl_b32 s61, s61, 7"); a("s_sub_u32 s61, s61, s55")
        a("v_add_u32 v240, s61, v240")
    a("s_cmp_eq_u32 s50, 0"); a("s_cbranch_scc0 Lnz")
    a("s_lshl_b32 s55, s49, 4"); a("s_add_u32 s55, s55, s48"); a("s_lshl_b32 s55, s55, 7"); a(f"s_add_u32 s55, s55, {FL_KV}"); a("v_writelane_b32 v18, s55, 0")
    a("s_lshl_b32 s55, s2, 7"); a(f"s_add_u32 s55, s55, {FL_U}"); a("v_writelane_b32 v18, s55, 1")
    a("s_lshl_b32 s55, s48, 4"); a("s_add_u32 s55, s55, s49"); a("s_lshl_b32 s55, s55, 7"); a(f"s_add_u32 s55, s55, {FL_O}"); a("v_writelane_b32 v18, s55, 2")
    a("s_lshl_b32 s55, s51, 5"); a("s_add_u32 s55, s55, s52"); a("s_lshl_b32 s55, s55, 7"); a(f"s_add_u32 s55, s55, {FL_Y}"); a("v_writelane_b32 v18, s55, 3")
    a("v_mov_b32 v19, 0"); a("v_mov_b32 v20, 1")
    a("s_mov_b64 exec, 15")
    a("buffer_store_dword v19, v18, s[36:39], 0 offen sc1")
    if opt.get("atom_early"):
        a("s_waitcnt vmcnt(0)")
        a("s_mov_b64 exec, 1")
        a("buffer_atomic_add v20, v19, s[40:43], 0 offen sc1")
    a("s_mov_b64 exec, -1")
    a.label("Lnz")

    def reads(slot, kk, buf):
        hi = 2 if slot >= 2 else 0
        so = (slot & 1) * ST1
        X = [f"ds_read_b128 {vr(xf(buf,ai),4)}, v{XA+hi+kk} offset:{so + ai*2048}" for ai in range(4)]
        W = {}
        for c in range(3):
            for u in range(2):
                W[c, u] = [f"ds_read_b64_tr_b16 {vr(wf(buf,c,u)+2*sec,2)}, v{WA+hi+u} offset:{so + c*8192 + kk*4096 + sec*512}" for sec in range(2)]
        return [X[0]] + W[0, 0] + [X[1], X[2], X[3]] + W[0, 1] + W[1, 0] + W[1, 1] + W[2, 0] + W[2, 1]
    def mfmas(buf):
        L = []
        for c in range(3):
            for u in range(2):
                for ai in range(4):
                    d = vr(acc(ai, c, u), 4)
                    if c == 0: L.append(f"v_mfma_f32_16x16x32_bf16 {d}, {vr(wf(buf,c,u),4)}, {vr(xf(buf,ai),4)}, {d}")
                    else:      L.append(f"v_mfma_f32_16x16x32_bf16 {d}, {vr(xf(buf,ai),4)}, {vr(wf(buf,c,u),4)}, {d}")
        return L
    def step(buf, nxt, barrier=False):
        M = mfmas(buf); q = list(nxt)
        first = 4 if barrier else 0
        for i in range(24):
            a(M[i])
            if barrier and i == first - 1: a("s_barrier")
            if i >= first - (1 if barrier else 0) and q: a(q.pop(0))
        for s_ in q: a(s_)
    a("s_barrier")
    cst = opt.get("cst")
    def st_(i, j=None, g=None):
        k = g if opt.get("gstc") else (j if cst else i)
        if k is not None: stamp(a, opt, k)
    st_(1)
    for s in reads(0, 0, 0): a(s)
    a("s_mov_b32 s60, 0")
    a(f".p2align {opt.get('align', 6)}")
    a.label("Lcloop")
    for slot in range(4):
        for kk in range(2):
            a("s_waitcnt lgkmcnt(0)")
            if kk == 0:
                if KVT and slot == KVT[1]:
                    a(f"s_cmp_eq_u32 s60, {KVT[0]}"); a("s_cbranch_scc0 Lnkvt")
                    a("buffer_load_dword v241, v240, s[28:31], 0 offen"); a.label("Lnkvt")
                if slot == 0 and not opt.get("atom_early") and not opt.get("atom_none"):
                    a("s_cmp_eq_u32 s60, 2"); a("s_cselect_b32 s61, s50, 1"); a("s_cmp_eq_u32 s61, 0"); a("s_cbranch_scc0 Lnat")
                    a("s_waitcnt vmcnt(0)"); a("s_mov_b64 exec, 1")
                    a("buffer_atomic_add v20, v19, s[40:43], 0 offen sc1")
                    a("s_mov_b64 exec, -1"); a("s_nop 4")
                    a.label("Lnat")
                step(0, reads(slot, 1, 1))
            else:
                if slot == 3:
                    a("s_cmp_eq_u32 s60, 3"); a("s_cbranch_scc1 Lclast")
                step(1, reads((slot + 1) & 3, 0, 0), barrier=True)
    a("s_add_u32 s60, s60, 1")
    a("s_branch Lcloop")
    a.label("Lclast")
    step(1, [])
    st_(2, 1)

    TMP = 20
    KF = 160; VF = 176; ONES = 192; QF = 200
    def kf(u, ks): return KF + (u*2 + ks)*4
    def vf(u, ks): return VF + (u*2 + ks)*4
    a("s_nop 7")
    for u in range(2):
        for a2 in range(2):
            tiles = [2*a2, 2*a2 + 1]
            phi_group(a, [acc(ai, 1, u) + 2*h_ for ai in tiles for h_ in range(2)], 24)
            for ai in tiles:
                t = acc(ai, 1, u); o = kf(u, ai >> 1) + (ai & 1)*2
                a(f"v_cvt_pk_bf16_f32 v{o}, v{t}, v{t+1}"); a(f"v_cvt_pk_bf16_f32 v{o+1}, v{t+2}, v{t+3}")
    for u in range(2):
        for ai in range(4):
            t = acc(ai, 2, u); o = vf(u, ai >> 1) + (ai & 1)*2
            a(f"v_cvt_pk_bf16_f32 v{o}, v{t}, v{t+1}"); a(f"v_cvt_pk_bf16_f32 v{o+1}, v{t+2}, v{t+3}")
    for r in range(4): a(f"v_mov_b32 v{ONES+r}, 0x3f803f80")
    KVA = 96; ZA = 112
    a("s_nop 1")
    for ks in range(2):
        for ud in range(2):
            for ue in range(2):
                d = vr(KVA + (ud*2+ue)*4, 4)
                a(f"v_mfma_f32_16x16x32_bf16 {d}, {vr(kf(ud,ks),4)}, {vr(vf(ue,ks),4)}, {'0' if ks == 0 else d}")
            d = vr(ZA + ud*4, 4)
            a(f"v_mfma_f32_16x16x32_bf16 {d}, {vr(kf(ud,ks),4)}, {vr(ONES,4)}, {'0' if ks == 0 else d}")
    st_(None, 2)
    def q_frags():
        for ai in range(4):
            phi_group(a, [acc(ai, 0, u) + 2*h_ for u in range(2) for h_ in range(2)], 32)
            for u in range(2):
                t = acc(ai, 0, u); o = QF + ai*4 + u*2
                a(f"v_cvt_pk_bf16_f32 v{o}, v{t}, v{t+1}"); a(f"v_cvt_pk_bf16_f32 v{o+1}, v{t+2}, v{t+3}")
    a("v_mov_b32 v30, 0"); a("v_mov_b32 v31, 1")
    a(f"s_mul_i32 s55, s50, 3072"); a(f"s_add_u32 s55, s55, {F_SCR}"); a("s_xor_b32 s61, s50, 1"); a("s_mul_i32 s61, s61, 3072"); a(f"s_add_u32 s61, s61, {F_SCR}")
    a("v_lshlrev_b32 v6, 4, v0"); a("v_add_u32 v8, s55, v6"); a("v_add_u32 v9, s61, v6")
    a("s_lshl_b32 s55, s50, 2"); a("v_mov_b32 v13, s55"); a("s_xor_b32 s55, s55, 4"); a("v_mov_b32 v14, s55")
    a("s_lshl_b32 s55, s49, 1"); a("s_add_u32 s55, s55, s54"); a("s_lshl_b32 s55, s55, 4"); a("s_add_u32 s55, s55, s48")
    a("s_lshl_b32 s63, s55, 11"); a("s_lshl_b32 s61, s53, 10"); a("s_add_u32 s63, s63, s61"); a(f"s_add_u32 s63, s63, {WS_KVP}")
    a("s_lshl_b32 s62, s55, 7"); a("s_lshl_b32 s61, s53, 6"); a("s_add_u32 s62, s62, s61"); a(f"s_add_u32 s62, s62, {WS_ZP}")
    a("v_lshlrev_b32 v7, 4, v3")
    R = 32
    def half(wm):
        give = [KVA + 4*(2*(wm ^ 1)), KVA + 4*(2*(wm ^ 1) + 1), ZA + 4*(wm ^ 1)]
        keep = [KVA + 4*(2*wm), KVA + 4*(2*wm + 1), ZA + 4*wm]
        for q in range(3): a(f"ds_write_b128 v8, {vr(give[q],4)} offset:{q*1024}")
        a("s_waitcnt lgkmcnt(0)")
        a(f"ds_write_b32 v13, v31 offset:{E_RF}")
        lds_spin(a, 14, E_RF, 28, "eq", 1)
        for q in range(3): a(f"ds_read_b128 {vr(R+4*q,4)}, v9 offset:{q*1024}")
        a("s_waitcnt lgkmcnt(0)")
        for q in range(3):
            for r in range(4): a(f"v_add_f32 v{keep[q]+r}, v{keep[q]+r}, v{R+4*q+r}")
        for q in range(2):
            for p in range(2): a(f"v_cvt_pk_bf16_f32 v{R+12+2*q+p}, v{keep[q]+2*p}, v{keep[q]+2*p+1}")
        a(f"buffer_store_dwordx4 {vr(R+12,4)}, v6, s[36:39], s63 offen sc1")
        a("v_cmp_eq_u32 vcc, 0, v2")
        a("s_and_saveexec_b64 s[64:65], vcc")
        a(f"buffer_store_dwordx4 {vr(keep[2],4)}, v7, s[36:39], s62 offen sc1")
        a("s_mov_b64 exec, s[64:65]")
    a("s_nop 3")
    a("s_cmp_eq_u32 s53, 0"); a("s_cbranch_scc1 Lred0")
    half(1)
    a("s_branch Lredj")
    a.label("Lred0")
    half(0)
    a.label("Lredj")
    st_(None, 3)
    a("s_lshl_b32 s55, s49, 4"); a("s_add_u32 s55, s55, s48"); a("s_lshl_b32 s55, s55, 7"); a(f"s_add_u32 s55, s55, {FL_KV}"); a("v_mov_b32 v28, s55")
    a("s_waitcnt vmcnt(0)")
    lds_count_last(a, 30, E_KVC, 31, 29, 3, lambda: a("buffer_store_dword v31, v28, s[36:39], 0 offen sc1"))
    st_(None, 4)
    a.label("Lred1")
    a("s_lshl_b32 s55, s48, 7"); a("s_lshl_b32 s61, s53, 6"); a("s_add_u32 s55, s55, s61")
    a("v_add_u32 v5, s55, v2"); a("v_lshlrev_b32 v5, 11, v5")
    a("s_lshl_b32 s55, s49, 7"); a("s_lshl_b32 s61, s54, 6"); a("s_add_u32 s55, s55, s61")
    a("v_and_b32 v6, 1, v3"); a("v_lshlrev_b32 v6, 5, v6"); a("v_lshrrev_b32 v7, 1, v3"); a("v_lshl_add_u32 v6, v7, 4, v6")
    a("v_add3_u32 v5, v5, v6, s55")
    a(f"s_mul_i32 s55, s50, 4608"); a(f"s_add_u32 s55, s55, {F_SCR}"); a("s_xor_b32 s61, s50, 1"); a("s_mul_i32 s61, s61, 4608"); a(f"s_add_u32 s61, s61, {F_SCR}")
    a("v_lshlrev_b32 v6, 4, v0"); a("v_add_u32 v8, s55, v6"); a("v_add_u32 v9, s61, v6")
    a("v_and_b32 v7, 7, v0"); a("v_lshlrev_b32 v7, 4, v7"); a("s_add_u32 s55, s55, 4096"); a("v_add_u32 v10, s55, v7")
    a("v_lshlrev_b32 v7, 4, v3"); a("v_add_u32 v11, s55, v7"); a("s_add_u32 s61, s61, 4096"); a("v_add_u32 v12, s61, v7")
    a("s_lshl_b32 s55, s50, 2"); a("v_mov_b32 v13, s55"); a("s_xor_b32 s55, s55, 4"); a("v_mov_b32 v14, s55")
    a("s_lshl_b32 s55, s49, 1"); a("s_add_u32 s55, s55, s54"); a("s_lshl_b32 s55, s55, 4"); a("s_lshl_b32 s61, s53, 3"); a("s_add_u32 s55, s55, s61")
    a("s_lshl_b32 s68, s55, 11"); a(f"s_add_u32 s68, s68, {WS_KVP}")
    a("s_lshl_b32 s69, s55, 7"); a(f"s_add_u32 s69, s69, {WS_ZP}")
    a("s_lshl_b32 s53, s51, 7"); a("s_lshl_b32 s54, s52, 2"); a("s_add_u32 s53, s53, s54"); a("s_add_u32 s53, s53, s50")
    a(f"s_mul_i32 s54, s50, {CWB}")
    a("v_and_b32 v6, 3, v0"); a(f"v_mul_u32_u24 v6, {CTS}, v6")
    a("v_bfe_u32 v7, v0, 2, 2"); a("v_lshlrev_b32 v7, 3, v7"); a("v_sub_u32 v6, v6, v7")
    a("v_lshl_add_u32 v6, v3, 4, v6")
    a(f"s_add_u32 s55, s54, {8 + 24 + 448}"); a("v_add_u32 v16, s55, v6")
    a("v_lshlrev_b32 v6, 5, v2"); a("v_lshl_add_u32 v6, v3, 4, v6")
    a(f"s_add_u32 s55, s54, {CF + 448}"); a("v_add_u32 v17, s55, v6")
    a("s_lshl_b32 s55, s53, 1"); a("s_and_b32 s55, s55, 0xfffffffc")
    a("s_add_u32 s8, s8, s55"); a("s_addc_u32 s9, s9, 0")
    a("s_load_dword s70, s[8:9], 0")
    make_srd(a, 24, 4, NB["x"]); make_srd(a, 28, 16, NB["out"])
    GXA = 224; GWA = 228; XR = 232; GR = 32
    a("s_lshr_b32 s66, s50, 1"); a("s_and_b32 s67, s50, 1")
    a("s_lshl_b32 s55, s96, 7"); a("s_lshl_b32 s61, s66, 6"); a("s_add_u32 s55, s55, s61")
    a("v_add_u32 v20, s55, v2"); a("v_lshlrev_b32 v21, 11, v20")
    a("s_lshl_b32 s55, s97, 7"); a("s_lshl_b32 s61, s67, 6"); a("s_add_u32 s64, s55, s61")
    a("v_lshl_add_u32 v22, v3, 3, s64"); a("v_add_u32 v22, v21, v22"); a("v_lshlrev_b32 v23, 2, v20")
    a("v_lshrrev_b32 v24, 1, v2"); a("v_xor_b32 v24, v24, v3")
    a("s_lshl_b32 s55, s66, 13")
    a("v_lshlrev_b32 v25, 7, v2"); a("v_add_u32 v25, s55, v25")
    a(f"v_lshl_add_u32 v{GXA+2}, v24, 4, v25")
    a("v_xor_b32 v26, 4, v24"); a(f"v_lshl_add_u32 v{GXA+3}, v26, 4, v25")
    for kk in range(2): a(f"v_add_u32 v{GXA+kk}, {F_U}, v{GXA+2+kk}")
    a("v_bfe_u32 v26, v0, 2, 2")
    a("v_lshl_add_u32 v27, v3, 3, v26"); a("v_lshlrev_b32 v27, 7, v27")
    a("v_and_b32 v28, 3, v0"); a("v_lshl_add_u32 v27, v28, 3, v27"); a("v_add_u32 v27, 16384, v27")
    a("v_bfe_u32 v28, v0, 3, 1"); a("v_bfe_u32 v29, v0, 4, 1"); a("v_lshl_or_b32 v28, v29, 1, v28")
    a("s_lshl_b32 s55, s67, 1"); a("v_xor_b32 v28, s55, v28")
    a(f"v_lshl_add_u32 v{GWA+2}, v28, 5, v27")
    a("v_xor_b32 v28, 1, v28"); a(f"v_lshl_add_u32 v{GWA+3}, v28, 5, v27")
    for u in range(2): a(f"v_add_u32 v{GWA+u}, {F_U}, v{GWA+2+u}")
    SEL = 248
    a("v_lshrrev_b32 v6, 2, v2"); a("v_cmp_eq_u32 vcc, v6, v3")
    a("v_and_b32 v6, 1, v2"); a("v_lshlrev_b32 v6, 4, v6"); a("v_mov_b32 v7, 0x3f80"); a("v_lshlrev_b32 v6, v6, v7")
    a("v_cndmask_b32 v6, 0, v6, vcc")
    a("v_bfe_u32 v7, v2, 1, 1"); a("v_cmp_eq_u32 vcc, 0, v7")
    for r in range(8): a(f"v_mov_b32 v{SEL+r}, 0")
    a(f"v_cndmask_b32 v{SEL}, 0, v6, vcc"); a(f"v_cndmask_b32 v{SEL+1}, v6, 0, vcc" if False else f"v_cndmask_b32_e64 v{SEL+1}, v6, 0, vcc")
    a(f"v_mov_b32 v{SEL+6}, v{SEL}"); a(f"v_mov_b32 v{SEL+7}, v{SEL+1}")
    a("v_mov_b32 v7, v3")
    q_frags()
    a("s_waitcnt lgkmcnt(0)")
    a("s_lshr_b32 s57, s70, 16"); a("s_and_b32 s60, s70, 0xffff"); a("s_and_b32 s61, s53, 1"); a("s_cmp_eq_u32 s61, 0"); a("s_cselect_b32 s57, s60, s57")
    a("v_lshrrev_b32 v28, 3, v2"); a("v_add_u32 v28, 2, v28"); a("v_cmp_eq_u32 vcc, v28, v7")
    a("v_and_b32 v28, 1, v2"); a("v_lshlrev_b32 v28, 4, v28"); a("v_mov_b32 v29, s57"); a("v_lshlrev_b32 v29, v28, v29")
    a("v_cndmask_b32 v29, 0, v29, vcc")
    a("v_bfe_u32 v28, v2, 1, 2")
    for w_ in range(4):
        a(f"v_cmp_eq_u32 vcc, {w_}, v28"); a("s_nop 1"); a(f"v_cndmask_b32 v{24+w_}, 0, v29, vcc")
    st_(None, 5)
    a("s_cmp_eq_u32 s50, 1"); a("s_cbranch_scc0 Lkvw")
    poll_zeroed(a, 28)
    a("s_lshl_b32 s55, s49, 11"); a(f"s_add_u32 s55, s55, {FL_KV}")
    a("v_lshl_add_u32 v15, v2, 7, s55")
    poll16(a, 15, 28, extra=(30, E_KVC, 4))
    a(f"ds_write_b32 v30, v31 offset:{E_KVR}")
    a("s_branch Lkvg")
    a.label("Lkvw")
    lds_spin(a, 30, E_KVR, 28, "eq", 1)
    a.label("Lkvg")
    st_(3, 6)
    PK = 128; PR = 64; ZR = 120
    a("v_lshlrev_b32 v6, 4, v0")
    a(f"buffer_load_dwordx4 {vr(ZR,4)}, v6, s[36:39], s69 offen sc1")
    for p in range(8):
        for q in range(2):
            a(f"buffer_load_dwordx4 {vr(PK+8*p+4*q,4)}, v6, s[36:39], s68 offen offset:{q*1024} sc1")
        a("s_add_u32 s68, s68, 2048")
    a("s_waitcnt vmcnt(16)")
    for r in range(4): a(f"v_add_f32_dpp v{ZR+r}, v{ZR+r}, v{ZR+r} row_ror:8 row_mask:0xf bank_mask:0xf")
    for r in range(4): a(f"v_mov_b32 v{ZR+4+r}, v{ZR+r}")
    a("s_nop 1")
    for r in range(4): a(f"v_permlane16_swap_b32 v{ZR+r}, v{ZR+4+r}")
    a("s_nop 1")
    for r in range(4): a(f"v_add_f32 v{ZR+r}, v{ZR+r}, v{ZR+4+r}")
    for r in range(4): a(f"v_mov_b32 v{ZR+4+r}, v{ZR+r}")
    a("s_nop 1")
    for r in range(4): a(f"v_permlane32_swap_b32 v{ZR+r}, v{ZR+4+r}")
    a("s_nop 1")
    for r in range(4): a(f"v_add_f32 v{ZR+r}, v{ZR+r}, v{ZR+4+r}")
    a(f"ds_write_b128 v10, {vr(ZR,4)}")
    for p in range(8):
        a(f"s_waitcnt vmcnt({14-2*p})")
        for q in range(2):
            for h_ in range(2):
                d = vr(PR + 4*(2*q + h_), 4)
                a(f"v_mfma_f32_16x16x32_bf16 {d}, {vr(SEL+4*h_,4)}, {vr(PK+8*p+4*q,4)}, {'0' if p == 0 else d}")
    a("s_nop 7")
    for q in range(4):
        a(f"ds_write_b128 v8, {vr(PR+4*q,4)} offset:{q*1024}")
    a("s_waitcnt lgkmcnt(0)")
    a(f"ds_write_b32 v13, v31 offset:{E_XF}")
    lds_spin(a, 14, E_XF, 28, "eq", 1)
    SB = 80
    for q in range(4):
        a(f"ds_read_b128 {vr(SB+4*q,4)}, v9 offset:{q*1024}")
    for ud in range(2):
        a(f"ds_read_b128 {vr(96+4*ud,4)}, v11 offset:{ud*64}"); a(f"ds_read_b128 {vr(104+4*ud,4)}, v12 offset:{ud*64}")
    a("s_waitcnt lgkmcnt(0)")
    for r in range(16): a(f"v_add_f32 v{PR+r}, v{PR+r}, v{SB+r}")
    for r in range(8): a(f"v_add_f32 v{96+r}, v{96+r}, v{104+r}")
    KA = 112; ZF = 120
    for ue in range(2):
        for ud in range(2):
            t = PR + (ud*2+ue)*4
            a(f"v_cvt_pk_bf16_f32 v{KA+4*ue+2*ud}, v{t}, v{t+1}"); a(f"v_cvt_pk_bf16_f32 v{KA+4*ue+2*ud+1}, v{t+2}, v{t+3}")
    for ud in range(2):
        t = 96 + 4*ud
        a(f"v_cvt_pk_bf16_f32 v{ZF+2*ud}, v{t}, v{t+1}"); a(f"v_cvt_pk_bf16_f32 v{ZF+2*ud+1}, v{t+2}, v{t+3}")
    a("s_nop 1")
    O = 128
    for ai in range(4):
        for ue in range(2):
            a(f"v_mfma_f32_16x16x32_bf16 {vr(O+(ai*3+ue)*4,4)}, {vr(KA+4*ue,4)}, {vr(QF+4*ai,4)}, 0")
        a(f"v_mfma_f32_16x16x32_bf16 {vr(O+(ai*3+2)*4,4)}, {vr(ZF,4)}, {vr(QF+4*ai,4)}, 0")
    a("s_nop 7")
    OP = 64
    for ai in range(4):
        dn = O + (ai*3+2)*4
        a(f"v_add_f32 v{dn}, s58, v{dn}")
        a(f"v_rcp_f32 v{dn}, v{dn}")
        a("s_nop 0")
        for ue in range(2):
            t = O + (ai*3+ue)*4
            for r in range(4): a(f"v_mul_f32 v{t+r}, v{t+r}, v{dn}")
            a(f"v_cvt_pk_bf16_f32 v{OP+4*ai+2*ue}, v{t}, v{t+1}"); a(f"v_cvt_pk_bf16_f32 v{OP+4*ai+2*ue+1}, v{t+2}, v{t+3}")
        o = OP + 4*ai
        a("s_nop 1")
        a(f"v_permlane16_swap_b32 v{o}, v{o+2}"); a(f"v_permlane16_swap_b32 v{o+1}, v{o+3}")
        a(f"s_mov_b32 s60, {WS_O + 16*ai*2048}")
        a(f"buffer_store_dwordx4 {vr(o,4)}, v5, s[36:39], s60 offen sc1")
    st_(4, 7)
    a("s_lshl_b32 s55, s53, 12")
    a("s_mov_b32 s58, s70")
    def publish_o():
        a("s_lshl_b32 s57, s48, 4"); a("s_add_u32 s57, s57, s49"); a("s_lshl_b32 s57, s57, 7"); a(f"s_add_u32 s57, s57, {FL_O}"); a("v_mov_b32 v28, s57")
        lds_spin(a, 30, E_ADC, 29, "ge", 4)
        a("s_waitcnt vmcnt(0)")
        lds_count_last(a, 30, E_OC, 31, 29, 3, lambda: a("buffer_store_dword v31, v28, s[36:39], 0 offen sc1"))
        a("s_nop 4")
    a("s_mov_b32 s71, 0")
    a(f"ds_read_b32 v29, v30 offset:{E_CRC}"); a("s_waitcnt lgkmcnt(0)")
    a("v_readfirstlane_b32 s60, v29"); a("s_cmp_ge_u32 s60, 4"); a("s_cbranch_scc1 Lconv")
    publish_o()
    a("s_mov_b32 s71, 1")
    lds_spin(a, 30, E_CRC, 29, "ge", 4)
    a.label("Lconv")
    st_(5)
    FR = 96; ACC = 32
    def tf(b, k1): return FR + b*64 + k1*4
    def ff(b, n1): return FR + b*64 + 32 + n1*4
    def rd(b):
        L = []
        for i in range(8):
            L.append(f"ds_read_b64 {vr(tf(b,i),2)}, v16 offset:{512*(7-i)}")
            L.append(f"ds_read_b64 {vr(tf(b,i)+2,2)}, v16 offset:{512*(7-i)+8}")
            L.append(f"ds_read_b128 {vr(ff(b,i),4)}, v17 offset:{512*i}")
        return L
    def mm(b, first):
        L = []; seen = set()
        for k1 in range(8):
            for n1 in range(8 - k1):
                t = k1 + n1
                d = vr(ACC + 4*t, 4)
                c = "0" if (first and t not in seen) else d
                seen.add(t)
                L.append(f"v_mfma_f32_16x16x32_bf16 {d}, {vr(tf(b,k1),4)}, {vr(ff(b,n1),4)}, {c}")
        return L
    for s_ in rd(0): a(s_)
    a("v_subrev_u32 v16, 64, v16"); a("v_subrev_u32 v17, 64, v17")
    DF = 24
    def resid(b, first, last):
        Ms = mm(b, first)
        if first: Ms += [f"v_mfma_f32_16x16x32_bf16 {vr(ACC+4*t,4)}, {vr(DF,4)}, {vr(ff(b,t),4)}, {vr(ACC+4*t,4)}" for t in range(8)]
        R_ = [] if last else rd(b ^ 1)
        a("s_waitcnt lgkmcnt(0)")
        for m_ in Ms:
            a(m_)
            if R_: a(R_.pop(0))
        if not last:
            a("v_subrev_u32 v16, 64, v16"); a("v_subrev_u32 v17, 64, v17")
    resid(0, True, False); resid(1, False, False)
    a("s_cmp_eq_u32 s71, 0"); a("s_cbranch_scc0 Lpubd")
    publish_o()
    a.label("Lpubd")
    for ai in range(4):
        a(f"s_mov_b32 s61, {16*ai*2048}")
        for u in range(2):
            a(f"buffer_load_dwordx2 {vr(XR+(ai*2+u)*2,2)}, v22, s[24:27], s61 offen offset:{32*u}")
    a("s_mov_b32 s60, 0")
    a(f".p2align {opt.get('align', 6)}")
    a.label("Lcl")
    resid(0, False, False); resid(1, False, False)
    a("s_add_u32 s60, s60, 1"); a("s_cmp_lt_u32 s60, 2"); a("s_cbranch_scc1 Lcl")
    resid(0, False, False); resid(1, False, True)
    a("v_lshlrev_b32 v5, 5, v2"); a("v_lshl_add_u32 v5, v7, 3, v5")
    a(f"s_add_u32 s56, s55, {WS_YT}")
    a("s_nop 7")
    for t in range(8):
        y = ACC + 4*t
        a(f"v_cvt_pk_bf16_f32 v{y}, v{y}, v{y+1}"); a(f"v_cvt_pk_bf16_f32 v{y+1}, v{y+2}, v{y+3}")
        a(f"buffer_store_dwordx2 {vr(y,2)}, v5, s[36:39], s56 offen offset:{512*t} sc1")

    NS = 6
    def gacc(ai, u): return 64 + (u*4 + ai)*4
    def gxf(buf, kk, ai): return 96 + buf*48 + (kk*4 + ai)*4
    def gwf(buf, kk, u): return 96 + buf*48 + 32 + (kk*2 + u)*4
    def greads(st, buf):
        slot = st % NS
        hi = 0 if slot < 3 else 2
        so = (slot % 3) * ST3
        L = []
        for kk in range(2):
            X = [f"ds_read_b128 {vr(gxf(buf,kk,ai),4)}, v{GXA+hi+kk} offset:{so + ai*2048}" for ai in range(4)]
            W = [[f"ds_read_b64_tr_b16 {vr(gwf(buf,kk,u)+2*sec,2)}, v{GWA+hi+u} offset:{so + kk*4096 + sec*512}" for sec in range(2)] for u in range(2)]
            L += W[0] + [X[0], X[1]] + W[1] + [X[2], X[3]]
        return L
    def gmfmas(buf, first=False):
        return [f"v_mfma_f32_16x16x32_bf16 {vr(gacc(ai,u),4)}, {vr(gwf(buf,kk,u),4)}, {vr(gxf(buf,kk,ai),4)}, {'0' if first and kk == 0 else vr(gacc(ai,u),4)}"
                for kk in range(2) for u in range(2) for ai in range(4)]
    XG = 192
    xg = []
    for ai in range(4):
        for u in range(2):
            xr = XR + (ai*2+u)*2; o = XG + (ai*2+u)*4
            xg += [f"v_lshlrev_b32 v{o}, 16, v{xr}", f"v_and_b32 v{o+1}, 0xffff0000, v{xr}",
                   f"v_lshlrev_b32 v{o+2}, 16, v{xr+1}", f"v_and_b32 v{o+3}, 0xffff0000, v{xr+1}"]
    a("s_mov_b64 exec, 1"); a(f"ds_add_u32 v30, v31 offset:{E_CD}"); a("s_mov_b64 exec, -1")
    a(f"v_mov_b32 v30, {F_FL}")
    a("s_barrier")
    st_(6, None, 1)
    for s_ in greads(0, 0): a(s_)
    for st in range(16):
        buf = st & 1
        Ms = gmfmas(buf, st == 0)
        q = greads(st + 1, buf ^ 1) if st < 15 else []
        if st == 15:
            q = [f"ds_read_b64_tr_b16 {vr(96+(ai*2+u)*2,2)}, v6 offset:{u*16*256 + ai*32}" for ai in range(4) for u in range(2)]
        extra = []
        if 5 <= st < 15:
            n = -(-len(xg) // 10)
            extra = xg[(st-5)*n:(st-4)*n]
        a("s_waitcnt lgkmcnt(0)")
        if st in (4, 8, 12, 15): st_(None, None, {4: 2, 8: 3, 12: 4, 15: 5}[st])
        if st == 4:
            a("s_waitcnt vmcnt(0)")
            a("s_lshr_b32 s65, s53, 2"); a("s_lshl_b32 s65, s65, 7"); a(f"s_add_u32 s65, s65, {FL_Y}"); a("v_mov_b32 v28, s65")
            lds_count_last(a, 30, 0, 31, 29, 3, lambda: a("buffer_store_dword v31, v28, s[36:39], 0 offen sc1"))
            a("s_nop 4")
        if st == 13:
            a("v_bfe_u32 v6, v0, 2, 2"); a("v_lshl_add_u32 v6, v7, 2, v6")
            a("s_lshl_b32 s57, s67, 5"); a("v_add_u32 v6, s57, v6"); a("v_lshlrev_b32 v6, 8, v6")
            a("v_and_b32 v5, 3, v0"); a("v_lshl_add_u32 v6, v5, 3, v6")
            a("s_lshl_b32 s57, s66, 7"); a(f"s_add_u32 s57, s57, {F_Y}"); a("v_add_u32 v6, s57, v6")
            a("v_and_b32 v8, 1, v7"); a("v_lshlrev_b32 v8, 5, v8"); a("v_lshrrev_b32 v9, 1, v7"); a("v_lshl_add_u32 v8, v9, 4, v8")
            a("v_add3_u32 v8, v21, v8, s64")
        if st == 15:
            a("s_waitcnt vmcnt(0)")
            for ai in range(4): a(f"v_sub_f32 v{GR+4*ai+2}, 1.0, v{GR+4*ai}")
        if st == 11:
            a(f"s_mov_b32 s61, {WS_G}")
            for ai in range(4):
                a(f"buffer_load_dword v{GR+4*ai}, v23, s[36:39], s61 offen offset:{64*ai} sc1")
        for i in range(16):
            a(Ms[i])
            if i == 1 and st < 15: a("s_barrier")
            if i >= 1:
                for _ in range(2):
                    if q: a(q.pop(0))
            if i >= 9:
                for _ in range(3):
                    if extra: a(extra.pop(0))
        for s_ in q + extra: a(s_)
    a("s_waitcnt lgkmcnt(0)")
    st_(None, None, 6)
    YR = 96; OP = 112; T = 128
    for ai in range(4):
        g_ = GR + 4*ai
        for u in range(2):
            t = gacc(ai, u); yr = YR + (ai*2+u)*2; xo = XG + (ai*2+u)*4; T_ = T + 4*(u & 1)
            a(f"v_lshlrev_b32 v{T_}, 16, v{yr}"); a(f"v_and_b32 v{T_+1}, 0xffff0000, v{yr}")
            a(f"v_lshlrev_b32 v{T_+2}, 16, v{yr+1}"); a(f"v_and_b32 v{T_+3}, 0xffff0000, v{yr+1}")
            for h_ in range(2):
                a(f"v_pk_mul_f32 {vr(T_+2*h_,2)}, {vr(T_+2*h_,2)}, {vr(xo+2*h_,2)}")
                a(f"v_pk_mul_f32 {vr(T_+2*h_,2)}, {vr(T_+2*h_,2)}, {vr(g_+2,2)} op_sel_hi:[1,0]")
                a(f"v_pk_fma_f32 {vr(T_+2*h_,2)}, {vr(t+2*h_,2)}, {vr(g_,2)}, {vr(T_+2*h_,2)} op_sel_hi:[1,0,1]")
                a(f"v_cvt_pk_bf16_f32 v{OP+4*ai+2*u+h_}, v{T_+2*h_}, v{T_+2*h_+1}")
        o = OP + 4*ai
        a("s_nop 1")
        a(f"v_permlane16_swap_b32 v{o}, v{o+2}"); a(f"v_permlane16_swap_b32 v{o+1}, v{o+3}")
        a(f"s_mov_b32 s61, {16*ai*2048}")
        a(f"buffer_store_dwordx4 {vr(o,4)}, v8, s[28:31], s61 offen{opt.get('outfl', '')}")
    a("s_waitcnt vmcnt(0)")
    st_(7, None, 7)
    stamp_dump(a, opt, 8)
    a("s_waitcnt vmcnt(0)")
    a("s_endpgm")

def a_waves(a, opt):
    a("s_sub_u32 s53, s50, 4")
    VA = 8; VW = 12
    a("v_lshrrev_b32 v2, 3, v0"); a("v_and_b32 v3, 7, v0"); a("v_lshrrev_b32 v4, 4, v0")
    a("s_lshl_b32 s55, s48, 7"); a("s_lshl_b32 s61, s53, 5"); a("s_add_u32 s55, s55, s61")
    a("v_add_u32 v5, s55, v2"); a("v_lshlrev_b32 v5, 11, v5")
    a("v_xor_b32 v6, v4, v3"); a(f"v_lshl_add_u32 v{VA}, v6, 4, v5")
    a("v_xor_b32 v6, 4, v6"); a(f"v_lshl_add_u32 v{VA+1}, v6, 4, v5"); a(f"v_add_u32 v{VA+1}, 16384, v{VA+1}")
    for i in range(2, 4): a(f"v_add_u32 v{VA+i}, 32768, v{VA+(i&1)}")
    a("v_and_b32 v6, 1, v4"); a("v_lshlrev_b32 v6, 1, v6"); a("v_xor_b32 v6, v6, v3")
    a("v_mul_u32_u24 v5, 6144, v2")
    a(f"s_mul_i32 s55, s53, {2*8*6144}"); a("s_lshl_b32 s61, s49, 7"); a("s_add_u32 s55, s55, s61")
    a("v_add_u32 v5, s55, v5")
    a(f"v_lshl_add_u32 v{VW}, v6, 4, v5")
    a("v_xor_b32 v6, 4, v6"); a(f"v_lshl_add_u32 v{VW+1}, v6, 4, v5"); a(f"v_add_u32 v{VW+1}, {8*6144}, v{VW+1}")
    WL = [(seg, r2) for seg in range(3) for r2 in range(2)]
    for i, (seg, r2) in enumerate(WL):
        if i >= 2: a(f"v_add_u32 v{VW+i}, {seg*2048}, v{VW + r2}")
    a("s_lshl_b32 s64, s53, 12")
    a("s_lshl_b32 s65, s53, 11"); a("s_add_u32 s65, s65, 16384")
    rv = opt.get("rotv", 0)
    if rv == 0: a("s_lshr_b32 s46, s52, 3"); a("s_add_u32 s46, s46, s52"); a("s_and_b32 s46, s46, 3"); a("s_lshl_b32 s46, s46, 2")
    elif rv == 1: a("s_and_b32 s46, s52, 3"); a("s_lshl_b32 s46, s46, 2")
    elif rv == 2: a("s_lshr_b32 s46, s52, 3"); a("s_lshl_b32 s46, s46, 2")
    elif rv == 3: a("s_lshr_b32 s46, s52, 3"); a("s_add_u32 s46, s46, s52"); a("s_add_u32 s46, s46, s51"); a("s_and_b32 s46, s46, 3"); a("s_lshl_b32 s46, s46, 2")
    elif rv == 4: a("s_lshr_b32 s46, s52, 1"); a("s_and_b32 s46, s46, 3"); a("s_lshl_b32 s46, s46, 2")
    a("s_lshl_b32 s66, s46, 7"); a(f"s_mul_i32 s67, s46, {64*6144}"); a("s_mov_b32 s68, 0")
    a("s_waitcnt lgkmcnt(0)")
    make_srd(a, 20, 4, NB["x"]); make_srd(a, 24, 6, NB["wqkv"])
    def prep():
        a("s_add_u32 s69, s64, s68"); a("s_add_u32 s55, s65, s68"); a("s_mov_b32 m0, s69")
    def issue(prepared=False):
        if not prepared: prep(); a("s_nop 0")
        fill = [f"s_add_u32 s68, s68, {ST1}", f"s_cmp_eq_u32 s68, {4*ST1}\ns_cselect_b32 s68, 0, s68", "s_nop 0"]
        for i in range(4):
            if i:
                a(f"s_add_u32 m0, s69, {i*1024}"); a(fill.pop(0))
            a(f"buffer_load_dwordx4 v{VA+i}, s[20:23], s66 offen lds")
        fill = ["s_add_u32 s66, s66, 128", "s_cmp_eq_u32 s66, 2048\ns_cselect_b32 s66, 0, s66"]
        for i, (seg, r2) in enumerate(WL):
            a(f"s_add_u32 m0, s55, {seg*8192 + r2*1024}"); a(fill.pop(0) if fill else "s_nop 0")
            a(f"buffer_load_dwordx4 v{VW+i}, s[24:27], s67 offen lds")
        a(f"s_add_u32 s67, s67, {64*6144}"); a(f"s_cmp_eq_u32 s67, {16*64*6144}"); a("s_cselect_b32 s67, 0, s67")
    issue(); issue()
    a("s_load_dwordx4 s[8:11], s[0:1], 32")
    a("s_load_dwordx4 s[4:7], s[0:1], 48")
    a("s_load_dwordx2 s[16:17], s[0:1], 72")
    a("s_load_dwordx2 s[18:19], s[0:1], 16")
    ramp = opt.get("ramp1", (1, 1, 1, 1, 2))
    issued = 2
    for i, n in enumerate(ramp):
        prep()
        a(f"s_waitcnt vmcnt({10*(issued - i - 1)})"); a("s_barrier")
        if i == 0: stamp(a, opt, 1)
        for k_ in range(n):
            issue(prepared=(k_ == 0)); issued += 1
        if i == 0:
            a("s_waitcnt lgkmcnt(0)")
            make_srd(a, 28, 8, NB["bk"]); make_srd(a, 32, 10, NB["bv"])
            make_srd(a, 36, 14, WS_USED); make_srd(a, 40, 4, NB["shift"]); make_srd(a, 44, 16, NB["gw"])
    i0 = len(ramp)
    a(f"s_mov_b32 s60, {i0}")
    a(f".p2align {opt.get('align', 6)}")
    a.label("Llloop")
    prep()
    a("s_add_u32 s60, s60, 1")
    a("s_waitcnt vmcnt(20)"); a("s_barrier")
    issue(prepared=True)
    a("s_cmp_lt_u32 s60, 13"); a("s_cbranch_scc1 Llloop")
    NTKV = "" if opt.get("kvtouch") else " nt"
    pl = Asm()
    pl("s_and_b32 s70, s2, 15"); pl("s_lshr_b32 s71, s2, 4")
    pl("v_lshrrev_b32 v20, 3, v0"); pl("v_and_b32 v21, 7, v0")
    pl("s_lshl_b32 s72, s70, 7"); pl("s_lshl_b32 s73, s53, 5"); pl("s_add_u32 s72, s72, s73")
    pl("v_lshl_add_u32 v22, v20, 2, s72")
    pl("s_lshl_b32 s73, s71, 6"); pl("v_lshl_add_u32 v23, v21, 3, s73")
    pl("v_lshlrev_b32 v24, 11, v22"); pl("v_lshl_add_u32 v24, v23, 1, v24")
    pl("v_subrev_u32 v25, 6144, v24")
    for r in range(7):
        if r: pl("v_add_u32 v25, 2048, v25")
        pl(f"buffer_load_dwordx4 {vr(32+4*r,4)}, v25, s[28:31], 0 offen{NTKV}")
    pl("v_add_u32 v26, 4096, v24")
    for r in range(4):
        pl(f"buffer_load_dwordx4 {vr(60+4*r,4)}, v{24 if r < 2 else 26}, s[32:35], 0 offen offset:{2048*(r & 1)}{NTKV}")
    partA = pl.lines; pl = Asm()
    pl("v_lshlrev_b32 v27, 3, v23")
    for q in range(4):
        pl(f"buffer_load_dwordx4 {vr(76+4*q,4)}, v27, s[40:43], 0 offen offset:{16*q}")
    pl("s_lshl_b32 s73, s48, 7"); pl("s_lshl_b32 s74, s49, 3"); pl("s_add_u32 s73, s73, s74"); pl("s_lshl_b32 s74, s53, 1"); pl("s_add_u32 s73, s73, s74")
    pl("v_lshrrev_b32 v28, 5, v0"); pl("v_add_u32 v28, s73, v28")
    pl("v_and_b32 v29, 31, v0"); pl("v_lshlrev_b32 v29, 4, v29")
    pl("v_lshl_add_u32 v30, v28, 11, v29")
    for i in range(4):
        pl(f"buffer_load_dwordx4 {vr(92+4*i,4)}, v30, s[20:23], 0 offen offset:{512*i}")
    for i in range(4):
        pl(f"buffer_load_dwordx4 {vr(108+4*i,4)}, v29, s[44:47], 0 offen offset:{512*i}")
    pl("v_lshlrev_b32 v31, 12, v23"); pl("v_lshl_add_u32 v31, v22, 1, v31")
    pl(f"s_mov_b32 s72, {WS_UT}")
    pl("s_mov_b32 s74, 0x05040100"); pl("s_mov_b32 s75, 0x07060302")
    partB = pl.lines
    a("v_mov_b32 v160, 0"); a("v_mov_b32 v161, 0"); a("v_mov_b32 v162, 0"); a("v_mov_b32 v163, 0")
    a("v_and_b32 v164, 1, v0"); a("v_lshlrev_b32 v164, 4, v164")
    a("s_waitcnt vmcnt(20)"); a("s_barrier")
    a(f"ds_write_b128 v164, v[160:163] offset:{F_E0}")
    for ln in partA: a(ln)
    a("s_waitcnt vmcnt(21)"); a("s_barrier")
    a(f"ds_write_b128 v164, v[160:163] offset:{F_E1}")
    for ln in partB: a(ln)
    a("s_lshl_b32 s54, s51, 7"); a("s_lshl_b32 s55, s52, 2"); a("s_add_u32 s54, s54, s55"); a("s_add_u32 s54, s54, s53")
    a("s_lshl_b32 s55, s54, 12")
    a("s_add_u32 s60, s6, s55"); a("s_addc_u32 s61, s7, 0")
    a("v_lshlrev_b32 v1, 2, v0"); a("v_subrev_u32 v3, 4, v1"); a("v_add_u32 v4, 252, v1")
    a("s_waitcnt vmcnt(23) lgkmcnt(0)"); a("s_barrier")
    a("v_and_b32 v165, 7, v0"); a("v_lshlrev_b32 v165, 4, v165"); a(f"v_add_u32 v165, {F_FL}, v165")
    a("ds_write_b128 v165, v[160:163]")
    a("s_mov_b32 s24, s60"); a("s_mov_b32 s25, s61"); a("s_mov_b32 s26, 4096"); a("s_mov_b32 s27, 0x00020000")
    E = 176; E1 = 192
    for j in range(16):
        a(f"buffer_load_dword v{E+j}, v1, s[24:27], 0 offen offset:{256*j} nt")
        if j == 0: a(f"buffer_load_dword v{E1}, v3, s[24:27], 0 offen")
        else:      a(f"buffer_load_dword v{E1+j}, v4, s[24:27], 0 offen offset:{256*(j-1)}")
    a("s_waitcnt vmcnt(40)")
    stamp(a, opt, 2)
    P = 128; KS = 140; VU = 148
    for c in range(8):
        cp, h = c >> 1, c & 1
        sel = "s75" if h else "s74"
        pb = P + 6*(c & 1); kb = KS + 4*(c & 1)
        for t in range(6): a(f"v_perm_b32 v{pb+t}, v{32+4*t+cp}, v{32+4*(t+1)+cp}, {sel}")
        for r in range(4): a(f"v_dot2_f32_bf16 v{kb+r}, v{pb+r+2}, v{76+2*c}, 0")
        for r in range(4): a(f"v_dot2_f32_bf16 v{kb+r}, v{pb+r}, v{76+2*c+1}, v{kb+r}")
        for r in range(4):
            if h: a(f"v_and_b32 v{VU+r}, 0xffff0000, v{60+4*r+cp}")
            else: a(f"v_lshlrev_b32 v{VU+r}, 16, v{60+4*r+cp}")
        for r in range(4): a(f"v_mul_f32 v{kb+r}, v{kb+r}, v{VU+r}")
        o = 152 + 2*(c & 3)
        a(f"v_cvt_pk_bf16_f32 v{o}, v{kb}, v{kb+1}"); a(f"v_cvt_pk_bf16_f32 v{o+1}, v{kb+2}, v{kb+3}")
        a(f"s_add_u32 s73, s72, {c*4096}")
        a(f"buffer_store_dwordx2 {vr(o,2)}, v31, s[36:39], s73 offen sc1")
    a("s_waitcnt vmcnt(40)")
    a("v_mov_b32 v128, 0")
    for i in range(16): a(f"v_dot2_f32_bf16 v128, v{92+i}, v{108+i}, v128")
    a("s_nop 3")
    for ctl in ("quad_perm:[1,0,3,2]", "quad_perm:[2,3,0,1]", "row_half_mirror", "row_mirror"):
        a(f"v_add_f32_dpp v128, v128, v128 {ctl} row_mask:0xf bank_mask:0xf"); a("s_nop 1")
    a("v_mov_b32 v129, v128"); a("s_nop 1")
    a("v_permlane16_swap_b32 v128, v129"); a("s_nop 1")
    a("v_add_f32 v128, v128, v129")
    a("v_mul_f32 v128, 0xbfb8aa3b, v128"); a("v_exp_f32 v128, v128"); a("s_nop 0")
    a("v_add_f32 v128, 1.0, v128"); a("v_rcp_f32 v128, v128")
    a("v_lshlrev_b32 v28, 2, v28"); a("v_and_b32 v29, 31, v0"); a("v_cmp_eq_u32 vcc, 0, v29")
    a("s_and_saveexec_b64 s[62:63], vcc")
    a(f"s_mov_b32 s73, {WS_G}")
    a("buffer_store_dword v128, v28, s[36:39], s73 offen sc1")
    a("s_mov_b64 exec, s[62:63]")
    stamp(a, opt, 3)
    a("v_lshlrev_b32 v2, 4, v0")
    a(f"s_mul_i32 s56, s53, {CWB}")
    a("v_mov_b32 v12, 0"); a("v_mov_b32 v13, 0"); a("v_mov_b32 v14, 0"); a("v_mov_b32 v15, 0")
    a(f"s_add_u32 s57, s56, {CF}")
    a("v_min_u32 v5, 29, v0"); a("v_lshl_add_u32 v5, v5, 4, s57")
    a("ds_write_b128 v5, v[12:15]")
    a("v_lshrrev_b32 v5, 3, v0"); a("v_and_b32 v5, 3, v5"); a(f"v_mul_u32_u24 v5, {CTS}, v5")
    a("v_and_b32 v6, 7, v0"); a("v_lshl_add_u32 v5, v6, 2, v5")
    a(f"s_add_u32 s57, s56, {8 + 4*1023}"); a("v_add_u32 v5, s57, v5")
    a("ds_write_b32 v5, v12")
    TW = 16
    for rho in range(4):
        a(f"s_add_u32 s57, s56, {rho*CTS + 256 + (4 if rho >= 2 else 0)}")
        a(f"v_sub_u32 v{TW+rho}, s57, v1")
    a("s_mov_b32 s59, 0xffff")
    a("s_waitcnt vmcnt(9)")
    S = 64; M = 80
    for j in range(16):
        a(f"v_alignbit_b32 v{S+j}, v{E+j}, v{E+j}, 16")
        a(f"v_bfi_b32 v{M+j}, s59, v{E+j}, v{E1+j}")
    for j in range(0, 16, 2):
        for rho in range(4):
            src = S if rho & 1 else M
            a(f"ds_write2st64_b32 v{TW+rho}, v{src+j}, v{src+j+1} offset0:{15-j} offset1:{14-j}")
    make_srd(a, 40, 12, 256); make_srd(a, 24, 18, NB["wo"])
    a("v_mov_b32 v9, 0"); a("v_mov_b32 v11, 1")
    a("s_lshl_b32 s60, s2, 7"); a(f"s_add_u32 s60, s60, {FL_U}"); a("v_mov_b32 v10, s60")
    a("s_waitcnt vmcnt(0)")
    lds_count_last(a, 9, E_ADC, 11, 8, 3, lambda: a("buffer_store_dword v11, v10, s[36:39], 0 offen sc1"))
    stamp(a, opt, 4)
    a("v_lshrrev_b32 v96, 3, v0"); a("v_and_b32 v97, 7, v0"); a("v_lshrrev_b32 v98, 4, v0")
    a("s_cmp_eq_u32 s53, 3"); a("s_cbranch_scc1 Lawo")
    a("s_lshl_b32 s60, s96, 7"); a("v_add_u32 v99, s60, v96"); a("v_lshlrev_b32 v99, 11, v99")
    a("v_xor_b32 v100, v98, v97"); a("v_lshl_add_u32 v20, v100, 4, v99")
    a("v_xor_b32 v100, 4, v100"); a("v_lshl_add_u32 v21, v100, 4, v99")
    a("s_mov_b32 s28, s36"); a("s_mov_b32 s29, s37"); a("s_mov_b32 s30, s38"); a("s_mov_b32 s31, s39")
    a("s_sub_u32 s60, s53, 1"); a("s_lshl_b32 s64, s60, 13"); a("s_lshl_b32 s66, s60, 17"); a(f"s_add_u32 s66, s66, {WS_O}"); a("s_mov_b32 s65, 128")
    a("s_branch Lawd")
    a.label("Lawo")
    a("v_and_b32 v100, 1, v98"); a("v_lshlrev_b32 v100, 1, v100"); a("v_xor_b32 v100, v100, v97")
    a("v_lshlrev_b32 v99, 11, v96"); a("s_lshl_b32 s61, s97, 7"); a("v_add_u32 v99, s61, v99")
    a("v_lshl_add_u32 v20, v100, 4, v99")
    a("v_xor_b32 v100, 4, v100"); a("v_lshl_add_u32 v21, v100, 4, v99")
    a("s_mov_b32 s28, s24"); a("s_mov_b32 s29, s25"); a("s_mov_b32 s30, s26"); a("s_mov_b32 s31, s27")
    a("s_mov_b32 s64, 16384"); a("s_mov_b32 s66, 0"); a("s_mov_b32 s65, 131072")
    a.label("Lawd")
    a("v_lshrrev_b32 v99, 4, v0"); a("s_lshl_b32 s60, s97, 6"); a("v_add_u32 v99, s60, v99"); a("v_lshlrev_b32 v99, 12, v99")
    a("v_and_b32 v100, 15, v0"); a("v_lshl_add_u32 v99, v100, 4, v99"); a("s_lshl_b32 s60, s96, 8"); a("v_add_u32 v26, s60, v99")
    a("s_cmp_eq_u32 s53, 0"); a("s_cbranch_scc1 Lupoll")
    a("s_lshl_b32 s60, s52, 5"); a("s_lshl_b32 s61, s53, 3"); a("s_add_u32 s60, s60, s61"); a("s_sub_u32 s60, s60, 8")
    a("v_lshrrev_b32 v96, 3, v0"); a("v_add_u32 v96, s60, v96"); a("v_lshlrev_b32 v96, 11, v96")
    a("v_and_b32 v97, 7, v0"); a("v_lshl_add_u32 v96, v97, 7, v96")
    a("s_lshr_b32 s60, s51, 2"); a("s_lshl_b32 s60, s60, 10")
    a("buffer_load_dword v98, v96, s[24:27], s60 offen")
    a("s_cmp_eq_u32 s53, 3"); a("s_cbranch_scc0 Lnpf")
    a("v_add_u32 v96, 16384, v96")
    a("buffer_load_dword v99, v96, s[24:27], s60 offen")
    a.label("Lnpf")
    lds_spin(a, 9, E_UR, 8, "eq", 1)
    a("s_branch Lugo")
    a.label("Lupoll")
    poll_zeroed(a, 100)
    a("s_lshl_b32 s60, s51, 1"); a("s_lshr_b32 s61, s52, 4"); a("s_add_u32 s60, s60, s61"); a("s_lshl_b32 s60, s60, 11"); a(f"s_add_u32 s60, s60, {FL_U}")
    a("v_and_b32 v102, 15, v0"); a("v_lshl_add_u32 v102, v102, 7, s60")
    poll16(a, 102, 100)
    a(f"ds_write_b32 v9, v11 offset:{E_UR}")
    a.label("Lugo")
    a(f"s_add_u32 s57, s55, {WS_UT}")
    for i in range(4):
        a(f"s_add_u32 m0, s56, {CF + 480 + i*1024}")
        a(f"s_add_u32 s60, s57, {i*1024}")
        a("buffer_load_dwordx4 v2, s[36:39], s60 offen sc1 lds")
    a("s_waitcnt vmcnt(0) lgkmcnt(0)")
    a("s_mov_b64 exec, 1")
    a(f"ds_add_u32 v9, v11 offset:{E_CRC}")
    a("s_mov_b64 exec, -1")
    stamp(a, opt, 5)
    def slot_base(st):
        sl = st % 6
        return (F_U + sl*ST3) if sl < 3 else (sl - 3)*ST3
    ORD = 64
    a(f"v_mov_b32 v27, {F_FL}")
    a("s_cmp_eq_u32 s53, 0"); a("s_cbranch_scc0 Lgload")
    a("s_lshl_b32 s60, s96, 11"); a(f"s_add_u32 s60, s60, {FL_O}")
    a("v_and_b32 v102, 15, v0"); a("v_lshl_add_u32 v102, v102, 7, s60")
    a("s_lshl_b32 s60, s97, 11"); a(f"s_add_u32 s60, s60, {FL_Y}")
    a("v_and_b32 v103, 15, v0"); a("v_lshl_add_u32 v103, v103, 7, s60")
    a("s_mov_b32 s70, 0"); a("s_mov_b32 s71, 0")
    def absorb():
        l0, l1 = lab("ab"), lab("ae")
        a("v_cmp_eq_u32 vcc, 1, v100"); a("s_nop 3")
        a("s_and_b32 s72, vcc_lo, 0xffff"); a("s_andn2_b32 s62, s72, s71")
        a.label(l0)
        a("s_cmp_eq_u32 s62, 0"); a(f"s_cbranch_scc1 {l1}")
        a("s_ff1_i32_b32 s47, s62"); a("s_lshl_b32 s60, 1, s47"); a("s_or_b32 s71, s71, s60"); a("s_andn2_b32 s62, s62, s60")
        a("s_add_u32 s47, s47, 1"); a("v_mov_b32 v101, s47"); a("s_lshl_b32 s60, s70, 2"); a("v_add_u32 v104, s60, v27")
        a(f"ds_write_b32 v104, v101 offset:{ORD}"); a("s_add_u32 s70, s70, 1")
        a(f"s_branch {l0}")
        a.label(l1)
    a("s_mov_b32 s61, 0")
    a.label("Lsync0")
    a(f"buffer_load_dword v100, v102, s[36:39], 0 offen{POLL[0]}")
    a("s_mov_b32 s73, 0")
    a.label("Lsyncw")
    a(f"ds_read_b32 v105, v9 offset:{E_CD}"); a("s_waitcnt lgkmcnt(0)")
    a("v_readfirstlane_b32 s60, v105"); a("s_add_u32 s73, s73, 1")
    a("s_cmp_ge_u32 s60, 4"); a("s_cselect_b32 s60, 1, 0"); a("s_cmp_ge_u32 s70, 4"); a("s_cselect_b32 s62, 1, 0"); a("s_and_b32 s60, s60, s62"); a("s_cbranch_scc1 Lsync1")
    a("s_cmp_lt_u32 s73, 4"); a("s_cbranch_scc1 Lsyncw")
    a("s_waitcnt vmcnt(0)")
    absorb()
    a("s_cmp_eq_u32 s70, 16"); a("s_cbranch_scc1 Lsync1")
    a("s_add_u32 s61, s61, 1"); a(f"s_cmp_lt_u32 s61, {SPIN_MAX}"); a("s_cbranch_scc1 Lsync0")
    a("v_mov_b32 v100, 1"); absorb()
    a.label("Lsync1")
    stamp(a, opt, 6)
    first_after = {}
    issued_ = 3
    for i in range(16):
        n_ = 0
        while issued_ + n_ <= min(15, i + 5) and n_ < opt.get("gburst", 2): n_ += 1
        if n_: first_after[i] = (issued_, issued_ + n_ - 1)
        issued_ += n_
    def ensure(count):
        l0, l1 = lab("en"), lab("ex")
        a("s_mov_b32 s73, 0")
        a.label(l0)
        a(f"s_cmp_ge_u32 s70, {count}"); a(f"s_cbranch_scc1 {l1}")
        a(f"buffer_load_dword v100, v102, s[36:39], 0 offen{POLL[0]}"); a("s_waitcnt vmcnt(0)")
        absorb()
        a("s_add_u32 s73, s73, 1"); a(f"s_cmp_lt_u32 s73, {SPIN_MAX}"); a(f"s_cbranch_scc1 {l0}")
        a("v_mov_b32 v100, 1"); absorb()
        a.label(l1)
    for i in range(16):
        if i in first_after: ensure(first_after[i][0] + 1)
        if i == 15: a("s_waitcnt vmcnt(0)")
        a("s_barrier")
        if i in first_after:
            nxt = first_after.get(i + 1, (first_after[i][1],))[0]
            ensure(max(first_after[i][1], nxt) + 1)
        if i == 9:
            a("buffer_load_dword v106, v103, s[36:39], 0 offen sc1")
        if i == 11:
            l = lab("sy"); l2 = lab("sz")
            a("s_mov_b32 s73, 0")
            a.label(l2)
            a("s_waitcnt vmcnt(0)")
            a("v_cmp_ne_u32 vcc, 1, v106"); a("s_add_u32 s73, s73, 1"); a("s_nop 3"); a("s_cmp_eq_u64 vcc, 0"); a(f"s_cbranch_scc1 {l}")
            a("buffer_load_dword v106, v103, s[36:39], 0 offen sc1")
            a(f"s_cmp_lt_u32 s73, {SPIN_MAX}"); a(f"s_cbranch_scc1 {l2}")
            a.label(l)
            for t in range(16):
                a(f"s_mov_b32 m0, {F_Y + t*1024}"); a(f"s_mov_b32 s61, {WS_YT + t*4*4096}")
                a("buffer_load_dwordx4 v26, s[36:39], s61 offen sc1 lds")
    a("s_branch Lgend")
    a.label("Lgload")
    def fetch_ord(k):
        a(f"ds_read_b32 v100, v27 offset:{ORD + 4*k}")
    def decode():
        a("v_readfirstlane_b32 s62, v100")
        a("s_sub_u32 s68, s62, 1"); a("s_and_b32 s68, s68, 15"); a("s_mul_i32 s68, s68, s65"); a("s_add_u32 s68, s68, s66")
    def take_ord(k, decoded=False):
        l0, l1 = lab("to"), lab("tx")
        if not decoded:
            a("s_waitcnt lgkmcnt(0)"); decode()
        a("s_cmp_lg_u32 s62, 0"); a(f"s_cbranch_scc1 {l1}")
        a("s_mov_b32 s61, 0")
        a.label(l0)
        fetch_ord(k); a("s_waitcnt lgkmcnt(0)"); decode()
        a("s_add_u32 s61, s61, 1"); a("s_cmp_lg_u32 s62, 0"); a(f"s_cbranch_scc1 {l1}")
        a(f"s_cmp_lt_u32 s61, {SPIN_MAX*8}"); a(f"s_cbranch_scc1 {l0}")
        a.label(l1)
        a("s_mov_b32 s67, s68")
    SC1 = "" if opt.get("nosc1") else " sc1"
    def issue_stage(st, nxt):
        sb = slot_base(st)
        for t in range(8):
            if t: a(f"s_add_u32 m0, s64, {sb + t*1024}"); a(f"s_add_u32 s60, s67, {t*16384}")
            a(f"buffer_load_dwordx4 v{20 + (t & 1)}, s[28:31], {'s67' if t == 0 else 's60'} offen{SC1} lds")
            if nxt is not None:
                if t == 1: fetch_ord(nxt)
                if t == 5: a("s_waitcnt lgkmcnt(0)"); decode()
    def prep_stage(st):
        a(f"s_add_u32 m0, s64, {slot_base(st)}")
    Q = []
    for st in range(3):
        fetch_ord(st); take_ord(st)
        if st == 2: lds_spin(a, 9, E_OC, 8, "ge", 4)
        prep_stage(st); a("s_nop 0")
        issue_stage(st, 3 if st == 2 else None); Q += [st]*8
        if st == 0: stamp(a, opt, 6)
    issued = 3
    for i in range(16):
        last = max(k for k, e in enumerate(Q) if e == i)
        n_after = len(Q) - 1 - last
        todo = []
        while issued + len(todo) <= min(15, i + 5) and len(todo) < opt.get("gburst", 2): todo.append(issued + len(todo))
        if todo:
            take_ord(todo[0], True); prep_stage(todo[0])
        a(f"s_waitcnt vmcnt({n_after})")
        if opt.get("gst"): a("s_memtime s[100:101]")
        a("s_barrier")
        if opt.get("gst"):
            a("s_waitcnt lgkmcnt(0)"); a("s_sub_u32 s100, s100, s80"); a(f"v_writelane_b32 v200, s100, {i}"); a("s_memtime s[100:101]")
            a("s_waitcnt lgkmcnt(0)"); a("s_sub_u32 s100, s100, s80"); a(f"v_writelane_b32 v200, s100, {16+i}")
        Q = Q[last + 1:]
        for k_, st in enumerate(todo):
            if k_:
                take_ord(st, True); prep_stage(st); a("s_nop 0")
            nxt = st + 1 if st + 1 <= 15 else None
            issue_stage(st, nxt); Q += [st]*8
        issued += len(todo)
    assert issued == 16
    if opt.get("gst"):
        a(f"s_add_u32 s76, s14, {WS_STAMP + (1 << 20)}"); a("s_addc_u32 s77, s15, 0"); a("s_mov_b32 s78, 0x1000000"); a("s_mov_b32 s79, 0x00020000")
        a("s_lshl_b32 s75, s2, 2"); a("s_add_u32 s75, s75, s53"); a("s_lshl_b32 s75, s75, 8")
        a("v_lshlrev_b32 v201, 2, v0"); a("buffer_store_dword v200, v201, s[76:79], s75 offen")
    a.label("Lgend")
    stamp(a, opt, 7)
    stamp_dump(a, opt, 8)
    a("s_waitcnt vmcnt(0)")

HEADER = """
"""

def build(opt=None):
    opt = opt or {}
    _lab[0] = 0
    POLL[0] = opt.get("pollfl", " sc1")
    a = Asm()
    for ln in HEADER.strip("\n").split("\n"): a(ln)
    if opt.get("aslist"): a(f"; @launch kernel={NAME} grid=(256,1,1) block=(512,1,1) lds=163840")
    else: a("; @launch grid=(256,1,1) block=(512,1,1) lds=163840")
    a('.amdgcn_target "amdgcn-amd-amdhsa--gfx950"')
    a(".text")
    a.lines = [l for l in a.lines]
    kernel(a, opt)
    a('.section .rodata,"a"')
    kernel_desc(a, NAME, vgpr=256, sgpr=102)
    return a.text().replace("None\n", "")

if __name__ == "__main__":
    opt = {}
    for o in sys.argv[2:]:
        k, _, v = o.partition("=")
        opt[k] = int(v) if v else 1
    open(sys.argv[1], "w").write(build(opt))
```

```python
import sys
from asmlib import *

WS_UT  = 4 << 20
WS_KVP = 8 << 20
WS_ZP  = 10 << 20
WS_G   = 11 << 20
WS_FL  = (11 << 20) | 0x80000
FL_KV, FL_U, FL_O, FL_Y = WS_FL, WS_FL + 32768, WS_FL + 65536, WS_FL + 98304
WS_O   = 12 << 20
WS_YT  = 16 << 20
WS_USED = 20 << 20
WS_STAMP = 24 << 20
LOG2E = 0x3fb8aa3b
EPS   = 0x358637bd
SPIN_MAX = 1 << 17
NAME = "gated_mix__linear_attn_block__ssm_conv_h3__prompt_kernel"

ST1 = 40960
CTS = 4160
CF  = 4 * CTS
CWB = 4 * CTS + 4608
F_FL = 4 * CWB
ST3 = 24576
F_U = F_FL + 256
F_SCR = F_U + 2 * ST3
F_Y = ST3
F_E0 = CWB - 32
F_E1 = 2 * CWB - 32
E_XF = F_E0
E_RF = F_E0 + 16
E_ADC, E_UR, E_CRC, E_OC, E_CD, E_KVC, E_KVR = (F_E1 + 4*k for k in range(7))
W_YC, W_YR = F_FL, F_FL + 4

def vr(a, n=1): return f"v{a}" if n == 1 else f"v[{a}:{a+n-1}]"

def stamp(a, opt, i):
    if opt.get("stamps"):
        a(f"s_memtime s[{80+2*i}:{81+2*i}]")
        if i == 0: a("s_memrealtime s[98:99]")
def stamp_dump(a, opt, n):
    if not opt.get("stamps"): return
    a("s_waitcnt vmcnt(0) lgkmcnt(0)")
    a(f"s_add_u32 s76, s14, {WS_STAMP}"); a("s_addc_u32 s77, s15, 0"); a("s_mov_b32 s78, 0x1000000"); a("s_mov_b32 s79, 0x00020000")
    a("s_lshl_b32 s75, s2, 3"); a("s_add_u32 s75, s75, s50"); a("s_lshl_b32 s75, s75, 6"); a("v_mov_b32 v1, s75")
    for i in range(1, n):
        a(f"s_sub_u32 s74, s{80+2*i}, s80"); a("v_mov_b32 v2, s74")
        a(f"buffer_store_dword v2, v1, s[76:79], 0 offen offset:{4*i}")
    a("s_memrealtime s[80:81]"); a("s_waitcnt lgkmcnt(0)"); a("v_mov_b32 v2, s80")
    a("buffer_store_dword v2, v1, s[76:79], 0 offen offset:60")
    a("v_mov_b32 v2, s98"); a("buffer_store_dword v2, v1, s[76:79], 0 offen offset:56")

def phi_pair(a, t, tmp):
    a(f"v_pk_mul_f32 {vr(tmp,2)}, {vr(t,2)}, s[56:57]")
    a(f"v_exp_f32_e64 v{tmp}, v{tmp} clamp")
    a(f"v_exp_f32_e64 v{tmp+1}, v{tmp+1} clamp")
    a(f"v_max_f32 v{t}, 0, v{t}")
    a(f"v_max_f32 v{t+1}, 0, v{t+1}")
    a(f"v_pk_add_f32 {vr(t,2)}, {vr(t,2)}, {vr(tmp,2)}")
    a(f"v_pk_add_f32 {vr(t,2)}, {vr(t,2)}, s[58:59]")

def phi_group(a, ts, tmp):
    for i, t in enumerate(ts): a(f"v_pk_mul_f32 {vr(tmp+2*i,2)}, {vr(t,2)}, s[56:57]")
    for i, t in enumerate(ts):
        a(f"v_exp_f32_e64 v{tmp+2*i}, v{tmp+2*i} clamp"); a(f"v_exp_f32_e64 v{tmp+2*i+1}, v{tmp+2*i+1} clamp")
    for i, t in enumerate(ts):
        a(f"v_max_f32 v{t}, 0, v{t}"); a(f"v_max_f32 v{t+1}, 0, v{t+1}")
    for i, t in enumerate(ts): a(f"v_pk_add_f32 {vr(t,2)}, {vr(t,2)}, {vr(tmp+2*i,2)}")
    for i, t in enumerate(ts): a(f"v_pk_add_f32 {vr(t,2)}, {vr(t,2)}, s[58:59]")

_lab = [0]
POLL = [" sc1"]
FLST = [" sc1"]
def lab(p):
    _lab[0] += 1
    return f"L{p}{_lab[0]}"

def lds_spin(a, vaddr, off, vtmp, cond, val):
    assert off < 65536
    l0, l1 = lab("sp"), lab("sx")
    a("s_mov_b32 s61, 0")
    a.label(l0)
    a(f"ds_read_b32 v{vtmp}, v{vaddr} offset:{off}"); a("s_waitcnt lgkmcnt(0)")
    a(f"v_readfirstlane_b32 s60, v{vtmp}"); a("s_add_u32 s61, s61, 1"); a(f"s_cmp_{cond}_u32 s60, {val}"); a(f"s_cbranch_scc1 {l1}")
    a(f"s_cmp_lt_u32 s61, {SPIN_MAX*8}"); a(f"s_cbranch_scc1 {l0}")
    a.label(l1)

def lds_count_last(a, vaddr, off, vone, vtmp, last, action):
    l = lab("cl")
    a("s_mov_b64 exec, 1")
    a(f"ds_add_rtn_u32 v{vtmp}, v{vaddr}, v{vone} offset:{off}"); a("s_waitcnt lgkmcnt(0)")
    a(f"v_readfirstlane_b32 s60, v{vtmp}"); a(f"s_cmp_eq_u32 s60, {last}"); a(f"s_cbranch_scc0 {l}")
    action()
    a.label(l)
    a("s_mov_b64 exec, -1")

def poll16(a, vaddr, vtmp, extra=None):
    l0, l1 = lab("pl"), lab("px")
    a("s_mov_b32 s61, 0")
    a.label(l0)
    a(f"buffer_load_dword v{vtmp}, v{vaddr}, s[36:39], 0 offen{POLL[0]}")
    if extra: a(f"ds_read_b32 v{vtmp+1}, v{extra[0]} offset:{extra[1]}")
    a("s_waitcnt vmcnt(0) lgkmcnt(0)")
    a(f"v_cmp_ne_u32 vcc, 1, v{vtmp}")
    if extra: a(f"v_readfirstlane_b32 s62, v{vtmp+1}")
    a("s_add_u32 s61, s61, 1"); a("s_nop 2")
    a("s_cmp_eq_u64 vcc, 0")
    if extra:
        a("s_cselect_b32 s60, 1, 0"); a(f"s_cmp_ge_u32 s62, {extra[2]}"); a("s_cselect_b32 s62, 1, 0"); a("s_and_b32 s60, s60, s62")
    a(f"s_cbranch_scc1 {l1}")
    a(f"s_cmp_lt_u32 s61, {SPIN_MAX}"); a(f"s_cbranch_scc1 {l0}")
    a.label(l1)

def poll_zeroed(a, vtmp):
    l0, l1 = lab("zl"), lab("zx")
    a("s_mov_b32 s61, 0"); a(f"v_mov_b32 v{vtmp+1}, 0")
    a.label(l0)
    a(f"buffer_load_dword v{vtmp}, v{vtmp+1}, s[40:43], 0 offen sc1"); a("s_waitcnt vmcnt(0)")
    a(f"v_readfirstlane_b32 s60, v{vtmp}"); a("s_add_u32 s61, s61, 1"); a("s_cmp_ge_u32 s60, 256"); a(f"s_cbranch_scc1 {l1}")
    a(f"s_cmp_lt_u32 s61, {SPIN_MAX}"); a(f"s_cbranch_scc1 {l0}")
    a.label(l1)

def kernel(a, opt):
    name = NAME
    kernel_begin(a, name)
    a("s_cmp_ge_u32 s2, 256")
    a("s_cbranch_scc1 Ldone")
    stamp(a, opt, 0)
    if opt.get("pad0"):
        a("s_memtime s[20:21]"); a("s_waitcnt lgkmcnt(0)"); a(f"s_add_u32 s22, s20, {opt['pad0']}")
        a.label("Lpad0"); a("s_memtime s[20:21]"); a("s_waitcnt lgkmcnt(0)"); a("s_cmp_lt_u32 s20, s22"); a("s_cbranch_scc1 Lpad0")
    a("s_load_dwordx4 s[4:7], s[0:1], 0")
    a("s_load_dwordx4 s[12:15], s[0:1], 88")
    a("v_lshrrev_b32 v1, 6, v0")
    a("v_and_b32 v0, 63, v0")
    a("v_readfirstlane_b32 s50, v1")
    a("s_and_b32 s51, s2, 7")
    a("s_lshr_b32 s52, s2, 3")
    a("s_lshl_b32 s53, s51, 3"); a("s_and_b32 s53, s53, 8"); a("s_and_b32 s54, s52, 7"); a("s_or_b32 s48, s53, s54")
    a("s_lshl_b32 s53, s51, 1"); a("s_and_b32 s53, s53, 12"); a("s_lshr_b32 s54, s52, 3"); a("s_or_b32 s49, s53, s54")
    if opt.get("jx"): a(f"s_xor_b32 s49, s49, {opt['jx']}")
    if opt.get("jperm", 1):
        a("s_lshr_b32 s53, s49, 2"); a("s_add_u32 s53, s53, 1"); a("s_and_b32 s53, s53, 2"); a("s_mul_i32 s53, s53, 6"); a("s_xor_b32 s49, s49, s53")
    a("s_and_b32 s53, s51, 3"); a("s_lshl_b32 s53, s53, 2"); a("s_and_b32 s54, s52, 3"); a("s_or_b32 s96, s53, s54")
    a("s_lshr_b32 s53, s51, 2"); a("s_lshl_b32 s53, s53, 3"); a("s_lshr_b32 s54, s52, 2"); a("s_or_b32 s97, s53, s54")
    a("s_cmp_ge_u32 s50, 4")
    a("s_cbranch_scc1 Laux")
    c_waves(a, opt)
    a(f".p2align {opt.get('align', 6)}")
    a.label("Laux")
    a_waves(a, opt)
    a.label("Ldone")
    a("s_endpgm")
    a.label("Lend")

def c_waves(a, opt):
    def acc(ai, c, u): return 64 + ((c * 2 + u) * 4 + ai) * 4
    def xf(buf, ai): return 160 + buf * 40 + ai * 4
    def wf(buf, c, u): return 160 + buf * 40 + 16 + (c * 2 + u) * 4
    XA = 8; WA = 12
    a("s_load_dwordx4 s[8:11], s[0:1], 56") if False else None
    a("s_setprio 2")
    a("s_and_b32 s53, s50, 1")
    a("s_lshr_b32 s54, s50, 1")
    a("v_and_b32 v2, 15, v0")
    a("v_lshrrev_b32 v3, 4, v0")
    a("v_lshrrev_b32 v4, 1, v2"); a("v_xor_b32 v4, v4, v3")
    a("s_lshl_b32 s55, s53, 13")
    a("v_lshlrev_b32 v5, 7, v2"); a("v_add_u32 v5, s55, v5")
    a(f"v_lshl_add_u32 v{XA}, v4, 4, v5")
    a("v_xor_b32 v6, 4, v4"); a(f"v_lshl_add_u32 v{XA+1}, v6, 4, v5")
    for kk in range(2): a(f"v_add_u32 v{XA+2+kk}, {2*ST1}, v{XA+kk}")
    a("v_bfe_u32 v6, v0, 2, 2")
    a("v_lshl_add_u32 v7, v3, 3, v6"); a("v_lshlrev_b32 v7, 7, v7")
    a("v_and_b32 v18, 3, v0"); a("v_lshl_add_u32 v7, v18, 3, v7")
    a("v_add_u32 v7, 16384, v7")
    a("v_bfe_u32 v18, v0, 3, 1"); a("v_bfe_u32 v19, v0, 4, 1"); a("v_lshl_or_b32 v18, v19, 1, v18")
    a("s_lshl_b32 s55, s54, 1")
    a("v_xor_b32 v18, s55, v18")
    a(f"v_lshl_add_u32 v{WA}, v18, 5, v7")
    a("v_xor_b32 v18, 1, v18"); a(f"v_lshl_add_u32 v{WA+1}, v18, 5, v7")
    for u in range(2): a(f"v_add_u32 v{WA+2+u}, {2*ST1}, v{WA+u}")
    for r in range(64, 160): a(f"v_mov_b32 v{r}, 0")
    a(f"s_mov_b32 s56, {LOG2E:#x}"); a(f"s_mov_b32 s57, {LOG2E:#x}")
    a(f"s_mov_b32 s58, {EPS:#x}"); a(f"s_mov_b32 s59, {EPS:#x}")
    a("s_waitcnt lgkmcnt(0)")
    make_srd(a, 36, 14, WS_USED); make_srd(a, 40, 12, 256)
    a("s_load_dwordx2 s[18:19], s[0:1], 16")
    if opt.get("codepf", 0):
        a("s_cmp_lt_u32 s52, 2"); a("s_cbranch_scc0 Lnocp")
        a("s_getpc_b64 s[74:75]")
        a.label("Lpc")
        a(f"s_sub_u32 s74, s74, Lpc-{NAME}"); a("s_subb_u32 s75, s75, 0")
        a("s_lshl_b32 s55, s52, 2"); a("s_add_u32 s55, s55, s50"); a("s_lshl_b32 s55, s55, 6")
        a("v_add_u32 v18, s55, v0"); a(f"v_min_u32 v18, (Lend-{NAME}-4)/128, v18"); a("v_lshlrev_b32 v18, 7, v18")
        a("global_load_dword v21, v18, s[74:75]")
        a.label("Lnocp")
    KVT = opt.get("kvtouch")
    if KVT:
        a("s_load_dwordx4 s[24:27], s[0:1], 32")
        a("s_waitcnt lgkmcnt(0)")
        a("s_cmp_eq_u32 s54, 0"); a("s_cselect_b32 s28, s24, s26"); a("s_cselect_b32 s29, s25, s27"); a("s_cselect_b32 s55, 6144, 0")
        a(f"s_mov_b32 s30, {NB['bk']}"); a("s_mov_b32 s31, 0x00020000")
        a("s_and_b32 s61, s2, 15"); a("s_lshl_b32 s61, s61, 7"); a("s_lshl_b32 s63, s53, 6"); a("s_add_u32 s61, s61, s63")
        a("v_add_u32 v240, s61, v0"); a("v_lshlrev_b32 v240, 11, v240")
        a("s_lshr_b32 s61, s2, 4"); a("s_lshl_b32 s61, s61, 7"); a("s_sub_u32 s61, s61, s55")
        a("v_add_u32 v240, s61, v240")
    a("s_cmp_eq_u32 s50, 0"); a("s_cbranch_scc0 Lnz")
    a("s_lshl_b32 s55, s49, 4"); a("s_add_u32 s55, s55, s48"); a("s_lshl_b32 s55, s55, 7"); a(f"s_add_u32 s55, s55, {FL_KV}"); a("v_writelane_b32 v18, s55, 0")
    a("s_lshl_b32 s55, s2, 7"); a(f"s_add_u32 s55, s55, {FL_U}"); a("v_writelane_b32 v18, s55, 1")
    a("s_lshl_b32 s55, s48, 4"); a("s_add_u32 s55, s55, s49"); a("s_lshl_b32 s55, s55, 7"); a(f"s_add_u32 s55, s55, {FL_O}"); a("v_writelane_b32 v18, s55, 2")
    a("s_lshl_b32 s55, s51, 5"); a("s_add_u32 s55, s55, s52"); a("s_lshl_b32 s55, s55, 7"); a(f"s_add_u32 s55, s55, {FL_Y}"); a("v_writelane_b32 v18, s55, 3")
    a("v_mov_b32 v19, 0"); a("v_mov_b32 v20, 1")
    a("s_mov_b64 exec, 15")
    a("buffer_store_dword v19, v18, s[36:39], 0 offen sc1")
    if opt.get("atom_early"):
        a("s_waitcnt vmcnt(0)")
        a("s_mov_b64 exec, 1")
        a("buffer_atomic_add v20, v19, s[40:43], 0 offen sc1")
    a("s_mov_b64 exec, -1")
    a.label("Lnz")

    def reads(slot, kk, buf):
        hi = 2 if slot >= 2 else 0
        so = (slot & 1) * ST1
        X = [f"ds_read_b128 {vr(xf(buf,ai),4)}, v{XA+hi+kk} offset:{so + ai*2048}" for ai in range(4)]
        W = {}
        for c in range(3):
            for u in range(2):
                W[c, u] = [f"ds_read_b64_tr_b16 {vr(wf(buf,c,u)+2*sec,2)}, v{WA+hi+u} offset:{so + c*8192 + kk*4096 + sec*512}" for sec in range(2)]
        return [X[0]] + W[0, 0] + [X[1], X[2], X[3]] + W[0, 1] + W[1, 0] + W[1, 1] + W[2, 0] + W[2, 1]
    def mfmas(buf):
        L = []
        for c in range(3):
            for u in range(2):
                for ai in range(4):
                    d = vr(acc(ai, c, u), 4)
                    if c == 0: L.append(f"v_mfma_f32_16x16x32_bf16 {d}, {vr(wf(buf,c,u),4)}, {vr(xf(buf,ai),4)}, {d}")
                    else:      L.append(f"v_mfma_f32_16x16x32_bf16 {d}, {vr(xf(buf,ai),4)}, {vr(wf(buf,c,u),4)}, {d}")
        return L
    def step(buf, nxt, barrier=False):
        M = mfmas(buf); q = list(nxt)
        first = 4 if barrier else 0
        for i in range(24):
            a(M[i])
            if barrier and i == first - 1: a("s_barrier")
            if i >= first - (1 if barrier else 0) and q: a(q.pop(0))
        for s_ in q: a(s_)
    a("s_barrier")
    cst = opt.get("cst")
    def st_(i, j=None, g=None):
        k = g if opt.get("gstc") else (j if cst else i)
        if k is not None: stamp(a, opt, k)
    st_(1)
    for s in reads(0, 0, 0): a(s)
    a("s_mov_b32 s60, 0")
    a(f".p2align {opt.get('align', 6)}")
    a.label("Lcloop")
    for slot in range(4):
        for kk in range(2):
            a("s_waitcnt lgkmcnt(0)")
            if kk == 0:
                if KVT and slot == KVT[1]:
                    a(f"s_cmp_eq_u32 s60, {KVT[0]}"); a("s_cbranch_scc0 Lnkvt")
                    a("buffer_load_dword v241, v240, s[28:31], 0 offen"); a.label("Lnkvt")
                if slot == 0 and not opt.get("atom_early") and not opt.get("atom_none"):
                    a("s_cmp_eq_u32 s60, 2"); a("s_cselect_b32 s61, s50, 1"); a("s_cmp_eq_u32 s61, 0"); a("s_cbranch_scc0 Lnat")
                    a("s_waitcnt vmcnt(0)"); a("s_mov_b64 exec, 1")
                    a("buffer_atomic_add v20, v19, s[40:43], 0 offen sc1")
                    a("s_mov_b64 exec, -1"); a("s_nop 4")
                    a.label("Lnat")
                step(0, reads(slot, 1, 1))
            else:
                if slot == 3:
                    a("s_cmp_eq_u32 s60, 3"); a("s_cbranch_scc1 Lclast")
                step(1, reads((slot + 1) & 3, 0, 0), barrier=True)
    a("s_add_u32 s60, s60, 1")
    a("s_branch Lcloop")
    a.label("Lclast")
    step(1, [])
    st_(2, 1)

    TMP = 20
    KF = 160; VF = 176; ONES = 192; QF = 200
    def kf(u, ks): return KF + (u*2 + ks)*4
    def vf(u, ks): return VF + (u*2 + ks)*4
    a("s_nop 7")
    for u in range(2):
        for a2 in range(2):
            tiles = [2*a2, 2*a2 + 1]
            phi_group(a, [acc(ai, 1, u) + 2*h_ for ai in tiles for h_ in range(2)], 24)
            for ai in tiles:
                t = acc(ai, 1, u); o = kf(u, ai >> 1) + (ai & 1)*2
                a(f"v_cvt_pk_bf16_f32 v{o}, v{t}, v{t+1}"); a(f"v_cvt_pk_bf16_f32 v{o+1}, v{t+2}, v{t+3}")
    for u in range(2):
        for ai in range(4):
            t = acc(ai, 2, u); o = vf(u, ai >> 1) + (ai & 1)*2
            a(f"v_cvt_pk_bf16_f32 v{o}, v{t}, v{t+1}"); a(f"v_cvt_pk_bf16_f32 v{o+1}, v{t+2}, v{t+3}")
    for r in range(4): a(f"v_mov_b32 v{ONES+r}, 0x3f803f80")
    KVA = 96; ZA = 112
    a("s_nop 1")
    for ks in range(2):
        for ud in range(2):
            for ue in range(2):
                d = vr(KVA + (ud*2+ue)*4, 4)
                a(f"v_mfma_f32_16x16x32_bf16 {d}, {vr(kf(ud,ks),4)}, {vr(vf(ue,ks),4)}, {'0' if ks == 0 else d}")
            d = vr(ZA + ud*4, 4)
            a(f"v_mfma_f32_16x16x32_bf16 {d}, {vr(kf(ud,ks),4)}, {vr(ONES,4)}, {'0' if ks == 0 else d}")
    st_(None, 2)
    def q_frags():
        for ai in range(4):
            phi_group(a, [acc(ai, 0, u) + 2*h_ for u in range(2) for h_ in range(2)], 32)
            for u in range(2):
                t = acc(ai, 0, u); o = QF + ai*4 + u*2
                a(f"v_cvt_pk_bf16_f32 v{o}, v{t}, v{t+1}"); a(f"v_cvt_pk_bf16_f32 v{o+1}, v{t+2}, v{t+3}")
    a("v_mov_b32 v30, 0"); a("v_mov_b32 v31, 1")
    a(f"s_mul_i32 s55, s50, 3072"); a(f"s_add_u32 s55, s55, {F_SCR}"); a("s_xor_b32 s61, s50, 1"); a("s_mul_i32 s61, s61, 3072"); a(f"s_add_u32 s61, s61, {F_SCR}")
    a("v_lshlrev_b32 v6, 4, v0"); a("v_add_u32 v8, s55, v6"); a("v_add_u32 v9, s61, v6")
    a("s_lshl_b32 s55, s50, 2"); a("v_mov_b32 v13, s55"); a("s_xor_b32 s55, s55, 4"); a("v_mov_b32 v14, s55")
    a("s_lshl_b32 s55, s49, 1"); a("s_add_u32 s55, s55, s54"); a("s_lshl_b32 s55, s55, 4"); a("s_add_u32 s55, s55, s48")
    a("s_lshl_b32 s63, s55, 11"); a("s_lshl_b32 s61, s53, 10"); a("s_add_u32 s63, s63, s61"); a(f"s_add_u32 s63, s63, {WS_KVP}")
    a("s_lshl_b32 s62, s55, 7"); a("s_lshl_b32 s61, s53, 6"); a("s_add_u32 s62, s62, s61"); a(f"s_add_u32 s62, s62, {WS_ZP}")
    a("v_lshlrev_b32 v7, 4, v3")
    R = 32
    def half(wm):
        give = [KVA + 4*(2*(wm ^ 1)), KVA + 4*(2*(wm ^ 1) + 1), ZA + 4*(wm ^ 1)]
        keep = [KVA + 4*(2*wm), KVA + 4*(2*wm + 1), ZA + 4*wm]
        for q in range(3): a(f"ds_write_b128 v8, {vr(give[q],4)} offset:{q*1024}")
        a("s_waitcnt lgkmcnt(0)")
        a(f"ds_write_b32 v13, v31 offset:{E_RF}")
        lds_spin(a, 14, E_RF, 28, "eq", 1)
        for q in range(3): a(f"ds_read_b128 {vr(R+4*q,4)}, v9 offset:{q*1024}")
        a("s_waitcnt lgkmcnt(0)")
        for q in range(3):
            for r in range(4): a(f"v_add_f32 v{keep[q]+r}, v{keep[q]+r}, v{R+4*q+r}")
        for q in range(2):
            for p in range(2): a(f"v_cvt_pk_bf16_f32 v{R+12+2*q+p}, v{keep[q]+2*p}, v{keep[q]+2*p+1}")
        a(f"buffer_store_dwordx4 {vr(R+12,4)}, v6, s[36:39], s63 offen sc1")
        a("v_cmp_eq_u32 vcc, 0, v2")
        a("s_and_saveexec_b64 s[64:65], vcc")
        a(f"buffer_store_dwordx4 {vr(keep[2],4)}, v7, s[36:39], s62 offen sc1")
        a("s_mov_b64 exec, s[64:65]")
    a("s_nop 3")
    a("s_cmp_eq_u32 s53, 0"); a("s_cbranch_scc1 Lred0")
    half(1)
    a("s_branch Lredj")
    a.label("Lred0")
    half(0)
    a.label("Lredj")
    st_(None, 3)
    a("s_lshl_b32 s55, s49, 4"); a("s_add_u32 s55, s55, s48"); a("s_lshl_b32 s55, s55, 7"); a(f"s_add_u32 s55, s55, {FL_KV}"); a("v_mov_b32 v28, s55")
    a("s_waitcnt vmcnt(0)")
    lds_count_last(a, 30, E_KVC, 31, 29, 3, lambda: a("buffer_store_dword v31, v28, s[36:39], 0 offen sc1"))
    st_(None, 4)
    a.label("Lred1")
    a("s_lshl_b32 s55, s48, 7"); a("s_lshl_b32 s61, s53, 6"); a("s_add_u32 s55, s55, s61")
    a("v_add_u32 v5, s55, v2"); a("v_lshlrev_b32 v5, 11, v5")
    a("s_lshl_b32 s55, s49, 7"); a("s_lshl_b32 s61, s54, 6"); a("s_add_u32 s55, s55, s61")
    a("v_and_b32 v6, 1, v3"); a("v_lshlrev_b32 v6, 5, v6"); a("v_lshrrev_b32 v7, 1, v3"); a("v_lshl_add_u32 v6, v7, 4, v6")
    a("v_add3_u32 v5, v5, v6, s55")
    a(f"s_mul_i32 s55, s50, 4608"); a(f"s_add_u32 s55, s55, {F_SCR}"); a("s_xor_b32 s61, s50, 1"); a("s_mul_i32 s61, s61, 4608"); a(f"s_add_u32 s61, s61, {F_SCR}")
    a("v_lshlrev_b32 v6, 4, v0"); a("v_add_u32 v8, s55, v6"); a("v_add_u32 v9, s61, v6")
    a("v_and_b32 v7, 7, v0"); a("v_lshlrev_b32 v7, 4, v7"); a("s_add_u32 s55, s55, 4096"); a("v_add_u32 v10, s55, v7")
    a("v_lshlrev_b32 v7, 4, v3"); a("v_add_u32 v11, s55, v7"); a("s_add_u32 s61, s61, 4096"); a("v_add_u32 v12, s61, v7")
    a("s_lshl_b32 s55, s50, 2"); a("v_mov_b32 v13, s55"); a("s_xor_b32 s55, s55, 4"); a("v_mov_b32 v14, s55")
    a("s_lshl_b32 s55, s49, 1"); a("s_add_u32 s55, s55, s54"); a("s_lshl_b32 s55, s55, 4"); a("s_lshl_b32 s61, s53, 3"); a("s_add_u32 s55, s55, s61")
    a("s_lshl_b32 s68, s55, 11"); a(f"s_add_u32 s68, s68, {WS_KVP}")
    a("s_lshl_b32 s69, s55, 7"); a(f"s_add_u32 s69, s69, {WS_ZP}")
    SEL = 248
    a("v_lshrrev_b32 v6, 2, v2"); a("v_cmp_eq_u32 vcc, v6, v3")
    a("v_and_b32 v6, 1, v2"); a("v_lshlrev_b32 v6, 4, v6"); a("v_mov_b32 v7, 0x3f80"); a("v_lshlrev_b32 v6, v6, v7")
    a("v_cndmask_b32 v6, 0, v6, vcc")
    a("v_bfe_u32 v7, v2, 1, 1"); a("v_cmp_eq_u32 vcc, 0, v7")
    for r in range(8): a(f"v_mov_b32 v{SEL+r}, 0")
    a(f"v_cndmask_b32 v{SEL}, 0, v6, vcc"); a(f"v_cndmask_b32 v{SEL+1}, v6, 0, vcc" if False else f"v_cndmask_b32_e64 v{SEL+1}, v6, 0, vcc")
    a(f"v_mov_b32 v{SEL+6}, v{SEL}"); a(f"v_mov_b32 v{SEL+7}, v{SEL+1}")
    q_frags()
    st_(None, 5)
    a("s_cmp_eq_u32 s50, 1"); a("s_cbranch_scc0 Lkvw")
    poll_zeroed(a, 28)
    a("s_lshl_b32 s55, s49, 11"); a(f"s_add_u32 s55, s55, {FL_KV}")
    a("v_lshl_add_u32 v15, v2, 7, s55")
    poll16(a, 15, 28, extra=(30, E_KVC, 4))
    a(f"ds_write_b32 v30, v31 offset:{E_KVR}")
    a("s_branch Lkvg")
    a.label("Lkvw")
    lds_spin(a, 30, E_KVR, 28, "eq", 1)
    a.label("Lkvg")
    st_(3, 6)
    PK = 128; PR = 64; ZR = 120
    a("v_lshlrev_b32 v6, 4, v0")
    a(f"buffer_load_dwordx4 {vr(ZR,4)}, v6, s[36:39], s69 offen sc1")
    for p in range(8):
        for q in range(2):
            a(f"buffer_load_dwordx4 {vr(PK+8*p+4*q,4)}, v6, s[36:39], s68 offen offset:{q*1024} sc1")
        a("s_add_u32 s68, s68, 2048")
    a("s_waitcnt vmcnt(16)")
    for r in range(4): a(f"v_add_f32_dpp v{ZR+r}, v{ZR+r}, v{ZR+r} row_ror:8 row_mask:0xf bank_mask:0xf")
    for r in range(4): a(f"v_mov_b32 v{ZR+4+r}, v{ZR+r}")
    a("s_nop 1")
    for r in range(4): a(f"v_permlane16_swap_b32 v{ZR+r}, v{ZR+4+r}")
    a("s_nop 1")
    for r in range(4): a(f"v_add_f32 v{ZR+r}, v{ZR+r}, v{ZR+4+r}")
    for r in range(4): a(f"v_mov_b32 v{ZR+4+r}, v{ZR+r}")
    a("s_nop 1")
    for r in range(4): a(f"v_permlane32_swap_b32 v{ZR+r}, v{ZR+4+r}")
    a("s_nop 1")
    for r in range(4): a(f"v_add_f32 v{ZR+r}, v{ZR+r}, v{ZR+4+r}")
    a(f"ds_write_b128 v10, {vr(ZR,4)}")
    for p in range(8):
        a(f"s_waitcnt vmcnt({14-2*p})")
        for q in range(2):
            for h_ in range(2):
                d = vr(PR + 4*(2*q + h_), 4)
                a(f"v_mfma_f32_16x16x32_bf16 {d}, {vr(SEL+4*h_,4)}, {vr(PK+8*p+4*q,4)}, {'0' if p == 0 else d}")
    a("s_nop 7")
    for q in range(4):
        a(f"ds_write_b128 v8, {vr(PR+4*q,4)} offset:{q*1024}")
    a("s_waitcnt lgkmcnt(0)")
    a(f"ds_write_b32 v13, v31 offset:{E_XF}")
    lds_spin(a, 14, E_XF, 28, "eq", 1)
    SB = 80
    for q in range(4):
        a(f"ds_read_b128 {vr(SB+4*q,4)}, v9 offset:{q*1024}")
    for ud in range(2):
        a(f"ds_read_b128 {vr(96+4*ud,4)}, v11 offset:{ud*64}"); a(f"ds_read_b128 {vr(104+4*ud,4)}, v12 offset:{ud*64}")
    a("s_waitcnt lgkmcnt(0)")
    for r in range(16): a(f"v_add_f32 v{PR+r}, v{PR+r}, v{SB+r}")
    for r in range(8): a(f"v_add_f32 v{96+r}, v{96+r}, v{104+r}")
    KA = 112; ZF = 120
    for ue in range(2):
        for ud in range(2):
            t = PR + (ud*2+ue)*4
            a(f"v_cvt_pk_bf16_f32 v{KA+4*ue+2*ud}, v{t}, v{t+1}"); a(f"v_cvt_pk_bf16_f32 v{KA+4*ue+2*ud+1}, v{t+2}, v{t+3}")
    for ud in range(2):
        t = 96 + 4*ud
        a(f"v_cvt_pk_bf16_f32 v{ZF+2*ud}, v{t}, v{t+1}"); a(f"v_cvt_pk_bf16_f32 v{ZF+2*ud+1}, v{t+2}, v{t+3}")
    a("s_nop 1")
    O = 128
    for ai in range(4):
        for ue in range(2):
            a(f"v_mfma_f32_16x16x32_bf16 {vr(O+(ai*3+ue)*4,4)}, {vr(KA+4*ue,4)}, {vr(QF+4*ai,4)}, 0")
        a(f"v_mfma_f32_16x16x32_bf16 {vr(O+(ai*3+2)*4,4)}, {vr(ZF,4)}, {vr(QF+4*ai,4)}, 0")
    a("s_nop 7")
    OP = 64
    for ai in range(4):
        dn = O + (ai*3+2)*4
        a(f"v_add_f32 v{dn}, s58, v{dn}")
        a(f"v_rcp_f32 v{dn}, v{dn}")
        a("s_nop 0")
        for ue in range(2):
            t = O + (ai*3+ue)*4
            for r in range(4): a(f"v_mul_f32 v{t+r}, v{t+r}, v{dn}")
            a(f"v_cvt_pk_bf16_f32 v{OP+4*ai+2*ue}, v{t}, v{t+1}"); a(f"v_cvt_pk_bf16_f32 v{OP+4*ai+2*ue+1}, v{t+2}, v{t+3}")
        o = OP + 4*ai
        a("s_nop 1")
        a(f"v_permlane16_swap_b32 v{o}, v{o+2}"); a(f"v_permlane16_swap_b32 v{o+1}, v{o+3}")
        a(f"s_mov_b32 s60, {WS_O + 16*ai*2048}")
        a(f"buffer_store_dwordx4 {vr(o,4)}, v5, s[36:39], s60 offen sc1")
    st_(4, 7)
    a("s_setprio 0")
    a("s_lshl_b32 s57, s48, 4"); a("s_add_u32 s57, s57, s49"); a("s_lshl_b32 s57, s57, 7"); a(f"s_add_u32 s57, s57, {FL_O}"); a("v_mov_b32 v28, s57")
    make_srd(a, 24, 18, NB["wo"])
    a("v_mov_b32 v9, 0"); a("v_mov_b32 v11, 1"); a("s_mov_b32 s53, s50")
    lds_spin(a, 30, E_ADC, 29, "ge", 4)
    a("s_waitcnt vmcnt(0)")
    lds_count_last(a, 30, E_OC, 31, 29, 3, lambda: a("buffer_store_dword v31, v28, s[36:39], 0 offen sc1"))
    st_(5)
    a("v_lshrrev_b32 v96, 3, v0"); a("v_and_b32 v97, 7, v0"); a("v_lshrrev_b32 v98, 4, v0")
    a("s_cmp_eq_u32 s53, 3"); a("s_cbranch_scc1 Lawo")
    a("s_lshl_b32 s60, s96, 7"); a("v_add_u32 v99, s60, v96"); a("v_lshlrev_b32 v99, 11, v99")
    a("v_xor_b32 v100, v98, v97"); a("v_lshl_add_u32 v20, v100, 4, v99")
    a("v_xor_b32 v100, 4, v100"); a("v_lshl_add_u32 v21, v100, 4, v99")
    a("s_mov_b32 s28, s36"); a("s_mov_b32 s29, s37"); a("s_mov_b32 s30, s38"); a("s_mov_b32 s31, s39")
    a("s_sub_u32 s60, s53, 1"); a("s_lshl_b32 s64, s60, 13"); a("s_lshl_b32 s66, s60, 17"); a(f"s_add_u32 s66, s66, {WS_O}"); a("s_mov_b32 s65, 128")
    a("s_branch Lawd")
    a.label("Lawo")
    a("v_and_b32 v100, 1, v98"); a("v_lshlrev_b32 v100, 1, v100"); a("v_xor_b32 v100, v100, v97")
    a("v_lshlrev_b32 v99, 11, v96"); a("s_lshl_b32 s61, s97, 7"); a("v_add_u32 v99, s61, v99")
    a("v_lshl_add_u32 v20, v100, 4, v99")
    a("v_xor_b32 v100, 4, v100"); a("v_lshl_add_u32 v21, v100, 4, v99")
    a("s_mov_b32 s28, s24"); a("s_mov_b32 s29, s25"); a("s_mov_b32 s30, s26"); a("s_mov_b32 s31, s27")
    a("s_mov_b32 s64, 16384"); a("s_mov_b32 s66, 0"); a("s_mov_b32 s65, 131072")
    a.label("Lawd")
    a("v_lshrrev_b32 v99, 4, v0"); a("s_lshl_b32 s60, s97, 6"); a("v_add_u32 v99, s60, v99"); a("v_lshlrev_b32 v99, 12, v99")
    a("v_and_b32 v100, 15, v0"); a("v_lshl_add_u32 v99, v100, 4, v99"); a("s_lshl_b32 s60, s96, 8"); a("v_add_u32 v26, s60, v99")
    def slot_base(st):
        sl = st % 6
        return (F_U + sl*ST3) if sl < 3 else (sl - 3)*ST3
    ORD = 64
    a(f"v_mov_b32 v27, {F_FL}")
    a("s_cmp_eq_u32 s53, 0"); a("s_cbranch_scc0 Lgload")
    a("s_lshl_b32 s60, s96, 11"); a(f"s_add_u32 s60, s60, {FL_O}")
    a("v_and_b32 v102, 15, v0"); a("v_lshl_add_u32 v102, v102, 7, s60")
    a("s_lshl_b32 s60, s97, 11"); a(f"s_add_u32 s60, s60, {FL_Y}")
    a("v_and_b32 v103, 15, v0"); a("v_lshl_add_u32 v103, v103, 7, s60")
    a("s_mov_b32 s70, 0"); a("s_mov_b32 s71, 0")
    def absorb():
        l0, l1 = lab("ab"), lab("ae")
        a("v_cmp_eq_u32 vcc, 1, v100"); a("s_nop 3")
        a("s_and_b32 s72, vcc_lo, 0xffff"); a("s_andn2_b32 s62, s72, s71")
        a.label(l0)
        a("s_cmp_eq_u32 s62, 0"); a(f"s_cbranch_scc1 {l1}")
        a("s_ff1_i32_b32 s47, s62"); a("s_lshl_b32 s60, 1, s47"); a("s_or_b32 s71, s71, s60"); a("s_andn2_b32 s62, s62, s60")
        a("s_add_u32 s47, s47, 1"); a("v_mov_b32 v101, s47"); a("s_lshl_b32 s60, s70, 2"); a("v_add_u32 v104, s60, v27")
        a(f"ds_write_b32 v104, v101 offset:{ORD}"); a("s_add_u32 s70, s70, 1")
        a(f"s_branch {l0}")
        a.label(l1)
    a("s_mov_b32 s61, 0")
    a.label("Lsync0")
    a(f"buffer_load_dword v100, v102, s[36:39], 0 offen{POLL[0]}")
    a("s_mov_b32 s73, 0")
    a.label("Lsyncw")
    a(f"ds_read_b32 v105, v9 offset:{E_CD}"); a("s_waitcnt lgkmcnt(0)")
    a("v_readfirstlane_b32 s60, v105"); a("s_add_u32 s73, s73, 1")
    a("s_cmp_ge_u32 s60, 4"); a("s_cselect_b32 s60, 1, 0"); a("s_cmp_ge_u32 s70, 4"); a("s_cselect_b32 s62, 1, 0"); a("s_and_b32 s60, s60, s62"); a("s_cbranch_scc1 Lsync1")
    a("s_cmp_lt_u32 s73, 4"); a("s_cbranch_scc1 Lsyncw")
    a("s_waitcnt vmcnt(0)")
    absorb()
    a("s_cmp_eq_u32 s70, 16"); a("s_cbranch_scc1 Lsync1")
    a("s_add_u32 s61, s61, 1"); a(f"s_cmp_lt_u32 s61, {SPIN_MAX}"); a("s_cbranch_scc1 Lsync0")
    a("v_mov_b32 v100, 1"); absorb()
    a.label("Lsync1")
    st_(6)
    first_after = {}
    issued_ = 3
    for i in range(16):
        n_ = 0
        while issued_ + n_ <= min(15, i + 5) and n_ < opt.get("gburst", 2): n_ += 1
        if n_: first_after[i] = (issued_, issued_ + n_ - 1)
        issued_ += n_
    def ensure(count):
        l0, l1 = lab("en"), lab("ex")
        a("s_mov_b32 s73, 0")
        a.label(l0)
        a(f"s_cmp_ge_u32 s70, {count}"); a(f"s_cbranch_scc1 {l1}")
        a(f"buffer_load_dword v100, v102, s[36:39], 0 offen{POLL[0]}"); a("s_waitcnt vmcnt(0)")
        absorb()
        a("s_add_u32 s73, s73, 1"); a(f"s_cmp_lt_u32 s73, {SPIN_MAX}"); a(f"s_cbranch_scc1 {l0}")
        a("v_mov_b32 v100, 1"); absorb()
        a.label(l1)
    for i in range(16):
        if i in first_after: ensure(first_after[i][0] + 1)
        if i == 15: a("s_waitcnt vmcnt(0)")
        a("s_barrier")
        if i in first_after:
            nxt = first_after.get(i + 1, (first_after[i][1],))[0]
            ensure(max(first_after[i][1], nxt) + 1)
        if i == 9:
            a("buffer_load_dword v106, v103, s[36:39], 0 offen sc1")
        if i == 11:
            l = lab("sy"); l2 = lab("sz")
            a("s_mov_b32 s73, 0")
            a.label(l2)
            a("s_waitcnt vmcnt(0)")
            a("v_cmp_ne_u32 vcc, 1, v106"); a("s_add_u32 s73, s73, 1"); a("s_nop 3"); a("s_cmp_eq_u64 vcc, 0"); a(f"s_cbranch_scc1 {l}")
            a("buffer_load_dword v106, v103, s[36:39], 0 offen sc1")
            a(f"s_cmp_lt_u32 s73, {SPIN_MAX}"); a(f"s_cbranch_scc1 {l2}")
            a.label(l)
            for t in range(16):
                a(f"s_mov_b32 m0, {F_Y + t*1024}"); a(f"s_mov_b32 s61, {WS_YT + t*4*4096}")
                a("buffer_load_dwordx4 v26, s[36:39], s61 offen sc1 lds")
    a("s_branch Lgend")
    a.label("Lgload")
    def fetch_ord(k):
        a(f"ds_read_b32 v100, v27 offset:{ORD + 4*k}")
    def decode():
        a("v_readfirstlane_b32 s62, v100")
        a("s_sub_u32 s68, s62, 1"); a("s_and_b32 s68, s68, 15"); a("s_mul_i32 s68, s68, s65"); a("s_add_u32 s68, s68, s66")
    def take_ord(k, decoded=False):
        l0, l1 = lab("to"), lab("tx")
        if not decoded:
            a("s_waitcnt lgkmcnt(0)"); decode()
        a("s_cmp_lg_u32 s62, 0"); a(f"s_cbranch_scc1 {l1}")
        a("s_mov_b32 s61, 0")
        a.label(l0)
        fetch_ord(k); a("s_waitcnt lgkmcnt(0)"); decode()
        a("s_add_u32 s61, s61, 1"); a("s_cmp_lg_u32 s62, 0"); a(f"s_cbranch_scc1 {l1}")
        a(f"s_cmp_lt_u32 s61, {SPIN_MAX*8}"); a(f"s_cbranch_scc1 {l0}")
        a.label(l1)
        a("s_mov_b32 s67, s68")
    SC1 = "" if opt.get("nosc1") else " sc1"
    def issue_stage(st, nxt):
        sb = slot_base(st)
        for t in range(8):
            if t: a(f"s_add_u32 m0, s64, {sb + t*1024}"); a(f"s_add_u32 s60, s67, {t*16384}")
            a(f"buffer_load_dwordx4 v{20 + (t & 1)}, s[28:31], {'s67' if t == 0 else 's60'} offen{SC1} lds")
            if nxt is not None:
                if t == 1: fetch_ord(nxt)
                if t == 5: a("s_waitcnt lgkmcnt(0)"); decode()
    def prep_stage(st):
        a(f"s_add_u32 m0, s64, {slot_base(st)}")
    Q = []
    for st in range(3):
        fetch_ord(st); take_ord(st)
        if st == 2: lds_spin(a, 9, E_OC, 8, "ge", 4)
        prep_stage(st); a("s_nop 0")
        issue_stage(st, 3 if st == 2 else None); Q += [st]*8
        if st == 0: st_(6)
    issued = 3
    for i in range(16):
        last = max(k for k, e in enumerate(Q) if e == i)
        n_after = len(Q) - 1 - last
        todo = []
        while issued + len(todo) <= min(15, i + 5) and len(todo) < opt.get("gburst", 2): todo.append(issued + len(todo))
        if todo:
            take_ord(todo[0], True); prep_stage(todo[0])
        a(f"s_waitcnt vmcnt({n_after})")
        if opt.get("gst"): a("s_memtime s[100:101]")
        a("s_barrier")
        if opt.get("gst"):
            a("s_waitcnt lgkmcnt(0)"); a("s_sub_u32 s100, s100, s80"); a(f"v_writelane_b32 v200, s100, {i}"); a("s_memtime s[100:101]")
            a("s_waitcnt lgkmcnt(0)"); a("s_sub_u32 s100, s100, s80"); a(f"v_writelane_b32 v200, s100, {16+i}")
        Q = Q[last + 1:]
        for k_, st in enumerate(todo):
            if k_:
                take_ord(st, True); prep_stage(st); a("s_nop 0")
            nxt = st + 1 if st + 1 <= 15 else None
            issue_stage(st, nxt); Q += [st]*8
        issued += len(todo)
    assert issued == 16
    if opt.get("gst"):
        a(f"s_add_u32 s76, s14, {WS_STAMP + (1 << 20)}"); a("s_addc_u32 s77, s15, 0"); a("s_mov_b32 s78, 0x1000000"); a("s_mov_b32 s79, 0x00020000")
        a("s_lshl_b32 s75, s2, 2"); a("s_add_u32 s75, s75, s53"); a("s_lshl_b32 s75, s75, 8")
        a("v_lshlrev_b32 v201, 2, v0"); a("buffer_store_dword v200, v201, s[76:79], s75 offen")
    a.label("Lgend")
    st_(7)
    stamp_dump(a, opt, 8)
    a("s_waitcnt vmcnt(0)")
    a("s_endpgm")


def a_waves(a, opt):
    a("s_sub_u32 s53, s50, 4")
    VA = 8; VW = 12
    a("v_lshrrev_b32 v2, 3, v0"); a("v_and_b32 v3, 7, v0"); a("v_lshrrev_b32 v4, 4, v0")
    a("s_lshl_b32 s55, s48, 7"); a("s_lshl_b32 s61, s53, 5"); a("s_add_u32 s55, s55, s61")
    a("v_add_u32 v5, s55, v2"); a("v_lshlrev_b32 v5, 11, v5")
    a("v_xor_b32 v6, v4, v3"); a(f"v_lshl_add_u32 v{VA}, v6, 4, v5")
    a("v_xor_b32 v6, 4, v6"); a(f"v_lshl_add_u32 v{VA+1}, v6, 4, v5"); a(f"v_add_u32 v{VA+1}, 16384, v{VA+1}")
    for i in range(2, 4): a(f"v_add_u32 v{VA+i}, 32768, v{VA+(i&1)}")
    a("v_and_b32 v6, 1, v4"); a("v_lshlrev_b32 v6, 1, v6"); a("v_xor_b32 v6, v6, v3")
    a("v_mul_u32_u24 v5, 6144, v2")
    a(f"s_mul_i32 s55, s53, {2*8*6144}"); a("s_lshl_b32 s61, s49, 7"); a("s_add_u32 s55, s55, s61")
    a("v_add_u32 v5, s55, v5")
    a(f"v_lshl_add_u32 v{VW}, v6, 4, v5")
    a("v_xor_b32 v6, 4, v6"); a(f"v_lshl_add_u32 v{VW+1}, v6, 4, v5"); a(f"v_add_u32 v{VW+1}, {8*6144}, v{VW+1}")
    WL = [(seg, r2) for seg in range(3) for r2 in range(2)]
    for i, (seg, r2) in enumerate(WL):
        if i >= 2: a(f"v_add_u32 v{VW+i}, {seg*2048}, v{VW + r2}")
    a("s_lshl_b32 s64, s53, 12")
    a("s_lshl_b32 s65, s53, 11"); a("s_add_u32 s65, s65, 16384")
    rv = opt.get("rotv", 0)
    if rv == 0: a("s_lshr_b32 s46, s52, 3"); a("s_add_u32 s46, s46, s52"); a("s_and_b32 s46, s46, 3"); a("s_lshl_b32 s46, s46, 2")
    elif rv == 1: a("s_and_b32 s46, s52, 3"); a("s_lshl_b32 s46, s46, 2")
    elif rv == 2: a("s_lshr_b32 s46, s52, 3"); a("s_lshl_b32 s46, s46, 2")
    elif rv == 3: a("s_lshr_b32 s46, s52, 3"); a("s_add_u32 s46, s46, s52"); a("s_add_u32 s46, s46, s51"); a("s_and_b32 s46, s46, 3"); a("s_lshl_b32 s46, s46, 2")
    elif rv == 4: a("s_lshr_b32 s46, s52, 1"); a("s_and_b32 s46, s46, 3"); a("s_lshl_b32 s46, s46, 2")
    a("s_lshl_b32 s66, s46, 7"); a(f"s_mul_i32 s67, s46, {64*6144}"); a("s_mov_b32 s68, 0")
    a("s_waitcnt lgkmcnt(0)")
    make_srd(a, 20, 4, NB["x"]); make_srd(a, 24, 6, NB["wqkv"])
    def prep():
        a("s_add_u32 s69, s64, s68"); a("s_add_u32 s55, s65, s68"); a("s_mov_b32 m0, s69")
    def issue(prepared=False):
        if not prepared: prep(); a("s_nop 0")
        fill = [f"s_add_u32 s68, s68, {ST1}", f"s_cmp_eq_u32 s68, {4*ST1}\ns_cselect_b32 s68, 0, s68", "s_nop 0"]
        for i in range(4):
            if i:
                a(f"s_add_u32 m0, s69, {i*1024}"); a(fill.pop(0))
            a(f"buffer_load_dwordx4 v{VA+i}, s[20:23], s66 offen lds")
        fill = ["s_add_u32 s66, s66, 128", "s_cmp_eq_u32 s66, 2048\ns_cselect_b32 s66, 0, s66"]
        for i, (seg, r2) in enumerate(WL):
            a(f"s_add_u32 m0, s55, {seg*8192 + r2*1024}"); a(fill.pop(0) if fill else "s_nop 0")
            a(f"buffer_load_dwordx4 v{VW+i}, s[24:27], s67 offen lds")
        a(f"s_add_u32 s67, s67, {64*6144}"); a(f"s_cmp_eq_u32 s67, {16*64*6144}"); a("s_cselect_b32 s67, 0, s67")
    issue(); issue()
    a("s_load_dwordx4 s[8:11], s[0:1], 32")
    a("s_load_dwordx4 s[4:7], s[0:1], 48")
    a("s_load_dwordx2 s[16:17], s[0:1], 72")
    a("s_load_dwordx2 s[18:19], s[0:1], 16")
    ramp = opt.get("ramp1", (1, 1, 1, 1, 2))
    issued = 2
    for i, n in enumerate(ramp):
        prep()
        a(f"s_waitcnt vmcnt({10*(issued - i - 1)})"); a("s_barrier")
        if i == 0: stamp(a, opt, 1)
        for k_ in range(n):
            issue(prepared=(k_ == 0)); issued += 1
        if i == 0:
            a("s_waitcnt lgkmcnt(0)")
            make_srd(a, 28, 8, NB["bk"]); make_srd(a, 32, 10, NB["bv"])
            make_srd(a, 36, 14, WS_USED); make_srd(a, 40, 4, NB["shift"]); make_srd(a, 44, 16, NB["gw"])
    i0 = len(ramp)
    a(f"s_mov_b32 s60, {i0}")
    a(f".p2align {opt.get('align', 6)}")
    a.label("Llloop")
    prep()
    a("s_add_u32 s60, s60, 1")
    a("s_waitcnt vmcnt(20)"); a("s_barrier")
    issue(prepared=True)
    a("s_cmp_lt_u32 s60, 13"); a("s_cbranch_scc1 Llloop")
    NTKV = "" if opt.get("kvtouch") else " nt"
    pl = Asm()
    pl("s_and_b32 s70, s2, 15"); pl("s_lshr_b32 s71, s2, 4")
    pl("v_lshrrev_b32 v20, 3, v0"); pl("v_and_b32 v21, 7, v0")
    pl("s_lshl_b32 s72, s70, 7"); pl("s_lshl_b32 s73, s53, 5"); pl("s_add_u32 s72, s72, s73")
    pl("v_lshl_add_u32 v22, v20, 2, s72")
    pl("s_lshl_b32 s73, s71, 6"); pl("v_lshl_add_u32 v23, v21, 3, s73")
    pl("v_lshlrev_b32 v24, 11, v22"); pl("v_lshl_add_u32 v24, v23, 1, v24")
    pl("v_subrev_u32 v25, 6144, v24")
    for r in range(7):
        if r: pl("v_add_u32 v25, 2048, v25")
        pl(f"buffer_load_dwordx4 {vr(32+4*r,4)}, v25, s[28:31], 0 offen{NTKV}")
    pl("v_add_u32 v26, 4096, v24")
    for r in range(4):
        pl(f"buffer_load_dwordx4 {vr(60+4*r,4)}, v{24 if r < 2 else 26}, s[32:35], 0 offen offset:{2048*(r & 1)}{NTKV}")
    partA = pl.lines; pl = Asm()
    pl("v_lshlrev_b32 v27, 3, v23")
    for q in range(4):
        pl(f"buffer_load_dwordx4 {vr(76+4*q,4)}, v27, s[40:43], 0 offen offset:{16*q}")
    pl("s_lshl_b32 s73, s48, 7"); pl("s_lshl_b32 s74, s49, 3"); pl("s_add_u32 s73, s73, s74"); pl("s_lshl_b32 s74, s53, 1"); pl("s_add_u32 s73, s73, s74")
    pl("v_lshrrev_b32 v28, 5, v0"); pl("v_add_u32 v28, s73, v28")
    pl("v_and_b32 v29, 31, v0"); pl("v_lshlrev_b32 v29, 4, v29")
    pl("v_lshl_add_u32 v30, v28, 11, v29")
    for i in range(4):
        pl(f"buffer_load_dwordx4 {vr(92+4*i,4)}, v30, s[20:23], 0 offen offset:{512*i}")
    for i in range(4):
        pl(f"buffer_load_dwordx4 {vr(108+4*i,4)}, v29, s[44:47], 0 offen offset:{512*i}")
    pl("v_lshlrev_b32 v31, 12, v23"); pl("v_lshl_add_u32 v31, v22, 1, v31")
    pl(f"s_mov_b32 s72, {WS_UT}")
    pl("s_mov_b32 s74, 0x05040100"); pl("s_mov_b32 s75, 0x07060302")
    partB = pl.lines
    a("v_mov_b32 v160, 0"); a("v_mov_b32 v161, 0"); a("v_mov_b32 v162, 0"); a("v_mov_b32 v163, 0")
    a("v_and_b32 v164, 1, v0"); a("v_lshlrev_b32 v164, 4, v164")
    a("s_waitcnt vmcnt(20)"); a("s_barrier")
    a(f"ds_write_b128 v164, v[160:163] offset:{F_E0}")
    for ln in partA: a(ln)
    a("s_waitcnt vmcnt(21)"); a("s_barrier")
    a(f"ds_write_b128 v164, v[160:163] offset:{F_E1}")
    for ln in partB: a(ln)
    a("s_lshl_b32 s54, s51, 7"); a("s_lshl_b32 s55, s52, 2"); a("s_add_u32 s54, s54, s55"); a("s_add_u32 s54, s54, s53")
    a("s_lshl_b32 s55, s54, 12")
    a("s_add_u32 s60, s6, s55"); a("s_addc_u32 s61, s7, 0")
    a("v_lshlrev_b32 v1, 2, v0"); a("v_subrev_u32 v3, 4, v1"); a("v_add_u32 v4, 252, v1")
    a("s_waitcnt vmcnt(23) lgkmcnt(0)"); a("s_barrier")
    a("v_and_b32 v165, 7, v0"); a("v_lshlrev_b32 v165, 4, v165"); a(f"v_add_u32 v165, {F_FL}, v165")
    a("ds_write_b128 v165, v[160:163]")
    a("s_mov_b32 s24, s60"); a("s_mov_b32 s25, s61"); a("s_mov_b32 s26, 4096"); a("s_mov_b32 s27, 0x00020000")
    E = 176; E1 = 192
    for j in range(16):
        a(f"buffer_load_dword v{E+j}, v1, s[24:27], 0 offen offset:{256*j} nt")
        if j == 0: a(f"buffer_load_dword v{E1}, v3, s[24:27], 0 offen")
        else:      a(f"buffer_load_dword v{E1+j}, v4, s[24:27], 0 offen offset:{256*(j-1)}")
    a("s_waitcnt vmcnt(40)")
    stamp(a, opt, 2)
    P = 128; KS = 140; VU = 148
    for c in range(8):
        cp, h = c >> 1, c & 1
        sel = "s75" if h else "s74"
        pb = P + 6*(c & 1); kb = KS + 4*(c & 1)
        for t in range(6): a(f"v_perm_b32 v{pb+t}, v{32+4*t+cp}, v{32+4*(t+1)+cp}, {sel}")
        for r in range(4): a(f"v_dot2_f32_bf16 v{kb+r}, v{pb+r+2}, v{76+2*c}, 0")
        for r in range(4): a(f"v_dot2_f32_bf16 v{kb+r}, v{pb+r}, v{76+2*c+1}, v{kb+r}")
        for r in range(4):
            if h: a(f"v_and_b32 v{VU+r}, 0xffff0000, v{60+4*r+cp}")
            else: a(f"v_lshlrev_b32 v{VU+r}, 16, v{60+4*r+cp}")
        for r in range(4): a(f"v_mul_f32 v{kb+r}, v{kb+r}, v{VU+r}")
        o = 152 + 2*(c & 3)
        a(f"v_cvt_pk_bf16_f32 v{o}, v{kb}, v{kb+1}"); a(f"v_cvt_pk_bf16_f32 v{o+1}, v{kb+2}, v{kb+3}")
        a(f"s_add_u32 s73, s72, {c*4096}")
        a(f"buffer_store_dwordx2 {vr(o,2)}, v31, s[36:39], s73 offen sc1")
    a("s_waitcnt vmcnt(40)")
    a("v_mov_b32 v128, 0")
    for i in range(16): a(f"v_dot2_f32_bf16 v128, v{92+i}, v{108+i}, v128")
    a("s_nop 3")
    for ctl in ("quad_perm:[1,0,3,2]", "quad_perm:[2,3,0,1]", "row_half_mirror", "row_mirror"):
        a(f"v_add_f32_dpp v128, v128, v128 {ctl} row_mask:0xf bank_mask:0xf"); a("s_nop 1")
    a("v_mov_b32 v129, v128"); a("s_nop 1")
    a("v_permlane16_swap_b32 v128, v129"); a("s_nop 1")
    a("v_add_f32 v128, v128, v129")
    a("v_mul_f32 v128, 0xbfb8aa3b, v128"); a("v_exp_f32 v128, v128"); a("s_nop 0")
    a("v_add_f32 v128, 1.0, v128"); a("v_rcp_f32 v128, v128")
    a("v_lshlrev_b32 v28, 2, v28"); a("v_and_b32 v29, 31, v0"); a("v_cmp_eq_u32 vcc, 0, v29")
    a("s_and_saveexec_b64 s[62:63], vcc")
    a(f"s_mov_b32 s73, {WS_G}")
    a("buffer_store_dword v128, v28, s[36:39], s73 offen sc1")
    a("s_mov_b64 exec, s[62:63]")
    stamp(a, opt, 3)
    a("v_lshlrev_b32 v2, 4, v0")
    a(f"s_mul_i32 s56, s53, {CWB}")
    a("v_mov_b32 v12, 0"); a("v_mov_b32 v13, 0"); a("v_mov_b32 v14, 0"); a("v_mov_b32 v15, 0")
    a(f"s_add_u32 s57, s56, {CF}")
    a("v_min_u32 v5, 29, v0"); a("v_lshl_add_u32 v5, v5, 4, s57")
    a("ds_write_b128 v5, v[12:15]")
    a("v_lshrrev_b32 v5, 3, v0"); a("v_and_b32 v5, 3, v5"); a(f"v_mul_u32_u24 v5, {CTS}, v5")
    a("v_and_b32 v6, 7, v0"); a("v_lshl_add_u32 v5, v6, 2, v5")
    a(f"s_add_u32 s57, s56, {8 + 4*1023}"); a("v_add_u32 v5, s57, v5")
    a("ds_write_b32 v5, v12")
    TW = 16
    for rho in range(4):
        a(f"s_add_u32 s57, s56, {rho*CTS + 256 + (4 if rho >= 2 else 0)}")
        a(f"v_sub_u32 v{TW+rho}, s57, v1")
    a("s_mov_b32 s59, 0xffff")
    a("s_waitcnt vmcnt(9)")
    S = 64; M = 80
    for j in range(16):
        a(f"v_alignbit_b32 v{S+j}, v{E+j}, v{E+j}, 16")
        a(f"v_bfi_b32 v{M+j}, s59, v{E+j}, v{E1+j}")
    for j in range(0, 16, 2):
        for rho in range(4):
            src = S if rho & 1 else M
            a(f"ds_write2st64_b32 v{TW+rho}, v{src+j}, v{src+j+1} offset0:{15-j} offset1:{14-j}")
    a("s_load_dwordx2 s[8:9], s[0:1], 64"); a("s_load_dwordx2 s[16:17], s[0:1], 80")
    make_srd(a, 40, 12, 256); make_srd(a, 24, 18, NB["wo"])
    a("v_mov_b32 v9, 0"); a("v_mov_b32 v11, 1")
    a("s_lshl_b32 s60, s2, 7"); a(f"s_add_u32 s60, s60, {FL_U}"); a("v_mov_b32 v10, s60")
    a("s_waitcnt vmcnt(0)")
    lds_count_last(a, 9, E_ADC, 11, 8, 3, lambda: a("buffer_store_dword v11, v10, s[36:39], 0 offen sc1"))
    stamp(a, opt, 4)
    a("s_cmp_eq_u32 s53, 0"); a("s_cbranch_scc1 Lupoll")
    a("s_lshl_b32 s60, s52, 5"); a("s_lshl_b32 s61, s53, 3"); a("s_add_u32 s60, s60, s61"); a("s_sub_u32 s60, s60, 8")
    a("v_lshrrev_b32 v96, 3, v0"); a("v_add_u32 v96, s60, v96"); a("v_lshlrev_b32 v96, 11, v96")
    a("v_and_b32 v97, 7, v0"); a("v_lshl_add_u32 v96, v97, 7, v96")
    a("s_lshr_b32 s60, s51, 2"); a("s_lshl_b32 s60, s60, 10")
    a("buffer_load_dword v98, v96, s[24:27], s60 offen")
    a("s_cmp_eq_u32 s53, 3"); a("s_cbranch_scc0 Lnpf")
    a("v_add_u32 v96, 16384, v96")
    a("buffer_load_dword v99, v96, s[24:27], s60 offen")
    a.label("Lnpf")
    lds_spin(a, 9, E_UR, 8, "eq", 1)
    a("s_branch Lugo")
    a.label("Lupoll")
    poll_zeroed(a, 100)
    a("s_lshl_b32 s60, s51, 1"); a("s_lshr_b32 s61, s52, 4"); a("s_add_u32 s60, s60, s61"); a("s_lshl_b32 s60, s60, 11"); a(f"s_add_u32 s60, s60, {FL_U}")
    a("v_and_b32 v102, 15, v0"); a("v_lshl_add_u32 v102, v102, 7, s60")
    poll16(a, 102, 100)
    a(f"ds_write_b32 v9, v11 offset:{E_UR}")
    a.label("Lugo")
    a(f"s_add_u32 s57, s55, {WS_UT}")
    for i in range(4):
        a(f"s_add_u32 m0, s56, {CF + 480 + i*1024}")
        a(f"s_add_u32 s60, s57, {i*1024}")
        a("buffer_load_dwordx4 v2, s[36:39], s60 offen sc1 lds")
    a("s_mov_b32 s47, s53")
    a("v_and_b32 v2, 15, v0"); a("v_lshrrev_b32 v3, 4, v0")
    a("s_waitcnt lgkmcnt(0)")
    a("s_lshl_b32 s53, s51, 7"); a("s_lshl_b32 s54, s52, 2"); a("s_add_u32 s53, s53, s54"); a("s_add_u32 s53, s53, s47")
    a(f"s_mul_i32 s54, s47, {CWB}")
    a("v_and_b32 v6, 3, v0"); a(f"v_mul_u32_u24 v6, {CTS}, v6")
    a("v_bfe_u32 v7, v0, 2, 2"); a("v_lshlrev_b32 v7, 3, v7"); a("v_sub_u32 v6, v6, v7")
    a("v_lshl_add_u32 v6, v3, 4, v6")
    a(f"s_add_u32 s55, s54, {8 + 24 + 448}"); a("v_add_u32 v16, s55, v6")
    a("v_lshlrev_b32 v6, 5, v2"); a("v_lshl_add_u32 v6, v3, 4, v6")
    a(f"s_add_u32 s55, s54, {CF + 448}"); a("v_add_u32 v17, s55, v6")
    a("s_lshl_b32 s55, s53, 1"); a("s_and_b32 s55, s55, 0xfffffffc")
    a("s_add_u32 s8, s8, s55"); a("s_addc_u32 s9, s9, 0")
    a("s_load_dword s70, s[8:9], 0")
    make_srd(a, 28, 16, NB["out"])
    GXA = 224; GWA = 228; XR = 232; GR = 32
    a("s_lshr_b32 s66, s47, 1"); a("s_and_b32 s67, s47, 1")
    a("s_lshl_b32 s55, s96, 7"); a("s_lshl_b32 s61, s66, 6"); a("s_add_u32 s55, s55, s61")
    a("v_add_u32 v20, s55, v2"); a("v_lshlrev_b32 v21, 11, v20")
    a("s_lshl_b32 s55, s97, 7"); a("s_lshl_b32 s61, s67, 6"); a("s_add_u32 s64, s55, s61")
    a("v_lshl_add_u32 v22, v3, 3, s64"); a("v_add_u32 v22, v21, v22"); a("v_lshlrev_b32 v23, 2, v20")
    a("v_lshrrev_b32 v24, 1, v2"); a("v_xor_b32 v24, v24, v3")
    a("s_lshl_b32 s55, s66, 13")
    a("v_lshlrev_b32 v25, 7, v2"); a("v_add_u32 v25, s55, v25")
    a(f"v_lshl_add_u32 v{GXA+2}, v24, 4, v25")
    a("v_xor_b32 v26, 4, v24"); a(f"v_lshl_add_u32 v{GXA+3}, v26, 4, v25")
    for kk in range(2): a(f"v_add_u32 v{GXA+kk}, {F_U}, v{GXA+2+kk}")
    a("v_bfe_u32 v26, v0, 2, 2")
    a("v_lshl_add_u32 v27, v3, 3, v26"); a("v_lshlrev_b32 v27, 7, v27")
    a("v_and_b32 v28, 3, v0"); a("v_lshl_add_u32 v27, v28, 3, v27"); a("v_add_u32 v27, 16384, v27")
    a("v_bfe_u32 v28, v0, 3, 1"); a("v_bfe_u32 v29, v0, 4, 1"); a("v_lshl_or_b32 v28, v29, 1, v28")
    a("s_lshl_b32 s55, s67, 1"); a("v_xor_b32 v28, s55, v28")
    a(f"v_lshl_add_u32 v{GWA+2}, v28, 5, v27")
    a("v_xor_b32 v28, 1, v28"); a(f"v_lshl_add_u32 v{GWA+3}, v28, 5, v27")
    for u in range(2): a(f"v_add_u32 v{GWA+u}, {F_U}, v{GWA+2+u}")
    a("v_mov_b32 v7, v3")
    a("s_waitcnt lgkmcnt(0)")
    a("s_lshr_b32 s57, s70, 16"); a("s_and_b32 s60, s70, 0xffff"); a("s_and_b32 s61, s53, 1"); a("s_cmp_eq_u32 s61, 0"); a("s_cselect_b32 s57, s60, s57")
    a("v_lshrrev_b32 v28, 3, v2"); a("v_add_u32 v28, 2, v28"); a("v_cmp_eq_u32 vcc, v28, v7")
    a("v_and_b32 v28, 1, v2"); a("v_lshlrev_b32 v28, 4, v28"); a("v_mov_b32 v29, s57"); a("v_lshlrev_b32 v29, v28, v29")
    a("v_cndmask_b32 v29, 0, v29, vcc")
    a("v_bfe_u32 v28, v2, 1, 2")
    for w_ in range(4):
        a(f"v_cmp_eq_u32 vcc, {w_}, v28"); a("s_nop 1"); a(f"v_cndmask_b32 v{24+w_}, 0, v29, vcc")
    a("v_mov_b32 v30, 0"); a("v_mov_b32 v31, 1")
    a("s_lshl_b32 s55, s53, 12")
    a("s_waitcnt vmcnt(0) lgkmcnt(0)")
    stamp(a, opt, 5)
    a("s_setprio 2")
    FR = 96; ACC = 32
    def tf(b, k1): return FR + b*64 + k1*4
    def ff(b, n1): return FR + b*64 + 32 + n1*4
    def rd(b):
        L = []
        for i in range(8):
            L.append(f"ds_read_b64 {vr(tf(b,i),2)}, v16 offset:{512*(7-i)}")
            L.append(f"ds_read_b64 {vr(tf(b,i)+2,2)}, v16 offset:{512*(7-i)+8}")
            L.append(f"ds_read_b128 {vr(ff(b,i),4)}, v17 offset:{512*i}")
        return L
    def mm(b, first):
        L = []; seen = set()
        for k1 in range(8):
            for n1 in range(8 - k1):
                t = k1 + n1
                d = vr(ACC + 4*t, 4)
                c = "0" if (first and t not in seen) else d
                seen.add(t)
                L.append(f"v_mfma_f32_16x16x32_bf16 {d}, {vr(tf(b,k1),4)}, {vr(ff(b,n1),4)}, {c}")
        return L
    for s_ in rd(0): a(s_)
    a("v_subrev_u32 v16, 64, v16"); a("v_subrev_u32 v17, 64, v17")
    DF = 24
    def resid(b, first, last):
        Ms = mm(b, first)
        if first: Ms += [f"v_mfma_f32_16x16x32_bf16 {vr(ACC+4*t,4)}, {vr(DF,4)}, {vr(ff(b,t),4)}, {vr(ACC+4*t,4)}" for t in range(8)]
        R_ = [] if last else rd(b ^ 1)
        a("s_waitcnt lgkmcnt(0)")
        for m_ in Ms:
            a(m_)
            if R_: a(R_.pop(0))
        if not last:
            a("v_subrev_u32 v16, 64, v16"); a("v_subrev_u32 v17, 64, v17")
    resid(0, True, False); resid(1, False, False)
    for ai in range(4):
        a(f"s_mov_b32 s61, {16*ai*2048}")
        for u in range(2):
            a(f"buffer_load_dwordx2 {vr(XR+(ai*2+u)*2,2)}, v22, s[20:23], s61 offen offset:{32*u}")
    a("s_mov_b32 s60, 0")
    a(f".p2align {opt.get('align', 6)}")
    a.label("Lcl")
    resid(0, False, False); resid(1, False, False)
    a("s_add_u32 s60, s60, 1"); a("s_cmp_lt_u32 s60, 2"); a("s_cbranch_scc1 Lcl")
    resid(0, False, False); resid(1, False, True)
    a("v_lshlrev_b32 v5, 5, v2"); a("v_lshl_add_u32 v5, v7, 3, v5")
    a(f"s_add_u32 s56, s55, {WS_YT}")
    a("s_nop 7")
    for t in range(8):
        y = ACC + 4*t
        a(f"v_cvt_pk_bf16_f32 v{y}, v{y}, v{y+1}"); a(f"v_cvt_pk_bf16_f32 v{y+1}, v{y+2}, v{y+3}")
        a(f"buffer_store_dwordx2 {vr(y,2)}, v5, s[36:39], s56 offen offset:{512*t} sc1")

    NS = 6
    def gacc(ai, u): return 64 + (u*4 + ai)*4
    def gxf(buf, kk, ai): return 96 + buf*48 + (kk*4 + ai)*4
    def gwf(buf, kk, u): return 96 + buf*48 + 32 + (kk*2 + u)*4
    def greads(st, buf):
        slot = st % NS
        hi = 0 if slot < 3 else 2
        so = (slot % 3) * ST3
        L = []
        for kk in range(2):
            X = [f"ds_read_b128 {vr(gxf(buf,kk,ai),4)}, v{GXA+hi+kk} offset:{so + ai*2048}" for ai in range(4)]
            W = [[f"ds_read_b64_tr_b16 {vr(gwf(buf,kk,u)+2*sec,2)}, v{GWA+hi+u} offset:{so + kk*4096 + sec*512}" for sec in range(2)] for u in range(2)]
            L += W[0] + [X[0], X[1]] + W[1] + [X[2], X[3]]
        return L
    def gmfmas(buf, first=False):
        return [f"v_mfma_f32_16x16x32_bf16 {vr(gacc(ai,u),4)}, {vr(gwf(buf,kk,u),4)}, {vr(gxf(buf,kk,ai),4)}, {'0' if first and kk == 0 else vr(gacc(ai,u),4)}"
                for kk in range(2) for u in range(2) for ai in range(4)]
    XG = 192
    xg = []
    for ai in range(4):
        for u in range(2):
            xr = XR + (ai*2+u)*2; o = XG + (ai*2+u)*4
            xg += [f"v_lshlrev_b32 v{o}, 16, v{xr}", f"v_and_b32 v{o+1}, 0xffff0000, v{xr}",
                   f"v_lshlrev_b32 v{o+2}, 16, v{xr+1}", f"v_and_b32 v{o+3}, 0xffff0000, v{xr+1}"]
    a("s_mov_b64 exec, 1"); a(f"ds_add_u32 v30, v31 offset:{E_CD}"); a("s_mov_b64 exec, -1")
    a(f"v_mov_b32 v30, {F_FL}")
    a("s_barrier")
    stamp(a, opt, 6)
    for s_ in greads(0, 0): a(s_)
    for st in range(16):
        buf = st & 1
        Ms = gmfmas(buf, st == 0)
        q = greads(st + 1, buf ^ 1) if st < 15 else []
        if st == 15:
            q = [f"ds_read_b64_tr_b16 {vr(96+(ai*2+u)*2,2)}, v6 offset:{u*16*256 + ai*32}" for ai in range(4) for u in range(2)]
        extra = []
        if 5 <= st < 15:
            n = -(-len(xg) // 10)
            extra = xg[(st-5)*n:(st-4)*n]
        a("s_waitcnt lgkmcnt(0)")
        if st == 4:
            a("s_waitcnt vmcnt(0)")
            a("s_lshr_b32 s65, s53, 2"); a("s_lshl_b32 s65, s65, 7"); a(f"s_add_u32 s65, s65, {FL_Y}"); a("v_mov_b32 v28, s65")
            lds_count_last(a, 30, 0, 31, 29, 3, lambda: a("buffer_store_dword v31, v28, s[36:39], 0 offen sc1"))
            a("s_nop 4")
        if st == 13:
            a("v_bfe_u32 v6, v0, 2, 2"); a("v_lshl_add_u32 v6, v7, 2, v6")
            a("s_lshl_b32 s57, s67, 5"); a("v_add_u32 v6, s57, v6"); a("v_lshlrev_b32 v6, 8, v6")
            a("v_and_b32 v5, 3, v0"); a("v_lshl_add_u32 v6, v5, 3, v6")
            a("s_lshl_b32 s57, s66, 7"); a(f"s_add_u32 s57, s57, {F_Y}"); a("v_add_u32 v6, s57, v6")
            a("v_and_b32 v8, 1, v7"); a("v_lshlrev_b32 v8, 5, v8"); a("v_lshrrev_b32 v9, 1, v7"); a("v_lshl_add_u32 v8, v9, 4, v8")
            a("v_add3_u32 v8, v21, v8, s64")
        if st == 15:
            a("s_waitcnt vmcnt(0)")
            for ai in range(4): a(f"v_sub_f32 v{GR+4*ai+2}, 1.0, v{GR+4*ai}")
        if st == 11:
            a(f"s_mov_b32 s61, {WS_G}")
            for ai in range(4):
                a(f"buffer_load_dword v{GR+4*ai}, v23, s[36:39], s61 offen offset:{64*ai} sc1")
        for i in range(16):
            a(Ms[i])
            if i == 1 and st < 15: a("s_barrier")
            if i >= 1:
                for _ in range(2):
                    if q: a(q.pop(0))
            if i >= 9:
                for _ in range(3):
                    if extra: a(extra.pop(0))
        for s_ in q + extra: a(s_)
    a("s_waitcnt lgkmcnt(0)")
    YR = 96; OP = 112; T = 128
    for ai in range(4):
        g_ = GR + 4*ai
        for u in range(2):
            t = gacc(ai, u); yr = YR + (ai*2+u)*2; xo = XG + (ai*2+u)*4; T_ = T + 4*(u & 1)
            a(f"v_lshlrev_b32 v{T_}, 16, v{yr}"); a(f"v_and_b32 v{T_+1}, 0xffff0000, v{yr}")
            a(f"v_lshlrev_b32 v{T_+2}, 16, v{yr+1}"); a(f"v_and_b32 v{T_+3}, 0xffff0000, v{yr+1}")
            for h_ in range(2):
                a(f"v_pk_mul_f32 {vr(T_+2*h_,2)}, {vr(T_+2*h_,2)}, {vr(xo+2*h_,2)}")
                a(f"v_pk_mul_f32 {vr(T_+2*h_,2)}, {vr(T_+2*h_,2)}, {vr(g_+2,2)} op_sel_hi:[1,0]")
                a(f"v_pk_fma_f32 {vr(T_+2*h_,2)}, {vr(t+2*h_,2)}, {vr(g_,2)}, {vr(T_+2*h_,2)} op_sel_hi:[1,0,1]")
                a(f"v_cvt_pk_bf16_f32 v{OP+4*ai+2*u+h_}, v{T_+2*h_}, v{T_+2*h_+1}")
        o = OP + 4*ai
        a("s_nop 1")
        a(f"v_permlane16_swap_b32 v{o}, v{o+2}"); a(f"v_permlane16_swap_b32 v{o+1}, v{o+3}")
        a(f"s_mov_b32 s61, {16*ai*2048}")
        a(f"buffer_store_dwordx4 {vr(o,4)}, v8, s[28:31], s61 offen{opt.get('outfl', '')}")
    a("s_waitcnt vmcnt(0)")
    stamp(a, opt, 7)
    stamp_dump(a, opt, 8)
    a("s_waitcnt vmcnt(0)")


HEADER = """
"""

def build(opt=None):
    opt = opt or {}
    _lab[0] = 0
    POLL[0] = opt.get("pollfl", " sc1")
    a = Asm()
    for ln in HEADER.strip("\n").split("\n"): a(ln)
    if opt.get("aslist"): a(f"; @launch kernel={NAME} grid=(256,1,1) block=(512,1,1) lds=163840")
    else: a("; @launch grid=(256,1,1) block=(512,1,1) lds=163840")
    a('.amdgcn_target "amdgcn-amd-amdhsa--gfx950"')
    a(".text")
    a.lines = [l for l in a.lines]
    kernel(a, opt)
    a('.section .rodata,"a"')
    kernel_desc(a, NAME, vgpr=256, sgpr=102)
    return a.text().replace("None\n", "")

if __name__ == "__main__":
    opt = {}
    for o in sys.argv[2:]:
        k, _, v = o.partition("=")
        opt[k] = int(v) if v else 1
    open(sys.argv[1], "w").write(build(opt))
```

```python
import sys
from asmlib import *

WS_UT  = 4 << 20
WS_KVP = 8 << 20
WS_ZP  = 10 << 20
WS_G   = 11 << 20
WS_FL  = (11 << 20) | 0x80000
FL_KV, FL_U, FL_O, FL_Y = WS_FL, WS_FL + 32768, WS_FL + 65536, WS_FL + 98304
WS_O   = 12 << 20
WS_YT  = 16 << 20
WS_USED = 20 << 20
WS_STAMP = 24 << 20
LOG2E = 0x3fb8aa3b
EPS   = 0x358637bd
SPIN_MAX = 1 << 17
NAME = "gated_mix__linear_attn_block__ssm_conv_h3__prompt_kernel"

ST1 = 40960
CTS = 4160
CF  = 4 * CTS
CWB = 4 * CTS + 4608
F_FL = 4 * CWB
ST3 = 24576
F_U = F_FL + 256
F_SCR = F_U + 2 * ST3
F_Y = ST3
F_E0 = CWB - 32
F_E1 = 2 * CWB - 32
E_XF = F_E0
E_RF = F_E0 + 16
E_ADC, E_UR, E_CRC, E_OC, E_CD, E_KVC, E_KVR = (F_E1 + 4*k for k in range(7))
W_YC, W_YR = F_FL, F_FL + 4

def vr(a, n=1): return f"v{a}" if n == 1 else f"v[{a}:{a+n-1}]"

def stamp(a, opt, i):
    if opt.get("stamps"):
        a(f"s_memtime s[{80+2*i}:{81+2*i}]")
        if i == 0: a("s_memrealtime s[98:99]")
def stamp_dump(a, opt, n):
    if not opt.get("stamps"): return
    a("s_waitcnt vmcnt(0) lgkmcnt(0)")
    a(f"s_add_u32 s76, s14, {WS_STAMP}"); a("s_addc_u32 s77, s15, 0"); a("s_mov_b32 s78, 0x1000000"); a("s_mov_b32 s79, 0x00020000")
    a("s_lshl_b32 s75, s2, 3"); a("s_add_u32 s75, s75, s50"); a("s_lshl_b32 s75, s75, 6"); a("v_mov_b32 v1, s75")
    for i in range(1, n):
        a(f"s_sub_u32 s74, s{80+2*i}, s80"); a("v_mov_b32 v2, s74")
        a(f"buffer_store_dword v2, v1, s[76:79], 0 offen offset:{4*i}")
    a("s_memrealtime s[80:81]"); a("s_waitcnt lgkmcnt(0)"); a("v_mov_b32 v2, s80")
    a("buffer_store_dword v2, v1, s[76:79], 0 offen offset:60")
    a("v_mov_b32 v2, s98"); a("buffer_store_dword v2, v1, s[76:79], 0 offen offset:56")

def phi_pair(a, t, tmp):
    a(f"v_pk_mul_f32 {vr(tmp,2)}, {vr(t,2)}, s[56:57]")
    a(f"v_exp_f32_e64 v{tmp}, v{tmp} clamp")
    a(f"v_exp_f32_e64 v{tmp+1}, v{tmp+1} clamp")
    a(f"v_max_f32 v{t}, 0, v{t}")
    a(f"v_max_f32 v{t+1}, 0, v{t+1}")
    a(f"v_pk_add_f32 {vr(t,2)}, {vr(t,2)}, {vr(tmp,2)}")
    a(f"v_pk_add_f32 {vr(t,2)}, {vr(t,2)}, s[58:59]")

def phi_group(a, ts, tmp):
    for i, t in enumerate(ts): a(f"v_pk_mul_f32 {vr(tmp+2*i,2)}, {vr(t,2)}, s[56:57]")
    for i, t in enumerate(ts):
        a(f"v_exp_f32_e64 v{tmp+2*i}, v{tmp+2*i} clamp"); a(f"v_exp_f32_e64 v{tmp+2*i+1}, v{tmp+2*i+1} clamp")
    for i, t in enumerate(ts):
        a(f"v_max_f32 v{t}, 0, v{t}"); a(f"v_max_f32 v{t+1}, 0, v{t+1}")
    for i, t in enumerate(ts): a(f"v_pk_add_f32 {vr(t,2)}, {vr(t,2)}, {vr(tmp+2*i,2)}")
    for i, t in enumerate(ts): a(f"v_pk_add_f32 {vr(t,2)}, {vr(t,2)}, s[58:59]")

_lab = [0]
POLL = [" sc1"]
FLST = [" sc1"]
def lab(p):
    _lab[0] += 1
    return f"L{p}{_lab[0]}"

def lds_spin(a, vaddr, off, vtmp, cond, val):
    assert off < 65536
    l0, l1 = lab("sp"), lab("sx")
    a("s_mov_b32 s61, 0")
    a.label(l0)
    a(f"ds_read_b32 v{vtmp}, v{vaddr} offset:{off}"); a("s_waitcnt lgkmcnt(0)")
    a(f"v_readfirstlane_b32 s60, v{vtmp}"); a("s_add_u32 s61, s61, 1"); a(f"s_cmp_{cond}_u32 s60, {val}"); a(f"s_cbranch_scc1 {l1}")
    a(f"s_cmp_lt_u32 s61, {SPIN_MAX*8}"); a(f"s_cbranch_scc1 {l0}")
    a.label(l1)

def lds_count_last(a, vaddr, off, vone, vtmp, last, action):
    l = lab("cl")
    a("s_mov_b64 exec, 1")
    a(f"ds_add_rtn_u32 v{vtmp}, v{vaddr}, v{vone} offset:{off}"); a("s_waitcnt lgkmcnt(0)")
    a(f"v_readfirstlane_b32 s60, v{vtmp}"); a(f"s_cmp_eq_u32 s60, {last}"); a(f"s_cbranch_scc0 {l}")
    action()
    a.label(l)
    a("s_mov_b64 exec, -1")

def poll16(a, vaddr, vtmp, extra=None):
    l0, l1 = lab("pl"), lab("px")
    a("s_mov_b32 s61, 0")
    a.label(l0)
    a(f"buffer_load_dword v{vtmp}, v{vaddr}, s[36:39], 0 offen{POLL[0]}")
    if extra: a(f"ds_read_b32 v{vtmp+1}, v{extra[0]} offset:{extra[1]}")
    a("s_waitcnt vmcnt(0) lgkmcnt(0)")
    a(f"v_cmp_ne_u32 vcc, 1, v{vtmp}")
    if extra: a(f"v_readfirstlane_b32 s62, v{vtmp+1}")
    a("s_add_u32 s61, s61, 1"); a("s_nop 2")
    a("s_cmp_eq_u64 vcc, 0")
    if extra:
        a("s_cselect_b32 s60, 1, 0"); a(f"s_cmp_ge_u32 s62, {extra[2]}"); a("s_cselect_b32 s62, 1, 0"); a("s_and_b32 s60, s60, s62")
    a(f"s_cbranch_scc1 {l1}")
    a(f"s_cmp_lt_u32 s61, {SPIN_MAX}"); a(f"s_cbranch_scc1 {l0}")
    a.label(l1)

def poll_zeroed(a, vtmp):
    l0, l1 = lab("zl"), lab("zx")
    a("s_mov_b32 s61, 0"); a(f"v_mov_b32 v{vtmp+1}, 0")
    a.label(l0)
    a(f"buffer_load_dword v{vtmp}, v{vtmp+1}, s[40:43], 0 offen sc1"); a("s_waitcnt vmcnt(0)")
    a(f"v_readfirstlane_b32 s60, v{vtmp}"); a("s_add_u32 s61, s61, 1"); a("s_cmp_ge_u32 s60, 256"); a(f"s_cbranch_scc1 {l1}")
    a(f"s_cmp_lt_u32 s61, {SPIN_MAX}"); a(f"s_cbranch_scc1 {l0}")
    a.label(l1)

def kernel(a, opt):
    name = NAME
    kernel_begin(a, name)
    a("s_cmp_ge_u32 s2, 256")
    a("s_cbranch_scc1 Ldone")
    stamp(a, opt, 0)
    if opt.get("pad0"):
        a("s_memtime s[20:21]"); a("s_waitcnt lgkmcnt(0)"); a(f"s_add_u32 s22, s20, {opt['pad0']}")
        a.label("Lpad0"); a("s_memtime s[20:21]"); a("s_waitcnt lgkmcnt(0)"); a("s_cmp_lt_u32 s20, s22"); a("s_cbranch_scc1 Lpad0")
    a("s_load_dwordx4 s[4:7], s[0:1], 0")
    a("s_load_dwordx4 s[12:15], s[0:1], 88")
    a("v_lshrrev_b32 v1, 6, v0")
    a("v_and_b32 v0, 63, v0")
    a("v_readfirstlane_b32 s50, v1")
    a("s_and_b32 s51, s2, 7")
    a("s_lshr_b32 s52, s2, 3")
    a("s_lshl_b32 s53, s51, 3"); a("s_and_b32 s53, s53, 8"); a("s_and_b32 s54, s52, 7"); a("s_or_b32 s48, s53, s54")
    a("s_lshl_b32 s53, s51, 1"); a("s_and_b32 s53, s53, 12"); a("s_lshr_b32 s54, s52, 3"); a("s_or_b32 s49, s53, s54")
    if opt.get("jx"): a(f"s_xor_b32 s49, s49, {opt['jx']}")
    if opt.get("jperm", 1):
        a("s_lshr_b32 s53, s49, 2"); a("s_add_u32 s53, s53, 1"); a("s_and_b32 s53, s53, 2"); a("s_mul_i32 s53, s53, 6"); a("s_xor_b32 s49, s49, s53")
    a("s_and_b32 s53, s51, 3"); a("s_lshl_b32 s53, s53, 2"); a("s_and_b32 s54, s52, 3"); a("s_or_b32 s96, s53, s54")
    a("s_lshr_b32 s53, s51, 2"); a("s_lshl_b32 s53, s53, 3"); a("s_lshr_b32 s54, s52, 2"); a("s_or_b32 s97, s53, s54")
    a("s_cmp_ge_u32 s50, 4")
    a("s_cbranch_scc1 Laux")
    c_waves(a, opt)
    a(f".p2align {opt.get('align', 6)}")
    a.label("Laux")
    a_waves(a, opt)
    a.label("Ldone")
    a("s_endpgm")
    a.label("Lend")

def c_waves(a, opt):
    def acc(ai, c, u): return 64 + ((c * 2 + u) * 4 + ai) * 4
    def xf(buf, ai): return 160 + buf * 40 + ai * 4
    def wf(buf, c, u): return 160 + buf * 40 + 16 + (c * 2 + u) * 4
    XA = 8; WA = 12
    a("s_load_dwordx4 s[8:11], s[0:1], 56") if False else None
    a("s_setprio 2")
    a("s_and_b32 s53, s50, 1")
    a("s_lshr_b32 s54, s50, 1")
    a("v_and_b32 v2, 15, v0")
    a("v_lshrrev_b32 v3, 4, v0")
    a("v_lshrrev_b32 v4, 1, v2"); a("v_xor_b32 v4, v4, v3")
    a("s_lshl_b32 s55, s53, 13")
    a("v_lshlrev_b32 v5, 7, v2"); a("v_add_u32 v5, s55, v5")
    a(f"v_lshl_add_u32 v{XA}, v4, 4, v5")
    a("v_xor_b32 v6, 4, v4"); a(f"v_lshl_add_u32 v{XA+1}, v6, 4, v5")
    for kk in range(2): a(f"v_add_u32 v{XA+2+kk}, {2*ST1}, v{XA+kk}")
    a("v_bfe_u32 v6, v0, 2, 2")
    a("v_lshl_add_u32 v7, v3, 3, v6"); a("v_lshlrev_b32 v7, 7, v7")
    a("v_and_b32 v18, 3, v0"); a("v_lshl_add_u32 v7, v18, 3, v7")
    a("v_add_u32 v7, 16384, v7")
    a("v_bfe_u32 v18, v0, 3, 1"); a("v_bfe_u32 v19, v0, 4, 1"); a("v_lshl_or_b32 v18, v19, 1, v18")
    a("s_lshl_b32 s55, s54, 1")
    a("v_xor_b32 v18, s55, v18")
    a(f"v_lshl_add_u32 v{WA}, v18, 5, v7")
    a("v_xor_b32 v18, 1, v18"); a(f"v_lshl_add_u32 v{WA+1}, v18, 5, v7")
    for u in range(2): a(f"v_add_u32 v{WA+2+u}, {2*ST1}, v{WA+u}")
    for r in range(64, 160): a(f"v_mov_b32 v{r}, 0")
    a(f"s_mov_b32 s56, {LOG2E:#x}"); a(f"s_mov_b32 s57, {LOG2E:#x}")
    a(f"s_mov_b32 s58, {EPS:#x}"); a(f"s_mov_b32 s59, {EPS:#x}")
    a("s_waitcnt lgkmcnt(0)")
    make_srd(a, 36, 14, WS_USED); make_srd(a, 40, 12, 256)
    a("s_load_dwordx2 s[18:19], s[0:1], 16")
    if opt.get("codepf", 0):
        a("s_cmp_lt_u32 s52, 2"); a("s_cbranch_scc0 Lnocp")
        a("s_getpc_b64 s[74:75]")
        a.label("Lpc")
        a(f"s_sub_u32 s74, s74, Lpc-{NAME}"); a("s_subb_u32 s75, s75, 0")
        a("s_lshl_b32 s55, s52, 2"); a("s_add_u32 s55, s55, s50"); a("s_lshl_b32 s55, s55, 6")
        a("v_add_u32 v18, s55, v0"); a(f"v_min_u32 v18, (Lend-{NAME}-4)/128, v18"); a("v_lshlrev_b32 v18, 7, v18")
        a("global_load_dword v21, v18, s[74:75]")
        a.label("Lnocp")
    KVT = opt.get("kvtouch")
    if KVT:
        a("s_load_dwordx4 s[24:27], s[0:1], 32")
        a("s_waitcnt lgkmcnt(0)")
        a("s_cmp_eq_u32 s54, 0"); a("s_cselect_b32 s28, s24, s26"); a("s_cselect_b32 s29, s25, s27"); a("s_cselect_b32 s55, 6144, 0")
        a(f"s_mov_b32 s30, {NB['bk']}"); a("s_mov_b32 s31, 0x00020000")
        a("s_and_b32 s61, s2, 15"); a("s_lshl_b32 s61, s61, 7"); a("s_lshl_b32 s63, s53, 6"); a("s_add_u32 s61, s61, s63")
        a("v_add_u32 v240, s61, v0"); a("v_lshlrev_b32 v240, 11, v240")
        a("s_lshr_b32 s61, s2, 4"); a("s_lshl_b32 s61, s61, 7"); a("s_sub_u32 s61, s61, s55")
        a("v_add_u32 v240, s61, v240")
    a("s_cmp_eq_u32 s50, 0"); a("s_cbranch_scc0 Lnz")
    a("s_lshl_b32 s55, s49, 4"); a("s_add_u32 s55, s55, s48"); a("s_lshl_b32 s55, s55, 7"); a(f"s_add_u32 s55, s55, {FL_KV}"); a("v_writelane_b32 v18, s55, 0")
    a("s_lshl_b32 s55, s2, 7"); a(f"s_add_u32 s55, s55, {FL_U}"); a("v_writelane_b32 v18, s55, 1")
    a("s_lshl_b32 s55, s48, 4"); a("s_add_u32 s55, s55, s49"); a("s_lshl_b32 s55, s55, 7"); a(f"s_add_u32 s55, s55, {FL_O}"); a("v_writelane_b32 v18, s55, 2")
    a("s_lshl_b32 s55, s51, 5"); a("s_add_u32 s55, s55, s52"); a("s_lshl_b32 s55, s55, 7"); a(f"s_add_u32 s55, s55, {FL_Y}"); a("v_writelane_b32 v18, s55, 3")
    a("v_mov_b32 v19, 0"); a("v_mov_b32 v20, 1")
    a("s_mov_b64 exec, 15")
    a("buffer_store_dword v19, v18, s[36:39], 0 offen sc1")
    if opt.get("atom_early"):
        a("s_waitcnt vmcnt(0)")
        a("s_mov_b64 exec, 1")
        a("buffer_atomic_add v20, v19, s[40:43], 0 offen sc1")
    a("s_mov_b64 exec, -1")
    a.label("Lnz")

    def reads(slot, kk, buf):
        hi = 2 if slot >= 2 else 0
        so = (slot & 1) * ST1
        X = [f"ds_read_b128 {vr(xf(buf,ai),4)}, v{XA+hi+kk} offset:{so + ai*2048}" for ai in range(4)]
        W = {}
        for c in range(3):
            for u in range(2):
                W[c, u] = [f"ds_read_b64_tr_b16 {vr(wf(buf,c,u)+2*sec,2)}, v{WA+hi+u} offset:{so + c*8192 + kk*4096 + sec*512}" for sec in range(2)]
        return [X[0]] + W[0, 0] + [X[1], X[2], X[3]] + W[0, 1] + W[1, 0] + W[1, 1] + W[2, 0] + W[2, 1]
    def mfmas(buf):
        L = []
        for c in range(3):
            for u in range(2):
                for ai in range(4):
                    d = vr(acc(ai, c, u), 4)
                    if c == 0: L.append(f"v_mfma_f32_16x16x32_bf16 {d}, {vr(wf(buf,c,u),4)}, {vr(xf(buf,ai),4)}, {d}")
                    else:      L.append(f"v_mfma_f32_16x16x32_bf16 {d}, {vr(xf(buf,ai),4)}, {vr(wf(buf,c,u),4)}, {d}")
        return L
    def step(buf, nxt, barrier=False):
        M = mfmas(buf); q = list(nxt)
        first = 4 if barrier else 0
        for i in range(24):
            a(M[i])
            if barrier and i == first - 1: a("s_barrier")
            if i >= first - (1 if barrier else 0) and q: a(q.pop(0))
        for s_ in q: a(s_)
    a("s_barrier")
    cst = opt.get("cst")
    def st_(i, j=None, g=None):
        k = g if opt.get("gstc") else (j if cst else i)
        if k is not None: stamp(a, opt, k)
    st_(1)
    for s in reads(0, 0, 0): a(s)
    a("s_mov_b32 s60, 0")
    a(f".p2align {opt.get('align', 6)}")
    a.label("Lcloop")
    for slot in range(4):
        for kk in range(2):
            a("s_waitcnt lgkmcnt(0)")
            if kk == 0:
                if KVT and slot == KVT[1]:
                    a(f"s_cmp_eq_u32 s60, {KVT[0]}"); a("s_cbranch_scc0 Lnkvt")
                    a("buffer_load_dword v241, v240, s[28:31], 0 offen"); a.label("Lnkvt")
                if slot == 0 and not opt.get("atom_early") and not opt.get("atom_none"):
                    a("s_cmp_eq_u32 s60, 2"); a("s_cselect_b32 s61, s50, 1"); a("s_cmp_eq_u32 s61, 0"); a("s_cbranch_scc0 Lnat")
                    a("s_waitcnt vmcnt(0)"); a("s_mov_b64 exec, 1")
                    a("buffer_atomic_add v20, v19, s[40:43], 0 offen sc1")
                    a("s_mov_b64 exec, -1"); a("s_nop 4")
                    a.label("Lnat")
                step(0, reads(slot, 1, 1))
            else:
                if slot == 3:
                    a("s_cmp_eq_u32 s60, 3"); a("s_cbranch_scc1 Lclast")
                step(1, reads((slot + 1) & 3, 0, 0), barrier=True)
    a("s_add_u32 s60, s60, 1")
    a("s_branch Lcloop")
    a.label("Lclast")
    step(1, [])
    st_(2, 1)

    TMP = 20
    KF = 160; VF = 176; ONES = 192; QF = 200
    def kf(u, ks): return KF + (u*2 + ks)*4
    def vf(u, ks): return VF + (u*2 + ks)*4
    a("s_nop 7")
    for u in range(2):
        for a2 in range(2):
            tiles = [2*a2, 2*a2 + 1]
            phi_group(a, [acc(ai, 1, u) + 2*h_ for ai in tiles for h_ in range(2)], 24)
            for ai in tiles:
                t = acc(ai, 1, u); o = kf(u, ai >> 1) + (ai & 1)*2
                a(f"v_cvt_pk_bf16_f32 v{o}, v{t}, v{t+1}"); a(f"v_cvt_pk_bf16_f32 v{o+1}, v{t+2}, v{t+3}")
    for u in range(2):
        for ai in range(4):
            t = acc(ai, 2, u); o = vf(u, ai >> 1) + (ai & 1)*2
            a(f"v_cvt_pk_bf16_f32 v{o}, v{t}, v{t+1}"); a(f"v_cvt_pk_bf16_f32 v{o+1}, v{t+2}, v{t+3}")
    for r in range(4): a(f"v_mov_b32 v{ONES+r}, 0x3f803f80")
    KVA = 96; ZA = 112
    a("s_nop 1")
    for ks in range(2):
        for ud in range(2):
            for ue in range(2):
                d = vr(KVA + (ud*2+ue)*4, 4)
                a(f"v_mfma_f32_16x16x32_bf16 {d}, {vr(kf(ud,ks),4)}, {vr(vf(ue,ks),4)}, {'0' if ks == 0 else d}")
            d = vr(ZA + ud*4, 4)
            a(f"v_mfma_f32_16x16x32_bf16 {d}, {vr(kf(ud,ks),4)}, {vr(ONES,4)}, {'0' if ks == 0 else d}")
    st_(None, 2)
    def q_frags():
        for ai in range(4):
            phi_group(a, [acc(ai, 0, u) + 2*h_ for u in range(2) for h_ in range(2)], 32)
            for u in range(2):
                t = acc(ai, 0, u); o = QF + ai*4 + u*2
                a(f"v_cvt_pk_bf16_f32 v{o}, v{t}, v{t+1}"); a(f"v_cvt_pk_bf16_f32 v{o+1}, v{t+2}, v{t+3}")
    a("v_mov_b32 v30, 0"); a("v_mov_b32 v31, 1")
    a(f"s_mul_i32 s55, s50, 3072"); a(f"s_add_u32 s55, s55, {F_SCR}"); a("s_xor_b32 s61, s50, 1"); a("s_mul_i32 s61, s61, 3072"); a(f"s_add_u32 s61, s61, {F_SCR}")
    a("v_lshlrev_b32 v6, 4, v0"); a("v_add_u32 v8, s55, v6"); a("v_add_u32 v9, s61, v6")
    a("s_lshl_b32 s55, s50, 2"); a("v_mov_b32 v13, s55"); a("s_xor_b32 s55, s55, 4"); a("v_mov_b32 v14, s55")
    a("s_lshl_b32 s55, s49, 1"); a("s_add_u32 s55, s55, s54"); a("s_lshl_b32 s55, s55, 4"); a("s_add_u32 s55, s55, s48")
    a("s_lshl_b32 s63, s55, 11"); a("s_lshl_b32 s61, s53, 10"); a("s_add_u32 s63, s63, s61"); a(f"s_add_u32 s63, s63, {WS_KVP}")
    a("s_lshl_b32 s62, s55, 7"); a("s_lshl_b32 s61, s53, 6"); a("s_add_u32 s62, s62, s61"); a(f"s_add_u32 s62, s62, {WS_ZP}")
    a("v_lshlrev_b32 v7, 4, v3")
    R = 32
    def half(wm):
        give = [KVA + 4*(2*(wm ^ 1)), KVA + 4*(2*(wm ^ 1) + 1), ZA + 4*(wm ^ 1)]
        keep = [KVA + 4*(2*wm), KVA + 4*(2*wm + 1), ZA + 4*wm]
        for q in range(3): a(f"ds_write_b128 v8, {vr(give[q],4)} offset:{q*1024}")
        a("s_waitcnt lgkmcnt(0)")
        a(f"ds_write_b32 v13, v31 offset:{E_RF}")
        lds_spin(a, 14, E_RF, 28, "eq", 1)
        for q in range(3): a(f"ds_read_b128 {vr(R+4*q,4)}, v9 offset:{q*1024}")
        a("s_waitcnt lgkmcnt(0)")
        for q in range(3):
            for r in range(4): a(f"v_add_f32 v{keep[q]+r}, v{keep[q]+r}, v{R+4*q+r}")
        for q in range(2):
            for p in range(2): a(f"v_cvt_pk_bf16_f32 v{R+12+2*q+p}, v{keep[q]+2*p}, v{keep[q]+2*p+1}")
        a(f"buffer_store_dwordx4 {vr(R+12,4)}, v6, s[36:39], s63 offen sc1")
        a("v_cmp_eq_u32 vcc, 0, v2")
        a("s_and_saveexec_b64 s[64:65], vcc")
        a(f"buffer_store_dwordx4 {vr(keep[2],4)}, v7, s[36:39], s62 offen sc1")
        a("s_mov_b64 exec, s[64:65]")
    a("s_nop 3")
    a("s_cmp_eq_u32 s53, 0"); a("s_cbranch_scc1 Lred0")
    half(1)
    a("s_branch Lredj")
    a.label("Lred0")
    half(0)
    a.label("Lredj")
    st_(None, 3)
    a("s_lshl_b32 s55, s49, 4"); a("s_add_u32 s55, s55, s48"); a("s_lshl_b32 s55, s55, 7"); a(f"s_add_u32 s55, s55, {FL_KV}"); a("v_mov_b32 v28, s55")
    a("s_waitcnt vmcnt(0)")
    lds_count_last(a, 30, E_KVC, 31, 29, 3, lambda: a("buffer_store_dword v31, v28, s[36:39], 0 offen sc1"))
    st_(None, 4)
    a.label("Lred1")
    a("s_lshl_b32 s55, s48, 7"); a("s_lshl_b32 s61, s53, 6"); a("s_add_u32 s55, s55, s61")
    a("v_add_u32 v5, s55, v2"); a("v_lshlrev_b32 v5, 11, v5")
    a("s_lshl_b32 s55, s49, 7"); a("s_lshl_b32 s61, s54, 6"); a("s_add_u32 s55, s55, s61")
    a("v_and_b32 v6, 1, v3"); a("v_lshlrev_b32 v6, 5, v6"); a("v_lshrrev_b32 v7, 1, v3"); a("v_lshl_add_u32 v6, v7, 4, v6")
    a("v_add3_u32 v5, v5, v6, s55")
    a(f"s_mul_i32 s55, s50, 4608"); a(f"s_add_u32 s55, s55, {F_SCR}"); a("s_xor_b32 s61, s50, 1"); a("s_mul_i32 s61, s61, 4608"); a(f"s_add_u32 s61, s61, {F_SCR}")
    a("v_lshlrev_b32 v6, 4, v0"); a("v_add_u32 v8, s55, v6"); a("v_add_u32 v9, s61, v6")
    a("v_and_b32 v7, 7, v0"); a("v_lshlrev_b32 v7, 4, v7"); a("s_add_u32 s55, s55, 4096"); a("v_add_u32 v10, s55, v7")
    a("v_lshlrev_b32 v7, 4, v3"); a("v_add_u32 v11, s55, v7"); a("s_add_u32 s61, s61, 4096"); a("v_add_u32 v12, s61, v7")
    a("s_lshl_b32 s55, s50, 2"); a("v_mov_b32 v13, s55"); a("s_xor_b32 s55, s55, 4"); a("v_mov_b32 v14, s55")
    a("s_lshl_b32 s55, s49, 1"); a("s_add_u32 s55, s55, s54"); a("s_lshl_b32 s55, s55, 4"); a("s_lshl_b32 s61, s53, 3"); a("s_add_u32 s55, s55, s61")
    a("s_lshl_b32 s68, s55, 11"); a(f"s_add_u32 s68, s68, {WS_KVP}")
    a("s_lshl_b32 s69, s55, 7"); a(f"s_add_u32 s69, s69, {WS_ZP}")
    SEL = 248
    a("v_lshrrev_b32 v6, 2, v2"); a("v_cmp_eq_u32 vcc, v6, v3")
    a("v_and_b32 v6, 1, v2"); a("v_lshlrev_b32 v6, 4, v6"); a("v_mov_b32 v7, 0x3f80"); a("v_lshlrev_b32 v6, v6, v7")
    a("v_cndmask_b32 v6, 0, v6, vcc")
    a("v_bfe_u32 v7, v2, 1, 1"); a("v_cmp_eq_u32 vcc, 0, v7")
    for r in range(8): a(f"v_mov_b32 v{SEL+r}, 0")
    a(f"v_cndmask_b32 v{SEL}, 0, v6, vcc"); a(f"v_cndmask_b32 v{SEL+1}, v6, 0, vcc" if False else f"v_cndmask_b32_e64 v{SEL+1}, v6, 0, vcc")
    a(f"v_mov_b32 v{SEL+6}, v{SEL}"); a(f"v_mov_b32 v{SEL+7}, v{SEL+1}")
    q_frags()
    st_(None, 5)
    a("s_cmp_eq_u32 s50, 1"); a("s_cbranch_scc0 Lkvw")
    poll_zeroed(a, 28)
    a("s_lshl_b32 s55, s49, 11"); a(f"s_add_u32 s55, s55, {FL_KV}")
    a("v_lshl_add_u32 v15, v2, 7, s55")
    poll16(a, 15, 28, extra=(30, E_KVC, 4))
    a(f"ds_write_b32 v30, v31 offset:{E_KVR}")
    a("s_branch Lkvg")
    a.label("Lkvw")
    lds_spin(a, 30, E_KVR, 28, "eq", 1)
    a.label("Lkvg")
    st_(3, 6)
    PK = 128; PR = 64; ZR = 120
    a("v_lshlrev_b32 v6, 4, v0")
    a(f"buffer_load_dwordx4 {vr(ZR,4)}, v6, s[36:39], s69 offen sc1")
    for p in range(8):
        for q in range(2):
            a(f"buffer_load_dwordx4 {vr(PK+8*p+4*q,4)}, v6, s[36:39], s68 offen offset:{q*1024} sc1")
        a("s_add_u32 s68, s68, 2048")
    a("s_waitcnt vmcnt(16)")
    for r in range(4): a(f"v_add_f32_dpp v{ZR+r}, v{ZR+r}, v{ZR+r} row_ror:8 row_mask:0xf bank_mask:0xf")
    for r in range(4): a(f"v_mov_b32 v{ZR+4+r}, v{ZR+r}")
    a("s_nop 1")
    for r in range(4): a(f"v_permlane16_swap_b32 v{ZR+r}, v{ZR+4+r}")
    a("s_nop 1")
    for r in range(4): a(f"v_add_f32 v{ZR+r}, v{ZR+r}, v{ZR+4+r}")
    for r in range(4): a(f"v_mov_b32 v{ZR+4+r}, v{ZR+r}")
    a("s_nop 1")
    for r in range(4): a(f"v_permlane32_swap_b32 v{ZR+r}, v{ZR+4+r}")
    a("s_nop 1")
    for r in range(4): a(f"v_add_f32 v{ZR+r}, v{ZR+r}, v{ZR+4+r}")
    a(f"ds_write_b128 v10, {vr(ZR,4)}")
    for p in range(8):
        a(f"s_waitcnt vmcnt({14-2*p})")
        for q in range(2):
            for h_ in range(2):
                d = vr(PR + 4*(2*q + h_), 4)
                a(f"v_mfma_f32_16x16x32_bf16 {d}, {vr(SEL+4*h_,4)}, {vr(PK+8*p+4*q,4)}, {'0' if p == 0 else d}")
    a("s_nop 7")
    for q in range(4):
        a(f"ds_write_b128 v8, {vr(PR+4*q,4)} offset:{q*1024}")
    a("s_waitcnt lgkmcnt(0)")
    a(f"ds_write_b32 v13, v31 offset:{E_XF}")
    lds_spin(a, 14, E_XF, 28, "eq", 1)
    SB = 80
    for q in range(4):
        a(f"ds_read_b128 {vr(SB+4*q,4)}, v9 offset:{q*1024}")
    for ud in range(2):
        a(f"ds_read_b128 {vr(96+4*ud,4)}, v11 offset:{ud*64}"); a(f"ds_read_b128 {vr(104+4*ud,4)}, v12 offset:{ud*64}")
    a("s_waitcnt lgkmcnt(0)")
    for r in range(16): a(f"v_add_f32 v{PR+r}, v{PR+r}, v{SB+r}")
    for r in range(8): a(f"v_add_f32 v{96+r}, v{96+r}, v{104+r}")
    KA = 112; ZF = 120
    for ue in range(2):
        for ud in range(2):
            t = PR + (ud*2+ue)*4
            a(f"v_cvt_pk_bf16_f32 v{KA+4*ue+2*ud}, v{t}, v{t+1}"); a(f"v_cvt_pk_bf16_f32 v{KA+4*ue+2*ud+1}, v{t+2}, v{t+3}")
    for ud in range(2):
        t = 96 + 4*ud
        a(f"v_cvt_pk_bf16_f32 v{ZF+2*ud}, v{t}, v{t+1}"); a(f"v_cvt_pk_bf16_f32 v{ZF+2*ud+1}, v{t+2}, v{t+3}")
    a("s_cmp_eq_u32 s50, 0"); a("s_cbranch_scc0 Lnsp")
    a("s_lshl_b32 s60, s96, 11"); a(f"s_add_u32 s60, s60, {FL_O}"); a("v_lshl_add_u32 v217, v2, 7, s60")
    a(f"buffer_load_dword v216, v217, s[36:39], 0 offen{POLL[0]}")
    a.label("Lnsp")
    a("s_nop 1")
    O = 128
    for ai in range(4):
        for ue in range(2):
            a(f"v_mfma_f32_16x16x32_bf16 {vr(O+(ai*3+ue)*4,4)}, {vr(KA+4*ue,4)}, {vr(QF+4*ai,4)}, 0")
        a(f"v_mfma_f32_16x16x32_bf16 {vr(O+(ai*3+2)*4,4)}, {vr(ZF,4)}, {vr(QF+4*ai,4)}, 0")
    a("s_nop 7")
    OP = 64
    for ai in range(4):
        dn = O + (ai*3+2)*4
        a(f"v_add_f32 v{dn}, s58, v{dn}")
        a(f"v_rcp_f32 v{dn}, v{dn}")
        a("s_nop 0")
        for ue in range(2):
            t = O + (ai*3+ue)*4
            for r in range(4): a(f"v_mul_f32 v{t+r}, v{t+r}, v{dn}")
            a(f"v_cvt_pk_bf16_f32 v{OP+4*ai+2*ue}, v{t}, v{t+1}"); a(f"v_cvt_pk_bf16_f32 v{OP+4*ai+2*ue+1}, v{t+2}, v{t+3}")
        o = OP + 4*ai
        a("s_nop 1")
        a(f"v_permlane16_swap_b32 v{o}, v{o+2}"); a(f"v_permlane16_swap_b32 v{o+1}, v{o+3}")
        a(f"s_mov_b32 s60, {WS_O + 16*ai*2048}")
        a(f"buffer_store_dwordx4 {vr(o,4)}, v5, s[36:39], s60 offen sc1")
    st_(4, 7)
    a("s_setprio 0")
    a("s_lshl_b32 s57, s48, 4"); a("s_add_u32 s57, s57, s49"); a("s_lshl_b32 s57, s57, 7"); a(f"s_add_u32 s57, s57, {FL_O}"); a("v_mov_b32 v28, s57")
    make_srd(a, 24, 18, NB["wo"])
    a("v_mov_b32 v9, 0"); a("v_mov_b32 v11, 1"); a("s_mov_b32 s53, s50")
    a("v_lshrrev_b32 v96, 3, v0"); a("v_and_b32 v97, 7, v0"); a("v_lshrrev_b32 v98, 4, v0")
    a("s_cmp_eq_u32 s53, 3"); a("s_cbranch_scc1 Lawo")
    a("s_lshl_b32 s60, s96, 7"); a("v_add_u32 v99, s60, v96"); a("v_lshlrev_b32 v99, 11, v99")
    a("v_xor_b32 v100, v98, v97"); a("v_lshl_add_u32 v20, v100, 4, v99")
    a("v_xor_b32 v100, 4, v100"); a("v_lshl_add_u32 v21, v100, 4, v99")
    a("s_mov_b32 s28, s36"); a("s_mov_b32 s29, s37"); a("s_mov_b32 s30, s38"); a("s_mov_b32 s31, s39")
    a("s_sub_u32 s60, s53, 1"); a("s_lshl_b32 s64, s60, 13"); a("s_lshl_b32 s66, s60, 17"); a(f"s_add_u32 s66, s66, {WS_O}"); a("s_mov_b32 s65, 128")
    a("s_branch Lawd")
    a.label("Lawo")
    a("v_and_b32 v100, 1, v98"); a("v_lshlrev_b32 v100, 1, v100"); a("v_xor_b32 v100, v100, v97")
    a("v_lshlrev_b32 v99, 11, v96"); a("s_lshl_b32 s61, s97, 7"); a("v_add_u32 v99, s61, v99")
    a("v_lshl_add_u32 v20, v100, 4, v99")
    a("v_xor_b32 v100, 4, v100"); a("v_lshl_add_u32 v21, v100, 4, v99")
    a("s_mov_b32 s28, s24"); a("s_mov_b32 s29, s25"); a("s_mov_b32 s30, s26"); a("s_mov_b32 s31, s27")
    a("s_mov_b32 s64, 16384"); a("s_mov_b32 s66, 0"); a("s_mov_b32 s65, 131072")
    a.label("Lawd")
    a("v_lshrrev_b32 v99, 4, v0"); a("s_lshl_b32 s60, s97, 6"); a("v_add_u32 v99, s60, v99"); a("v_lshlrev_b32 v99, 12, v99")
    a("v_and_b32 v100, 15, v0"); a("v_lshl_add_u32 v99, v100, 4, v99"); a("s_lshl_b32 s60, s96, 8"); a("v_add_u32 v26, s60, v99")
    def slot_base(st):
        sl = st % 6
        return (F_U + sl*ST3) if sl < 3 else (sl - 3)*ST3
    ORD = 64
    a(f"v_mov_b32 v27, {F_FL}")
    a("s_lshl_b32 s60, s96, 11"); a(f"s_add_u32 s60, s60, {FL_O}")
    a("v_and_b32 v102, 15, v0"); a("v_lshl_add_u32 v102, v102, 7, s60")
    a("s_lshl_b32 s60, s97, 11"); a(f"s_add_u32 s60, s60, {FL_Y}")
    a("v_and_b32 v103, 15, v0"); a("v_lshl_add_u32 v103, v103, 7, s60")
    lds_spin(a, 30, E_ADC, 29, "ge", 4)
    a("s_waitcnt vmcnt(0)")
    lds_count_last(a, 30, E_OC, 31, 29, 3, lambda: a("buffer_store_dword v31, v28, s[36:39], 0 offen sc1"))
    st_(5)
    a("s_cmp_eq_u32 s53, 0"); a("s_cbranch_scc0 Lgload")
    a("s_mov_b32 s70, 0"); a("s_mov_b32 s71, 0")
    def absorb():
        l0, l1 = lab("ab"), lab("ae")
        a("v_cmp_eq_u32 vcc, 1, v100"); a("s_nop 3")
        a("s_and_b32 s72, vcc_lo, 0xffff"); a("s_andn2_b32 s62, s72, s71")
        a.label(l0)
        a("s_cmp_eq_u32 s62, 0"); a(f"s_cbranch_scc1 {l1}")
        a("s_ff1_i32_b32 s47, s62"); a("s_lshl_b32 s60, 1, s47"); a("s_or_b32 s71, s71, s60"); a("s_andn2_b32 s62, s62, s60")
        a("s_add_u32 s47, s47, 1"); a("v_mov_b32 v101, s47"); a("s_lshl_b32 s60, s70, 2"); a("v_add_u32 v104, s60, v27")
        a(f"ds_write_b32 v104, v101 offset:{ORD}"); a("s_add_u32 s70, s70, 1")
        a(f"s_branch {l0}")
        a.label(l1)
    a("v_mov_b32 v100, v216")
    absorb()
    a("s_mov_b32 s61, 0")
    a.label("Lsync0")
    a(f"buffer_load_dword v100, v102, s[36:39], 0 offen{POLL[0]}")
    a("s_mov_b32 s73, 0")
    a.label("Lsyncw")
    a(f"ds_read_b32 v105, v9 offset:{E_CD}"); a("s_waitcnt lgkmcnt(0)")
    a("v_readfirstlane_b32 s60, v105"); a("s_add_u32 s73, s73, 1")
    a("s_cmp_ge_u32 s60, 4"); a("s_cselect_b32 s60, 1, 0"); a("s_cmp_ge_u32 s70, 4"); a("s_cselect_b32 s62, 1, 0"); a("s_and_b32 s60, s60, s62"); a("s_cbranch_scc1 Lsync1")
    a("s_cmp_ge_u32 s70, 4"); a("s_cselect_b32 s60, 12, 1"); a("s_cmp_lt_u32 s73, s60"); a("s_cbranch_scc1 Lsyncw")
    a("s_waitcnt vmcnt(0)")
    absorb()
    a("s_cmp_eq_u32 s70, 16"); a("s_cbranch_scc1 Lsync1")
    a("s_add_u32 s61, s61, 1"); a(f"s_cmp_lt_u32 s61, {SPIN_MAX}"); a("s_cbranch_scc1 Lsync0")
    a("v_mov_b32 v100, 1"); absorb()
    a.label("Lsync1")
    st_(6)
    first_after = {}
    issued_ = 3
    for i in range(16):
        n_ = 0
        while issued_ + n_ <= min(15, i + 5) and n_ < opt.get("gburst", 2): n_ += 1
        if n_: first_after[i] = (issued_, issued_ + n_ - 1)
        issued_ += n_
    def ensure(count):
        l0, l1 = lab("en"), lab("ex")
        a("s_mov_b32 s73, 0")
        a.label(l0)
        a(f"s_cmp_ge_u32 s70, {count}"); a(f"s_cbranch_scc1 {l1}")
        a(f"buffer_load_dword v100, v102, s[36:39], 0 offen{POLL[0]}"); a("s_waitcnt vmcnt(0)")
        absorb()
        a("s_add_u32 s73, s73, 1"); a(f"s_cmp_lt_u32 s73, {SPIN_MAX}"); a(f"s_cbranch_scc1 {l0}")
        a("v_mov_b32 v100, 1"); absorb()
        a.label(l1)
    for i in range(16):
        if i in first_after: ensure(first_after[i][0] + 1)
        if i == 15: a("s_waitcnt vmcnt(0)")
        a("s_barrier")
        if i in first_after:
            nxt = first_after.get(i + 1, (first_after[i][1],))[0]
            ensure(max(first_after[i][1], nxt) + 1)
        if i == 9:
            a("buffer_load_dword v106, v103, s[36:39], 0 offen sc1")
        if i == 11:
            l = lab("sy"); l2 = lab("sz")
            a("s_mov_b32 s73, 0")
            a.label(l2)
            a("s_waitcnt vmcnt(0)")
            a("v_cmp_ne_u32 vcc, 1, v106"); a("s_add_u32 s73, s73, 1"); a("s_nop 3"); a("s_cmp_eq_u64 vcc, 0"); a(f"s_cbranch_scc1 {l}")
            a("buffer_load_dword v106, v103, s[36:39], 0 offen sc1")
            a(f"s_cmp_lt_u32 s73, {SPIN_MAX}"); a(f"s_cbranch_scc1 {l2}")
            a.label(l)
            for t in range(16):
                a(f"s_mov_b32 m0, {F_Y + t*1024}"); a(f"s_mov_b32 s61, {WS_YT + t*4*4096}")
                a("buffer_load_dwordx4 v26, s[36:39], s61 offen sc1 lds")
    a("s_branch Lgend")
    a.label("Lgload")
    def fetch_ord(k):
        a(f"ds_read_b32 v100, v27 offset:{ORD + 4*k}")
    def decode():
        a("v_readfirstlane_b32 s62, v100")
        a("s_sub_u32 s68, s62, 1"); a("s_and_b32 s68, s68, 15"); a("s_mul_i32 s68, s68, s65"); a("s_add_u32 s68, s68, s66")
    def take_ord(k, decoded=False):
        l0, l1 = lab("to"), lab("tx")
        if not decoded:
            a("s_waitcnt lgkmcnt(0)"); decode()
        a("s_cmp_lg_u32 s62, 0"); a(f"s_cbranch_scc1 {l1}")
        a("s_mov_b32 s61, 0")
        a.label(l0)
        fetch_ord(k); a("s_waitcnt lgkmcnt(0)"); decode()
        a("s_add_u32 s61, s61, 1"); a("s_cmp_lg_u32 s62, 0"); a(f"s_cbranch_scc1 {l1}")
        a(f"s_cmp_lt_u32 s61, {SPIN_MAX*8}"); a(f"s_cbranch_scc1 {l0}")
        a.label(l1)
        a("s_mov_b32 s67, s68")
    SC1 = "" if opt.get("nosc1") else " sc1"
    def issue_stage(st, nxt):
        sb = slot_base(st)
        for t in range(8):
            if t: a(f"s_add_u32 m0, s64, {sb + t*1024}"); a(f"s_add_u32 s60, s67, {t*16384}")
            a(f"buffer_load_dwordx4 v{20 + (t & 1)}, s[28:31], {'s67' if t == 0 else 's60'} offen{SC1} lds")
            if nxt is not None:
                if t == 1: fetch_ord(nxt)
                if t == 5: a("s_waitcnt lgkmcnt(0)"); decode()
    def prep_stage(st):
        a(f"s_add_u32 m0, s64, {slot_base(st)}")
    Q = []
    for st in range(3):
        fetch_ord(st); take_ord(st)
        if st == 2: lds_spin(a, 9, E_OC, 8, "ge", 4)
        prep_stage(st); a("s_nop 0")
        issue_stage(st, 3 if st == 2 else None); Q += [st]*8
        if st == 0: st_(6)
    issued = 3
    for i in range(16):
        last = max(k for k, e in enumerate(Q) if e == i)
        n_after = len(Q) - 1 - last
        todo = []
        while issued + len(todo) <= min(15, i + 5) and len(todo) < opt.get("gburst", 2): todo.append(issued + len(todo))
        if todo:
            take_ord(todo[0], True); prep_stage(todo[0])
        a(f"s_waitcnt vmcnt({n_after})")
        if opt.get("gst"): a("s_memtime s[100:101]")
        a("s_barrier")
        if opt.get("gst"):
            a("s_waitcnt lgkmcnt(0)"); a("s_sub_u32 s100, s100, s80"); a(f"v_writelane_b32 v200, s100, {i}"); a("s_memtime s[100:101]")
            a("s_waitcnt lgkmcnt(0)"); a("s_sub_u32 s100, s100, s80"); a(f"v_writelane_b32 v200, s100, {16+i}")
        Q = Q[last + 1:]
        for k_, st in enumerate(todo):
            if k_:
                take_ord(st, True); prep_stage(st); a("s_nop 0")
            nxt = st + 1 if st + 1 <= 15 else None
            issue_stage(st, nxt); Q += [st]*8
        issued += len(todo)
    assert issued == 16
    if opt.get("gst"):
        a(f"s_add_u32 s76, s14, {WS_STAMP + (1 << 20)}"); a("s_addc_u32 s77, s15, 0"); a("s_mov_b32 s78, 0x1000000"); a("s_mov_b32 s79, 0x00020000")
        a("s_lshl_b32 s75, s2, 2"); a("s_add_u32 s75, s75, s53"); a("s_lshl_b32 s75, s75, 8")
        a("v_lshlrev_b32 v201, 2, v0"); a("buffer_store_dword v200, v201, s[76:79], s75 offen")
    a.label("Lgend")
    st_(7)
    stamp_dump(a, opt, 8)
    a("s_waitcnt vmcnt(0)")
    a("s_endpgm")


def a_waves(a, opt):
    a("s_sub_u32 s53, s50, 4")
    VA = 8; VW = 12
    a("v_lshrrev_b32 v2, 3, v0"); a("v_and_b32 v3, 7, v0"); a("v_lshrrev_b32 v4, 4, v0")
    a("s_lshl_b32 s55, s48, 7"); a("s_lshl_b32 s61, s53, 5"); a("s_add_u32 s55, s55, s61")
    a("v_add_u32 v5, s55, v2"); a("v_lshlrev_b32 v5, 11, v5")
    a("v_xor_b32 v6, v4, v3"); a(f"v_lshl_add_u32 v{VA}, v6, 4, v5")
    a("v_xor_b32 v6, 4, v6"); a(f"v_lshl_add_u32 v{VA+1}, v6, 4, v5"); a(f"v_add_u32 v{VA+1}, 16384, v{VA+1}")
    for i in range(2, 4): a(f"v_add_u32 v{VA+i}, 32768, v{VA+(i&1)}")
    a("v_and_b32 v6, 1, v4"); a("v_lshlrev_b32 v6, 1, v6"); a("v_xor_b32 v6, v6, v3")
    a("v_mul_u32_u24 v5, 6144, v2")
    a(f"s_mul_i32 s55, s53, {2*8*6144}"); a("s_lshl_b32 s61, s49, 7"); a("s_add_u32 s55, s55, s61")
    a("v_add_u32 v5, s55, v5")
    a(f"v_lshl_add_u32 v{VW}, v6, 4, v5")
    a("v_xor_b32 v6, 4, v6"); a(f"v_lshl_add_u32 v{VW+1}, v6, 4, v5"); a(f"v_add_u32 v{VW+1}, {8*6144}, v{VW+1}")
    WL = [(seg, r2) for seg in range(3) for r2 in range(2)]
    for i, (seg, r2) in enumerate(WL):
        if i >= 2: a(f"v_add_u32 v{VW+i}, {seg*2048}, v{VW + r2}")
    a("s_lshl_b32 s64, s53, 12")
    a("s_lshl_b32 s65, s53, 11"); a("s_add_u32 s65, s65, 16384")
    rv = opt.get("rotv", 0)
    if rv == 0: a("s_lshr_b32 s46, s52, 3"); a("s_add_u32 s46, s46, s52"); a("s_and_b32 s46, s46, 3"); a("s_lshl_b32 s46, s46, 2")
    elif rv == 1: a("s_and_b32 s46, s52, 3"); a("s_lshl_b32 s46, s46, 2")
    elif rv == 2: a("s_lshr_b32 s46, s52, 3"); a("s_lshl_b32 s46, s46, 2")
    elif rv == 3: a("s_lshr_b32 s46, s52, 3"); a("s_add_u32 s46, s46, s52"); a("s_add_u32 s46, s46, s51"); a("s_and_b32 s46, s46, 3"); a("s_lshl_b32 s46, s46, 2")
    elif rv == 4: a("s_lshr_b32 s46, s52, 1"); a("s_and_b32 s46, s46, 3"); a("s_lshl_b32 s46, s46, 2")
    a("s_lshl_b32 s66, s46, 7"); a(f"s_mul_i32 s67, s46, {64*6144}"); a("s_mov_b32 s68, 0")
    a("s_waitcnt lgkmcnt(0)")
    make_srd(a, 20, 4, NB["x"]); make_srd(a, 24, 6, NB["wqkv"])
    def prep():
        a("s_add_u32 s69, s64, s68"); a("s_add_u32 s55, s65, s68"); a("s_mov_b32 m0, s69")
    def issue(prepared=False):
        if not prepared: prep(); a("s_nop 0")
        fill = [f"s_add_u32 s68, s68, {ST1}", f"s_cmp_eq_u32 s68, {4*ST1}\ns_cselect_b32 s68, 0, s68", "s_nop 0"]
        for i in range(4):
            if i:
                a(f"s_add_u32 m0, s69, {i*1024}"); a(fill.pop(0))
            a(f"buffer_load_dwordx4 v{VA+i}, s[20:23], s66 offen lds")
        fill = ["s_add_u32 s66, s66, 128", "s_cmp_eq_u32 s66, 2048\ns_cselect_b32 s66, 0, s66"]
        for i, (seg, r2) in enumerate(WL):
            a(f"s_add_u32 m0, s55, {seg*8192 + r2*1024}"); a(fill.pop(0) if fill else "s_nop 0")
            a(f"buffer_load_dwordx4 v{VW+i}, s[24:27], s67 offen lds")
        a(f"s_add_u32 s67, s67, {64*6144}"); a(f"s_cmp_eq_u32 s67, {16*64*6144}"); a("s_cselect_b32 s67, 0, s67")
    issue(); issue()
    a("s_load_dwordx4 s[8:11], s[0:1], 32")
    a("s_load_dwordx4 s[4:7], s[0:1], 48")
    a("s_load_dwordx2 s[16:17], s[0:1], 72")
    a("s_load_dwordx2 s[18:19], s[0:1], 16")
    ramp = opt.get("ramp1", (1, 1, 1, 1, 2))
    issued = 2
    for i, n in enumerate(ramp):
        prep()
        a(f"s_waitcnt vmcnt({10*(issued - i - 1)})"); a("s_barrier")
        if i == 0: stamp(a, opt, 1)
        for k_ in range(n):
            issue(prepared=(k_ == 0)); issued += 1
        if i == 0:
            a("s_waitcnt lgkmcnt(0)")
            make_srd(a, 28, 8, NB["bk"]); make_srd(a, 32, 10, NB["bv"])
            make_srd(a, 36, 14, WS_USED); make_srd(a, 40, 4, NB["shift"]); make_srd(a, 44, 16, NB["gw"])
    i0 = len(ramp)
    a(f"s_mov_b32 s60, {i0}")
    a(f".p2align {opt.get('align', 6)}")
    a.label("Llloop")
    prep()
    a("s_add_u32 s60, s60, 1")
    a("s_waitcnt vmcnt(20)"); a("s_barrier")
    issue(prepared=True)
    a("s_cmp_lt_u32 s60, 13"); a("s_cbranch_scc1 Llloop")
    NTKV = "" if opt.get("kvtouch") else " nt"
    pl = Asm()
    pl("s_and_b32 s70, s2, 15"); pl("s_lshr_b32 s71, s2, 4")
    pl("v_lshrrev_b32 v20, 3, v0"); pl("v_and_b32 v21, 7, v0")
    pl("s_lshl_b32 s72, s70, 7"); pl("s_lshl_b32 s73, s53, 5"); pl("s_add_u32 s72, s72, s73")
    pl("v_lshl_add_u32 v22, v20, 2, s72")
    pl("s_lshl_b32 s73, s71, 6"); pl("v_lshl_add_u32 v23, v21, 3, s73")
    pl("v_lshlrev_b32 v24, 11, v22"); pl("v_lshl_add_u32 v24, v23, 1, v24")
    pl("v_subrev_u32 v25, 6144, v24")
    for r in range(7):
        if r: pl("v_add_u32 v25, 2048, v25")
        pl(f"buffer_load_dwordx4 {vr(32+4*r,4)}, v25, s[28:31], 0 offen{NTKV}")
    pl("v_add_u32 v26, 4096, v24")
    for r in range(4):
        pl(f"buffer_load_dwordx4 {vr(60+4*r,4)}, v{24 if r < 2 else 26}, s[32:35], 0 offen offset:{2048*(r & 1)}{NTKV}")
    partA = pl.lines; pl = Asm()
    pl("v_lshlrev_b32 v27, 3, v23")
    for q in range(4):
        pl(f"buffer_load_dwordx4 {vr(76+4*q,4)}, v27, s[40:43], 0 offen offset:{16*q}")
    pl("s_lshl_b32 s73, s48, 7"); pl("s_lshl_b32 s74, s49, 3"); pl("s_add_u32 s73, s73, s74"); pl("s_lshl_b32 s74, s53, 1"); pl("s_add_u32 s73, s73, s74")
    pl("v_lshrrev_b32 v28, 5, v0"); pl("v_add_u32 v28, s73, v28")
    pl("v_and_b32 v29, 31, v0"); pl("v_lshlrev_b32 v29, 4, v29")
    pl("v_lshl_add_u32 v30, v28, 11, v29")
    for i in range(4):
        pl(f"buffer_load_dwordx4 {vr(92+4*i,4)}, v30, s[20:23], 0 offen offset:{512*i}")
    for i in range(4):
        pl(f"buffer_load_dwordx4 {vr(108+4*i,4)}, v29, s[44:47], 0 offen offset:{512*i}")
    pl("v_lshlrev_b32 v31, 12, v23"); pl("v_lshl_add_u32 v31, v22, 1, v31")
    pl(f"s_mov_b32 s72, {WS_UT}")
    pl("s_mov_b32 s74, 0x05040100"); pl("s_mov_b32 s75, 0x07060302")
    partB = pl.lines
    a("v_mov_b32 v160, 0"); a("v_mov_b32 v161, 0"); a("v_mov_b32 v162, 0"); a("v_mov_b32 v163, 0")
    a("v_and_b32 v164, 1, v0"); a("v_lshlrev_b32 v164, 4, v164")
    a("s_waitcnt vmcnt(20)"); a("s_barrier")
    a(f"ds_write_b128 v164, v[160:163] offset:{F_E0}")
    for ln in partA: a(ln)
    a("s_waitcnt vmcnt(21)"); a("s_barrier")
    a(f"ds_write_b128 v164, v[160:163] offset:{F_E1}")
    for ln in partB: a(ln)
    a("s_lshl_b32 s54, s51, 7"); a("s_lshl_b32 s55, s52, 2"); a("s_add_u32 s54, s54, s55"); a("s_add_u32 s54, s54, s53")
    a("s_lshl_b32 s55, s54, 12")
    a("s_add_u32 s60, s6, s55"); a("s_addc_u32 s61, s7, 0")
    a("v_lshlrev_b32 v1, 2, v0"); a("v_subrev_u32 v3, 4, v1"); a("v_add_u32 v4, 252, v1")
    a("s_waitcnt vmcnt(23) lgkmcnt(0)"); a("s_barrier")
    a("v_and_b32 v165, 7, v0"); a("v_lshlrev_b32 v165, 4, v165"); a(f"v_add_u32 v165, {F_FL}, v165")
    a("ds_write_b128 v165, v[160:163]")
    a("s_mov_b32 s24, s60"); a("s_mov_b32 s25, s61"); a("s_mov_b32 s26, 4096"); a("s_mov_b32 s27, 0x00020000")
    E = 176; E1 = 192
    for j in range(16):
        a(f"buffer_load_dword v{E+j}, v1, s[24:27], 0 offen offset:{256*j} nt")
        if j == 0: a(f"buffer_load_dword v{E1}, v3, s[24:27], 0 offen")
        else:      a(f"buffer_load_dword v{E1+j}, v4, s[24:27], 0 offen offset:{256*(j-1)}")
    a("s_waitcnt vmcnt(40)")
    stamp(a, opt, 2)
    P = 128; KS = 140; VU = 148
    for c in range(8):
        cp, h = c >> 1, c & 1
        sel = "s75" if h else "s74"
        pb = P + 6*(c & 1); kb = KS + 4*(c & 1)
        for t in range(6): a(f"v_perm_b32 v{pb+t}, v{32+4*t+cp}, v{32+4*(t+1)+cp}, {sel}")
        for r in range(4): a(f"v_dot2_f32_bf16 v{kb+r}, v{pb+r+2}, v{76+2*c}, 0")
        for r in range(4): a(f"v_dot2_f32_bf16 v{kb+r}, v{pb+r}, v{76+2*c+1}, v{kb+r}")
        for r in range(4):
            if h: a(f"v_and_b32 v{VU+r}, 0xffff0000, v{60+4*r+cp}")
            else: a(f"v_lshlrev_b32 v{VU+r}, 16, v{60+4*r+cp}")
        for r in range(4): a(f"v_mul_f32 v{kb+r}, v{kb+r}, v{VU+r}")
        o = 152 + 2*(c & 3)
        a(f"v_cvt_pk_bf16_f32 v{o}, v{kb}, v{kb+1}"); a(f"v_cvt_pk_bf16_f32 v{o+1}, v{kb+2}, v{kb+3}")
        a(f"s_add_u32 s73, s72, {c*4096}")
        a(f"buffer_store_dwordx2 {vr(o,2)}, v31, s[36:39], s73 offen sc1")
    a("s_waitcnt vmcnt(40)")
    a("v_mov_b32 v128, 0")
    for i in range(16): a(f"v_dot2_f32_bf16 v128, v{92+i}, v{108+i}, v128")
    a("s_nop 3")
    for ctl in ("quad_perm:[1,0,3,2]", "quad_perm:[2,3,0,1]", "row_half_mirror", "row_mirror"):
        a(f"v_add_f32_dpp v128, v128, v128 {ctl} row_mask:0xf bank_mask:0xf"); a("s_nop 1")
    a("v_mov_b32 v129, v128"); a("s_nop 1")
    a("v_permlane16_swap_b32 v128, v129"); a("s_nop 1")
    a("v_add_f32 v128, v128, v129")
    a("v_mul_f32 v128, 0xbfb8aa3b, v128"); a("v_exp_f32 v128, v128"); a("s_nop 0")
    a("v_add_f32 v128, 1.0, v128"); a("v_rcp_f32 v128, v128")
    a("v_lshlrev_b32 v28, 2, v28"); a("v_and_b32 v29, 31, v0"); a("v_cmp_eq_u32 vcc, 0, v29")
    a("s_and_saveexec_b64 s[62:63], vcc")
    a(f"s_mov_b32 s73, {WS_G}")
    a("buffer_store_dword v128, v28, s[36:39], s73 offen sc1")
    a("s_mov_b64 exec, s[62:63]")
    stamp(a, opt, 3)
    a("v_lshlrev_b32 v2, 4, v0")
    a(f"s_mul_i32 s56, s53, {CWB}")
    a("v_mov_b32 v12, 0"); a("v_mov_b32 v13, 0"); a("v_mov_b32 v14, 0"); a("v_mov_b32 v15, 0")
    a(f"s_add_u32 s57, s56, {CF}")
    a("v_min_u32 v5, 29, v0"); a("v_lshl_add_u32 v5, v5, 4, s57")
    a("ds_write_b128 v5, v[12:15]")
    a("v_lshrrev_b32 v5, 3, v0"); a("v_and_b32 v5, 3, v5"); a(f"v_mul_u32_u24 v5, {CTS}, v5")
    a("v_and_b32 v6, 7, v0"); a("v_lshl_add_u32 v5, v6, 2, v5")
    a(f"s_add_u32 s57, s56, {8 + 4*1023}"); a("v_add_u32 v5, s57, v5")
    a("ds_write_b32 v5, v12")
    TW = 16
    for rho in range(4):
        a(f"s_add_u32 s57, s56, {rho*CTS + 256 + (4 if rho >= 2 else 0)}")
        a(f"v_sub_u32 v{TW+rho}, s57, v1")
    a("s_mov_b32 s59, 0xffff")
    a("s_waitcnt vmcnt(9)")
    S = 64; M = 80
    for j in range(16):
        a(f"v_alignbit_b32 v{S+j}, v{E+j}, v{E+j}, 16")
        a(f"v_bfi_b32 v{M+j}, s59, v{E+j}, v{E1+j}")
    for j in range(0, 16, 2):
        for rho in range(4):
            src = S if rho & 1 else M
            a(f"ds_write2st64_b32 v{TW+rho}, v{src+j}, v{src+j+1} offset0:{15-j} offset1:{14-j}")
    a("s_load_dwordx2 s[8:9], s[0:1], 64"); a("s_load_dwordx2 s[16:17], s[0:1], 80")
    make_srd(a, 40, 12, 256); make_srd(a, 24, 18, NB["wo"])
    a("v_mov_b32 v9, 0"); a("v_mov_b32 v11, 1")
    a("s_lshl_b32 s60, s2, 7"); a(f"s_add_u32 s60, s60, {FL_U}"); a("v_mov_b32 v10, s60")
    a("s_waitcnt vmcnt(0)")
    lds_count_last(a, 9, E_ADC, 11, 8, 3, lambda: a("buffer_store_dword v11, v10, s[36:39], 0 offen sc1"))
    stamp(a, opt, 4)
    a("s_cmp_eq_u32 s53, 0"); a("s_cbranch_scc1 Lupoll")
    a("s_lshl_b32 s60, s52, 5"); a("s_lshl_b32 s61, s53, 3"); a("s_add_u32 s60, s60, s61"); a("s_sub_u32 s60, s60, 8")
    a("v_lshrrev_b32 v96, 3, v0"); a("v_add_u32 v96, s60, v96"); a("v_lshlrev_b32 v96, 11, v96")
    a("v_and_b32 v97, 7, v0"); a("v_lshl_add_u32 v96, v97, 7, v96")
    a("s_lshr_b32 s60, s51, 2"); a("s_lshl_b32 s60, s60, 10")
    a("buffer_load_dword v98, v96, s[24:27], s60 offen")
    a("s_cmp_eq_u32 s53, 3"); a("s_cbranch_scc0 Lnpf")
    a("v_add_u32 v96, 16384, v96")
    a("buffer_load_dword v99, v96, s[24:27], s60 offen")
    a.label("Lnpf")
    lds_spin(a, 9, E_UR, 8, "eq", 1)
    a("s_branch Lugo")
    a.label("Lupoll")
    poll_zeroed(a, 100)
    a("s_lshl_b32 s60, s51, 1"); a("s_lshr_b32 s61, s52, 4"); a("s_add_u32 s60, s60, s61"); a("s_lshl_b32 s60, s60, 11"); a(f"s_add_u32 s60, s60, {FL_U}")
    a("v_and_b32 v102, 15, v0"); a("v_lshl_add_u32 v102, v102, 7, s60")
    poll16(a, 102, 100)
    a(f"ds_write_b32 v9, v11 offset:{E_UR}")
    a.label("Lugo")
    a(f"s_add_u32 s57, s55, {WS_UT}")
    for i in range(4):
        a(f"s_add_u32 m0, s56, {CF + 480 + i*1024}")
        a(f"s_add_u32 s60, s57, {i*1024}")
        a("buffer_load_dwordx4 v2, s[36:39], s60 offen sc1 lds")
    a("s_mov_b32 s47, s53")
    a("v_and_b32 v2, 15, v0"); a("v_lshrrev_b32 v3, 4, v0")
    a("s_waitcnt lgkmcnt(0)")
    a("s_lshl_b32 s53, s51, 7"); a("s_lshl_b32 s54, s52, 2"); a("s_add_u32 s53, s53, s54"); a("s_add_u32 s53, s53, s47")
    a(f"s_mul_i32 s54, s47, {CWB}")
    a("v_and_b32 v6, 3, v0"); a(f"v_mul_u32_u24 v6, {CTS}, v6")
    a("v_bfe_u32 v7, v0, 2, 2"); a("v_lshlrev_b32 v7, 3, v7"); a("v_sub_u32 v6, v6, v7")
    a("v_lshl_add_u32 v6, v3, 4, v6")
    a(f"s_add_u32 s55, s54, {8 + 24 + 448}"); a("v_add_u32 v16, s55, v6")
    a("v_lshlrev_b32 v6, 5, v2"); a("v_lshl_add_u32 v6, v3, 4, v6")
    a(f"s_add_u32 s55, s54, {CF + 448}"); a("v_add_u32 v17, s55, v6")
    a("s_lshl_b32 s55, s53, 1"); a("s_and_b32 s55, s55, 0xfffffffc")
    a("s_add_u32 s8, s8, s55"); a("s_addc_u32 s9, s9, 0")
    a("s_load_dword s70, s[8:9], 0")
    make_srd(a, 28, 16, NB["out"])
    GXA = 224; GWA = 228; XR = 232; GR = 32
    a("s_lshr_b32 s66, s47, 1"); a("s_and_b32 s67, s47, 1")
    a("s_lshl_b32 s55, s96, 7"); a("s_lshl_b32 s61, s66, 6"); a("s_add_u32 s55, s55, s61")
    a("v_add_u32 v20, s55, v2"); a("v_lshlrev_b32 v21, 11, v20")
    a("s_lshl_b32 s55, s97, 7"); a("s_lshl_b32 s61, s67, 6"); a("s_add_u32 s64, s55, s61")
    a("v_lshl_add_u32 v22, v3, 3, s64"); a("v_add_u32 v22, v21, v22"); a("v_lshlrev_b32 v23, 2, v20")
    a("v_lshrrev_b32 v24, 1, v2"); a("v_xor_b32 v24, v24, v3")
    a("s_lshl_b32 s55, s66, 13")
    a("v_lshlrev_b32 v25, 7, v2"); a("v_add_u32 v25, s55, v25")
    a(f"v_lshl_add_u32 v{GXA+2}, v24, 4, v25")
    a("v_xor_b32 v26, 4, v24"); a(f"v_lshl_add_u32 v{GXA+3}, v26, 4, v25")
    for kk in range(2): a(f"v_add_u32 v{GXA+kk}, {F_U}, v{GXA+2+kk}")
    a("v_bfe_u32 v26, v0, 2, 2")
    a("v_lshl_add_u32 v27, v3, 3, v26"); a("v_lshlrev_b32 v27, 7, v27")
    a("v_and_b32 v28, 3, v0"); a("v_lshl_add_u32 v27, v28, 3, v27"); a("v_add_u32 v27, 16384, v27")
    a("v_bfe_u32 v28, v0, 3, 1"); a("v_bfe_u32 v29, v0, 4, 1"); a("v_lshl_or_b32 v28, v29, 1, v28")
    a("s_lshl_b32 s55, s67, 1"); a("v_xor_b32 v28, s55, v28")
    a(f"v_lshl_add_u32 v{GWA+2}, v28, 5, v27")
    a("v_xor_b32 v28, 1, v28"); a(f"v_lshl_add_u32 v{GWA+3}, v28, 5, v27")
    for u in range(2): a(f"v_add_u32 v{GWA+u}, {F_U}, v{GWA+2+u}")
    a("v_mov_b32 v7, v3")
    a("s_waitcnt lgkmcnt(0)")
    a("s_lshr_b32 s57, s70, 16"); a("s_and_b32 s60, s70, 0xffff"); a("s_and_b32 s61, s53, 1"); a("s_cmp_eq_u32 s61, 0"); a("s_cselect_b32 s57, s60, s57")
    a("v_lshrrev_b32 v28, 3, v2"); a("v_add_u32 v28, 2, v28"); a("v_cmp_eq_u32 vcc, v28, v7")
    a("v_and_b32 v28, 1, v2"); a("v_lshlrev_b32 v28, 4, v28"); a("v_mov_b32 v29, s57"); a("v_lshlrev_b32 v29, v28, v29")
    a("v_cndmask_b32 v29, 0, v29, vcc")
    a("v_bfe_u32 v28, v2, 1, 2")
    for w_ in range(4):
        a(f"v_cmp_eq_u32 vcc, {w_}, v28"); a("s_nop 1"); a(f"v_cndmask_b32 v{24+w_}, 0, v29, vcc")
    a("v_mov_b32 v30, 0"); a("v_mov_b32 v31, 1")
    a("s_lshl_b32 s55, s53, 12")
    a("s_waitcnt vmcnt(0) lgkmcnt(0)")
    stamp(a, opt, 5)
    a("s_setprio 2")
    FR = 96; ACC = 32
    def tf(b, k1): return FR + b*64 + k1*4
    def ff(b, n1): return FR + b*64 + 32 + n1*4
    def rd(b):
        L = []
        for i in range(8):
            L.append(f"ds_read_b64 {vr(tf(b,i),2)}, v16 offset:{512*(7-i)}")
            L.append(f"ds_read_b64 {vr(tf(b,i)+2,2)}, v16 offset:{512*(7-i)+8}")
            L.append(f"ds_read_b128 {vr(ff(b,i),4)}, v17 offset:{512*i}")
        return L
    def mm(b, first):
        L = []; seen = set()
        for k1 in range(8):
            for n1 in range(8 - k1):
                t = k1 + n1
                d = vr(ACC + 4*t, 4)
                c = "0" if (first and t not in seen) else d
                seen.add(t)
                L.append(f"v_mfma_f32_16x16x32_bf16 {d}, {vr(tf(b,k1),4)}, {vr(ff(b,n1),4)}, {c}")
        return L
    for s_ in rd(0): a(s_)
    a("v_subrev_u32 v16, 64, v16"); a("v_subrev_u32 v17, 64, v17")
    DF = 24
    def resid(b, first, last):
        Ms = mm(b, first)
        if first: Ms += [f"v_mfma_f32_16x16x32_bf16 {vr(ACC+4*t,4)}, {vr(DF,4)}, {vr(ff(b,t),4)}, {vr(ACC+4*t,4)}" for t in range(8)]
        R_ = [] if last else rd(b ^ 1)
        a("s_waitcnt lgkmcnt(0)")
        for m_ in Ms:
            a(m_)
            if R_: a(R_.pop(0))
        if not last:
            a("v_subrev_u32 v16, 64, v16"); a("v_subrev_u32 v17, 64, v17")
    resid(0, True, False); resid(1, False, False)
    for ai in range(4):
        a(f"s_mov_b32 s61, {16*ai*2048}")
        for u in range(2):
            a(f"buffer_load_dwordx2 {vr(XR+(ai*2+u)*2,2)}, v22, s[20:23], s61 offen offset:{32*u}")
    a("s_mov_b32 s60, 0")
    a(f".p2align {opt.get('align', 6)}")
    a.label("Lcl")
    resid(0, False, False); resid(1, False, False)
    a("s_add_u32 s60, s60, 1"); a("s_cmp_lt_u32 s60, 2"); a("s_cbranch_scc1 Lcl")
    resid(0, False, False); resid(1, False, True)
    a("v_lshlrev_b32 v5, 5, v2"); a("v_lshl_add_u32 v5, v7, 3, v5")
    a(f"s_add_u32 s56, s55, {WS_YT}")
    a("s_nop 7")
    for t in range(8):
        y = ACC + 4*t
        a(f"v_cvt_pk_bf16_f32 v{y}, v{y}, v{y+1}"); a(f"v_cvt_pk_bf16_f32 v{y+1}, v{y+2}, v{y+3}")
        a(f"buffer_store_dwordx2 {vr(y,2)}, v5, s[36:39], s56 offen offset:{512*t} sc1")

    NS = 6
    def gacc(ai, u): return 64 + (u*4 + ai)*4
    def gxf(buf, kk, ai): return 96 + buf*48 + (kk*4 + ai)*4
    def gwf(buf, kk, u): return 96 + buf*48 + 32 + (kk*2 + u)*4
    def greads(st, buf):
        slot = st % NS
        hi = 0 if slot < 3 else 2
        so = (slot % 3) * ST3
        L = []
        for kk in range(2):
            X = [f"ds_read_b128 {vr(gxf(buf,kk,ai),4)}, v{GXA+hi+kk} offset:{so + ai*2048}" for ai in range(4)]
            W = [[f"ds_read_b64_tr_b16 {vr(gwf(buf,kk,u)+2*sec,2)}, v{GWA+hi+u} offset:{so + kk*4096 + sec*512}" for sec in range(2)] for u in range(2)]
            L += W[0] + [X[0], X[1]] + W[1] + [X[2], X[3]]
        return L
    def gmfmas(buf, first=False):
        return [f"v_mfma_f32_16x16x32_bf16 {vr(gacc(ai,u),4)}, {vr(gwf(buf,kk,u),4)}, {vr(gxf(buf,kk,ai),4)}, {'0' if first and kk == 0 else vr(gacc(ai,u),4)}"
                for kk in range(2) for u in range(2) for ai in range(4)]
    XG = 192
    xg = []
    for ai in range(4):
        for u in range(2):
            xr = XR + (ai*2+u)*2; o = XG + (ai*2+u)*4
            xg += [f"v_lshlrev_b32 v{o}, 16, v{xr}", f"v_and_b32 v{o+1}, 0xffff0000, v{xr}",
                   f"v_lshlrev_b32 v{o+2}, 16, v{xr+1}", f"v_and_b32 v{o+3}, 0xffff0000, v{xr+1}"]
    a("s_mov_b64 exec, 1"); a(f"ds_add_u32 v30, v31 offset:{E_CD}"); a("s_mov_b64 exec, -1")
    a(f"v_mov_b32 v30, {F_FL}")
    a("s_barrier")
    stamp(a, opt, 6)
    for s_ in greads(0, 0): a(s_)
    for st in range(16):
        buf = st & 1
        Ms = gmfmas(buf, st == 0)
        q = greads(st + 1, buf ^ 1) if st < 15 else []
        if st == 15:
            q = [f"ds_read_b64_tr_b16 {vr(96+(ai*2+u)*2,2)}, v6 offset:{u*16*256 + ai*32}" for ai in range(4) for u in range(2)]
        extra = []
        if 5 <= st < 15:
            n = -(-len(xg) // 10)
            extra = xg[(st-5)*n:(st-4)*n]
        a("s_waitcnt lgkmcnt(0)")
        if st == 4:
            a("s_waitcnt vmcnt(0)")
            a("s_lshr_b32 s65, s53, 2"); a("s_lshl_b32 s65, s65, 7"); a(f"s_add_u32 s65, s65, {FL_Y}"); a("v_mov_b32 v28, s65")
            lds_count_last(a, 30, 0, 31, 29, 3, lambda: a("buffer_store_dword v31, v28, s[36:39], 0 offen sc1"))
            a("s_nop 4")
        if st == 13:
            a("v_bfe_u32 v6, v0, 2, 2"); a("v_lshl_add_u32 v6, v7, 2, v6")
            a("s_lshl_b32 s57, s67, 5"); a("v_add_u32 v6, s57, v6"); a("v_lshlrev_b32 v6, 8, v6")
            a("v_and_b32 v5, 3, v0"); a("v_lshl_add_u32 v6, v5, 3, v6")
            a("s_lshl_b32 s57, s66, 7"); a(f"s_add_u32 s57, s57, {F_Y}"); a("v_add_u32 v6, s57, v6")
            a("v_and_b32 v8, 1, v7"); a("v_lshlrev_b32 v8, 5, v8"); a("v_lshrrev_b32 v9, 1, v7"); a("v_lshl_add_u32 v8, v9, 4, v8")
            a("v_add3_u32 v8, v21, v8, s64")
        if st == 15:
            a("s_waitcnt vmcnt(0)")
            for ai in range(4): a(f"v_sub_f32 v{GR+4*ai+2}, 1.0, v{GR+4*ai}")
        if st == 11:
            a(f"s_mov_b32 s61, {WS_G}")
            for ai in range(4):
                a(f"buffer_load_dword v{GR+4*ai}, v23, s[36:39], s61 offen offset:{64*ai} sc1")
        for i in range(16):
            a(Ms[i])
            if i == 1 and st < 15: a("s_barrier")
            if i >= 1:
                for _ in range(2):
                    if q: a(q.pop(0))
            if i >= 9:
                for _ in range(3):
                    if extra: a(extra.pop(0))
        for s_ in q + extra: a(s_)
    a("s_waitcnt lgkmcnt(0)")
    YR = 96; OP = 112; T = 128
    for ai in range(4):
        g_ = GR + 4*ai
        for u in range(2):
            t = gacc(ai, u); yr = YR + (ai*2+u)*2; xo = XG + (ai*2+u)*4; T_ = T + 4*(u & 1)
            a(f"v_lshlrev_b32 v{T_}, 16, v{yr}"); a(f"v_and_b32 v{T_+1}, 0xffff0000, v{yr}")
            a(f"v_lshlrev_b32 v{T_+2}, 16, v{yr+1}"); a(f"v_and_b32 v{T_+3}, 0xffff0000, v{yr+1}")
            for h_ in range(2):
                a(f"v_pk_mul_f32 {vr(T_+2*h_,2)}, {vr(T_+2*h_,2)}, {vr(xo+2*h_,2)}")
                a(f"v_pk_mul_f32 {vr(T_+2*h_,2)}, {vr(T_+2*h_,2)}, {vr(g_+2,2)} op_sel_hi:[1,0]")
                a(f"v_pk_fma_f32 {vr(T_+2*h_,2)}, {vr(t+2*h_,2)}, {vr(g_,2)}, {vr(T_+2*h_,2)} op_sel_hi:[1,0,1]")
                a(f"v_cvt_pk_bf16_f32 v{OP+4*ai+2*u+h_}, v{T_+2*h_}, v{T_+2*h_+1}")
        o = OP + 4*ai
        a("s_nop 1")
        a(f"v_permlane16_swap_b32 v{o}, v{o+2}"); a(f"v_permlane16_swap_b32 v{o+1}, v{o+3}")
        a(f"s_mov_b32 s61, {16*ai*2048}")
        a(f"buffer_store_dwordx4 {vr(o,4)}, v8, s[28:31], s61 offen{opt.get('outfl', '')}")
    a("s_waitcnt vmcnt(0)")
    stamp(a, opt, 7)
    stamp_dump(a, opt, 8)
    a("s_waitcnt vmcnt(0)")


HEADER = """
"""

def build(opt=None):
    opt = opt or {}
    _lab[0] = 0
    POLL[0] = opt.get("pollfl", " sc1")
    a = Asm()
    for ln in HEADER.strip("\n").split("\n"): a(ln)
    if opt.get("aslist"): a(f"; @launch kernel={NAME} grid=(256,1,1) block=(512,1,1) lds=163840")
    else: a("; @launch grid=(256,1,1) block=(512,1,1) lds=163840")
    a('.amdgcn_target "amdgcn-amd-amdhsa--gfx950"')
    a(".text")
    a.lines = [l for l in a.lines]
    kernel(a, opt)
    a('.section .rodata,"a"')
    kernel_desc(a, NAME, vgpr=256, sgpr=102)
    return a.text().replace("None\n", "")

if __name__ == "__main__":
    opt = {}
    for o in sys.argv[2:]:
        k, _, v = o.partition("=")
        opt[k] = int(v) if v else 1
    open(sys.argv[1], "w").write(build(opt))
```

```python
import sys
from asmlib import *

WS_UT  = 4 << 20
WS_KVP = 8 << 20
WS_ZP  = 10 << 20
WS_G   = 11 << 20
WS_FL  = (11 << 20) | 0x80000
FL_KV, FL_U, FL_O, FL_Y = WS_FL, WS_FL + 32768, WS_FL + 65536, WS_FL + 98304
WS_O   = 12 << 20
WS_YT  = 16 << 20
WS_USED = 20 << 20
WS_STAMP = 24 << 20
LOG2E = 0x3fb8aa3b
EPS   = 0x358637bd
SPIN_MAX = 1 << 17
NAME = "gated_mix__linear_attn_block__ssm_conv_h3__prompt_kernel"

ST1 = 40960
CTS = 4160
CF  = 4 * CTS
CWB = 4 * CTS + 4608
F_FL = 4 * CWB
ST3 = 24576
F_U = F_FL + 256
F_SCR = F_U + 2 * ST3
F_Y = ST3
F_E0 = CWB - 32
F_E1 = 2 * CWB - 32
E_XF = F_E0
E_RF = F_E0 + 16
E_ADC, E_UR, E_CRC, E_OC, E_CD, E_KVC, E_KVR = (F_E1 + 4*k for k in range(7))
W_YC, W_YR = F_FL, F_FL + 4

def vr(a, n=1): return f"v{a}" if n == 1 else f"v[{a}:{a+n-1}]"

def stamp(a, opt, i):
    if opt.get("stamps"):
        a(f"s_memtime s[{80+2*i}:{81+2*i}]")
        if i == 0: a("s_memrealtime s[98:99]")
def stamp_dump(a, opt, n):
    if not opt.get("stamps"): return
    a("s_waitcnt vmcnt(0) lgkmcnt(0)")
    a(f"s_add_u32 s76, s14, {WS_STAMP}"); a("s_addc_u32 s77, s15, 0"); a("s_mov_b32 s78, 0x1000000"); a("s_mov_b32 s79, 0x00020000")
    a("s_lshl_b32 s75, s2, 3"); a("s_add_u32 s75, s75, s50"); a("s_lshl_b32 s75, s75, 6"); a("v_mov_b32 v1, s75")
    for i in range(1, n):
        a(f"s_sub_u32 s74, s{80+2*i}, s80"); a("v_mov_b32 v2, s74")
        a(f"buffer_store_dword v2, v1, s[76:79], 0 offen offset:{4*i}")
    a("s_memrealtime s[80:81]"); a("s_waitcnt lgkmcnt(0)"); a("v_mov_b32 v2, s80")
    a("buffer_store_dword v2, v1, s[76:79], 0 offen offset:60")
    a("v_mov_b32 v2, s98"); a("buffer_store_dword v2, v1, s[76:79], 0 offen offset:56")

def phi_pair(a, t, tmp):
    a(f"v_pk_mul_f32 {vr(tmp,2)}, {vr(t,2)}, s[56:57]")
    a(f"v_exp_f32_e64 v{tmp}, v{tmp} clamp")
    a(f"v_exp_f32_e64 v{tmp+1}, v{tmp+1} clamp")
    a(f"v_max_f32 v{t}, 0, v{t}")
    a(f"v_max_f32 v{t+1}, 0, v{t+1}")
    a(f"v_pk_add_f32 {vr(t,2)}, {vr(t,2)}, {vr(tmp,2)}")
    a(f"v_pk_add_f32 {vr(t,2)}, {vr(t,2)}, s[58:59]")

def phi_group(a, ts, tmp):
    for i, t in enumerate(ts): a(f"v_pk_mul_f32 {vr(tmp+2*i,2)}, {vr(t,2)}, s[56:57]")
    for i, t in enumerate(ts):
        a(f"v_exp_f32_e64 v{tmp+2*i}, v{tmp+2*i} clamp"); a(f"v_exp_f32_e64 v{tmp+2*i+1}, v{tmp+2*i+1} clamp")
    for i, t in enumerate(ts):
        a(f"v_max_f32 v{t}, 0, v{t}"); a(f"v_max_f32 v{t+1}, 0, v{t+1}")
    for i, t in enumerate(ts): a(f"v_pk_add_f32 {vr(t,2)}, {vr(t,2)}, {vr(tmp+2*i,2)}")
    for i, t in enumerate(ts): a(f"v_pk_add_f32 {vr(t,2)}, {vr(t,2)}, s[58:59]")

_lab = [0]
POLL = [" sc1"]
FLST = [" sc1"]
def lab(p):
    _lab[0] += 1
    return f"L{p}{_lab[0]}"

def lds_spin(a, vaddr, off, vtmp, cond, val):
    assert off < 65536
    l0, l1 = lab("sp"), lab("sx")
    a("s_mov_b32 s61, 0")
    a.label(l0)
    a(f"ds_read_b32 v{vtmp}, v{vaddr} offset:{off}"); a("s_waitcnt lgkmcnt(0)")
    a(f"v_readfirstlane_b32 s60, v{vtmp}"); a("s_add_u32 s61, s61, 1"); a(f"s_cmp_{cond}_u32 s60, {val}"); a(f"s_cbranch_scc1 {l1}")
    a(f"s_cmp_lt_u32 s61, {SPIN_MAX*8}"); a(f"s_cbranch_scc1 {l0}")
    a.label(l1)

def lds_count_last(a, vaddr, off, vone, vtmp, last, action):
    l = lab("cl")
    a("s_mov_b64 exec, 1")
    a(f"ds_add_rtn_u32 v{vtmp}, v{vaddr}, v{vone} offset:{off}"); a("s_waitcnt lgkmcnt(0)")
    a(f"v_readfirstlane_b32 s60, v{vtmp}"); a(f"s_cmp_eq_u32 s60, {last}"); a(f"s_cbranch_scc0 {l}")
    action()
    a.label(l)
    a("s_mov_b64 exec, -1")

def poll16(a, vaddr, vtmp, extra=None):
    l0, l1 = lab("pl"), lab("px")
    a("s_mov_b32 s61, 0")
    a.label(l0)
    a(f"buffer_load_dword v{vtmp}, v{vaddr}, s[36:39], 0 offen{POLL[0]}")
    if extra: a(f"ds_read_b32 v{vtmp+1}, v{extra[0]} offset:{extra[1]}")
    a("s_waitcnt vmcnt(0) lgkmcnt(0)")
    a(f"v_cmp_ne_u32 vcc, 1, v{vtmp}")
    if extra: a(f"v_readfirstlane_b32 s62, v{vtmp+1}")
    a("s_add_u32 s61, s61, 1"); a("s_nop 2")
    a("s_cmp_eq_u64 vcc, 0")
    if extra:
        a("s_cselect_b32 s60, 1, 0"); a(f"s_cmp_ge_u32 s62, {extra[2]}"); a("s_cselect_b32 s62, 1, 0"); a("s_and_b32 s60, s60, s62")
    a(f"s_cbranch_scc1 {l1}")
    a(f"s_cmp_lt_u32 s61, {SPIN_MAX}"); a(f"s_cbranch_scc1 {l0}")
    a.label(l1)

def poll_zeroed(a, vtmp):
    l0, l1 = lab("zl"), lab("zx")
    a("s_mov_b32 s61, 0"); a(f"v_mov_b32 v{vtmp+1}, 0")
    a.label(l0)
    a(f"buffer_load_dword v{vtmp}, v{vtmp+1}, s[40:43], 0 offen sc1"); a("s_waitcnt vmcnt(0)")
    a(f"v_readfirstlane_b32 s60, v{vtmp}"); a("s_add_u32 s61, s61, 1"); a("s_cmp_ge_u32 s60, 256"); a(f"s_cbranch_scc1 {l1}")
    a(f"s_cmp_lt_u32 s61, {SPIN_MAX}"); a(f"s_cbranch_scc1 {l0}")
    a.label(l1)

def kernel(a, opt):
    name = NAME
    kernel_begin(a, name)
    a("s_cmp_ge_u32 s2, 256")
    a("s_cbranch_scc1 Ldone")
    stamp(a, opt, 0)
    if opt.get("pad0"):
        a("s_memtime s[20:21]"); a("s_waitcnt lgkmcnt(0)"); a(f"s_add_u32 s22, s20, {opt['pad0']}")
        a.label("Lpad0"); a("s_memtime s[20:21]"); a("s_waitcnt lgkmcnt(0)"); a("s_cmp_lt_u32 s20, s22"); a("s_cbranch_scc1 Lpad0")
    a("s_load_dwordx4 s[4:7], s[0:1], 0")
    a("s_load_dwordx4 s[12:15], s[0:1], 88")
    a("v_lshrrev_b32 v1, 6, v0")
    a("v_and_b32 v0, 63, v0")
    a("v_readfirstlane_b32 s50, v1")
    a("s_and_b32 s51, s2, 7")
    a("s_lshr_b32 s52, s2, 3")
    a("s_lshl_b32 s53, s51, 3"); a("s_and_b32 s53, s53, 8"); a("s_and_b32 s54, s52, 7"); a("s_or_b32 s48, s53, s54")
    a("s_lshl_b32 s53, s51, 1"); a("s_and_b32 s53, s53, 12"); a("s_lshr_b32 s54, s52, 3"); a("s_or_b32 s49, s53, s54")
    if opt.get("jx"): a(f"s_xor_b32 s49, s49, {opt['jx']}")
    if opt.get("jperm", 1):
        a("s_lshr_b32 s53, s49, 2"); a("s_add_u32 s53, s53, 1"); a("s_and_b32 s53, s53, 2"); a("s_mul_i32 s53, s53, 6"); a("s_xor_b32 s49, s49, s53")
    a("s_and_b32 s53, s51, 3"); a("s_lshl_b32 s53, s53, 2"); a("s_and_b32 s54, s52, 3"); a("s_or_b32 s96, s53, s54")
    a("s_lshr_b32 s53, s51, 2"); a("s_lshl_b32 s53, s53, 3"); a("s_lshr_b32 s54, s52, 2"); a("s_or_b32 s97, s53, s54")
    a("s_cmp_ge_u32 s50, 4")
    a("s_cbranch_scc1 Laux")
    c_waves(a, opt)
    a(f".p2align {opt.get('align', 6)}")
    a.label("Laux")
    a_waves(a, opt)
    a.label("Ldone")
    a("s_endpgm")
    a.label("Lend")

def c_waves(a, opt):
    def acc(ai, c, u): return 64 + ((c * 2 + u) * 4 + ai) * 4
    def xf(buf, ai): return 160 + buf * 40 + ai * 4
    def wf(buf, c, u): return 160 + buf * 40 + 16 + (c * 2 + u) * 4
    XA = 8; WA = 12
    a("s_load_dwordx4 s[8:11], s[0:1], 56") if False else None
    a(f"s_setprio {opt.get('pC1', 2)}")
    a("s_and_b32 s53, s50, 1")
    a("s_lshr_b32 s54, s50, 1")
    a("v_and_b32 v2, 15, v0")
    a("v_lshrrev_b32 v3, 4, v0")
    a("v_lshrrev_b32 v4, 1, v2"); a("v_xor_b32 v4, v4, v3")
    a("s_lshl_b32 s55, s53, 13")
    a("v_lshlrev_b32 v5, 7, v2"); a("v_add_u32 v5, s55, v5")
    a(f"v_lshl_add_u32 v{XA}, v4, 4, v5")
    a("v_xor_b32 v6, 4, v4"); a(f"v_lshl_add_u32 v{XA+1}, v6, 4, v5")
    for kk in range(2): a(f"v_add_u32 v{XA+2+kk}, {2*ST1}, v{XA+kk}")
    a("v_bfe_u32 v6, v0, 2, 2")
    a("v_lshl_add_u32 v7, v3, 3, v6"); a("v_lshlrev_b32 v7, 7, v7")
    a("v_and_b32 v18, 3, v0"); a("v_lshl_add_u32 v7, v18, 3, v7")
    a("v_add_u32 v7, 16384, v7")
    a("v_bfe_u32 v18, v0, 3, 1"); a("v_bfe_u32 v19, v0, 4, 1"); a("v_lshl_or_b32 v18, v19, 1, v18")
    a("s_lshl_b32 s55, s54, 1")
    a("v_xor_b32 v18, s55, v18")
    a(f"v_lshl_add_u32 v{WA}, v18, 5, v7")
    a("v_xor_b32 v18, 1, v18"); a(f"v_lshl_add_u32 v{WA+1}, v18, 5, v7")
    for u in range(2): a(f"v_add_u32 v{WA+2+u}, {2*ST1}, v{WA+u}")
    for r in range(64, 160): a(f"v_mov_b32 v{r}, 0")
    a(f"s_mov_b32 s56, {LOG2E:#x}"); a(f"s_mov_b32 s57, {LOG2E:#x}")
    a(f"s_mov_b32 s58, {EPS:#x}"); a(f"s_mov_b32 s59, {EPS:#x}")
    a("s_waitcnt lgkmcnt(0)")
    make_srd(a, 36, 14, WS_USED); make_srd(a, 40, 12, 256)
    a("s_load_dwordx2 s[18:19], s[0:1], 16")
    if opt.get("codepf", 0):
        a("s_cmp_lt_u32 s52, 2"); a("s_cbranch_scc0 Lnocp")
        a("s_getpc_b64 s[74:75]")
        a.label("Lpc")
        a(f"s_sub_u32 s74, s74, Lpc-{NAME}"); a("s_subb_u32 s75, s75, 0")
        a("s_lshl_b32 s55, s52, 2"); a("s_add_u32 s55, s55, s50"); a("s_lshl_b32 s55, s55, 6")
        a("v_add_u32 v18, s55, v0"); a(f"v_min_u32 v18, (Lend-{NAME}-4)/128, v18"); a("v_lshlrev_b32 v18, 7, v18")
        a("global_load_dword v21, v18, s[74:75]")
        a.label("Lnocp")
    KVT = opt.get("kvtouch")
    if KVT:
        a("s_load_dwordx4 s[24:27], s[0:1], 32")
        a("s_waitcnt lgkmcnt(0)")
        a("s_cmp_eq_u32 s54, 0"); a("s_cselect_b32 s28, s24, s26"); a("s_cselect_b32 s29, s25, s27"); a("s_cselect_b32 s55, 6144, 0")
        a(f"s_mov_b32 s30, {NB['bk']}"); a("s_mov_b32 s31, 0x00020000")
        a("s_and_b32 s61, s2, 15"); a("s_lshl_b32 s61, s61, 7"); a("s_lshl_b32 s63, s53, 6"); a("s_add_u32 s61, s61, s63")
        a("v_add_u32 v240, s61, v0"); a("v_lshlrev_b32 v240, 11, v240")
        a("s_lshr_b32 s61, s2, 4"); a("s_lshl_b32 s61, s61, 7"); a("s_sub_u32 s61, s61, s55")
        a("v_add_u32 v240, s61, v240")
    a("s_cmp_eq_u32 s50, 0"); a("s_cbranch_scc0 Lnz")
    a("s_lshl_b32 s55, s49, 4"); a("s_add_u32 s55, s55, s48"); a("s_lshl_b32 s55, s55, 7"); a(f"s_add_u32 s55, s55, {FL_KV}"); a("v_writelane_b32 v18, s55, 0")
    a("s_lshl_b32 s55, s2, 7"); a(f"s_add_u32 s55, s55, {FL_U}"); a("v_writelane_b32 v18, s55, 1")
    a("s_lshl_b32 s55, s48, 4"); a("s_add_u32 s55, s55, s49"); a("s_lshl_b32 s55, s55, 7"); a(f"s_add_u32 s55, s55, {FL_O}"); a("v_writelane_b32 v18, s55, 2")
    a("s_lshl_b32 s55, s51, 5"); a("s_add_u32 s55, s55, s52"); a("s_lshl_b32 s55, s55, 7"); a(f"s_add_u32 s55, s55, {FL_Y}"); a("v_writelane_b32 v18, s55, 3")
    a("v_mov_b32 v19, 0"); a("v_mov_b32 v20, 1")
    a("s_mov_b64 exec, 15")
    a("buffer_store_dword v19, v18, s[36:39], 0 offen sc1")
    if opt.get("atom_early"):
        a("s_waitcnt vmcnt(0)")
        a("s_mov_b64 exec, 1")
        a("buffer_atomic_add v20, v19, s[40:43], 0 offen sc1")
    a("s_mov_b64 exec, -1")
    a.label("Lnz")

    def reads(slot, kk, buf):
        hi = 2 if slot >= 2 else 0
        so = (slot & 1) * ST1
        X = [f"ds_read_b128 {vr(xf(buf,ai),4)}, v{XA+hi+kk} offset:{so + ai*2048}" for ai in range(4)]
        W = {}
        for c in range(3):
            for u in range(2):
                W[c, u] = [f"ds_read_b64_tr_b16 {vr(wf(buf,c,u)+2*sec,2)}, v{WA+hi+u} offset:{so + c*8192 + kk*4096 + sec*512}" for sec in range(2)]
        return [X[0]] + W[0, 0] + [X[1], X[2], X[3]] + W[0, 1] + W[1, 0] + W[1, 1] + W[2, 0] + W[2, 1]
    def mfmas(buf):
        L = []
        for c in range(3):
            for u in range(2):
                for ai in range(4):
                    d = vr(acc(ai, c, u), 4)
                    if c == 0: L.append(f"v_mfma_f32_16x16x32_bf16 {d}, {vr(wf(buf,c,u),4)}, {vr(xf(buf,ai),4)}, {d}")
                    else:      L.append(f"v_mfma_f32_16x16x32_bf16 {d}, {vr(xf(buf,ai),4)}, {vr(wf(buf,c,u),4)}, {d}")
        return L
    def step(buf, nxt, barrier=False):
        M = mfmas(buf); q = list(nxt)
        first = 4 if barrier else 0
        for i in range(24):
            a(M[i])
            if barrier and i == first - 1: a("s_barrier")
            if i >= first - (1 if barrier else 0) and q: a(q.pop(0))
        for s_ in q: a(s_)
    a("s_barrier")
    cst = opt.get("cst")
    def st_(i, j=None, g=None):
        k = g if opt.get("gstc") else (j if cst else i)
        if k is not None: stamp(a, opt, k)
    st_(1)
    for s in reads(0, 0, 0): a(s)
    a("s_mov_b32 s60, 0")
    a(f".p2align {opt.get('align', 6)}")
    a.label("Lcloop")
    for slot in range(4):
        for kk in range(2):
            a("s_waitcnt lgkmcnt(0)")
            if kk == 0:
                if KVT and slot == KVT[1]:
                    a(f"s_cmp_eq_u32 s60, {KVT[0]}"); a("s_cbranch_scc0 Lnkvt")
                    a("buffer_load_dword v241, v240, s[28:31], 0 offen"); a.label("Lnkvt")
                if slot == 0 and not opt.get("atom_early") and not opt.get("atom_none"):
                    a("s_cmp_eq_u32 s60, 2"); a("s_cselect_b32 s61, s50, 1"); a("s_cmp_eq_u32 s61, 0"); a("s_cbranch_scc0 Lnat")
                    a("s_waitcnt vmcnt(0)"); a("s_mov_b64 exec, 1")
                    a("buffer_atomic_add v20, v19, s[40:43], 0 offen sc1")
                    a("s_mov_b64 exec, -1"); a("s_nop 4")
                    a.label("Lnat")
                step(0, reads(slot, 1, 1))
            else:
                if slot == 3:
                    a("s_cmp_eq_u32 s60, 3"); a("s_cbranch_scc1 Lclast")
                step(1, reads((slot + 1) & 3, 0, 0), barrier=True)
    a("s_add_u32 s60, s60, 1")
    a("s_branch Lcloop")
    a.label("Lclast")
    step(1, [])
    st_(2, 1)

    TMP = 20
    KF = 160; VF = 176; ONES = 192; QF = 200
    def kf(u, ks): return KF + (u*2 + ks)*4
    def vf(u, ks): return VF + (u*2 + ks)*4
    a("s_nop 7")
    for u in range(2):
        for a2 in range(2):
            tiles = [2*a2, 2*a2 + 1]
            phi_group(a, [acc(ai, 1, u) + 2*h_ for ai in tiles for h_ in range(2)], 24)
            for ai in tiles:
                t = acc(ai, 1, u); o = kf(u, ai >> 1) + (ai & 1)*2
                a(f"v_cvt_pk_bf16_f32 v{o}, v{t}, v{t+1}"); a(f"v_cvt_pk_bf16_f32 v{o+1}, v{t+2}, v{t+3}")
    for u in range(2):
        for ai in range(4):
            t = acc(ai, 2, u); o = vf(u, ai >> 1) + (ai & 1)*2
            a(f"v_cvt_pk_bf16_f32 v{o}, v{t}, v{t+1}"); a(f"v_cvt_pk_bf16_f32 v{o+1}, v{t+2}, v{t+3}")
    for r in range(4): a(f"v_mov_b32 v{ONES+r}, 0x3f803f80")
    KVA = 96; ZA = 112
    a("s_nop 1")
    for ks in range(2):
        for ud in range(2):
            for ue in range(2):
                d = vr(KVA + (ud*2+ue)*4, 4)
                a(f"v_mfma_f32_16x16x32_bf16 {d}, {vr(kf(ud,ks),4)}, {vr(vf(ue,ks),4)}, {'0' if ks == 0 else d}")
            d = vr(ZA + ud*4, 4)
            a(f"v_mfma_f32_16x16x32_bf16 {d}, {vr(kf(ud,ks),4)}, {vr(ONES,4)}, {'0' if ks == 0 else d}")
    st_(None, 2)
    def q_frags():
        for ai in range(4):
            phi_group(a, [acc(ai, 0, u) + 2*h_ for u in range(2) for h_ in range(2)], 32)
            for u in range(2):
                t = acc(ai, 0, u); o = QF + ai*4 + u*2
                a(f"v_cvt_pk_bf16_f32 v{o}, v{t}, v{t+1}"); a(f"v_cvt_pk_bf16_f32 v{o+1}, v{t+2}, v{t+3}")
    a("v_mov_b32 v30, 0"); a("v_mov_b32 v31, 1")
    a(f"s_mul_i32 s55, s50, 3072"); a(f"s_add_u32 s55, s55, {F_SCR}"); a("s_xor_b32 s61, s50, 1"); a("s_mul_i32 s61, s61, 3072"); a(f"s_add_u32 s61, s61, {F_SCR}")
    a("v_lshlrev_b32 v6, 4, v0"); a("v_add_u32 v8, s55, v6"); a("v_add_u32 v9, s61, v6")
    a("s_lshl_b32 s55, s50, 2"); a("v_mov_b32 v13, s55"); a("s_xor_b32 s55, s55, 4"); a("v_mov_b32 v14, s55")
    a("s_lshl_b32 s55, s49, 1"); a("s_add_u32 s55, s55, s54"); a("s_lshl_b32 s55, s55, 4"); a("s_add_u32 s55, s55, s48")
    a("s_lshl_b32 s63, s55, 11"); a("s_lshl_b32 s61, s53, 10"); a("s_add_u32 s63, s63, s61"); a(f"s_add_u32 s63, s63, {WS_KVP}")
    a("s_lshl_b32 s62, s55, 7"); a("s_lshl_b32 s61, s53, 6"); a("s_add_u32 s62, s62, s61"); a(f"s_add_u32 s62, s62, {WS_ZP}")
    a("v_lshlrev_b32 v7, 4, v3")
    R = 32
    def half(wm):
        give = [KVA + 4*(2*(wm ^ 1)), KVA + 4*(2*(wm ^ 1) + 1), ZA + 4*(wm ^ 1)]
        keep = [KVA + 4*(2*wm), KVA + 4*(2*wm + 1), ZA + 4*wm]
        for q in range(3): a(f"ds_write_b128 v8, {vr(give[q],4)} offset:{q*1024}")
        a("s_waitcnt lgkmcnt(0)")
        a(f"ds_write_b32 v13, v31 offset:{E_RF}")
        lds_spin(a, 14, E_RF, 28, "eq", 1)
        for q in range(3): a(f"ds_read_b128 {vr(R+4*q,4)}, v9 offset:{q*1024}")
        a("s_waitcnt lgkmcnt(0)")
        for q in range(3):
            for r in range(4): a(f"v_add_f32 v{keep[q]+r}, v{keep[q]+r}, v{R+4*q+r}")
        for q in range(2):
            for p in range(2): a(f"v_cvt_pk_bf16_f32 v{R+12+2*q+p}, v{keep[q]+2*p}, v{keep[q]+2*p+1}")
        a(f"buffer_store_dwordx4 {vr(R+12,4)}, v6, s[36:39], s63 offen sc1")
        a("v_cmp_eq_u32 vcc, 0, v2")
        a("s_and_saveexec_b64 s[64:65], vcc")
        a(f"buffer_store_dwordx4 {vr(keep[2],4)}, v7, s[36:39], s62 offen sc1")
        a("s_mov_b64 exec, s[64:65]")
    a("s_nop 3")
    a("s_cmp_eq_u32 s53, 0"); a("s_cbranch_scc1 Lred0")
    half(1)
    a("s_branch Lredj")
    a.label("Lred0")
    half(0)
    a.label("Lredj")
    st_(None, 3)
    a("s_lshl_b32 s55, s49, 4"); a("s_add_u32 s55, s55, s48"); a("s_lshl_b32 s55, s55, 7"); a(f"s_add_u32 s55, s55, {FL_KV}"); a("v_mov_b32 v28, s55")
    a("s_waitcnt vmcnt(0)")
    lds_count_last(a, 30, E_KVC, 31, 29, 3, lambda: a("buffer_store_dword v31, v28, s[36:39], 0 offen sc1"))
    st_(None, 4)
    a.label("Lred1")
    a("s_lshl_b32 s55, s48, 7"); a("s_lshl_b32 s61, s53, 6"); a("s_add_u32 s55, s55, s61")
    a("v_add_u32 v5, s55, v2"); a("v_lshlrev_b32 v5, 11, v5")
    a("s_lshl_b32 s55, s49, 7"); a("s_lshl_b32 s61, s54, 6"); a("s_add_u32 s55, s55, s61")
    a("v_and_b32 v6, 1, v3"); a("v_lshlrev_b32 v6, 5, v6"); a("v_lshrrev_b32 v7, 1, v3"); a("v_lshl_add_u32 v6, v7, 4, v6")
    a("v_add3_u32 v5, v5, v6, s55")
    a(f"s_mul_i32 s55, s50, 4608"); a(f"s_add_u32 s55, s55, {F_SCR}"); a("s_xor_b32 s61, s50, 1"); a("s_mul_i32 s61, s61, 4608"); a(f"s_add_u32 s61, s61, {F_SCR}")
    a("v_lshlrev_b32 v6, 4, v0"); a("v_add_u32 v8, s55, v6"); a("v_add_u32 v9, s61, v6")
    a("v_and_b32 v7, 7, v0"); a("v_lshlrev_b32 v7, 4, v7"); a("s_add_u32 s55, s55, 4096"); a("v_add_u32 v10, s55, v7")
    a("v_lshlrev_b32 v7, 4, v3"); a("v_add_u32 v11, s55, v7"); a("s_add_u32 s61, s61, 4096"); a("v_add_u32 v12, s61, v7")
    a("s_lshl_b32 s55, s50, 2"); a("v_mov_b32 v13, s55"); a("s_xor_b32 s55, s55, 4"); a("v_mov_b32 v14, s55")
    a("s_lshl_b32 s55, s49, 1"); a("s_add_u32 s55, s55, s54"); a("s_lshl_b32 s55, s55, 4"); a("s_lshl_b32 s61, s53, 3"); a("s_add_u32 s55, s55, s61")
    a("s_lshl_b32 s68, s55, 11"); a(f"s_add_u32 s68, s68, {WS_KVP}")
    a("s_lshl_b32 s69, s55, 7"); a(f"s_add_u32 s69, s69, {WS_ZP}")
    SEL = 248
    a("v_lshrrev_b32 v6, 2, v2"); a("v_cmp_eq_u32 vcc, v6, v3")
    a("v_and_b32 v6, 1, v2"); a("v_lshlrev_b32 v6, 4, v6"); a("v_mov_b32 v7, 0x3f80"); a("v_lshlrev_b32 v6, v6, v7")
    a("v_cndmask_b32 v6, 0, v6, vcc")
    a("v_bfe_u32 v7, v2, 1, 1"); a("v_cmp_eq_u32 vcc, 0, v7")
    for r in range(8): a(f"v_mov_b32 v{SEL+r}, 0")
    a(f"v_cndmask_b32 v{SEL}, 0, v6, vcc"); a(f"v_cndmask_b32 v{SEL+1}, v6, 0, vcc" if False else f"v_cndmask_b32_e64 v{SEL+1}, v6, 0, vcc")
    a(f"v_mov_b32 v{SEL+6}, v{SEL}"); a(f"v_mov_b32 v{SEL+7}, v{SEL+1}")
    q_frags()
    st_(None, 5)
    a("s_cmp_eq_u32 s50, 1"); a("s_cbranch_scc0 Lkvw")
    poll_zeroed(a, 28)
    a("s_lshl_b32 s55, s49, 11"); a(f"s_add_u32 s55, s55, {FL_KV}")
    a("v_lshl_add_u32 v15, v2, 7, s55")
    poll16(a, 15, 28, extra=(30, E_KVC, 4))
    a(f"ds_write_b32 v30, v31 offset:{E_KVR}")
    a("s_branch Lkvg")
    a.label("Lkvw")
    lds_spin(a, 30, E_KVR, 28, "eq", 1)
    a.label("Lkvg")
    st_(3, 6)
    PK = 128; PR = 64; ZR = 120
    a("v_lshlrev_b32 v6, 4, v0")
    a(f"buffer_load_dwordx4 {vr(ZR,4)}, v6, s[36:39], s69 offen sc1")
    for p in range(8):
        for q in range(2):
            a(f"buffer_load_dwordx4 {vr(PK+8*p+4*q,4)}, v6, s[36:39], s68 offen offset:{q*1024} sc1")
        a("s_add_u32 s68, s68, 2048")
    a("s_waitcnt vmcnt(16)")
    for r in range(4): a(f"v_add_f32_dpp v{ZR+r}, v{ZR+r}, v{ZR+r} row_ror:8 row_mask:0xf bank_mask:0xf")
    for r in range(4): a(f"v_mov_b32 v{ZR+4+r}, v{ZR+r}")
    a("s_nop 1")
    for r in range(4): a(f"v_permlane16_swap_b32 v{ZR+r}, v{ZR+4+r}")
    a("s_nop 1")
    for r in range(4): a(f"v_add_f32 v{ZR+r}, v{ZR+r}, v{ZR+4+r}")
    for r in range(4): a(f"v_mov_b32 v{ZR+4+r}, v{ZR+r}")
    a("s_nop 1")
    for r in range(4): a(f"v_permlane32_swap_b32 v{ZR+r}, v{ZR+4+r}")
    a("s_nop 1")
    for r in range(4): a(f"v_add_f32 v{ZR+r}, v{ZR+r}, v{ZR+4+r}")
    a(f"ds_write_b128 v10, {vr(ZR,4)}")
    for p in range(8):
        a(f"s_waitcnt vmcnt({14-2*p})")
        for q in range(2):
            for h_ in range(2):
                d = vr(PR + 4*(2*q + h_), 4)
                a(f"v_mfma_f32_16x16x32_bf16 {d}, {vr(SEL+4*h_,4)}, {vr(PK+8*p+4*q,4)}, {'0' if p == 0 else d}")
    a("s_nop 7")
    for q in range(4):
        a(f"ds_write_b128 v8, {vr(PR+4*q,4)} offset:{q*1024}")
    a("s_waitcnt lgkmcnt(0)")
    a(f"ds_write_b32 v13, v31 offset:{E_XF}")
    lds_spin(a, 14, E_XF, 28, "eq", 1)
    SB = 80
    for q in range(4):
        a(f"ds_read_b128 {vr(SB+4*q,4)}, v9 offset:{q*1024}")
    for ud in range(2):
        a(f"ds_read_b128 {vr(96+4*ud,4)}, v11 offset:{ud*64}"); a(f"ds_read_b128 {vr(104+4*ud,4)}, v12 offset:{ud*64}")
    a("s_waitcnt lgkmcnt(0)")
    for r in range(16): a(f"v_add_f32 v{PR+r}, v{PR+r}, v{SB+r}")
    for r in range(8): a(f"v_add_f32 v{96+r}, v{96+r}, v{104+r}")
    KA = 112; ZF = 120
    for ue in range(2):
        for ud in range(2):
            t = PR + (ud*2+ue)*4
            a(f"v_cvt_pk_bf16_f32 v{KA+4*ue+2*ud}, v{t}, v{t+1}"); a(f"v_cvt_pk_bf16_f32 v{KA+4*ue+2*ud+1}, v{t+2}, v{t+3}")
    for ud in range(2):
        t = 96 + 4*ud
        a(f"v_cvt_pk_bf16_f32 v{ZF+2*ud}, v{t}, v{t+1}"); a(f"v_cvt_pk_bf16_f32 v{ZF+2*ud+1}, v{t+2}, v{t+3}")
    a("s_cmp_eq_u32 s50, 0"); a("s_cbranch_scc0 Lnsp")
    a("s_lshl_b32 s60, s96, 11"); a(f"s_add_u32 s60, s60, {FL_O}"); a("v_lshl_add_u32 v217, v2, 7, s60")
    a(f"buffer_load_dword v216, v217, s[36:39], 0 offen{POLL[0]}")
    a.label("Lnsp")
    a("s_nop 1")
    O = 128
    for ai in range(4):
        for ue in range(2):
            a(f"v_mfma_f32_16x16x32_bf16 {vr(O+(ai*3+ue)*4,4)}, {vr(KA+4*ue,4)}, {vr(QF+4*ai,4)}, 0")
        a(f"v_mfma_f32_16x16x32_bf16 {vr(O+(ai*3+2)*4,4)}, {vr(ZF,4)}, {vr(QF+4*ai,4)}, 0")
    a("s_nop 7")
    OP = 64
    for ai in range(4):
        dn = O + (ai*3+2)*4
        a(f"v_add_f32 v{dn}, s58, v{dn}")
        a(f"v_rcp_f32 v{dn}, v{dn}")
        a("s_nop 0")
        for ue in range(2):
            t = O + (ai*3+ue)*4
            for r in range(4): a(f"v_mul_f32 v{t+r}, v{t+r}, v{dn}")
            a(f"v_cvt_pk_bf16_f32 v{OP+4*ai+2*ue}, v{t}, v{t+1}"); a(f"v_cvt_pk_bf16_f32 v{OP+4*ai+2*ue+1}, v{t+2}, v{t+3}")
        o = OP + 4*ai
        a("s_nop 1")
        a(f"v_permlane16_swap_b32 v{o}, v{o+2}"); a(f"v_permlane16_swap_b32 v{o+1}, v{o+3}")
        a(f"s_mov_b32 s60, {WS_O + 16*ai*2048}")
        a(f"buffer_store_dwordx4 {vr(o,4)}, v5, s[36:39], s60 offen sc1")
    st_(4, 7)
    a(f"s_setprio {opt.get('pC3', 3)}")
    a("s_lshl_b32 s57, s48, 4"); a("s_add_u32 s57, s57, s49"); a("s_lshl_b32 s57, s57, 7"); a(f"s_add_u32 s57, s57, {FL_O}"); a("v_mov_b32 v28, s57")
    make_srd(a, 24, 18, NB["wo"])
    a("v_mov_b32 v9, 0"); a("v_mov_b32 v11, 1"); a("s_mov_b32 s53, s50")
    a("v_lshrrev_b32 v96, 3, v0"); a("v_and_b32 v97, 7, v0"); a("v_lshrrev_b32 v98, 4, v0")
    a("s_cmp_eq_u32 s53, 3"); a("s_cbranch_scc1 Lawo")
    a("s_lshl_b32 s60, s96, 7"); a("v_add_u32 v99, s60, v96"); a("v_lshlrev_b32 v99, 11, v99")
    a("v_xor_b32 v100, v98, v97"); a("v_lshl_add_u32 v20, v100, 4, v99")
    a("v_xor_b32 v100, 4, v100"); a("v_lshl_add_u32 v21, v100, 4, v99")
    a("s_mov_b32 s28, s36"); a("s_mov_b32 s29, s37"); a("s_mov_b32 s30, s38"); a("s_mov_b32 s31, s39")
    a("s_sub_u32 s60, s53, 1"); a("s_lshl_b32 s64, s60, 13"); a("s_lshl_b32 s66, s60, 17"); a(f"s_add_u32 s66, s66, {WS_O}"); a("s_mov_b32 s65, 128")
    a("s_branch Lawd")
    a.label("Lawo")
    a("v_and_b32 v100, 1, v98"); a("v_lshlrev_b32 v100, 1, v100"); a("v_xor_b32 v100, v100, v97")
    a("v_lshlrev_b32 v99, 11, v96"); a("s_lshl_b32 s61, s97, 7"); a("v_add_u32 v99, s61, v99")
    a("v_lshl_add_u32 v20, v100, 4, v99")
    a("v_xor_b32 v100, 4, v100"); a("v_lshl_add_u32 v21, v100, 4, v99")
    a("s_mov_b32 s28, s24"); a("s_mov_b32 s29, s25"); a("s_mov_b32 s30, s26"); a("s_mov_b32 s31, s27")
    a("s_mov_b32 s64, 16384"); a("s_mov_b32 s66, 0"); a("s_mov_b32 s65, 131072")
    a.label("Lawd")
    a("v_lshrrev_b32 v99, 4, v0"); a("s_lshl_b32 s60, s97, 6"); a("v_add_u32 v99, s60, v99"); a("v_lshlrev_b32 v99, 12, v99")
    a("v_and_b32 v100, 15, v0"); a("v_lshl_add_u32 v99, v100, 4, v99"); a("s_lshl_b32 s60, s96, 8"); a("v_add_u32 v26, s60, v99")
    def slot_base(st):
        sl = st % 6
        return (F_U + sl*ST3) if sl < 3 else (sl - 3)*ST3
    NPRE = opt.get("npre", 3)
    ORD = 64
    a(f"v_mov_b32 v27, {F_FL}")
    a("s_lshl_b32 s60, s96, 11"); a(f"s_add_u32 s60, s60, {FL_O}")
    a("v_and_b32 v102, 15, v0"); a("v_lshl_add_u32 v102, v102, 7, s60")
    a("s_lshl_b32 s60, s97, 11"); a(f"s_add_u32 s60, s60, {FL_Y}")
    a("v_and_b32 v103, 15, v0"); a("v_lshl_add_u32 v103, v103, 7, s60")
    lds_spin(a, 30, E_ADC, 29, "ge", 4)
    a("s_waitcnt vmcnt(0)")
    lds_count_last(a, 30, E_OC, 31, 29, 3, lambda: a("buffer_store_dword v31, v28, s[36:39], 0 offen sc1"))
    st_(5)
    a("s_cmp_eq_u32 s53, 0"); a("s_cbranch_scc0 Lgload")
    a("s_mov_b32 s70, 0"); a("s_mov_b32 s71, 0")
    def absorb():
        l0, l1 = lab("ab"), lab("ae")
        a("v_cmp_eq_u32 vcc, 1, v100"); a("s_nop 3")
        a("s_and_b32 s72, vcc_lo, 0xffff"); a("s_andn2_b32 s62, s72, s71")
        a.label(l0)
        a("s_cmp_eq_u32 s62, 0"); a(f"s_cbranch_scc1 {l1}")
        a("s_ff1_i32_b32 s47, s62"); a("s_lshl_b32 s60, 1, s47"); a("s_or_b32 s71, s71, s60"); a("s_andn2_b32 s62, s62, s60")
        a("s_add_u32 s47, s47, 1"); a("v_mov_b32 v101, s47"); a("s_lshl_b32 s60, s70, 2"); a("v_add_u32 v104, s60, v27")
        a(f"ds_write_b32 v104, v101 offset:{ORD}"); a("s_add_u32 s70, s70, 1")
        a(f"s_branch {l0}")
        a.label(l1)
    a("v_mov_b32 v100, v216")
    absorb()
    a("s_mov_b32 s61, 0")
    a.label("Lsync0")
    a(f"buffer_load_dword v100, v102, s[36:39], 0 offen{POLL[0]}")
    a("s_mov_b32 s73, 0")
    a.label("Lsyncw")
    a(f"ds_read_b32 v105, v9 offset:{E_CD}"); a("s_waitcnt lgkmcnt(0)")
    a("v_readfirstlane_b32 s60, v105"); a("s_add_u32 s73, s73, 1")
    a("s_cmp_ge_u32 s60, 4"); a("s_cselect_b32 s60, 1, 0"); a(f"s_cmp_ge_u32 s70, {NPRE + 1}"); a("s_cselect_b32 s62, 1, 0"); a("s_and_b32 s60, s60, s62"); a("s_cbranch_scc1 Lsync1")
    a(f"s_cmp_ge_u32 s70, {NPRE + 1}"); a("s_cselect_b32 s60, 12, 1"); a("s_cmp_lt_u32 s73, s60"); a("s_cbranch_scc1 Lsyncw")
    a("s_waitcnt vmcnt(0)")
    absorb()
    a("s_cmp_eq_u32 s70, 16"); a("s_cbranch_scc1 Lsync1")
    a("s_add_u32 s61, s61, 1"); a(f"s_cmp_lt_u32 s61, {SPIN_MAX}"); a("s_cbranch_scc1 Lsync0")
    a("v_mov_b32 v100, 1"); absorb()
    a.label("Lsync1")
    st_(6)
    first_after = {}
    issued_ = NPRE
    for i in range(16):
        n_ = 0
        while issued_ + n_ <= min(15, i + 5) and n_ < opt.get("gburst", 2): n_ += 1
        if n_: first_after[i] = (issued_, issued_ + n_ - 1)
        issued_ += n_
    def ensure(count):
        l0, l1 = lab("en"), lab("ex")
        a("s_mov_b32 s73, 0")
        a.label(l0)
        a(f"s_cmp_ge_u32 s70, {count}"); a(f"s_cbranch_scc1 {l1}")
        a(f"buffer_load_dword v100, v102, s[36:39], 0 offen{POLL[0]}"); a("s_waitcnt vmcnt(0)")
        absorb()
        a("s_add_u32 s73, s73, 1"); a(f"s_cmp_lt_u32 s73, {SPIN_MAX}"); a(f"s_cbranch_scc1 {l0}")
        a("v_mov_b32 v100, 1"); absorb()
        a.label(l1)
    for i in range(16):
        if i in first_after: ensure(first_after[i][0] + 1)
        if i == 15: a("s_waitcnt vmcnt(0)")
        a("s_barrier")
        if i in first_after:
            nxt = first_after.get(i + 1, (first_after[i][1],))[0]
            ensure(max(first_after[i][1], nxt) + 1)
        if i == 9:
            a("buffer_load_dword v106, v103, s[36:39], 0 offen sc1")
        if i == 11:
            l = lab("sy"); l2 = lab("sz")
            a("s_mov_b32 s73, 0")
            a.label(l2)
            a("s_waitcnt vmcnt(0)")
            a("v_cmp_ne_u32 vcc, 1, v106"); a("s_add_u32 s73, s73, 1"); a("s_nop 3"); a("s_cmp_eq_u64 vcc, 0"); a(f"s_cbranch_scc1 {l}")
            a("buffer_load_dword v106, v103, s[36:39], 0 offen sc1")
            a(f"s_cmp_lt_u32 s73, {SPIN_MAX}"); a(f"s_cbranch_scc1 {l2}")
            a.label(l)
            for t in range(16):
                a(f"s_mov_b32 m0, {F_Y + t*1024}"); a(f"s_mov_b32 s61, {WS_YT + t*4*4096}")
                a("buffer_load_dwordx4 v26, s[36:39], s61 offen sc1 lds")
    a("s_branch Lgend")
    a.label("Lgload")
    def fetch_ord(k):
        a(f"ds_read_b32 v100, v27 offset:{ORD + 4*k}")
    def decode():
        a("v_readfirstlane_b32 s62, v100")
        a("s_sub_u32 s68, s62, 1"); a("s_and_b32 s68, s68, 15"); a("s_mul_i32 s68, s68, s65"); a("s_add_u32 s68, s68, s66")
    def take_ord(k, decoded=False):
        l0, l1 = lab("to"), lab("tx")
        if not decoded:
            a("s_waitcnt lgkmcnt(0)"); decode()
        a("s_cmp_lg_u32 s62, 0"); a(f"s_cbranch_scc1 {l1}")
        a("s_mov_b32 s61, 0")
        a.label(l0)
        fetch_ord(k); a("s_waitcnt lgkmcnt(0)"); decode()
        a("s_add_u32 s61, s61, 1"); a("s_cmp_lg_u32 s62, 0"); a(f"s_cbranch_scc1 {l1}")
        a(f"s_cmp_lt_u32 s61, {SPIN_MAX*8}"); a(f"s_cbranch_scc1 {l0}")
        a.label(l1)
        a("s_mov_b32 s67, s68")
    SC1 = "" if opt.get("nosc1") else " sc1"
    def issue_stage(st, nxt):
        sb = slot_base(st)
        for t in range(8):
            if t: a(f"s_add_u32 m0, s64, {sb + t*1024}"); a(f"s_add_u32 s60, s67, {t*16384}")
            a(f"buffer_load_dwordx4 v{20 + (t & 1)}, s[28:31], {'s67' if t == 0 else 's60'} offen{SC1} lds")
            if nxt is not None:
                if t == 1: fetch_ord(nxt)
                if t == 5: a("s_waitcnt lgkmcnt(0)"); decode()
    def prep_stage(st):
        a(f"s_add_u32 m0, s64, {slot_base(st)}")
    Q = []
    for st in range(NPRE):
        fetch_ord(st); take_ord(st)
        if st == 2: lds_spin(a, 9, E_OC, 8, "ge", 4)
        if st == 3: lds_spin(a, 9, E_CD, 8, "ge", 4)
        prep_stage(st); a("s_nop 0")
        issue_stage(st, NPRE if st == NPRE - 1 else None); Q += [st]*8
        if st == 0: st_(6)
    issued = NPRE
    for i in range(16):
        last = max(k for k, e in enumerate(Q) if e == i)
        n_after = len(Q) - 1 - last
        todo = []
        while issued + len(todo) <= min(15, i + 5) and len(todo) < opt.get("gburst", 2): todo.append(issued + len(todo))
        if todo:
            take_ord(todo[0], True); prep_stage(todo[0])
        a(f"s_waitcnt vmcnt({n_after})")
        if opt.get("gst"): a("s_memtime s[100:101]")
        a("s_barrier")
        if opt.get("gst"):
            a("s_waitcnt lgkmcnt(0)"); a("s_sub_u32 s100, s100, s80"); a(f"v_writelane_b32 v200, s100, {i}"); a("s_memtime s[100:101]")
            a("s_waitcnt lgkmcnt(0)"); a("s_sub_u32 s100, s100, s80"); a(f"v_writelane_b32 v200, s100, {16+i}")
        Q = Q[last + 1:]
        for k_, st in enumerate(todo):
            if k_:
                take_ord(st, True); prep_stage(st); a("s_nop 0")
            nxt = st + 1 if st + 1 <= 15 else None
            issue_stage(st, nxt); Q += [st]*8
        issued += len(todo)
    assert issued == 16
    if opt.get("gst"):
        a(f"s_add_u32 s76, s14, {WS_STAMP + (1 << 20)}"); a("s_addc_u32 s77, s15, 0"); a("s_mov_b32 s78, 0x1000000"); a("s_mov_b32 s79, 0x00020000")
        a("s_lshl_b32 s75, s2, 2"); a("s_add_u32 s75, s75, s53"); a("s_lshl_b32 s75, s75, 8")
        a("v_lshlrev_b32 v201, 2, v0"); a("buffer_store_dword v200, v201, s[76:79], s75 offen")
    a.label("Lgend")
    st_(7)
    stamp_dump(a, opt, 8)
    a("s_waitcnt vmcnt(0)")
    a("s_endpgm")


def a_waves(a, opt):
    a(f"s_setprio {opt.get('pA1', 3)}")
    a("s_sub_u32 s53, s50, 4")
    VA = 8; VW = 12
    a("v_lshrrev_b32 v2, 3, v0"); a("v_and_b32 v3, 7, v0"); a("v_lshrrev_b32 v4, 4, v0")
    a("s_lshl_b32 s55, s48, 7"); a("s_lshl_b32 s61, s53, 5"); a("s_add_u32 s55, s55, s61")
    a("v_add_u32 v5, s55, v2"); a("v_lshlrev_b32 v5, 11, v5")
    a("v_xor_b32 v6, v4, v3"); a(f"v_lshl_add_u32 v{VA}, v6, 4, v5")
    a("v_xor_b32 v6, 4, v6"); a(f"v_lshl_add_u32 v{VA+1}, v6, 4, v5"); a(f"v_add_u32 v{VA+1}, 16384, v{VA+1}")
    for i in range(2, 4): a(f"v_add_u32 v{VA+i}, 32768, v{VA+(i&1)}")
    a("v_and_b32 v6, 1, v4"); a("v_lshlrev_b32 v6, 1, v6"); a("v_xor_b32 v6, v6, v3")
    a("v_mul_u32_u24 v5, 6144, v2")
    a(f"s_mul_i32 s55, s53, {2*8*6144}"); a("s_lshl_b32 s61, s49, 7"); a("s_add_u32 s55, s55, s61")
    a("v_add_u32 v5, s55, v5")
    a(f"v_lshl_add_u32 v{VW}, v6, 4, v5")
    a("v_xor_b32 v6, 4, v6"); a(f"v_lshl_add_u32 v{VW+1}, v6, 4, v5"); a(f"v_add_u32 v{VW+1}, {8*6144}, v{VW+1}")
    WL = [(seg, r2) for seg in range(3) for r2 in range(2)]
    for i, (seg, r2) in enumerate(WL):
        if i >= 2: a(f"v_add_u32 v{VW+i}, {seg*2048}, v{VW + r2}")
    a("s_lshl_b32 s64, s53, 12")
    a("s_lshl_b32 s65, s53, 11"); a("s_add_u32 s65, s65, 16384")
    rv = opt.get("rotv", 0)
    if rv == 0: a("s_lshr_b32 s46, s52, 3"); a("s_add_u32 s46, s46, s52"); a("s_and_b32 s46, s46, 3"); a("s_lshl_b32 s46, s46, 2")
    elif rv == 1: a("s_and_b32 s46, s52, 3"); a("s_lshl_b32 s46, s46, 2")
    elif rv == 2: a("s_lshr_b32 s46, s52, 3"); a("s_lshl_b32 s46, s46, 2")
    elif rv == 3: a("s_lshr_b32 s46, s52, 3"); a("s_add_u32 s46, s46, s52"); a("s_add_u32 s46, s46, s51"); a("s_and_b32 s46, s46, 3"); a("s_lshl_b32 s46, s46, 2")
    elif rv == 4: a("s_lshr_b32 s46, s52, 1"); a("s_and_b32 s46, s46, 3"); a("s_lshl_b32 s46, s46, 2")
    a("s_lshl_b32 s66, s46, 7"); a(f"s_mul_i32 s67, s46, {64*6144}"); a("s_mov_b32 s68, 0")
    a("s_waitcnt lgkmcnt(0)")
    make_srd(a, 20, 4, NB["x"]); make_srd(a, 24, 6, NB["wqkv"])
    def prep():
        a("s_add_u32 s69, s64, s68"); a("s_add_u32 s55, s65, s68"); a("s_mov_b32 m0, s69")
    def issue(prepared=False):
        if not prepared: prep(); a("s_nop 0")
        fill = [f"s_add_u32 s68, s68, {ST1}", f"s_cmp_eq_u32 s68, {4*ST1}\ns_cselect_b32 s68, 0, s68", "s_nop 0"]
        for i in range(4):
            if i:
                a(f"s_add_u32 m0, s69, {i*1024}"); a(fill.pop(0))
            a(f"buffer_load_dwordx4 v{VA+i}, s[20:23], s66 offen lds")
        fill = ["s_add_u32 s66, s66, 128", "s_cmp_eq_u32 s66, 2048\ns_cselect_b32 s66, 0, s66"]
        for i, (seg, r2) in enumerate(WL):
            a(f"s_add_u32 m0, s55, {seg*8192 + r2*1024}"); a(fill.pop(0) if fill else "s_nop 0")
            a(f"buffer_load_dwordx4 v{VW+i}, s[24:27], s67 offen lds")
        a(f"s_add_u32 s67, s67, {64*6144}"); a(f"s_cmp_eq_u32 s67, {16*64*6144}"); a("s_cselect_b32 s67, 0, s67")
    issue(); issue()
    a("s_load_dwordx4 s[8:11], s[0:1], 32")
    a("s_load_dwordx4 s[4:7], s[0:1], 48")
    a("s_load_dwordx2 s[16:17], s[0:1], 72")
    a("s_load_dwordx2 s[18:19], s[0:1], 16")
    ramp = opt.get("ramp1", (1, 1, 1, 1, 2))
    issued = 2
    for i, n in enumerate(ramp):
        prep()
        a(f"s_waitcnt vmcnt({10*(issued - i - 1)})"); a("s_barrier")
        if i == 0: stamp(a, opt, 1)
        for k_ in range(n):
            issue(prepared=(k_ == 0)); issued += 1
        if i == 0:
            a("s_waitcnt lgkmcnt(0)")
            make_srd(a, 28, 8, NB["bk"]); make_srd(a, 32, 10, NB["bv"])
            make_srd(a, 36, 14, WS_USED); make_srd(a, 40, 4, NB["shift"]); make_srd(a, 44, 16, NB["gw"])
    i0 = len(ramp)
    a(f"s_mov_b32 s60, {i0}")
    a(f".p2align {opt.get('align', 6)}")
    a.label("Llloop")
    prep()
    a("s_add_u32 s60, s60, 1")
    a("s_waitcnt vmcnt(20)"); a("s_barrier")
    issue(prepared=True)
    a("s_cmp_lt_u32 s60, 13"); a("s_cbranch_scc1 Llloop")
    NTKV = "" if opt.get("kvtouch") else " nt"
    pl = Asm()
    pl("s_and_b32 s70, s2, 15"); pl("s_lshr_b32 s71, s2, 4")
    pl("v_lshrrev_b32 v20, 3, v0"); pl("v_and_b32 v21, 7, v0")
    pl("s_lshl_b32 s72, s70, 7"); pl("s_lshl_b32 s73, s53, 5"); pl("s_add_u32 s72, s72, s73")
    pl("v_lshl_add_u32 v22, v20, 2, s72")
    pl("s_lshl_b32 s73, s71, 6"); pl("v_lshl_add_u32 v23, v21, 3, s73")
    pl("v_lshlrev_b32 v24, 11, v22"); pl("v_lshl_add_u32 v24, v23, 1, v24")
    pl("v_subrev_u32 v25, 6144, v24")
    for r in range(7):
        if r: pl("v_add_u32 v25, 2048, v25")
        pl(f"buffer_load_dwordx4 {vr(32+4*r,4)}, v25, s[28:31], 0 offen{NTKV}")
    pl("v_add_u32 v26, 4096, v24")
    for r in range(4):
        pl(f"buffer_load_dwordx4 {vr(60+4*r,4)}, v{24 if r < 2 else 26}, s[32:35], 0 offen offset:{2048*(r & 1)}{NTKV}")
    partA = pl.lines; pl = Asm()
    pl("v_lshlrev_b32 v27, 3, v23")
    for q in range(4):
        pl(f"buffer_load_dwordx4 {vr(76+4*q,4)}, v27, s[40:43], 0 offen offset:{16*q}")
    pl("s_lshl_b32 s73, s48, 7"); pl("s_lshl_b32 s74, s49, 3"); pl("s_add_u32 s73, s73, s74"); pl("s_lshl_b32 s74, s53, 1"); pl("s_add_u32 s73, s73, s74")
    pl("v_lshrrev_b32 v28, 5, v0"); pl("v_add_u32 v28, s73, v28")
    pl("v_and_b32 v29, 31, v0"); pl("v_lshlrev_b32 v29, 4, v29")
    pl("v_lshl_add_u32 v30, v28, 11, v29")
    for i in range(4):
        pl(f"buffer_load_dwordx4 {vr(92+4*i,4)}, v30, s[20:23], 0 offen offset:{512*i}")
    for i in range(4):
        pl(f"buffer_load_dwordx4 {vr(108+4*i,4)}, v29, s[44:47], 0 offen offset:{512*i}")
    pl("v_lshlrev_b32 v31, 12, v23"); pl("v_lshl_add_u32 v31, v22, 1, v31")
    pl(f"s_mov_b32 s72, {WS_UT}")
    pl("s_mov_b32 s74, 0x05040100"); pl("s_mov_b32 s75, 0x07060302")
    partB = pl.lines
    a("v_mov_b32 v160, 0"); a("v_mov_b32 v161, 0"); a("v_mov_b32 v162, 0"); a("v_mov_b32 v163, 0")
    a("v_and_b32 v164, 1, v0"); a("v_lshlrev_b32 v164, 4, v164")
    a("s_waitcnt vmcnt(20)"); a("s_barrier")
    a(f"ds_write_b128 v164, v[160:163] offset:{F_E0}")
    for ln in partA: a(ln)
    a("s_waitcnt vmcnt(21)"); a("s_barrier")
    a(f"ds_write_b128 v164, v[160:163] offset:{F_E1}")
    for ln in partB: a(ln)
    a("s_lshl_b32 s54, s51, 7"); a("s_lshl_b32 s55, s52, 2"); a("s_add_u32 s54, s54, s55"); a("s_add_u32 s54, s54, s53")
    a("s_lshl_b32 s55, s54, 12")
    a("s_add_u32 s60, s6, s55"); a("s_addc_u32 s61, s7, 0")
    a("v_lshlrev_b32 v1, 2, v0"); a("v_subrev_u32 v3, 4, v1"); a("v_add_u32 v4, 252, v1")
    a("s_waitcnt vmcnt(23) lgkmcnt(0)"); a("s_barrier")
    a("v_and_b32 v165, 7, v0"); a("v_lshlrev_b32 v165, 4, v165"); a(f"v_add_u32 v165, {F_FL}, v165")
    a("ds_write_b128 v165, v[160:163]")
    a("s_mov_b32 s24, s60"); a("s_mov_b32 s25, s61"); a("s_mov_b32 s26, 4096"); a("s_mov_b32 s27, 0x00020000")
    E = 176; E1 = 192
    for j in range(16):
        a(f"buffer_load_dword v{E+j}, v1, s[24:27], 0 offen offset:{256*j} nt")
        if j == 0: a(f"buffer_load_dword v{E1}, v3, s[24:27], 0 offen")
        else:      a(f"buffer_load_dword v{E1+j}, v4, s[24:27], 0 offen offset:{256*(j-1)}")
    a("s_waitcnt vmcnt(40)")
    stamp(a, opt, 2)
    P = 128; KS = 140; VU = 148
    for c in range(8):
        cp, h = c >> 1, c & 1
        sel = "s75" if h else "s74"
        pb = P + 6*(c & 1); kb = KS + 4*(c & 1)
        for t in range(6): a(f"v_perm_b32 v{pb+t}, v{32+4*t+cp}, v{32+4*(t+1)+cp}, {sel}")
        for r in range(4): a(f"v_dot2_f32_bf16 v{kb+r}, v{pb+r+2}, v{76+2*c}, 0")
        for r in range(4): a(f"v_dot2_f32_bf16 v{kb+r}, v{pb+r}, v{76+2*c+1}, v{kb+r}")
        for r in range(4):
            if h: a(f"v_and_b32 v{VU+r}, 0xffff0000, v{60+4*r+cp}")
            else: a(f"v_lshlrev_b32 v{VU+r}, 16, v{60+4*r+cp}")
        for r in range(4): a(f"v_mul_f32 v{kb+r}, v{kb+r}, v{VU+r}")
        o = 152 + 2*(c & 3)
        a(f"v_cvt_pk_bf16_f32 v{o}, v{kb}, v{kb+1}"); a(f"v_cvt_pk_bf16_f32 v{o+1}, v{kb+2}, v{kb+3}")
        a(f"s_add_u32 s73, s72, {c*4096}")
        a(f"buffer_store_dwordx2 {vr(o,2)}, v31, s[36:39], s73 offen sc1")
    a("s_waitcnt vmcnt(40)")
    a("v_mov_b32 v128, 0")
    for i in range(16): a(f"v_dot2_f32_bf16 v128, v{92+i}, v{108+i}, v128")
    a("s_nop 3")
    for ctl in ("quad_perm:[1,0,3,2]", "quad_perm:[2,3,0,1]", "row_half_mirror", "row_mirror"):
        a(f"v_add_f32_dpp v128, v128, v128 {ctl} row_mask:0xf bank_mask:0xf"); a("s_nop 1")
    a("v_mov_b32 v129, v128"); a("s_nop 1")
    a("v_permlane16_swap_b32 v128, v129"); a("s_nop 1")
    a("v_add_f32 v128, v128, v129")
    a("v_mul_f32 v128, 0xbfb8aa3b, v128"); a("v_exp_f32 v128, v128"); a("s_nop 0")
    a("v_add_f32 v128, 1.0, v128"); a("v_rcp_f32 v128, v128")
    a("v_lshlrev_b32 v28, 2, v28"); a("v_and_b32 v29, 31, v0"); a("v_cmp_eq_u32 vcc, 0, v29")
    a("s_and_saveexec_b64 s[62:63], vcc")
    a(f"s_mov_b32 s73, {WS_G}")
    a("buffer_store_dword v128, v28, s[36:39], s73 offen sc1")
    a("s_mov_b64 exec, s[62:63]")
    stamp(a, opt, 3)
    a("v_lshlrev_b32 v2, 4, v0")
    a(f"s_mul_i32 s56, s53, {CWB}")
    a("v_mov_b32 v12, 0"); a("v_mov_b32 v13, 0"); a("v_mov_b32 v14, 0"); a("v_mov_b32 v15, 0")
    a(f"s_add_u32 s57, s56, {CF}")
    a("v_min_u32 v5, 29, v0"); a("v_lshl_add_u32 v5, v5, 4, s57")
    a("ds_write_b128 v5, v[12:15]")
    a("v_lshrrev_b32 v5, 3, v0"); a("v_and_b32 v5, 3, v5"); a(f"v_mul_u32_u24 v5, {CTS}, v5")
    a("v_and_b32 v6, 7, v0"); a("v_lshl_add_u32 v5, v6, 2, v5")
    a(f"s_add_u32 s57, s56, {8 + 4*1023}"); a("v_add_u32 v5, s57, v5")
    a("ds_write_b32 v5, v12")
    TW = 16
    for rho in range(4):
        a(f"s_add_u32 s57, s56, {rho*CTS + 256 + (4 if rho >= 2 else 0)}")
        a(f"v_sub_u32 v{TW+rho}, s57, v1")
    a("s_mov_b32 s59, 0xffff")
    a("s_waitcnt vmcnt(9)")
    S = 64; M = 80
    for j in range(16):
        a(f"v_alignbit_b32 v{S+j}, v{E+j}, v{E+j}, 16")
        a(f"v_bfi_b32 v{M+j}, s59, v{E+j}, v{E1+j}")
    for j in range(0, 16, 2):
        for rho in range(4):
            src = S if rho & 1 else M
            a(f"ds_write2st64_b32 v{TW+rho}, v{src+j}, v{src+j+1} offset0:{15-j} offset1:{14-j}")
    a("s_load_dwordx2 s[8:9], s[0:1], 64"); a("s_load_dwordx2 s[16:17], s[0:1], 80")
    make_srd(a, 40, 12, 256); make_srd(a, 24, 18, NB["wo"])
    a("v_mov_b32 v9, 0"); a("v_mov_b32 v11, 1")
    a("s_lshl_b32 s60, s2, 7"); a(f"s_add_u32 s60, s60, {FL_U}"); a("v_mov_b32 v10, s60")
    a("s_waitcnt vmcnt(0)")
    lds_count_last(a, 9, E_ADC, 11, 8, 3, lambda: a("buffer_store_dword v11, v10, s[36:39], 0 offen sc1"))
    stamp(a, opt, 4)
    a("s_cmp_eq_u32 s53, 0"); a("s_cbranch_scc1 Lupoll")
    a("s_lshl_b32 s60, s52, 5"); a("s_lshl_b32 s61, s53, 3"); a("s_add_u32 s60, s60, s61"); a("s_sub_u32 s60, s60, 8")
    a("v_lshrrev_b32 v96, 3, v0"); a("v_add_u32 v96, s60, v96"); a("v_lshlrev_b32 v96, 11, v96")
    a("v_and_b32 v97, 7, v0"); a("v_lshl_add_u32 v96, v97, 7, v96")
    a("s_lshr_b32 s60, s51, 2"); a("s_lshl_b32 s60, s60, 10")
    a("buffer_load_dword v98, v96, s[24:27], s60 offen")
    a("s_cmp_eq_u32 s53, 3"); a("s_cbranch_scc0 Lnpf")
    a("v_add_u32 v96, 16384, v96")
    a("buffer_load_dword v99, v96, s[24:27], s60 offen")
    a.label("Lnpf")
    lds_spin(a, 9, E_UR, 8, "eq", 1)
    a("s_branch Lugo")
    a.label("Lupoll")
    poll_zeroed(a, 100)
    a("s_lshl_b32 s60, s51, 1"); a("s_lshr_b32 s61, s52, 4"); a("s_add_u32 s60, s60, s61"); a("s_lshl_b32 s60, s60, 11"); a(f"s_add_u32 s60, s60, {FL_U}")
    a("v_and_b32 v102, 15, v0"); a("v_lshl_add_u32 v102, v102, 7, s60")
    poll16(a, 102, 100)
    a(f"ds_write_b32 v9, v11 offset:{E_UR}")
    a.label("Lugo")
    a(f"s_add_u32 s57, s55, {WS_UT}")
    for i in range(4):
        a(f"s_add_u32 m0, s56, {CF + 480 + i*1024}")
        a(f"s_add_u32 s60, s57, {i*1024}")
        a("buffer_load_dwordx4 v2, s[36:39], s60 offen sc1 lds")
    a("s_mov_b32 s47, s53")
    a("v_and_b32 v2, 15, v0"); a("v_lshrrev_b32 v3, 4, v0")
    a("s_waitcnt lgkmcnt(0)")
    a("s_lshl_b32 s53, s51, 7"); a("s_lshl_b32 s54, s52, 2"); a("s_add_u32 s53, s53, s54"); a("s_add_u32 s53, s53, s47")
    a(f"s_mul_i32 s54, s47, {CWB}")
    a("v_and_b32 v6, 3, v0"); a(f"v_mul_u32_u24 v6, {CTS}, v6")
    a("v_bfe_u32 v7, v0, 2, 2"); a("v_lshlrev_b32 v7, 3, v7"); a("v_sub_u32 v6, v6, v7")
    a("v_lshl_add_u32 v6, v3, 4, v6")
    a(f"s_add_u32 s55, s54, {8 + 24 + 448}"); a("v_add_u32 v16, s55, v6")
    a("v_lshlrev_b32 v6, 5, v2"); a("v_lshl_add_u32 v6, v3, 4, v6")
    a(f"s_add_u32 s55, s54, {CF + 448}"); a("v_add_u32 v17, s55, v6")
    a("s_lshl_b32 s55, s53, 1"); a("s_and_b32 s55, s55, 0xfffffffc")
    a("s_add_u32 s8, s8, s55"); a("s_addc_u32 s9, s9, 0")
    a("s_load_dword s70, s[8:9], 0")
    make_srd(a, 28, 16, NB["out"])
    GXA = 224; GWA = 228; XR = 232; GR = 32
    a("s_lshr_b32 s66, s47, 1"); a("s_and_b32 s67, s47, 1")
    a("s_lshl_b32 s55, s96, 7"); a("s_lshl_b32 s61, s66, 6"); a("s_add_u32 s55, s55, s61")
    a("v_add_u32 v20, s55, v2"); a("v_lshlrev_b32 v21, 11, v20")
    a("s_lshl_b32 s55, s97, 7"); a("s_lshl_b32 s61, s67, 6"); a("s_add_u32 s64, s55, s61")
    a("v_lshl_add_u32 v22, v3, 3, s64"); a("v_add_u32 v22, v21, v22"); a("v_lshlrev_b32 v23, 2, v20")
    a("v_lshrrev_b32 v24, 1, v2"); a("v_xor_b32 v24, v24, v3")
    a("s_lshl_b32 s55, s66, 13")
    a("v_lshlrev_b32 v25, 7, v2"); a("v_add_u32 v25, s55, v25")
    a(f"v_lshl_add_u32 v{GXA+2}, v24, 4, v25")
    a("v_xor_b32 v26, 4, v24"); a(f"v_lshl_add_u32 v{GXA+3}, v26, 4, v25")
    for kk in range(2): a(f"v_add_u32 v{GXA+kk}, {F_U}, v{GXA+2+kk}")
    a("v_bfe_u32 v26, v0, 2, 2")
    a("v_lshl_add_u32 v27, v3, 3, v26"); a("v_lshlrev_b32 v27, 7, v27")
    a("v_and_b32 v28, 3, v0"); a("v_lshl_add_u32 v27, v28, 3, v27"); a("v_add_u32 v27, 16384, v27")
    a("v_bfe_u32 v28, v0, 3, 1"); a("v_bfe_u32 v29, v0, 4, 1"); a("v_lshl_or_b32 v28, v29, 1, v28")
    a("s_lshl_b32 s55, s67, 1"); a("v_xor_b32 v28, s55, v28")
    a(f"v_lshl_add_u32 v{GWA+2}, v28, 5, v27")
    a("v_xor_b32 v28, 1, v28"); a(f"v_lshl_add_u32 v{GWA+3}, v28, 5, v27")
    for u in range(2): a(f"v_add_u32 v{GWA+u}, {F_U}, v{GWA+2+u}")
    a("v_mov_b32 v7, v3")
    a("s_waitcnt lgkmcnt(0)")
    a("s_lshr_b32 s57, s70, 16"); a("s_and_b32 s60, s70, 0xffff"); a("s_and_b32 s61, s53, 1"); a("s_cmp_eq_u32 s61, 0"); a("s_cselect_b32 s57, s60, s57")
    a("v_lshrrev_b32 v28, 3, v2"); a("v_add_u32 v28, 2, v28"); a("v_cmp_eq_u32 vcc, v28, v7")
    a("v_and_b32 v28, 1, v2"); a("v_lshlrev_b32 v28, 4, v28"); a("v_mov_b32 v29, s57"); a("v_lshlrev_b32 v29, v28, v29")
    a("v_cndmask_b32 v29, 0, v29, vcc")
    a("v_bfe_u32 v28, v2, 1, 2")
    for w_ in range(4):
        a(f"v_cmp_eq_u32 vcc, {w_}, v28"); a("s_nop 1"); a(f"v_cndmask_b32 v{24+w_}, 0, v29, vcc")
    a("v_mov_b32 v30, 0"); a("v_mov_b32 v31, 1")
    a("s_lshl_b32 s55, s53, 12")
    a("s_waitcnt vmcnt(0) lgkmcnt(0)")
    stamp(a, opt, 5)
    a(f"s_setprio {opt.get('pA3', 2)}")
    FR = 96; ACC = 32
    def tf(b, k1): return FR + b*64 + k1*4
    def ff(b, n1): return FR + b*64 + 32 + n1*4
    def rd(b):
        L = []
        for i in range(8):
            L.append(f"ds_read_b64 {vr(tf(b,i),2)}, v16 offset:{512*(7-i)}")
            L.append(f"ds_read_b64 {vr(tf(b,i)+2,2)}, v16 offset:{512*(7-i)+8}")
            L.append(f"ds_read_b128 {vr(ff(b,i),4)}, v17 offset:{512*i}")
        return L
    def mm(b, first):
        L = []; seen = set()
        for k1 in range(8):
            for n1 in range(8 - k1):
                t = k1 + n1
                d = vr(ACC + 4*t, 4)
                c = "0" if (first and t not in seen) else d
                seen.add(t)
                L.append(f"v_mfma_f32_16x16x32_bf16 {d}, {vr(tf(b,k1),4)}, {vr(ff(b,n1),4)}, {c}")
        return L
    for s_ in rd(0): a(s_)
    a("v_subrev_u32 v16, 64, v16"); a("v_subrev_u32 v17, 64, v17")
    DF = 24
    def resid(b, first, last):
        Ms = mm(b, first)
        if first: Ms += [f"v_mfma_f32_16x16x32_bf16 {vr(ACC+4*t,4)}, {vr(DF,4)}, {vr(ff(b,t),4)}, {vr(ACC+4*t,4)}" for t in range(8)]
        R_ = [] if last else rd(b ^ 1)
        a("s_waitcnt lgkmcnt(0)")
        for m_ in Ms:
            a(m_)
            if R_: a(R_.pop(0))
        if not last:
            a("v_subrev_u32 v16, 64, v16"); a("v_subrev_u32 v17, 64, v17")
    resid(0, True, False); resid(1, False, False)
    for ai in range(4):
        a(f"s_mov_b32 s61, {16*ai*2048}")
        for u in range(2):
            a(f"buffer_load_dwordx2 {vr(XR+(ai*2+u)*2,2)}, v22, s[20:23], s61 offen offset:{32*u}")
    a("s_mov_b32 s60, 0")
    a(f".p2align {opt.get('align', 6)}")
    a.label("Lcl")
    resid(0, False, False); resid(1, False, False)
    a("s_add_u32 s60, s60, 1"); a("s_cmp_lt_u32 s60, 2"); a("s_cbranch_scc1 Lcl")
    resid(0, False, False); resid(1, False, True)
    a("v_lshlrev_b32 v5, 5, v2"); a("v_lshl_add_u32 v5, v7, 3, v5")
    a(f"s_add_u32 s56, s55, {WS_YT}")
    a("s_nop 7")
    for t in range(8):
        y = ACC + 4*t
        a(f"v_cvt_pk_bf16_f32 v{y}, v{y}, v{y+1}"); a(f"v_cvt_pk_bf16_f32 v{y+1}, v{y+2}, v{y+3}")
        a(f"buffer_store_dwordx2 {vr(y,2)}, v5, s[36:39], s56 offen offset:{512*t} sc1")

    NS = 6
    def gacc(ai, u): return 64 + (u*4 + ai)*4
    def gxf(buf, kk, ai): return 96 + buf*48 + (kk*4 + ai)*4
    def gwf(buf, kk, u): return 96 + buf*48 + 32 + (kk*2 + u)*4
    def greads(st, buf):
        slot = st % NS
        hi = 0 if slot < 3 else 2
        so = (slot % 3) * ST3
        L = []
        for kk in range(2):
            X = [f"ds_read_b128 {vr(gxf(buf,kk,ai),4)}, v{GXA+hi+kk} offset:{so + ai*2048}" for ai in range(4)]
            W = [[f"ds_read_b64_tr_b16 {vr(gwf(buf,kk,u)+2*sec,2)}, v{GWA+hi+u} offset:{so + kk*4096 + sec*512}" for sec in range(2)] for u in range(2)]
            L += W[0] + [X[0], X[1]] + W[1] + [X[2], X[3]]
        return L
    def gmfmas(buf, first=False):
        return [f"v_mfma_f32_16x16x32_bf16 {vr(gacc(ai,u),4)}, {vr(gwf(buf,kk,u),4)}, {vr(gxf(buf,kk,ai),4)}, {'0' if first and kk == 0 else vr(gacc(ai,u),4)}"
                for kk in range(2) for u in range(2) for ai in range(4)]
    XG = 192
    xg = []
    for ai in range(4):
        for u in range(2):
            xr = XR + (ai*2+u)*2; o = XG + (ai*2+u)*4
            xg += [f"v_lshlrev_b32 v{o}, 16, v{xr}", f"v_and_b32 v{o+1}, 0xffff0000, v{xr}",
                   f"v_lshlrev_b32 v{o+2}, 16, v{xr+1}", f"v_and_b32 v{o+3}, 0xffff0000, v{xr+1}"]
    a("s_mov_b64 exec, 1"); a(f"ds_add_u32 v30, v31 offset:{E_CD}"); a("s_mov_b64 exec, -1")
    a(f"v_mov_b32 v30, {F_FL}")
    a("s_barrier")
    stamp(a, opt, 6)
    for s_ in greads(0, 0): a(s_)
    for st in range(16):
        buf = st & 1
        Ms = gmfmas(buf, st == 0)
        q = greads(st + 1, buf ^ 1) if st < 15 else []
        if st == 15:
            q = [f"ds_read_b64_tr_b16 {vr(96+(ai*2+u)*2,2)}, v6 offset:{u*16*256 + ai*32}" for ai in range(4) for u in range(2)]
        extra = []
        if 5 <= st < 15:
            n = -(-len(xg) // 10)
            extra = xg[(st-5)*n:(st-4)*n]
        a("s_waitcnt lgkmcnt(0)")
        if st == 4:
            a("s_waitcnt vmcnt(0)")
            a("s_lshr_b32 s65, s53, 2"); a("s_lshl_b32 s65, s65, 7"); a(f"s_add_u32 s65, s65, {FL_Y}"); a("v_mov_b32 v28, s65")
            lds_count_last(a, 30, 0, 31, 29, 3, lambda: a("buffer_store_dword v31, v28, s[36:39], 0 offen sc1"))
            a("s_nop 4")
        if st == 13:
            a("v_bfe_u32 v6, v0, 2, 2"); a("v_lshl_add_u32 v6, v7, 2, v6")
            a("s_lshl_b32 s57, s67, 5"); a("v_add_u32 v6, s57, v6"); a("v_lshlrev_b32 v6, 8, v6")
            a("v_and_b32 v5, 3, v0"); a("v_lshl_add_u32 v6, v5, 3, v6")
            a("s_lshl_b32 s57, s66, 7"); a(f"s_add_u32 s57, s57, {F_Y}"); a("v_add_u32 v6, s57, v6")
            a("v_and_b32 v8, 1, v7"); a("v_lshlrev_b32 v8, 5, v8"); a("v_lshrrev_b32 v9, 1, v7"); a("v_lshl_add_u32 v8, v9, 4, v8")
            a("v_add3_u32 v8, v21, v8, s64")
        if st == 15:
            a("s_waitcnt vmcnt(0)")
            for ai in range(4): a(f"v_sub_f32 v{GR+4*ai+2}, 1.0, v{GR+4*ai}")
        if st == 11:
            a(f"s_mov_b32 s61, {WS_G}")
            for ai in range(4):
                a(f"buffer_load_dword v{GR+4*ai}, v23, s[36:39], s61 offen offset:{64*ai} sc1")
        for i in range(16):
            a(Ms[i])
            if i == 1 and st < 15: a("s_barrier")
            if i >= 1:
                for _ in range(2):
                    if q: a(q.pop(0))
            if i >= 9:
                for _ in range(3):
                    if extra: a(extra.pop(0))
        for s_ in q + extra: a(s_)
    a("s_waitcnt lgkmcnt(0)")
    YR = 96; OP = 112; T = 128
    for ai in range(4):
        g_ = GR + 4*ai
        for u in range(2):
            t = gacc(ai, u); yr = YR + (ai*2+u)*2; xo = XG + (ai*2+u)*4; T_ = T + 4*(u & 1)
            a(f"v_lshlrev_b32 v{T_}, 16, v{yr}"); a(f"v_and_b32 v{T_+1}, 0xffff0000, v{yr}")
            a(f"v_lshlrev_b32 v{T_+2}, 16, v{yr+1}"); a(f"v_and_b32 v{T_+3}, 0xffff0000, v{yr+1}")
            for h_ in range(2):
                a(f"v_pk_mul_f32 {vr(T_+2*h_,2)}, {vr(T_+2*h_,2)}, {vr(xo+2*h_,2)}")
                a(f"v_pk_mul_f32 {vr(T_+2*h_,2)}, {vr(T_+2*h_,2)}, {vr(g_+2,2)} op_sel_hi:[1,0]")
                a(f"v_pk_fma_f32 {vr(T_+2*h_,2)}, {vr(t+2*h_,2)}, {vr(g_,2)}, {vr(T_+2*h_,2)} op_sel_hi:[1,0,1]")
                a(f"v_cvt_pk_bf16_f32 v{OP+4*ai+2*u+h_}, v{T_+2*h_}, v{T_+2*h_+1}")
        o = OP + 4*ai
        a("s_nop 1")
        a(f"v_permlane16_swap_b32 v{o}, v{o+2}"); a(f"v_permlane16_swap_b32 v{o+1}, v{o+3}")
        a(f"s_mov_b32 s61, {16*ai*2048}")
        a(f"buffer_store_dwordx4 {vr(o,4)}, v8, s[28:31], s61 offen{opt.get('outfl', '')}")
    a("s_waitcnt vmcnt(0)")
    stamp(a, opt, 7)
    stamp_dump(a, opt, 8)
    a("s_waitcnt vmcnt(0)")


HEADER = """
"""

def build(opt=None):
    opt = opt or {}
    _lab[0] = 0
    POLL[0] = opt.get("pollfl", " sc1")
    a = Asm()
    for ln in HEADER.strip("\n").split("\n"): a(ln)
    if opt.get("aslist"): a(f"; @launch kernel={NAME} grid=(256,1,1) block=(512,1,1) lds=163840")
    else: a("; @launch grid=(256,1,1) block=(512,1,1) lds=163840")
    a('.amdgcn_target "amdgcn-amd-amdhsa--gfx950"')
    a(".text")
    a.lines = [l for l in a.lines]
    kernel(a, opt)
    a('.section .rodata,"a"')
    kernel_desc(a, NAME, vgpr=256, sgpr=102)
    return a.text().replace("None\n", "")

if __name__ == "__main__":
    opt = {}
    for o in sys.argv[2:]:
        k, _, v = o.partition("=")
        opt[k] = int(v) if v else 1
    open(sys.argv[1], "w").write(build(opt))
```
